```python
import torch

def _softmax(x, axis=-1):
    return torch.softmax(x, dim=axis)
def _gelu(x):
    return torch.nn.functional.gelu(x, approximate="tanh")
def _silu(x):
    return torch.nn.functional.silu(x)
def _sigmoid(x):
    return torch.sigmoid(x)
def _layernorm(x, axis=-1, eps=1e-5):
    m = x.mean(dim=axis, keepdim=True)
    v = x.var(dim=axis, keepdim=True, unbiased=False)
    return (x - m) / torch.sqrt(v + eps)
def _scatter_add(tgt, idx, src, axis=0):
    return tgt.clone().index_add_(axis, idx, src)
def _segment_sum(src, seg, n):
    out = torch.zeros((n,) + src.shape[1:], dtype=src.dtype)
    return out.index_add_(0, seg, src)
def _pad(x, pw):
    flat = tuple(v for pair in reversed(pw) for v in pair)
    return torch.nn.functional.pad(x, flat)

kernel_name = 'sequential_preLN__ssm_conv_s4d__dense_activation_squared_relu__prompt'

def setup_inputs():

    _w = (lambda a: (lambda t: t.to(torch.bfloat16) if t.is_floating_point() else t)(torch.as_tensor(a)))
    def _A_setup():
        Bsz, L, D, N = 1, 2048, 640, 128
        return {
            "u": _w((lambda *s: torch.randn(*s, dtype=torch.bfloat16) * 0.05)(Bsz, L, D)),
            "log_A_real": _w((lambda *s: torch.randn(*s, dtype=torch.bfloat16) * 3.2)(D, N) * 0.5),
            "A_imag": _w((lambda *s: torch.randn(*s, dtype=torch.bfloat16) * 0.05)(D, N) * 3.14),
            "C_real": _w((lambda *s: torch.randn(*s, dtype=torch.bfloat16) * 0.2)(D, N) / N ** 0.5),
            "C_imag": _w((lambda *s: torch.randn(*s, dtype=torch.bfloat16) * 0.2)(D, N) / N ** 0.5),
            "log_dt": _w((lambda *s: torch.randn(*s, dtype=torch.bfloat16) * 0.05)(D) * 0.5 - 4.0),
            "D_skip": _w((lambda *s: torch.randn(*s, dtype=torch.bfloat16) * 0.05)(D)),
        }
    _A_in = _A_setup()

    def _B_setup():
        B, S, D, F = 1, 2048, 640, 1728
        return {
            "x": _w((lambda *s: torch.randn(*s, dtype=torch.bfloat16) * 0.05)(B, S, D)),
            "w1": _w((lambda *s: torch.randn(*s, dtype=torch.bfloat16) * 0.05)(D, F)),
            "b1": _w((lambda *s: torch.randn(*s, dtype=torch.bfloat16) * 0.4)(F)),
            "w2": _w((lambda *s: torch.randn(*s, dtype=torch.bfloat16) * 0.05)(F, D)),
            "b2": _w((lambda *s: torch.randn(*s, dtype=torch.bfloat16) * 1.6)(D)),
        }
    _B_in = _B_setup()

    return {
        "A_u": _A_in["u"],
        "A_log_A_real": _A_in["log_A_real"],
        "A_A_imag": _A_in["A_imag"],
        "A_C_real": _A_in["C_real"],
        "A_C_imag": _A_in["C_imag"],
        "A_log_dt": _A_in["log_dt"],
        "A_D_skip": _A_in["D_skip"],
        "B_x": _B_in["x"],
        "B_w1": _B_in["w1"],
        "B_b1": _B_in["b1"],
        "B_w2": _B_in["w2"],
        "B_b2": _B_in["b2"],
    }

def reference(A_u, A_log_A_real, A_A_imag, A_C_real, A_C_imag, A_log_dt, A_D_skip, B_x, B_w1, B_b1, B_w2, B_b2):
    def _A_ref(u, log_A_real, A_imag, C_real, C_imag, log_dt, D_skip):
        L = u.shape[1]
        dt = torch.exp(log_dt)
        A = -torch.exp(log_A_real) + 1j * A_imag
        C = (C_real + 1j * C_imag) * dt[:, None]
        pos = (lambda x, dt: x.to(dt))(torch.arange(L), log_dt.dtype)
        P = torch.exp((A * dt[:, None])[:, :, None] * pos[None, None, :])
        K = 2.0 * torch.einsum("dn,dnl->dl", C, P).real
        L2 = 2 * L
        u_t = (lambda x, *d: x.permute(*d))(u, 0, 2, 1)
        Kf = (lambda x, *a, **k: torch.fft.rfft(x.float(), *a, **k))(K, L2)
        Uf = (lambda x, *a, **k: torch.fft.rfft(x.float(), *a, **k))(u_t, L2)
        y = (lambda x, *a, **k: torch.fft.irfft(x, *a, **k).to(torch.bfloat16))(Uf * Kf[None, :, :], L2)[:, :, :L]
        y = (lambda x, *d: x.permute(*d))(y, 0, 2, 1)
        return y + u * D_skip[None, None, :]

    def _B_ref(x, w1, b1, w2, b2):
        h = torch.einsum("bsd,df->bsf", x, w1) + b1
        zero = torch.zeros_like(h)
        r = torch.where(h > zero, h, zero)
        h = r * r
        out = torch.einsum("bsf,fd->bsd", h, w2) + b2
        return out

    x = A_u
    h = x + _A_ref(_layernorm(x, axis=-1), A_log_A_real, A_A_imag, A_C_real, A_C_imag, A_log_dt, A_D_skip)
    h2 = h + _B_ref(_layernorm(h, axis=-1), B_w1, B_b1, B_w2, B_b2)
    return h2
```

```python
import re

_REG_RE = re.compile(r'(?<![\w.])([vas])(\d+)(?![\w\[])|(?<![\w.])([vas])\[(\d+):(\d+)\]|(?<![\w.])(vcc|exec|m0|scc)(?![\w])')

TRANS = ('v_exp_f32', 'v_log_f32', 'v_rcp_f32', 'v_rsq_f32', 'v_sqrt_f32', 'v_sin_f32', 'v_cos_f32', 'v_rcp_iflag_f32')

def regs_of(op):
    out = []
    for m in _REG_RE.finditer(op):
        if m.group(1):
            out.append((m.group(1), int(m.group(2))))
        elif m.group(3):
            for i in range(int(m.group(4)), int(m.group(5)) + 1):
                out.append((m.group(3), i))
        else:
            out.append((m.group(6), 0))
    return out

def split_ops(s):
    ops, depth, cur = [], 0, ''
    for ch in s:
        if ch == '[': depth += 1
        if ch == ']': depth -= 1
        if ch == ',' and depth == 0:
            ops.append(cur.strip()); cur = ''
        else:
            cur += ch
    if cur.strip(): ops.append(cur.strip())
    return ops

class Ins:
    def __init__(self, text):
        self.text = text
        t = text.split(';')[0].strip()
        self.is_label = t.endswith(':')
        self.is_dir = t.startswith('.')
        self.empty = (t == '')
        self.mn = ''
        self.dst = []; self.src = []
        self.cls = 'none'
        if self.is_label or self.is_dir or self.empty:
            return
        parts = t.split(None, 1)
        mn = parts[0]; self.mn = mn
        rest = parts[1] if len(parts) > 1 else ''
        ops = split_ops(rest)
        opregs = []
        for o in ops:
            core = o.split()[0] if o.split() else ''
            opregs.append(regs_of(core))
        self.ops = ops
        self.dpp = ('_dpp' in mn) or ('row_' in rest) or ('quad_perm' in rest) or ('wave_sh' in rest)
        if mn.startswith('v_mfma'):
            self.cls = 'mfma'
            self.dst = opregs[0]; self.srcA = opregs[1]; self.srcB = opregs[2]; self.srcC = opregs[3] if len(opregs) > 3 else []
            self.src = self.srcA + self.srcB + self.srcC
            self.passes = 8 if '32x32x16' in mn else 4
        elif mn.startswith('v_'):
            self.cls = 'valu'
            if mn.startswith('v_cmp'):
                self.dst = opregs[0]; self.src = sum(opregs[1:], [])
                if mn.startswith('v_cmpx'): self.dst = self.dst + [('exec', 0)]
            elif mn in ('v_readfirstlane_b32', 'v_readlane_b32'):
                self.dst = opregs[0]; self.src = sum(opregs[1:], [])
            elif mn.startswith('v_permlane') and 'swap' in mn:
                self.dst = opregs[0] + opregs[1]; self.src = opregs[0] + opregs[1]
            elif mn.startswith(('v_add_co', 'v_sub_co', 'v_addc_co', 'v_subb_co', 'v_subrev_co')):
                self.dst = opregs[0] + opregs[1]; self.src = sum(opregs[2:], [])
            elif mn.startswith('v_nop'):
                pass
            else:
                self.dst = opregs[0]; self.src = sum(opregs[1:], [])
                if mn.startswith(('v_fmac', 'v_dot2c', 'v_writelane', 'v_mac', 'v_pk_fmac')) or 'd16' in mn:
                    self.src = self.src + opregs[0]
                if mn.startswith('v_cndmask') and len(ops) == 3:
                    self.src = self.src + [('vcc', 0)]
                if self.dpp:
                    self.src = self.src + opregs[0]
            self.trans = any(mn.startswith(x) for x in TRANS)
        elif mn.startswith(('buffer_', 'global_', 'flat_')):
            self.cls = 'vmem'
            self.lds_dma = bool(re.search(r'\blds\b', rest)) or 'load_lds' in mn
            if 'store' in mn or ('atomic' in mn):
                self.src = sum(opregs, []); self.dst = []
                self.store_data = opregs[0] if mn.startswith('buffer') else opregs[1]
                self.wide = ('x3' in mn or 'x4' in mn)
                if 'atomic' in mn and ('sc0' in rest):
                    self.dst = opregs[0]
            elif mn in ('buffer_inv', 'buffer_wbl2'):
                pass
            elif self.lds_dma:
                self.src = sum(opregs, []) + [('m0', 0)]
            else:
                self.dst = opregs[0]; self.src = sum(opregs[1:], [])
                if 'd16' in mn: self.src = self.src + opregs[0]
        elif mn.startswith('ds_'):
            self.cls = 'ds'
            if 'write' in mn:
                self.src = sum(opregs, [])
            else:
                self.dst = opregs[0]; self.src = sum(opregs[1:], [])
                if 'd16' in mn: self.src = self.src + opregs[0]
        elif mn.startswith('s_'):
            self.cls = 'salu'
            if mn.startswith(('s_load', 's_memtime', 's_memrealtime', 's_buffer_load')):
                self.cls = 'smem'
                self.dst = opregs[0]; self.src = sum(opregs[1:], [])
            elif mn.startswith(('s_cmp', 's_cbranch', 's_branch', 's_waitcnt', 's_barrier', 's_nop', 's_endpgm', 's_sleep', 's_setprio', 's_bitcmp')):
                self.src = sum(opregs, [])
            else:
                self.dst = opregs[0] if opregs else []; self.src = sum(opregs[1:], [])
                if 'saveexec' in mn: self.dst = self.dst + [('exec', 0)]
        else:
            raise ValueError('unknown instr: ' + text)

    def states(self):
        if self.mn == 's_nop':
            return int(self.text.split(';')[0].split()[1], 0) + 1
        return 1

class Asm:
    def __init__(self):
        self.lines = []
        self.lab = 0
    def __call__(self, text):
        for l in text.split('\n'):
            l = l.strip()
            if l: self.lines.append(l)
    def label(self, base='L'):
        Asm.GL = getattr(Asm, 'GL', 0) + 1
        return f'{base}_{Asm.GL}'
    def comment(self, t):
        self.lines.append('; ' + t)

    def finalize(self):
        snaps = {}
        out = None
        for it in range(3):
            out, snaps2 = self._pass(snaps)
            snaps = snaps2
        return out

    def _pass(self, snaps_in):
        out = []
        hist = []
        pos = 0
        WINDOW = 24
        snaps = {}
        for text in self.lines:
            if text.startswith(';'):
                out.append(text); continue
            ins = Ins(text)
            if ins.is_label:
                name = text.split(';')[0].strip()[:-1]
                for (p, rel) in snaps_in.get(name, []) + snaps.get(name, []):
                    hist.append((p, pos - rel))
                out.append(text); continue
            if ins.is_dir or ins.empty:
                out.append(text); continue
            need = 0
            sset = set(ins.src); dset = set(ins.dst)
            for (p, ppos) in hist:
                dist = pos - ppos - 1
                req = self._req(p, ins, sset, dset)
                if req > dist: need = max(need, req - dist)
            while need > 0:
                n = min(need, 16)
                out.append(f's_nop {n-1}')
                pos += n; need -= n
            out.append(text)
            hist.append((ins, pos))
            pos += ins.states()
            hist = [(p, pp) for (p, pp) in hist if pos - pp <= WINDOW]
            if ins.mn.startswith(('s_cbranch', 's_branch')):
                tgt = ins.ops[0].split()[0]
                snaps.setdefault(tgt, []).extend([(p, pos - pp) for (p, pp) in hist])
        return out, snaps

    def _req(self, p, ins, sset, dset):
        req = 0
        pd = set(p.dst)
        if p.cls == 'valu':
            vw = {r for r in pd if r[0] in 'va' and r[0] != 'vcc'}
            sw = {r for r in pd if r[0] in ('s', 'vcc')}
            if ins.cls == 'mfma' and vw & sset: req = max(req, 2)
            if ins.cls == 'valu':
                if ins.dpp and vw & sset: req = max(req, 2)
                if ins.mn.startswith('v_permlane') and vw & sset: req = max(req, 2)
                if ins.mn in ('v_readfirstlane_b32', 'v_readlane_b32') and vw & sset: req = max(req, 1)
                if sw & sset:
                    req = max(req, 4 if ins.mn in ('v_readlane_b32', 'v_writelane_b32') else 2)
                if p.trans and vw & sset: req = max(req, 1)
                if ('exec', 0) in pd: req = max(req, 5 if ins.dpp else 4 if ins.mn.startswith(('v_readlane', 'v_readfirstlane', 'v_writelane', 'v_permlane')) else 2)
            if ins.cls in ('vmem', 'ds'):
                if sw & sset: req = max(req, 5)
                if p.trans and vw & sset: req = max(req, 1)
            if ins.cls == 'mfma' and ('exec', 0) in pd: req = max(req, 4)
            if ins.cls == 'salu' and sw & sset: req = max(req, 1)
        if p.cls == 'valu' and p.mn.startswith('v_dot'):
            if pd & (sset | dset):
                same = (ins.mn == p.mn)
                if same:
                    ab = set(regs_of(ins.ops[1].split()[0])) | set(regs_of(ins.ops[2].split()[0]))
                    if pd & ab: req = max(req, 3)
                else:
                    req = max(req, 3)
        if p.cls == 'mfma':
            P = p.passes
            if ins.cls == 'mfma':
                if pd & (set(ins.srcA) | set(ins.srcB)): req = max(req, 8 if P == 4 else 12)
                if pd & set(ins.srcC):
                    if not (p.dst == ins.srcC and p.passes == ins.passes): req = max(req, 6 if P == 4 else 10)
                if pd & dset and not (pd & set(ins.srcC)):
                    req = max(req, 6 if P == 4 else 10)
            else:
                if pd & (sset | dset): req = max(req, 8 if P == 4 else 12)
                if ins.cls == 'valu' and set(p.srcC) & dset: req = max(req, 3 if P == 4 else 7)
        if p.cls == 'vmem' and getattr(p, 'wide', False):
            sd = set(p.store_data)
            if sd & dset: req = max(req, 2 if ins.cls == 'valu' else 1)
        if p.cls == 'salu' and ('m0', 0) in pd:
            if ins.cls == 'vmem' and getattr(ins, 'lds_dma', False): req = max(req, 1)
        return req
```

```python
import sys, struct
sys.path.insert(0, 'work')
from asmlib import Asm

NAME = "sequential_preLN__ssm_conv_s4d__dense_activation_squared_relu__prompt"

BLK = 0x0000000
HF  = 0x0500000
W1F = 0x0800000
W2F = 0x0B00000
SP  = 0x0E00000
HH  = 0x1000000
DBGW = 0x1800000
WS_SIZE = 0x4000000

TIMING = False
STAMPSET = None

def f2u(x):
    return struct.unpack('<I', struct.pack('<f', x))[0]

sWAVE = 4
SRD_A = 8; SRD_WS = 12; SRD_B = 48; SRD_C = 52; SRD_D = 56
P_X, P_LA, P_AI, P_CR, P_CI, P_LDT, P_DSK = 16, 18, 20, 22, 24, 26, 28
P_W1, P_B1, P_W2, P_B2, P_OUT, P_DBG, P_WS = 32, 34, 36, 38, 40, 42, 44

def sr(b, n=4): return f's[{b}:{b+n-1}]'
def vr(b, n): return f'v[{b}:{b+n-1}]' if n > 1 else f'v{b}'
def ar(b, n): return f'a[{b}:{b+n-1}]' if n > 1 else f'a{b}'

class Gen:
    def __init__(self, fused, debug=False):
        self.a = Asm()
        self.fused = fused
        self.debug = debug
        self.sc = ' sc1' if fused else ''
        self.p3_hook = None
        self.timing = TIMING
        self.nstamp = 0
        self.stamp_tags = []

    TSW = 0x3000000
    def stamp(self, tag=''):
        if not self.timing: return
        if STAMPSET and tag not in STAMPSET and tag not in ('start', 'end'): return
        if tag in self.stamp_tags:
            i = self.stamp_tags.index(tag)
        else:
            i = self.nstamp; self.nstamp += 1
            self.stamp_tags.append(tag)
        assert i < 16
        a = self.a
        a('s_memrealtime s[84:85]')
        a('s_waitcnt lgkmcnt(0)')
        a(f's_mov_b32 s{86+i}, s84')
    def stamp_flush(self, kidx):
        if not self.timing: return
        a = self.a
        a('s_waitcnt vmcnt(0) lgkmcnt(0)')
        self.stamp('end')
        n = self.nstamp
        a(f's_lshl_b32 s5, s2, 2'); a(f's_add_u32 s5, s5, s{sWAVE}'); a('s_lshl_b32 s5, s5, 6')
        a(f's_add_u32 s5, s5, {self.TSW + kidx * 0x10000}')
        for i in range(n):
            a(f'v_mov_b32 v4, s{86+i}')
            a(f'v_mov_b32 v5, {4*i}')
            a(f'buffer_store_dword v4, v5, {sr(SRD_WS)}, s5 offen')
        print('kernel', kidx, 'stamps:', self.stamp_tags)
        open('stamps.txt', 'w').write(' '.join(self.stamp_tags))

    def srd(self, dst, ptr, size):
        a = self.a
        a(f's_mov_b32 s{dst}, s{ptr}')
        a(f's_mov_b32 s{dst+1}, s{ptr+1}')
        a(f's_mov_b32 s{dst+2}, {size}')
        a(f's_mov_b32 s{dst+3}, 0x20000')

    def prologue(self):
        a = self.a
        a('s_cmp_ge_u32 s2, 256')
        a('s_cbranch_scc1 L_end_%s' % self.kname)
        a('s_load_dwordx16 s[16:31], s[0:1], 0')
        a('s_load_dwordx8 s[32:39], s[0:1], 64')
        a('s_load_dwordx4 s[40:43], s[0:1], 96')
        a('s_load_dwordx2 s[44:45], s[0:1], 112')
        a('v_lshrrev_b32 v1, 6, v0')
        a('v_and_b32 v2, 63, v0')
        a(f'v_readfirstlane_b32 s{sWAVE}, v1')
        a('s_waitcnt lgkmcnt(0)')
        self.srd(SRD_WS, P_WS, WS_SIZE)

    def end(self):
        a = self.a
        a('L_end_%s:' % self.kname)
        a('s_endpgm')


    SRD_DBG = SRD_D
    def sync_setup(self):
        a = self.a
        self.srd(SRD_D, P_DBG, 256)
        a('s_and_b32 s81, s2, 7')
        a('s_lshl_b32 s81, s81, 1')
        a('s_bfe_u32 s5, s2, 0x10003')
        a('s_add_u32 s81, s81, s5')
        a('s_lshl_b32 s81, s81, 4')
        a('s_lshr_b32 s5, s2, 4')
        a('s_add_u32 s81, s81, s5')

    def signal(self, phase):
        a = self.a
        L = a.label('Lsig')
        a('s_waitcnt vmcnt(0) lgkmcnt(0)')
        a('s_barrier')
        a(f's_cmp_eq_u32 s{sWAVE}, 0')
        a(f's_cbranch_scc0 {L}')
        a('s_mov_b64 exec, 1')
        a(f'v_mov_b32 v4, {phase}')
        a('v_mov_b32 v5, s81')
        a(f'buffer_store_byte v4, v5, {sr(SRD_D)}, 0 offen sc1')
        a('s_mov_b64 exec, -1')
        a(f'{L}:')

    def wait_flags(self, phase, mode):
        a = self.a
        Lp = a.label('Lpoll'); Ld = a.label('Lpolld'); Lo = a.label('Lpollo')
        a(f's_cmp_eq_u32 s{sWAVE}, 0')
        a(f's_cbranch_scc0 {Lo}')
        if mode == 'row':
            a('v_and_b32 v4, 3, v2')
            a('v_lshlrev_b32 v4, 2, v4')
            a('s_lshl_b32 s5, s82, 4')
            a('v_add_u32 v4, s5, v4')
        else:
            a('v_lshlrev_b32 v4, 2, v2')
        a('s_mov_b32 s6, 0')
        a(f's_mov_b32 s7, {phase * 0x01010101:#x}')
        a(f'{Lp}:')
        a(f'buffer_load_dword v5, v4, {sr(SRD_D)}, 0 offen sc1')
        a('s_waitcnt vmcnt(0)')
        a('v_or_b32 v5, 0x80808080, v5')
        a('v_subrev_u32 v5, s7, v5')
        if mode == 'aux':
            a('v_or_b32 v5, v5, v6')
        a('v_and_b32 v5, 0x80808080, v5')
        a('v_cmp_ne_u32 vcc, 0x80808080, v5')
        a(f's_cbranch_vccz {Ld}')
        a('s_sleep 1')
        a('s_add_u32 s6, s6, 1')
        a('s_cmp_lt_u32 s6, 0x40000')
        a(f's_cbranch_scc1 {Lp}')
        a(f'{Ld}:')
        a(f'{Lo}:')
        a('s_barrier')

    def ln1_issue(self):
        a = self.a
        self.srd(SRD_A, P_X, 2048 * 1280)
        a('v_lshrrev_b32 v3, 5, v0')
        a('v_and_b32 v4, 31, v0')
        a('v_mul_u32_u24 v5, 0x500, v3')
        a('v_lshl_add_u32 v5, v4, 3, v5')
        a('s_mul_i32 s3, s2, 10240')
        for q in range(5):
            a(f'buffer_load_dwordx2 {vr(8+2*q,2)}, v5, {sr(SRD_A)}, s3 offen offset:{256*q}')

    def rowsum32(self, v, t):
        a = self.a
        for r in (8, 4, 2, 1):
            a(f'v_add_f32_dpp v{v}, v{v}, v{v} row_ror:{r} row_mask:0xf bank_mask:0xf')
        a(f'v_mov_b32 v{t}, v{v}')
        a(f'v_permlane16_swap_b32 v{v}, v{t}')
        a(f'v_add_f32 v{v}, v{v}, v{t}')

    def bf16r(self, dst, src):
        a = self.a
        a(f'v_cvt_pk_bf16_f32 v{dst}, v{src}, v{src}')
        a(f'v_and_b32 v{dst}, 0xffff0000, v{dst}')

    def ln1_compute(self, nlater):
        a = self.a
        F = 20
        a(f's_waitcnt vmcnt({nlater})')
        self.stamp('xarr')
        for k in range(10):
            a(f'v_lshlrev_b32 v{F+2*k}, 16, v{8+k}')
            a(f'v_and_b32 v{F+2*k+1}, 0xffff0000, v{8+k}')
        a(f'v_pk_add_f32 v[40:41], {vr(F,2)}, {vr(F+2,2)}')
        for k in range(2, 10):
            a(f'v_pk_add_f32 v[40:41], v[40:41], {vr(F+2*k,2)}')
        a('v_add_f32 v40, v40, v41')
        self.rowsum32(40, 41)
        a(f'v_mul_f32 v40, {f2u(1.0/640):#x}, v40')
        a('v_mov_b32 v41, v40')
        for k in range(10):
            a(f'v_pk_add_f32 v[44:45], {vr(F+2*k,2)}, v[40:41] neg_lo:[0,1] neg_hi:[0,1]')
            if k == 0:
                a('v_pk_mul_f32 v[42:43], v[44:45], v[44:45]')
            else:
                a('v_pk_fma_f32 v[42:43], v[44:45], v[44:45], v[42:43]')
        a('v_add_f32 v42, v42, v43')
        self.rowsum32(42, 43)
        a(f'v_mul_f32 v42, {f2u(1.0/640):#x}, v42')
        self.bf16r(40, 40)
        a('v_mov_b32 v41, v40')
        self.bf16r(42, 42)
        a(f'v_add_f32 v42, {f2u(1e-5):#x}, v42')
        self.bf16r(42, 42)
        a('v_sqrt_f32 v42, v42')
        self.bf16r(42, 42)
        a('v_rcp_f32 v42, v42')
        a('v_mov_b32 v43, v42')
        U = 48
        for k in range(10):
            a(f'v_pk_add_f32 v[44:45], {vr(F+2*k,2)}, v[40:41] neg_lo:[0,1] neg_hi:[0,1]')
            a('v_cvt_pk_bf16_f32 v46, v44, v45')
            a('v_lshlrev_b32 v44, 16, v46')
            a('v_and_b32 v45, 0xffff0000, v46')
            a('v_pk_mul_f32 v[44:45], v[44:45], v[42:43]')
            a(f'v_cvt_pk_bf16_f32 v{U+2*k}, v44, v{F+2*k}')
            a(f'v_cvt_pk_bf16_f32 v{U+2*k+1}, v45, v{F+2*k+1}')
        a('v_mul_u32_u24 v6, 2624, v3')
        a('v_lshl_add_u32 v6, v4, 4, v6')
        for q in range(5):
            a(f'ds_write_b128 v6, {vr(U+4*q,4)} offset:{512*q}')
        a('v_bfe_u32 v7, v2, 2, 2')
        a('v_mul_u32_u24 v7, 2624, v7')
        a('v_lshrrev_b32 v6, 4, v2')
        a('v_lshl_add_u32 v7, v6, 5, v7')
        a('v_and_b32 v6, 3, v2')
        a('v_lshl_add_u32 v7, v6, 3, v7')
        a(f's_lshl_b32 s3, s{sWAVE}, 7')
        a('v_add_u32 v7, s3, v7')
        a('s_waitcnt lgkmcnt(0)')
        self.stamp('lncomp')
        a('s_barrier')
        T = 68
        for k in range(5):
            a(f'ds_read_b64_tr_b16 {vr(T+4*k,2)}, v7 offset:{512*k}')
            a(f'ds_read_b64_tr_b16 {vr(T+4*k+2,2)}, v7 offset:{512*k+4*2624}')
        a('v_lshlrev_b32 v6, 4, v2')
        a(f's_lshl_b32 s3, s{sWAVE}, 10')
        a('v_add_u32 v6, s3, v6')
        a('s_mul_i32 s3, s2, 20480')
        if BLK: a(f's_add_u32 s3, s3, {BLK}')
        for k in range(5):
            a(f's_waitcnt lgkmcnt({2*(4-k)})')
            a(f'buffer_store_dwordx4 {vr(T+4*k,4)}, v6, {sr(SRD_WS)}, s3 offen{self.sc}')
            if k < 4: a('s_add_u32 s3, s3, 4096')

    LDSP = 24576
    def prep_issue(self):
        a = self.a
        Lw2 = a.label('Lpw2'); Lnone = a.label('Lpnone'); Ldone = a.label('Lpdone')
        a('s_sub_u32 s5, s2, 160')
        a('s_mov_b32 s60, 0')
        a('s_cmp_lt_u32 s5, 27')
        a(f's_cbranch_scc0 {Lw2}')
        a('s_mov_b32 s60, 1')
        a('s_mov_b32 s61, s5')
        a(f's_mov_b32 s62, s{sWAVE}')
        self.srd(SRD_B, P_W1, 640 * 3456)
        a('v_lshrrev_b32 v90, 3, v2')
        a('v_mul_u32_u24 v90, 3456, v90')
        a('v_and_b32 v91, 7, v2')
        a('v_lshl_add_u32 v90, v91, 4, v90')
        a('s_mul_i32 s6, s62, %d' % (160 * 3456))
        a('s_lshl_b32 s7, s61, 7')
        a('s_add_u32 s6, s6, s7')
        a(f's_mul_i32 s7, s{sWAVE}, 20480')
        a(f's_add_u32 m0, s7, {self.LDSP}')
        for i in range(20):
            a(f'buffer_load_dwordx4 v90, {sr(SRD_B)}, s6 offen lds')
            if i < 19:
                a('s_add_u32 m0, m0, 1024')
                a(f's_add_u32 s6, s6, {8*3456}')
        a(f's_branch {Ldone}')
        a(f'{Lw2}:')
        a('s_cmp_lt_u32 s5, 72')
        a(f's_cbranch_scc0 {Ldone}')
        a('s_mov_b32 s60, 2')
        a('s_sub_u32 s5, s5, 27')
        a('s_lshl_b32 s5, s5, 2')
        a(f's_add_u32 s5, s5, s{sWAVE}')
        a('s_mul_i32 s61, s5, 3641')
        a('s_lshr_b32 s61, s61, 16')
        a('s_mul_i32 s6, s61, 18')
        a('s_sub_u32 s62, s5, s6')
        self.srd(SRD_B, P_W2, 1728 * 1280)
        a('v_lshrrev_b32 v90, 3, v2')
        a('v_mul_u32_u24 v90, 1280, v90')
        a('v_and_b32 v91, 7, v2')
        a('v_lshl_add_u32 v90, v91, 4, v90')
        a('s_mul_i32 s6, s62, %d' % (96 * 1280))
        a('s_lshl_b32 s7, s61, 7')
        a('s_add_u32 s6, s6, s7')
        a(f's_mul_i32 s7, s{sWAVE}, 20480')
        a(f's_add_u32 m0, s7, {self.LDSP}')
        for i in range(12):
            a(f'buffer_load_dwordx4 v90, {sr(SRD_B)}, s6 offen lds')
            if i < 11:
                a('s_add_u32 m0, m0, 1024')
                a(f's_add_u32 s6, s6, {8*1280}')
        a(f'{Ldone}:')

    def ct_of_T(self):
        a = self.a
        a('s_mul_i32 s64, s63, 4682')
        a('s_lshr_b32 s64, s64, 16')
        a('s_mul_i32 s65, s64, 14')
        a('s_sub_u32 s65, s63, s65')
        a('s_lshl_b32 s66, s64, 1')
        a('s_add_u32 s67, s66, 1')
        a('s_sub_u32 s68, s65, 8')
        a('s_cmp_eq_u32 s65, 7')
        a('s_cselect_b32 s68, 6, s68')
        a('s_cmp_lt_u32 s65, 7')
        a('s_cselect_b32 s66, s66, s67')
        a('s_cselect_b32 s68, s65, s68')
        a('s_sub_u32 s64, s63, 84')
        a('s_mul_i32 s65, s64, 10923')
        a('s_lshr_b32 s65, s65, 16')
        a('s_mul_i32 s67, s65, 6')
        a('s_sub_u32 s67, s64, s67')
        a('s_add_u32 s65, s65, 12')
        a('s_cmp_ge_u32 s63, 84')
        a('s_cselect_b32 s66, s65, s66')
        a('s_cselect_b32 s68, s67, s68')
        a('s_cmp_eq_u32 s68, 5')
        a('s_cselect_b32 s69, 1, 0')
        a('s_cmp_ge_u32 s66, 12')
        a('s_cselect_b32 s69, s69, 0')

    def ln1_compute_multi(self):
        self.ln1_compute(0)

    def dump_kc(self):
        a = self.a
        a('s_lshl_b32 s5, s2, 2')
        a(f's_add_u32 s5, s5, s{sWAVE}')
        a('s_mul_i32 s5, s5, 17408')
        a(f's_add_u32 s5, s5, {DBGW}')
        a('v_lshlrev_b32 v4, 4, v2')
        a('v_add_u32 v5, s61, v4')
        for i in range(17):
            a(f'ds_read_b128 v[8:11], v5 offset:{1024*i}')
            a('s_waitcnt lgkmcnt(0)')
            a(f'buffer_store_dwordx4 v[8:11], v4, {sr(SRD_WS)}, s5 offen')
            a('s_add_u32 s5, s5, 1024')

    def prep_compute(self):
        a = self.a
        Lw2 = a.label('Lqw2'); Ldone = a.label('Lqdone')
        a('s_cmp_eq_u32 s60, 0')
        a(f's_cbranch_scc1 {Ldone}')
        a('s_waitcnt vmcnt(0)')
        a('v_lshrrev_b32 v90, 4, v2')
        a('v_bfe_u32 v91, v2, 2, 2')
        a('v_and_b32 v92, 3, v2')
        a('v_lshlrev_b32 v93, 4, v2')
        a(f's_mul_i32 s7, s{sWAVE}, 20480')
        a(f's_add_u32 s7, s7, {self.LDSP}')
        a('s_cmp_eq_u32 s60, 1')
        a(f's_cbranch_scc0 {Lw2}')
        a('v_lshl_add_u32 v94, v90, 3, v91')
        a('v_lshlrev_b32 v94, 7, v94')
        a('v_lshl_add_u32 v94, v92, 3, v94')
        a('v_add_u32 v94, s7, v94')
        a('s_mov_b32 s70, 0x3f803f80')
        for tt in range(4):
            a('s_lshl_b32 s63, s61, 2')
            a(f's_add_u32 s63, s63, {tt}')
            self.ct_of_T()
            a('s_mul_i32 s64, s66, 140')
            a('s_add_u32 s64, s64, s68')
            a('s_lshl_b32 s64, s64, 10')
            a('s_mul_i32 s65, s62, %d' % (5 * 7168))
            a('s_add_u32 s64, s64, s65')
            a(f's_add_u32 s64, s64, {W1F}')
            for kk in range(5):
                R = 100 + 4 * kk
                a(f'ds_read_b64_tr_b16 {vr(R,2)}, v94 offset:{kk*4096+tt*32}')
                a(f'ds_read_b64_tr_b16 {vr(R+2,2)}, v94 offset:{kk*4096+tt*32+512}')
            S = 120 + tt
            for kk in range(5):
                R = 100 + 4 * kk
                a(f's_waitcnt lgkmcnt({2*(4-kk)})')
                a(f'buffer_store_dwordx4 {vr(R,4)}, v93, {sr(SRD_WS)}, s64 offen{self.sc}')
                for j in range(4):
                    c = '0' if (kk == 0 and j == 0) else f'v{S}'
                    a(f'v_dot2_f32_bf16 v{S}, v{R+j}, s70, {c}')
                Lskip = a.label('Ldup')
                a('s_cmp_eq_u32 s69, 0')
                a(f's_cbranch_scc1 {Lskip}')
                a('s_add_u32 s65, s64, 1024')
                a(f'buffer_store_dwordx4 {vr(R,4)}, v93, {sr(SRD_WS)}, s65 offen{self.sc}')
                a(f'{Lskip}:')
                if kk < 4: a('s_add_u32 s64, s64, 7168')
            a(f'v_mov_b32 v97, v{S}')
            a(f'v_permlane16_swap_b32 v{S}, v97')
            a(f'v_add_f32 v{S}, v{S}, v97')
            a(f'v_mov_b32 v97, v{S}')
            a(f'v_permlane32_swap_b32 v{S}, v97')
            a(f'v_add_f32 v{S}, v{S}, v97')
        SB = self.LDSP + 4 * 20480
        a('v_and_b32 v98, 15, v2')
        a('v_lshlrev_b32 v98, 2, v98')
        a(f's_lshl_b32 s64, s{sWAVE}, 8')
        a(f's_add_u32 s64, s64, {SB}')
        a('v_add_u32 v97, s64, v98')
        for tt in range(4):
            a(f'ds_write_b32 v97, v{120+tt} offset:{64*tt}')
        a('s_waitcnt lgkmcnt(0)')
        a('s_barrier')
        a(f's_lshl_b32 s64, s{sWAVE}, 6')
        a(f's_add_u32 s64, s64, {SB}')
        a('v_add_u32 v97, s64, v98')
        for w in range(4):
            a(f'ds_read_b32 v{120+w}, v97 offset:{256*w}')
        a('s_lshl_b32 s63, s61, 2')
        a(f's_add_u32 s63, s63, s{sWAVE}')
        self.ct_of_T()
        a('s_mul_i32 s64, s66, 112')
        a('s_lshl_b32 s65, s68, 4')
        a('s_add_u32 s64, s64, s65')
        a('s_lshl_b32 s64, s64, 2')
        a(f's_add_u32 s64, s64, {SP}')
        a('s_waitcnt lgkmcnt(0)')
        a('v_add_f32 v120, v120, v121')
        a('v_add_f32 v122, v122, v123')
        a('v_add_f32 v120, v120, v122')
        a(f'buffer_store_dword v120, v98, {sr(SRD_WS)}, s64 offen{self.sc}')
        Lskip = a.label('Ldup')
        a('s_cmp_eq_u32 s69, 0')
        a(f's_cbranch_scc1 {Lskip}')
        a('s_add_u32 s64, s64, 64')
        a(f'buffer_store_dword v120, v98, {sr(SRD_WS)}, s64 offen{self.sc}')
        a(f'{Lskip}:')
        a(f's_branch {Ldone}')
        a(f'{Lw2}:')
        a('v_lshl_add_u32 v94, v90, 2, v91')
        a('v_lshlrev_b32 v94, 7, v94')
        a('v_lshl_add_u32 v94, v92, 3, v94')
        a('v_add_u32 v94, s7, v94')
        for tt in range(4):
            a('s_lshl_b32 s63, s61, 2')
            a(f's_add_u32 s63, s63, {tt}')
            a('s_mul_i32 s64, s63, 13108')
            a('s_lshr_b32 s64, s64, 16')
            a('s_mul_i32 s65, s64, 5')
            a('s_sub_u32 s65, s63, s65')
            a('s_mul_i32 s64, s64, 270')
            a('s_add_u32 s64, s64, s65')
            a('s_mul_i32 s65, s62, 15')
            a('s_add_u32 s64, s64, s65')
            a('s_lshl_b32 s64, s64, 10')
            a(f's_add_u32 s64, s64, {W2F}')
            for kk in range(3):
                R = 100 + 4 * kk
                a(f'ds_read_b64_tr_b16 {vr(R,2)}, v94 offset:{kk*4096+tt*32}')
                a(f'ds_read_b64_tr_b16 {vr(R+2,2)}, v94 offset:{kk*4096+tt*32+2048}')
            for kk in range(3):
                R = 100 + 4 * kk
                a(f's_waitcnt lgkmcnt({2*(2-kk)})')
                a(f'buffer_store_dwordx4 {vr(R,4)}, v93, {sr(SRD_WS)}, s64 offen{self.sc}')
                if kk < 2: a('s_add_u32 s64, s64, 5120')
        a(f'{Ldone}:')

    WSTRIDE = 30272
    UXB = 4 * 30272
    ROWB = 528
    CPY = 4160
    TBL = 16640
    GA = 100
    VB = 136
    VA = 144; VEU = 145; VHW = 146
    PL = 148

    def kgen_issue(self):
        a = self.a
        a('s_lshl_b32 s5, s2, 2')
        a(f's_add_u32 s5, s5, s{sWAVE}')
        a('s_lshl_b32 s6, s5, 8')
        a('v_lshlrev_b32 v98, 2, v2')
        a('v_add_u32 v98, s6, v98')
        P = self.PL
        a(f'global_load_dword v{P}, v98, s[{P_LA}:{P_LA+1}]')
        a(f'global_load_dword v{P+1}, v98, s[{P_AI}:{P_AI+1}]')
        a(f'global_load_dword v{P+2}, v98, s[{P_CR}:{P_CR+1}]')
        a(f'global_load_dword v{P+3}, v98, s[{P_CI}:{P_CI+1}]')
        a('s_lshl_b32 s6, s5, 1')
        a('v_mov_b32 v99, s6')
        a(f'global_load_ushort v{P+4}, v99, s[{P_LDT}:{P_LDT+1}]')
        a(f'global_load_ushort v{P+5}, v99, s[{P_DSK}:{P_DSK+1}]')
        return 6

    def p2_consts(self):
        a = self.a
        GA, VB, VA = self.GA, self.VB, self.VA
        t0, t1, t2, t3, t4, t5 = 90, 91, 92, 93, 94, 95
        a(f's_mul_i32 s61, s{sWAVE}, {self.WSTRIDE}')
        a(f'v_lshlrev_b32 v{t0}, 5, v2')
        a(f'v_sub_u32 v{t0}, 2047, v{t0}')
        a(f's_add_u32 s6, s61, {self.TBL}')
        a('s_movk_i32 s7, 0x80')
        for e in range(0, 36, 2):
            a(f'v_subrev_u32 v{t1}, {e}, v{t0}')
            a(f'v_subrev_u32 v{t2}, {e+1}, v{t0}')
            a(f'v_cvt_f32_i32 v{t3}, v{t1}')
            a(f'v_cvt_f32_i32 v{t4}, v{t2}')
            a(f'v_cvt_pk_bf16_f32 v{t3}, v{t3}, v{t4}')
            a(f'v_lshrrev_b32 v{t4}, 16, v{t3}')
            a(f'v_and_b32 v{t3}, 0xffff, v{t3}')
            a(f'v_subrev_u32 v{t3}, 0x4280, v{t3}')
            a(f'v_med3_i32 v{t3}, v{t3}, v{t1}, s7')
            a(f'v_lshl_add_u32 v{GA+e}, v{t3}, 1, s6')
            if e + 1 < 35:
                a(f'v_subrev_u32 v{t4}, 0x4280, v{t4}')
                a(f'v_med3_i32 v{t4}, v{t4}, v{t2}, s7')
                a(f'v_lshl_add_u32 v{GA+e+1}, v{t4}, 1, s6')
        i_, g_ = t0, t1
        a(f'v_and_b32 v{i_}, 15, v2')
        a(f'v_lshrrev_b32 v{g_}, 4, v2')
        a(f'v_and_b32 v{t2}, 3, v{i_}')
        a(f'v_sub_u32 v{t2}, 3, v{t2}')
        a(f'v_mul_u32_u24 v{t2}, {self.CPY}, v{t2}')
        a(f'v_lshrrev_b32 v{t3}, 2, v{i_}')
        a(f'v_lshlrev_b32 v{t3}, 3, v{t3}')
        a(f'v_sub_u32 v{t2}, v{t2}, v{t3}')
        a(f'v_lshl_add_u32 v{t2}, v{g_}, 4, v{t2}')
        a(f's_add_u32 s6, s61, {2*(2044-16) - (512*7+64*7)}')
        a(f'v_add_u32 v{VA}, s6, v{t2}')
        a(f'v_lshlrev_b32 v{t2}, 1, v{i_}')
        a(f'v_add_u32 v{t2}, v{t2}, v{g_}')
        a(f'v_lshlrev_b32 v{t2}, 7, v{t2}')
        a(f'v_lshrrev_b32 v{t3}, 1, v{g_}')
        a(f'v_add_u32 v{t3}, v{t3}, v{i_}')
        a(f's_lshl_b32 s7, s{sWAVE}, 1')
        for b in range(8):
            a(f'v_subrev_u32 v{t4}, {2*b+1}, v{t3}')
            a(f'v_and_b32 v{t4}, 7, v{t4}')
            a(f'v_xor_b32 v{t4}, s7, v{t4}')
            a(f'v_lshl_add_u32 v{t4}, v{t4}, 4, v{t2}')
            a(f'v_add_u32 v{VB+b}, {self.UXB + (30-4*b)*128}, v{t4}')
        a(f'v_lshlrev_b32 v{t2}, 1, v{i_}')
        a(f'v_lshrrev_b32 v{t3}, 1, v{g_}')
        a(f'v_add_u32 v{t2}, v{t2}, v{t3}')
        a(f'v_lshlrev_b32 v{t2}, 7, v{t2}')
        a(f'v_and_b32 v{t3}, 7, v{i_}')
        a(f'v_xor_b32 v{t3}, s7, v{t3}')
        a(f'v_lshl_add_u32 v{t2}, v{t3}, 4, v{t2}')
        a(f'v_and_b32 v{t3}, 1, v{g_}')
        a(f'v_lshl_add_u32 v{t2}, v{t3}, 3, v{t2}')
        a(f'v_add_u32 v{self.VEU}, {self.UXB + 32*128}, v{t2}')
        a(f'v_lshlrev_b32 v{t2}, 5, v{i_}')
        a(f'v_lshl_add_u32 v{t2}, v{g_}, 3, v{t2}')
        a(f'v_add_u32 v{self.VHW}, s61, v{t2}')

    def exp_precise(self, dst, x, t1, t2):
        a = self.a
        a(f'v_mul_f32 v{t1}, s62, v{x}')
        a(f'v_fma_f32 v{t2}, v{x}, s62, -v{t1}')
        a(f'v_fma_f32 v{t2}, v{x}, s63, v{t2}')
        a(f'v_exp_f32 v{dst}, v{t1}')
        a(f'v_mul_f32 v{t2}, v{dst}, v{t2}')
        a(f'v_fma_f32 v{dst}, v{t2}, s64, v{dst}')

    def cmul2(self, d0, x0, y0, d1, x1, y1):
        a = self.a
        a(f'v_pk_mul_f32 {vr(d0,2)}, {vr(x0,2)}, {vr(y0,2)} op_sel:[0,0] op_sel_hi:[0,1]')
        a(f'v_pk_mul_f32 {vr(d1,2)}, {vr(x1,2)}, {vr(y1,2)} op_sel:[0,0] op_sel_hi:[0,1]')
        a(f'v_pk_fma_f32 {vr(d0,2)}, {vr(x0,2)}, {vr(y0,2)}, {vr(d0,2)} op_sel:[1,1,0] op_sel_hi:[1,0,1] neg_lo:[1,0,0]')
        a(f'v_pk_fma_f32 {vr(d1,2)}, {vr(x1,2)}, {vr(y1,2)}, {vr(d1,2)} op_sel:[1,1,0] op_sel_hi:[1,0,1] neg_lo:[1,0,0]')

    def kgen(self, nlater):
        a = self.a
        P = self.PL
        ROWB = self.ROWB
        a('s_mov_b32 s62, 0x3fb8aa3b')
        a('s_mov_b32 s63, 0x32a57060')
        a(f's_mov_b32 s64, {f2u(0.6931471805599453):#x}')
        a(f's_mov_b32 s65, {f2u(0.15915494309189535):#x}')
        a(f's_waitcnt vmcnt({nlater})')
        a(f'v_lshlrev_b32 v4, 16, v{P+4}')
        self.exp_precise(10, 4, 5, 6)
        self.bf16r(10, 10)
        for s in range(2):
            def unpack(dst, src):
                if s == 0: a(f'v_lshlrev_b32 v{dst}, 16, v{src}')
                else: a(f'v_and_b32 v{dst}, 0xffff0000, v{src}')
            unpack(4, P)
            self.exp_precise(7, 4, 5, 6)
            self.bf16r(7, 7)
            a('v_mul_f32 v7, v7, v10')
            a(f'v_mul_f32 v{12+s}, s62, v7')
            a(f'v_sub_f32 v{12+s}, 0, v{12+s}')
            unpack(4, P + 1)
            a('v_mul_f32 v4, v4, v10')
            a(f'v_mul_f32 v{14+s}, s65, v4')
            unpack(4, P + 2)
            a('v_mul_f32 v4, v4, v10')
            a(f'v_add_f32 v{16+2*s}, v4, v4')
            unpack(4, P + 3)
            a('v_mul_f32 v4, v4, v10')
            a(f'v_add_f32 v{17+2*s}, v4, v4')
        for zi, p in enumerate((1.0, 8.0, 128.0)):
            for s in range(2):
                d = 20 + 4 * zi + 2 * s
                a(f'v_mul_f32 v4, {f2u(p):#x}, v{12+s}')
                a(f'v_mul_f32 v5, {f2u(p):#x}, v{14+s}')
                a('v_exp_f32 v4, v4')
                a('v_rndne_f32 v6, v5')
                a('v_sub_f32 v5, v5, v6')
                a('v_cos_f32 v6, v5')
                a('v_sin_f32 v7, v5')
                a(f'v_mul_f32 v{d}, v4, v6')
                a(f'v_mul_f32 v{d+1}, v4, v7')
        self.stamp('kz')
        a('v_lshlrev_b32 v11, 3, v2')
        a('v_add_u32 v11, s61, v11')
        wt = [0]
        def put(row, x0, x1, neg=False):
            w = 88 + 2 * wt[0]; wt[0] = (wt[0] + 1) % 4
            n = '-' if neg else ''
            a(f'v_cvt_pk_bf16_f32 v{w}, v{x0}, {n}v{x0+1}')
            a(f'v_cvt_pk_bf16_f32 v{w+1}, v{x1}, {n}v{x1+1}')
            a(f'ds_write_b64 v11, {vr(w,2)} offset:{row*ROWB}')
        LO = 32
        def lo(c, s): return (20 + 2 * s) if c == 1 else LO + 4 * (c - 2) + 2 * s
        def mk(c, x, y): self.cmul2(lo(c, 0), lo(x, 0), lo(y, 0), lo(c, 1), lo(x, 1), lo(y, 1))
        mk(2, 1, 1); mk(3, 2, 1); mk(4, 2, 2); mk(5, 4, 1); mk(6, 4, 2); mk(7, 4, 3)
        a('v_mov_b32 v60, 1.0'); a('v_mov_b32 v61, 0'); a('v_mov_b32 v62, 1.0'); a('v_mov_b32 v63, 0')
        put(41, 60, 62, neg=True)
        put(42, 24, 26, neg=True)
        cur = 24; E = [64, 68]
        for j in range(2, 16):
            nx = E[j & 1]
            self.cmul2(nx, cur, 24, nx + 2, cur + 2, 26)
            put(41 + j, nx, nx + 2, neg=True)
            cur = nx
        H = [72, 76]; T = [80, 84]
        cur = 16; tt = 0
        for i in range(17):
            if i > 0:
                nx = H[i & 1]
                self.cmul2(nx, cur, 28, nx + 2, cur + 2, 30)
                cur = nx
            if i < 2: rows = [(8 * i + c, c) for c in range(8)]
            elif i < 4: rows = [(16 + 4 * (i - 2) + c, 2 * c) for c in range(4)]
            elif i < 8: rows = [(24 + 2 * (i - 4) + c, 4 * c) for c in range(2)]
            else: rows = [(32 + (i - 8), 0)]
            for (row, c) in rows:
                if c == 0:
                    put(row, cur, cur + 2)
                else:
                    t = T[tt]; tt ^= 1
                    self.cmul2(t, cur, lo(c, 0), t + 2, cur + 2, lo(c, 1))
                    put(row, t, t + 2)
        self.stamp('kchain')
        a('v_and_b32 v5, 15, v2')
        a('v_lshrrev_b32 v6, 4, v2')
        a(f'v_mul_u32_u24 v11, {ROWB}, v5')
        a('v_lshl_add_u32 v11, v6, 4, v11')
        a('v_add_u32 v11, s61, v11')
        FR = 160
        for half in range(2):
            for kk in range(4):
                kap = 4 * half + kk
                a(f'ds_read_b128 {vr(FR+16*kk,4)}, v11 offset:{41*ROWB + kap*64}')
                for T_ in range(3):
                    a(f'ds_read_b128 {vr(FR+16*kk+4+4*T_,4)}, v11 offset:{16*T_*ROWB + kap*64}')
            for kk in range(4):
                kap = 4 * half + kk
                a(f's_waitcnt lgkmcnt({4*(3-kk)})')
                for T_ in range(3):
                    c = '0' if kap == 0 else vr(12 + 4 * T_, 4)
                    a(f'v_mfma_f32_16x16x32_bf16 {vr(12+4*T_,4)}, {vr(FR+16*kk+4+4*T_,4)}, {vr(FR+16*kk,4)}, {c}')
        a(f's_add_u32 s6, s61, {self.TBL}')
        a('v_lshrrev_b32 v7, 1, v6'); a('v_lshlrev_b32 v7, 7, v7')
        a('v_and_b32 v8, 1, v6'); a('v_lshl_add_u32 v7, v8, 2, v7')
        a('v_lshl_add_u32 v7, v5, 3, v7')
        a('v_lshl_add_u32 v7, v7, 1, s6')
        a('v_lshlrev_b32 v8, 6, v6')
        a('v_lshlrev_b32 v9, 2, v5')
        a('v_lshlrev_b32 v10, 1, v5')
        a('v_cmp_gt_u32 vcc, 2, v6')
        a('v_cndmask_b32 v9, v10, v9, vcc')
        a('v_add_u32 v8, v8, v9')
        a('v_add_u32 v8, 256, v8')
        a('v_lshl_add_u32 v8, v8, 1, s6')
        a('v_mov_b32 v9, 64')
        a('v_mov_b32 v10, 4')
        a('v_cndmask_b32 v9, v9, v10, vcc')
        a('v_add_u32 v9, v8, v9')
        a('v_lshlrev_b32 v10, 6, v6')
        a('v_add_u32 v10, v10, v5')
        a('v_lshl_add_u32 v10, v10, 1, s6')
        a('v_cvt_pk_bf16_f32 v24, v12, v13'); a('v_cvt_pk_bf16_f32 v25, v14, v15')
        a('ds_write_b64 v7, v[24:25]')
        a('v_cvt_pk_bf16_f32 v26, v16, v17'); a('v_cvt_pk_bf16_f32 v27, v18, v19')
        a('ds_write_b32 v8, v26'); a('ds_write_b32 v9, v27')
        a('v_cvt_pk_bf16_f32 v28, v20, v21'); a('v_cvt_pk_bf16_f32 v29, v22, v23')
        a('ds_write_b16 v10, v28 offset:1024'); a('ds_write_b16_d16_hi v10, v28 offset:1056')
        a('ds_write_b16 v10, v29 offset:1088'); a('ds_write_b16_d16_hi v10, v29 offset:1120')
        self.stamp('kmfma')
        D = 32
        HI = 70
        for w in range(17):
            a(f'ds_read_u16 v{D+w}, v{self.GA+2*w}')
            a(f'ds_read_u16 v{HI+w}, v{self.GA+2*w+1}')
        a(f'ds_read_u16 v{D+17}, v{self.GA+34}')
        a('v_lshlrev_b32 v7, 6, v2')
        a('v_add_u32 v7, s61, v7')
        a(f'v_add_u32 v8, {2*self.CPY}, v7')
        a(f'v_add_u32 v9, {3*self.CPY}, v7')
        a('v_and_b32 v10, 15, v2')
        a('v_lshlrev_b32 v10, 2, v10')
        a('v_add_u32 v10, s61, v10')
        a('v_mov_b32 v11, 0')
        a('s_waitcnt lgkmcnt(0)')
        for w in range(17):
            a(f'v_lshl_or_b32 v{D+w}, v{HI+w}, 16, v{D+w}')
        a(f'v_writelane_b32 v{D+16}, 0, 63')
        a(f'v_writelane_b32 v{D+17}, 0, 63')
        self.stamp('kgath')
        O = 52
        for w in range(17):
            a(f'v_alignbit_b32 v{O+w}, v{D+w+1}, v{D+w}, 16')
        for i in range(4):
            a(f'ds_write_b128 v7, {vr(D+4*i,4)} offset:{16*i}')
            a(f'ds_write_b128 v7, {vr(O+4*i,4)} offset:{self.CPY+16*i}')
        for i in range(0, 16, 2):
            a(f'ds_write2_b32 v8, v{D+i+1}, v{D+i+2} offset0:{i} offset1:{i+1}')
            a(f'ds_write2_b32 v9, v{O+i+1}, v{O+i+2} offset0:{i} offset1:{i+1}')
        for c in range(4):
            a(f'ds_write_b32 v10, v11 offset:{c*self.CPY+4096}')

    def conv_load_ux(self):
        a = self.a
        a('v_lshrrev_b32 v4, 3, v2')
        a('v_mul_u32_u24 v5, 20480, v4')
        a('v_and_b32 v6, 7, v2')
        a('v_lshl_add_u32 v5, v6, 4, v5')
        a(f's_mul_i32 s5, s{sWAVE}, {64*20480}')
        a('s_lshl_b32 s6, s2, 7')
        a('s_add_u32 s5, s5, s6')
        if BLK: a(f's_add_u32 s5, s5, {BLK}')
        for k in range(8):
            a(f'buffer_load_dwordx4 {vr(160+4*k,4)}, v5, {sr(SRD_WS)}, s5 offen{self.sc}')
            if k < 7: a(f's_add_u32 s5, s5, {8*20480}')
        a('v_lshrrev_b32 v7, 4, v2')
        a('v_xor_b32 v8, v6, v7')
        a('v_xor_b32 v9, 4, v8')
        a('v_lshlrev_b32 v4, 7, v4')
        a(f's_lshl_b32 s6, s{sWAVE}, 13')
        a(f's_add_u32 s6, s6, {self.UXB + 4096}')
        a('v_add_u32 v4, s6, v4')
        a('v_lshl_add_u32 v8, v8, 4, v4')
        a('v_lshl_add_u32 v9, v9, 4, v4')
        a('v_mov_b32 v12, 0'); a('v_mov_b32 v13, 0'); a('v_mov_b32 v14, 0'); a('v_mov_b32 v15, 0')
        a('v_lshlrev_b32 v10, 4, v0')
        a(f'v_add_u32 v10, {self.UXB}, v10')
        a('ds_write_b128 v10, v[12:15]')
        for k in range(8):
            a(f's_waitcnt vmcnt({7-k})')
            a(f'ds_write_b128 v{8 + (k&1)}, {vr(160+4*k,4)} offset:{k*1024}')
        a('s_waitcnt lgkmcnt(0)')
        a('s_barrier')

    def conv_main(self, hook=None):
        a = self.a
        ACC = 12
        bufA = [44, 156]; bufB = [76, 188]
        def reads(b):
            sel = b & 1
            lst = []
            for aa in range(8):
                off = 512 * (7 - aa) + 64 * (7 - b)
                lst.append(f'ds_read_b64 {vr(bufA[sel]+4*aa,2)}, v{self.VA} offset:{off}')
                lst.append(f'ds_read_b64 {vr(bufA[sel]+4*aa+2,2)}, v{self.VA} offset:{off+8}')
            for e in range(8):
                lst.append(f'ds_read_b128 {vr(bufB[sel]+4*e,4)}, v{self.VB+b} offset:{4096*e}')
            order = []
            for k in range(8):
                order += [lst[2*k], lst[2*k+1], lst[16+k]]
            return order
        for r in reads(0): a(r)
        for b in range(8):
            sel = b & 1
            nxt = reads(b + 1) if b < 7 else []
            a('s_waitcnt lgkmcnt(0)')
            n = 0
            for aa in range(8):
                for e in range(8 - aa):
                    t = aa + e
                    c = '0' if (b == 0 and aa == 0) else vr(ACC + 4 * t, 4)
                    a(f'v_mfma_f32_16x16x32_bf16 {vr(ACC+4*t,4)}, {vr(bufA[sel]+4*aa,4)}, {vr(bufB[sel]+4*e,4)}, {c}')
                    if n < len(nxt): a(nxt[n])
                    if hook: hook(b, n)
                    n += 1

    def conv_epilogue(self):
        a = self.a
        ACC = 12
        P = self.PL
        a(f'v_xor_b32 v4, 16, v{self.VEU}')
        for t in range(8):
            a(f'ds_read_b64 {vr(44+4*t,2)}, v{self.VEU} offset:{4096*t}')
            a(f'ds_read_b64 {vr(46+4*t,2)}, v4 offset:{4096*t}')
        a(f'v_lshlrev_b32 v6, 16, v{P+5}')
        a('v_mov_b32 v7, v6')
        for t in range(8):
            a(f's_waitcnt lgkmcnt({2*(7-t)})')
            for h in range(2):
                u = 44 + 4 * t + h; x = 46 + 4 * t + h; y0 = ACC + 4 * t + 2 * h
                a(f'v_lshlrev_b32 v8, 16, v{u}')
                a(f'v_and_b32 v9, 0xffff0000, v{u}')
                a('v_pk_mul_f32 v[8:9], v[8:9], v[6:7]')
                a('v_cvt_pk_bf16_f32 v10, v8, v9')
                a(f'v_cvt_pk_bf16_f32 v11, v{y0}, v{y0+1}')
                a('v_lshlrev_b32 v8, 16, v10')
                a('v_and_b32 v9, 0xffff0000, v10')
                a('v_lshlrev_b32 v76, 16, v11')
                a('v_and_b32 v77, 0xffff0000, v11')
                a('v_pk_add_f32 v[8:9], v[8:9], v[76:77]')
                a('v_cvt_pk_bf16_f32 v10, v8, v9')
                a('v_lshlrev_b32 v8, 16, v10')
                a('v_and_b32 v9, 0xffff0000, v10')
                a(f'v_lshlrev_b32 v76, 16, v{x}')
                a(f'v_and_b32 v77, 0xffff0000, v{x}')
                a('v_pk_add_f32 v[8:9], v[8:9], v[76:77]')
                a(f'v_cvt_pk_bf16_f32 v{80+2*t+h}, v8, v9')
            a(f'ds_write_b64 v{self.VHW}, {vr(80+2*t,2)} offset:{512*t}')
        self.stamp('cep1')
        a('v_bfe_u32 v4, v2, 2, 2')
        a(f'v_mul_u32_u24 v4, {self.WSTRIDE}, v4')
        a('v_lshrrev_b32 v5, 4, v2')
        a('v_lshl_add_u32 v4, v5, 5, v4')
        a('v_and_b32 v6, 3, v2')
        a('v_lshl_add_u32 v4, v6, 3, v4')
        a(f's_lshl_b32 s5, s{sWAVE}, 10')
        a('v_add_u32 v4, s5, v4')
        a('v_mul_u32_u24 v5, 20480, v5')
        a('v_and_b32 v6, 15, v2')
        a('v_lshl_add_u32 v5, v6, 4, v5')
        a(f's_mul_i32 s5, s{sWAVE}, {8*81920}')
        a('s_lshr_b32 s6, s2, 3')
        a('s_lshl_b32 s6, s6, 10')
        a('s_add_u32 s5, s5, s6')
        a('s_bfe_u32 s6, s2, 0x20001')
        a('s_lshl_b32 s6, s6, 8')
        a('s_add_u32 s5, s5, s6')
        a('s_and_b32 s6, s2, 1')
        a('s_lshl_b32 s6, s6, 3')
        a('s_add_u32 s5, s5, s6')
        a(f's_add_u32 s5, s5, {HF}')
        a('s_waitcnt lgkmcnt(0)')
        a('s_barrier')
        for m in range(8):
            a(f'ds_read_b64_tr_b16 {vr(44+2*m,2)}, v4 offset:{128*m}')
        for m in range(8):
            a(f's_waitcnt lgkmcnt({7-m})')
            a(f'buffer_store_dwordx2 {vr(44+2*m,2)}, v5, {sr(SRD_WS)}, s5 offen{self.sc}')
            if m < 7: a('s_add_u32 s5, s5, 81920')

    def p3_ids(self):
        a = self.a
        a('s_and_b32 s66, s2, 7')
        a('s_lshl_b32 s66, s66, 1')
        a('s_bfe_u32 s5, s2, 0x10003')
        a('s_add_u32 s66, s66, s5')
        a('s_lshr_b32 s67, s2, 4')

    def p3_w1_dma(self):
        a = self.a
        a('v_lshlrev_b32 v3, 4, v2')
        a(f's_mul_i32 s5, s67, {140*1024}')
        a(f's_lshl_b32 s6, s{sWAVE}, 10')
        a('s_add_u32 s5, s5, s6')
        a(f's_add_u32 s5, s5, {W1F}')
        a('s_mov_b32 m0, s6')
        for i in range(35):
            a(f'buffer_load_dwordx4 v3, {sr(SRD_WS)}, s5 offen{self.sc} lds')
            if i < 34:
                a('s_add_u32 m0, m0, 4096')
                a('s_add_u32 s5, s5, 4096')
        return 35

    P3H = 96
    def p3_h_loads(self):
        a = self.a
        a('v_lshlrev_b32 v3, 4, v2')
        a('s_lshl_b32 s5, s66, 3')
        a(f's_lshl_b32 s6, s{sWAVE}, 1')
        a('s_add_u32 s5, s5, s6')
        a('s_mul_i32 s5, s5, 20480')
        a(f's_add_u32 s5, s5, {HF}')
        a('s_add_u32 s6, s5, 20480')
        for kap in range(20):
            for lt in range(2):
                base = 's5' if lt == 0 else 's6'
                a(f'buffer_load_dwordx4 {vr(self.P3H+(2*kap+lt)*4,4)}, v3, {sr(SRD_WS)}, {base} offen offset:{(kap%4)*1024}{self.sc}')
            if kap % 4 == 3 and kap < 19:
                a('s_add_u32 s5, s5, 4096'); a('s_add_u32 s6, s6, 4096')
        return 40

    def p3_s_load(self):
        a = self.a
        a('v_lshrrev_b32 v3, 4, v2')
        a('v_lshlrev_b32 v3, 4, v3')
        a('s_mul_i32 s5, s67, 448')
        a(f's_add_u32 s5, s5, {SP}')
        for t in range(7):
            a(f'buffer_load_dwordx4 {vr(64+4*t,4)}, v3, {sr(SRD_WS)}, s5 offen offset:{64*t}{self.sc}')
        return 7

    def p3_b1_load(self):
        a = self.a
        self.srd(SRD_B, P_B1, 1728 * 2)
        a('s_lshr_b32 s5, s67, 1'); a('s_mul_i32 s5, s5, 14')
        a('s_and_b32 s6, s67, 1'); a('s_lshl_b32 s7, s6, 3'); a('s_add_u32 s5, s5, s7')
        a('s_sub_u32 s7, s67, 12'); a('s_mul_i32 s7, s7, 6'); a('s_add_u32 s7, s7, 84')
        a('s_cmp_lt_u32 s67, 12')
        a('s_cselect_b32 s5, s5, s7')
        a('s_add_u32 s7, s5, 6'); a('s_sub_u32 s68, s5, 1')
        a('s_cmp_eq_u32 s6, 0'); a('s_cselect_b32 s7, s7, s68')
        a('s_add_u32 s68, s5, 5')
        a('s_cmp_lt_u32 s67, 12'); a('s_cselect_b32 s7, s7, s68')
        a('s_mov_b32 s68, s5')
        a('s_mov_b32 s69, s7')
        a('s_lshl_b32 s5, s5, 5'); a('s_lshl_b32 s7, s7, 5')
        a('v_lshrrev_b32 v94, 4, v2')
        a('v_lshlrev_b32 v94, 3, v94')
        for t in range(6):
            a(f'buffer_load_dwordx2 {vr(96+2*t,2)}, v94, {sr(SRD_B)}, s5 offen offset:{32*t}')
        a(f'buffer_load_dwordx2 {vr(108,2)}, v94, {sr(SRD_B)}, s7 offen')
        return 7

    def p3_main(self, hwait):
        a = self.a
        ACC = 8
        WB = [200, 228]
        a('v_lshlrev_b32 v3, 4, v2')
        a('s_mov_b32 s70, 0x3f803f80')
        a('v_add_u32 v92, 0x10000, v3')
        a('v_add_u32 v93, 0x20000, v3')
        def rd(kap, t):
            off = (kap * 7 + t) * 1024
            reg = ['v3', 'v92', 'v93'][off >> 16]
            return f'ds_read_b128 {ar(WB[kap&1]+4*t,4)}, {reg} offset:{off & 0xffff}'
        for t in range(7): a(rd(0, t))
        for kap in range(20):
            a(f's_waitcnt vmcnt({hwait(kap)}) lgkmcnt(0)')
            h0 = self.P3H + (2 * kap) * 4; h1 = h0 + 4
            extra = []
            if kap < 19: extra += [rd(kap + 1, t) for t in range(7)]
            dots = []
            for lt, h in ((0, h0), (1, h1)):
                for j in range(4):
                    if kap == 0 and j == 0:
                        dots.append(f'v_dot2_f32_bf16 v{4+2*lt}, v{h+j}, s70, 0')
                        dots.append(f'v_dot2_f32_bf16 v{5+2*lt}, v{h+j}, v{h+j}, 0')
                    else:
                        dots.append(f'v_dot2_f32_bf16 v{4+2*lt}, v{h+j}, s70, v{4+2*lt}')
                        dots.append(f'v_dot2_f32_bf16 v{5+2*lt}, v{h+j}, v{h+j}, v{5+2*lt}')
            n = 0
            for t in range(7):
                for lt, h in ((0, h0), (1, h1)):
                    acc = ACC + (t * 2 + lt) * 4
                    c = '0' if kap == 0 else vr(acc, 4)
                    a(f'v_mfma_f32_16x16x32_bf16 {vr(acc,4)}, {ar(WB[kap&1]+4*t,4)}, {vr(h,4)}, {c}')
                    if extra: a(extra.pop(0)) if n % 2 == 0 else None
                    if dots: a(dots.pop(0))
                    n += 1
            for e in extra: a(e)
            for d in dots: a(d)
            if self.p3_hook: self.p3_hook(kap)

    def p3_epilogue(self):
        a = self.a
        ACC = 8
        for v in (4, 5, 6, 7):
            a(f'v_mov_b32 v94, v{v}')
            a(f'v_permlane16_swap_b32 v{v}, v94')
            a(f'v_add_f32 v{v}, v{v}, v94')
            a(f'v_mov_b32 v94, v{v}')
            a(f'v_permlane32_swap_b32 v{v}, v94')
            a(f'v_add_f32 v{v}, v{v}, v94')
        for lt in range(2):
            s_, q_ = 4 + 2 * lt, 5 + 2 * lt
            a(f'v_mul_f32 v{s_}, {f2u(1.0/640):#x}, v{s_}')
            a(f'v_mul_f32 v{q_}, {f2u(1.0/640):#x}, v{q_}')
            a(f'v_fma_f32 v{q_}, -v{s_}, v{s_}, v{q_}')
            a(f'v_max_f32 v{q_}, 0, v{q_}')
            self.bf16r(s_, s_)
            self.bf16r(q_, q_)
            a(f'v_add_f32 v{q_}, {f2u(1e-5):#x}, v{q_}')
            self.bf16r(q_, q_)
            a(f'v_sqrt_f32 v{q_}, v{q_}')
            self.bf16r(q_, q_)
            R = 112 + 4 * lt
            a(f'v_rcp_f32 v{R}, v{q_}')
            a(f'v_mov_b32 v{R+2}, v{s_}')
            a(f'v_mov_b32 v{R+1}, v{R}')
            a(f'v_mov_b32 v{R+3}, v{s_}')
        a('s_mov_b32 s70, 0x00003f80')
        a('s_mov_b32 s71, 0x3f800000')
        a('s_waitcnt vmcnt(0)')
        for t in range(7):
            for h in range(2):
                a(f'v_lshlrev_b32 v{120+4*t+2*h}, 16, v{96+2*t+h}')
                a(f'v_and_b32 v{120+4*t+2*h+1}, 0xffff0000, v{96+2*t+h}')
        OUT = 150
        def outreg(t, lt):
            if t < 6: return OUT + ((t >> 1) * 2 + lt) * 4 + (t & 1) * 2
            return OUT + 24 + lt * 2
        for t in range(7):
            for lt in range(2):
                acc = ACC + (t * 2 + lt) * 4
                R = 112 + 4 * lt
                for h in range(2):
                    x = acc + 2 * h; S = 64 + 4 * t + 2 * h; B = 120 + 4 * t + 2 * h
                    a(f'v_pk_fma_f32 {vr(x,2)}, {vr(S,2)}, {vr(R+2,2)}, {vr(x,2)} neg_lo:[1,0,0] neg_hi:[1,0,0]')
                    a(f'v_pk_mul_f32 {vr(x,2)}, {vr(x,2)}, {vr(R,2)}')
                    a(f'v_cvt_pk_bf16_f32 v94, v{x}, v{x+1}')
                    a(f'v_dot2_f32_bf16 v{x}, v94, s70, v{B}')
                    a(f'v_dot2_f32_bf16 v{x+1}, v94, s71, v{B+1}')
                    a(f'v_cvt_pk_bf16_f32 v94, v{x}, v{x+1}')
                    a('v_pk_max_i16 v94, v94, 0')
                    a(f'v_lshlrev_b32 v{x}, 16, v94')
                    a(f'v_and_b32 v{x+1}, 0xffff0000, v94')
                    a(f'v_pk_mul_f32 {vr(x,2)}, {vr(x,2)}, {vr(x,2)}')
                    a(f'v_cvt_pk_bf16_f32 v{outreg(t,lt)+h}, v{x}, v{x+1}')
        a('v_lshlrev_b32 v3, 4, v2')
        a('s_lshl_b32 s5, s66, 3')
        a(f's_lshl_b32 s6, s{sWAVE}, 1')
        a('s_add_u32 s5, s5, s6')
        a(f's_mul_i32 s5, s5, {54*1024}')
        a(f's_add_u32 s5, s5, {HH}')
        a('s_lshr_b32 s6, s68, 1')
        a('s_lshl_b32 s6, s6, 10')
        a('s_add_u32 s6, s6, s5')
        a(f's_add_u32 s7, s6, {54*1024}')
        for p in range(3):
            for lt, sb in ((0, 's6'), (1, 's7')):
                a(f'buffer_store_dwordx4 {vr(OUT+(p*2+lt)*4,4)}, v3, {sr(SRD_WS)}, {sb} offen offset:{1024*p}{self.sc}')
        Lsk = a.label('Lp3s')
        a('s_cmp_ge_u32 s67, 12')
        a(f's_cbranch_scc1 {Lsk}')
        a('s_lshr_b32 s6, s69, 1')
        a('s_lshl_b32 s6, s6, 10')
        a('s_and_b32 s7, s69, 1')
        a('s_lshl_b32 s7, s7, 3')
        a('s_add_u32 s6, s6, s7')
        a('s_add_u32 s6, s6, s5')
        a(f's_add_u32 s7, s6, {54*1024}')
        for lt, sb in ((0, 's6'), (1, 's7')):
            a(f'buffer_store_dwordx2 {vr(OUT+24+lt*2,2)}, v3, {sr(SRD_WS)}, {sb} offen{self.sc}')
        a(f'{Lsk}:')

    def p4_ids(self):
        a = self.a
        a('s_and_b32 s72, s2, 7')
        a('s_lshl_b32 s72, s72, 2')
        a('s_bfe_u32 s5, s2, 0x20003')
        a('s_add_u32 s72, s72, s5')
        a('s_lshr_b32 s73, s2, 5')
        a(f's_mul_i32 s74, s{sWAVE}, 14')
        a(f's_cmp_eq_u32 s{sWAVE}, 3')
        a('s_cselect_b32 s5, 1, 0')
        a('s_sub_u32 s74, s74, s5')
        a(f's_cmp_ge_u32 s{sWAVE}, 2')
        a('s_cselect_b32 s75, 12, 13')

    def w2reg(self, idx):
        if idx < 64: return ar(4 * idx, 4)
        return vr(88 + 4 * (idx - 64), 4)

    def p4_w2_loads(self, lo, hi):
        a = self.a
        a('v_lshlrev_b32 v3, 4, v2')
        a('s_mul_i32 s5, s73, 54')
        a('s_add_u32 s5, s5, s74')
        a('s_mul_i32 s5, s5, 5120')
        a(f's_add_u32 s5, s5, {W2F}')
        a('s_mul_i32 s6, s75, 5120')
        a('s_add_u32 s6, s6, s5')
        n = 0
        cur = None
        for idx in range(lo, hi):
            kk, t = divmod(idx, 5)
            if kk < 13:
                off = idx * 1024
                blk = off // 4096
                if cur != blk:
                    a(f's_add_u32 s7, s5, {blk*4096}')
                    cur = blk
                a(f'buffer_load_dwordx4 {self.w2reg(idx)}, v3, {sr(SRD_WS)}, s7 offen offset:{off%4096}{self.sc}')
            else:
                if t < 4:
                    a(f'buffer_load_dwordx4 {self.w2reg(idx)}, v3, {sr(SRD_WS)}, s6 offen offset:{t*1024}{self.sc}')
                else:
                    a('s_add_u32 s7, s6, 4096')
                    a(f'buffer_load_dwordx4 {self.w2reg(idx)}, v3, {sr(SRD_WS)}, s7 offen{self.sc}')
            n += 1
        return n

    P4H = 112
    def p4_h_setup(self):
        a = self.a
        a('v_lshlrev_b32 v3, 4, v2')
        a('s_lshl_b32 s5, s72, 2')
        a('s_mul_i32 s5, s5, 54')
        a('s_add_u32 s5, s5, s74')
        a('s_lshl_b32 s5, s5, 10')
        a(f's_add_u32 s76, s5, {HH}')
        for lt in range(1, 4):
            a(f's_add_u32 s{76+lt}, s76, {lt*54*1024}')
        a('s_lshl_b32 s80, s75, 10')

    def p4_h_load(self, kk):
        a = self.a
        slot = kk % 9
        for lt in range(4):
            reg = vr(self.P4H + slot * 16 + lt * 4, 4)
            if kk < 13:
                if kk < 4:
                    a(f'buffer_load_dwordx4 {reg}, v3, {sr(SRD_WS)}, s{76+lt} offen offset:{kk*1024}{self.sc}')
                else:
                    a(f's_add_u32 s5, s{76+lt}, {kk*1024}')
                    a(f'buffer_load_dwordx4 {reg}, v3, {sr(SRD_WS)}, s5 offen{self.sc}')
            else:
                a(f's_add_u32 s5, s{76+lt}, s80')
                a(f'buffer_load_dwordx4 {reg}, v3, {sr(SRD_WS)}, s5 offen{self.sc}')
        return 4

    def p4_main(self):
        a = self.a
        ACC = 8
        for kk in range(14):
            issued_to = min(8 + kk, 13)
            a(f's_waitcnt vmcnt({(issued_to - kk) * 4})')
            Lsk = None
            if kk == 13:
                Lsk = a.label('Lp4s')
                a(f's_cmp_ge_u32 s{sWAVE}, 2')
                a(f's_cbranch_scc1 {Lsk}')
            slot = kk % 9
            for t in range(5):
                for lt in range(4):
                    acc = ACC + (t * 4 + lt) * 4
                    c = '0' if kk == 0 else vr(acc, 4)
                    a(f'v_mfma_f32_16x16x32_bf16 {vr(acc,4)}, {self.w2reg(kk*5+t)}, {vr(self.P4H+slot*16+lt*4,4)}, {c}')
            if Lsk: a(f'{Lsk}:')
            if kk + 9 <= 13: self.p4_h_load(kk + 9)

    def p4_epilogue(self):
        a = self.a
        ACC = 8
        self.srd(SRD_B, P_B2, 640 * 2)
        a('v_and_b32 v4, 15, v2')
        a('v_lshrrev_b32 v5, 4, v2')
        a('s_mul_i32 s5, s73, 20')
        a('s_lshl_b32 s6, s72, 2')
        a(f's_add_u32 s6, s6, s{sWAVE}')
        a('s_mul_i32 s7, s6, 20480')
        a(f's_add_u32 s7, s7, {HF}')
        for t in range(5):
            a(f'v_add_u32 v6, s5, v5')
            a(f'v_add_u32 v6, {4*t}, v6')
            a('v_lshrrev_b32 v7, 3, v6')
            a('v_lshlrev_b32 v7, 10, v7')
            a('v_bfe_u32 v88, v6, 1, 2')
            a('v_lshl_add_u32 v7, v88, 8, v7')
            a('v_and_b32 v88, 1, v6')
            a('v_lshl_add_u32 v7, v88, 3, v7')
            a('v_lshl_add_u32 v7, v4, 4, v7')
            a(f'buffer_load_dwordx2 {vr(112+2*t,2)}, v7, {sr(SRD_WS)}, s7 offen{self.sc}')
            a('v_lshlrev_b32 v6, 3, v6')
            a(f'buffer_load_dwordx2 {vr(132+2*t,2)}, v6, {sr(SRD_B)}, 0 offen')
        a('v_lshlrev_b32 v3, 4, v2')
        a(f's_mul_i32 s5, s{sWAVE}, 20480')
        a('v_add_u32 v6, s5, v3')
        for tl in range(20):
            a(f'ds_write_b128 v6, {vr(ACC+4*tl,4)} offset:{1024*tl}')
        a('s_waitcnt lgkmcnt(0)')
        a('s_barrier')
        a(f's_lshl_b32 s5, s{sWAVE}, 10')
        a('v_add_u32 v6, s5, v3')
        a('v_add_u32 v7, 40960, v6')
        for t in range(5):
            for w in range(4):
                reg = 'v6' if w < 2 else 'v7'
                a(f'ds_read_b128 {vr(144+(t*4+w)*4,4)}, {reg} offset:{(w&1)*20480 + t*4096}')
        self.srd(SRD_A, P_OUT, 2048 * 1280)
        a('s_lshl_b32 s5, s72, 6')
        a(f's_lshl_b32 s6, s{sWAVE}, 4')
        a('s_add_u32 s5, s5, s6')
        a('s_mul_i32 s5, s5, 1280')
        a('s_mul_i32 s6, s73, 160')
        a('s_add_u32 s5, s5, s6')
        a('v_mul_u32_u24 v4, 1280, v4')
        a('v_lshl_add_u32 v4, v5, 3, v4')
        a('s_mov_b32 s70, 0x00003f80')
        a('s_mov_b32 s71, 0x3f800000')
        a('s_waitcnt vmcnt(0)')
        for t in range(5):
            a(f's_waitcnt lgkmcnt({min(15, 4*(4-t))})')
            R = 144 + t * 16
            for h in range(2):
                x = R + 2 * h
                a(f'v_pk_add_f32 {vr(x,2)}, {vr(x,2)}, {vr(x+4,2)}')
                a(f'v_pk_add_f32 {vr(x+8,2)}, {vr(x+8,2)}, {vr(x+12,2)}')
                a(f'v_pk_add_f32 {vr(x,2)}, {vr(x,2)}, {vr(x+8,2)}')
                a(f'v_cvt_pk_bf16_f32 v88, v{x}, v{x+1}')
                b = 132 + 2 * t + h; hh = 112 + 2 * t + h
                a(f'v_lshlrev_b32 v90, 16, v{b}')
                a(f'v_and_b32 v91, 0xffff0000, v{b}')
                a(f'v_dot2_f32_bf16 v{x}, v88, s70, v90')
                a(f'v_dot2_f32_bf16 v{x+1}, v88, s71, v91')
                a(f'v_cvt_pk_bf16_f32 v88, v{x}, v{x+1}')
                a(f'v_lshlrev_b32 v90, 16, v{hh}')
                a(f'v_and_b32 v91, 0xffff0000, v{hh}')
                a(f'v_dot2_f32_bf16 v{x}, v88, s70, v90')
                a(f'v_dot2_f32_bf16 v{x+1}, v88, s71, v91')
                a(f'v_cvt_pk_bf16_f32 v{R+4+h}, v{x}, v{x+1}')
            a(f'buffer_store_dwordx2 {vr(R+4,2)}, v4, {sr(SRD_A)}, s5 offen offset:{32*t}')

def kernel_header(name):
    return f""".globl {name}
.p2align 8
.type {name},@function
{name}:
"""

def kernel_desc(name, vgpr=512, sgpr=102):
    acc = 256 if vgpr > 256 else (vgpr + 3) // 4 * 4
    return f""".p2align 6
.amdhsa_kernel {name}
  .amdhsa_next_free_vgpr {vgpr}
  .amdhsa_next_free_sgpr {sgpr}
  .amdhsa_accum_offset {acc}
  .amdhsa_group_segment_fixed_size 0
  .amdhsa_kernarg_size 120
  .amdhsa_user_sgpr_count 2
  .amdhsa_user_sgpr_kernarg_segment_ptr 1
  .amdhsa_system_sgpr_workgroup_id_x 1
.end_amdhsa_kernel
"""

LDS_SIZE = 163840

def build_multi(debug=False):
    out = []
    names = [f'k{i}_kernel' for i in range(1, 5)]
    for n in names:
        out.append(f'; @launch kernel={n} grid=(256,1,1) block=(256,1,1) lds={LDS_SIZE}')
    out.append('.amdgcn_target "amdgcn-amd-amdhsa--gfx950"')
    out.append('.text')
    g = Gen(False, debug); g.kname = 'k1'; a = g.a
    g.stamp('start')
    g.prologue()
    g.stamp('prol')
    g.ln1_issue()
    Lc = a.label('Lk1c')
    a('s_mov_b32 s60, 0')
    a('s_cmp_lt_u32 s2, 160'); a(f's_cbranch_scc1 {Lc}')
    g.prep_issue()
    a(f'{Lc}:')
    g.ln1_compute_multi()
    g.stamp('ln1')
    g.prep_compute()
    g.stamp_flush(0)
    g.end()
    out.append(kernel_header(names[0])); out += a.finalize()
    g = Gen(False, debug); g.kname = 'k2'; a = g.a
    g.stamp('start')
    g.prologue()
    a('s_cmp_ge_u32 s2, 160'); a('s_cbranch_scc1 L_end_k2')
    n = g.kgen_issue()
    g.p2_consts()
    g.stamp('consts')
    g.kgen(0)
    g.stamp('kgen')
    if debug:
        g.dump_kc()
    g.conv_load_ux()
    g.stamp('ux')
    g.conv_main()
    g.stamp('main')
    g.conv_epilogue()
    g.stamp_flush(1)
    g.end()
    out.append(kernel_header(names[1])); out += a.finalize()
    g = Gen(False, debug); g.kname = 'k3'; a = g.a
    g.stamp('start')
    g.prologue()
    g.p3_ids()
    g.p3_w1_dma()
    a('s_waitcnt vmcnt(10)')
    g.p3_h_loads()
    g.p3_s_load()
    g.stamp('issued')
    a('s_waitcnt vmcnt(47)')
    a('s_barrier')
    g.stamp('w1')
    state = {'later': 7}
    def hook(kap):
        if kap == 2:
            state['later'] += g.p3_b1_load()
    g.p3_hook = hook
    g.p3_main(lambda kap: (40 - 2 * (kap + 1)) + state['later'])
    g.stamp('main')
    g.p3_epilogue()
    g.stamp_flush(2)
    g.end()
    out.append(kernel_header(names[2])); out += a.finalize()
    g = Gen(False, debug); g.kname = 'k4'; a = g.a
    g.stamp('start')
    g.prologue()
    g.p4_ids()
    g.p4_w2_loads(0, 50)
    a('s_waitcnt vmcnt(0)')
    g.p4_w2_loads(50, 70)
    g.p4_h_setup()
    for kk in range(9): g.p4_h_load(kk)
    g.stamp('issued')
    g.p4_main()
    g.stamp('main')
    g.p4_epilogue()
    g.stamp_flush(3)
    g.end()
    out.append(kernel_header(names[3])); out += a.finalize()
    out.append('.section .rodata,"a"')
    for n in names: out.append(kernel_desc(n))
    return '\n'.join(out) + '\n'

def build_fused(debug=False):
    out = []
    kn = NAME + '_kernel'
    out.append(f'; @launch grid=(256,1,1) block=(256,1,1) lds={LDS_SIZE}')
    out.append('.amdgcn_target "amdgcn-amd-amdhsa--gfx950"')
    out.append('.text')
    g = Gen(True, debug); g.kname = 'f'; a = g.a
    if g.timing:
        for i in range(16): a(f's_mov_b32 s{86+i}, 0')
    g.stamp('start')
    g.prologue()
    g.sync_setup()
    g.ln1_issue()
    Laux = a.label('Laux'); Lp3 = a.label('Lp3')
    a('s_mov_b32 s60, 0')
    a('s_cmp_lt_u32 s2, 160'); a(f's_cbranch_scc0 {Laux}')
    g.kgen_issue()
    g.p2_consts()
    g.ln1_compute(6)
    g.stamp('lnst')
    g.signal(1)
    g.stamp('ln1')
    g.kgen(0)
    g.stamp('kgen')
    g.wait_flags(1, 'all')
    g.stamp('B1')
    g.conv_load_ux()
    g.stamp('ux')
    g.conv_main()
    g.stamp('conv')
    g.conv_epilogue()
    g.stamp('cep2')
    g.signal(2)
    a(f's_branch {Lp3}')
    a(f'{Laux}:')
    g.prep_issue()
    g.ln1_compute(0)
    g.signal(1)
    g.prep_compute()
    g.signal(2)
    a(f'{Lp3}:')
    g.stamp('P2end')
    g.p3_ids()
    g.wait_flags(2, 'all')
    g.stamp('B2')
    g.p3_w1_dma()
    a('s_waitcnt vmcnt(10)')
    g.p3_h_loads()
    g.p3_s_load()
    g.stamp('p3iss')
    a('s_waitcnt vmcnt(47)')
    a('s_barrier')
    g.stamp('p3w1')
    state = {'later': 7}
    def hook(kap):
        if kap == 2:
            state['later'] += g.p3_b1_load()
    g.p3_hook = hook
    g.p3_main(lambda kap: (40 - 2 * (kap + 1)) + state['later'])
    g.stamp('p3main')
    g.p3_epilogue()
    g.stamp('p3ep')
    g.signal(3)
    g.stamp('P3end')
    g.p4_ids()
    a('s_lshr_b32 s82, s72, 1')
    g.p4_w2_loads(0, 50)
    a('s_waitcnt vmcnt(0)')
    g.p4_w2_loads(50, 70)
    g.stamp('p4w2')
    g.wait_flags(3, 'row')
    g.stamp('B3')
    g.p4_h_setup()
    for kk in range(9): g.p4_h_load(kk)
    g.p4_main()
    g.stamp('p4main')
    g.p4_epilogue()
    g.stamp_flush(0)
    g.end()
    out.append(kernel_header(kn)); out += a.finalize()
    out.append('.section .rodata,"a"')
    out.append(kernel_desc(kn))
    return '\n'.join(out) + '\n'

if __name__ == '__main__':
    mode = sys.argv[1]; dst = sys.argv[2]
    debug = 'debug' in sys.argv[3:]
    TIMING = 'timing' in sys.argv[3:]
    for x in sys.argv[3:]:
        if x.startswith('set='): STAMPSET = set(x[4:].split(','))
    if mode == 'multi': s = build_multi(debug)
    if mode == 'fused': s = build_fused(debug)
    open(dst, 'w').write(s)
    print('wrote', dst, len(s), 'bytes')
```

```python
import sys, struct
sys.path.insert(0, 'work')
from asmlib import Asm

NAME = "sequential_preLN__ssm_conv_s4d__dense_activation_squared_relu__prompt"

BLK = 0x0000000
HF  = 0x0500000
W1F = 0x0800000
W2F = 0x0B00000
SP  = 0x0E00000
HH  = 0x1000000
DBGW = 0x1800000
WS_SIZE = 0x4000000

TIMING = False
STAMPSET = None

def f2u(x):
    return struct.unpack('<I', struct.pack('<f', x))[0]

sWAVE = 4
SRD_A = 8; SRD_WS = 12; SRD_B = 48; SRD_C = 52; SRD_D = 56
P_X, P_LA, P_AI, P_CR, P_CI, P_LDT, P_DSK = 16, 18, 20, 22, 24, 26, 28
P_W1, P_B1, P_W2, P_B2, P_OUT, P_DBG, P_WS = 32, 34, 36, 38, 40, 42, 44

def sr(b, n=4): return f's[{b}:{b+n-1}]'
def vr(b, n): return f'v[{b}:{b+n-1}]' if n > 1 else f'v{b}'
def ar(b, n): return f'a[{b}:{b+n-1}]' if n > 1 else f'a{b}'

class Gen:
    def __init__(self, fused, debug=False):
        self.a = Asm()
        self.fused = fused
        self.debug = debug
        self.sc = ' sc1' if fused else ''
        self.p3_hook = None
        self.timing = TIMING
        self.nstamp = 0
        self.stamp_tags = []

    TSW = 0x3000000
    def stamp(self, tag=''):
        if not self.timing: return
        if STAMPSET and tag not in STAMPSET and tag not in ('start', 'end'): return
        if tag in self.stamp_tags:
            i = self.stamp_tags.index(tag)
        else:
            i = self.nstamp; self.nstamp += 1
            self.stamp_tags.append(tag)
        assert i < 16
        a = self.a
        a('s_memrealtime s[84:85]')
        a('s_waitcnt lgkmcnt(0)')
        a(f's_mov_b32 s{86+i}, s84')
    def stamp_flush(self, kidx):
        if not self.timing: return
        a = self.a
        a('s_waitcnt vmcnt(0) lgkmcnt(0)')
        self.stamp('end')
        n = self.nstamp
        a(f's_lshl_b32 s5, s2, 2'); a(f's_add_u32 s5, s5, s{sWAVE}'); a('s_lshl_b32 s5, s5, 6')
        a(f's_add_u32 s5, s5, {self.TSW + kidx * 0x10000}')
        for i in range(n):
            a(f'v_mov_b32 v4, s{86+i}')
            a(f'v_mov_b32 v5, {4*i}')
            a(f'buffer_store_dword v4, v5, {sr(SRD_WS)}, s5 offen')
        print('kernel', kidx, 'stamps:', self.stamp_tags)
        open(f'stamps_k{kidx}.txt', 'w').write(' '.join(self.stamp_tags))

    def srd(self, dst, ptr, size):
        a = self.a
        a(f's_mov_b32 s{dst}, s{ptr}')
        a(f's_mov_b32 s{dst+1}, s{ptr+1}')
        a(f's_mov_b32 s{dst+2}, {size}')
        a(f's_mov_b32 s{dst+3}, 0x20000')

    def prologue(self):
        a = self.a
        a('s_cmp_ge_u32 s2, 256')
        a('s_cbranch_scc1 L_end_%s' % self.kname)
        a('s_load_dwordx16 s[16:31], s[0:1], 0')
        a('s_load_dwordx8 s[32:39], s[0:1], 64')
        a('s_load_dwordx4 s[40:43], s[0:1], 96')
        a('s_load_dwordx2 s[44:45], s[0:1], 112')
        a('v_lshrrev_b32 v1, 6, v0')
        a('v_and_b32 v2, 63, v0')
        a(f'v_readfirstlane_b32 s{sWAVE}, v1')
        a('s_waitcnt lgkmcnt(0)')
        self.srd(SRD_WS, P_WS, WS_SIZE)

    def end(self):
        a = self.a
        a('L_end_%s:' % self.kname)
        a('s_endpgm')


    SRD_DBG = SRD_D
    def sync_setup(self):
        a = self.a
        self.srd(SRD_D, P_DBG, 256)
        a('s_and_b32 s81, s2, 7')
        a('s_lshl_b32 s81, s81, 1')
        a('s_bfe_u32 s5, s2, 0x10003')
        a('s_add_u32 s81, s81, s5')
        a('s_lshl_b32 s81, s81, 4')
        a('s_lshr_b32 s5, s2, 4')
        a('s_add_u32 s81, s81, s5')

    def signal(self, phase):
        a = self.a
        L = a.label('Lsig')
        a('s_waitcnt vmcnt(0) lgkmcnt(0)')
        a('s_barrier')
        a(f's_cmp_eq_u32 s{sWAVE}, 0')
        a(f's_cbranch_scc0 {L}')
        a('s_mov_b64 exec, 1')
        a(f'v_mov_b32 v4, {phase}')
        a('v_mov_b32 v5, s81')
        a(f'buffer_store_byte v4, v5, {sr(SRD_D)}, 0 offen sc1')
        a('s_mov_b64 exec, -1')
        a(f'{L}:')

    def wait_flags(self, phase, mode):
        a = self.a
        Lp = a.label('Lpoll'); Ld = a.label('Lpolld'); Lo = a.label('Lpollo')
        a(f's_cmp_eq_u32 s{sWAVE}, 0')
        a(f's_cbranch_scc0 {Lo}')
        if mode == 'row':
            a('v_and_b32 v4, 3, v2')
            a('v_lshlrev_b32 v4, 2, v4')
            a('s_lshl_b32 s5, s82, 4')
            a('v_add_u32 v4, s5, v4')
        else:
            a('v_lshlrev_b32 v4, 2, v2')
        a('s_mov_b32 s6, 0')
        a(f's_mov_b32 s7, {phase * 0x01010101:#x}')
        a(f'{Lp}:')
        a(f'buffer_load_dword v5, v4, {sr(SRD_D)}, 0 offen sc1')
        a('s_waitcnt vmcnt(0)')
        a('v_or_b32 v5, 0x80808080, v5')
        a('v_subrev_u32 v5, s7, v5')
        if mode == 'aux':
            a('v_or_b32 v5, v5, v6')
        a('v_and_b32 v5, 0x80808080, v5')
        a('v_cmp_ne_u32 vcc, 0x80808080, v5')
        a(f's_cbranch_vccz {Ld}')
        a('s_sleep 1')
        a('s_add_u32 s6, s6, 1')
        a('s_cmp_lt_u32 s6, 0x40000')
        a(f's_cbranch_scc1 {Lp}')
        a(f'{Ld}:')
        a(f'{Lo}:')
        a('s_barrier')

    def ln1_issue(self):
        a = self.a
        self.srd(SRD_A, P_X, 2048 * 1280)
        a('v_lshrrev_b32 v3, 5, v0')
        a('v_and_b32 v4, 31, v0')
        a('v_mul_u32_u24 v5, 0x500, v3')
        a('v_lshl_add_u32 v5, v4, 3, v5')
        a('s_mul_i32 s3, s2, 10240')
        for q in range(5):
            a(f'buffer_load_dwordx2 {vr(8+2*q,2)}, v5, {sr(SRD_A)}, s3 offen offset:{256*q}')

    def rowsum32(self, v, t):
        a = self.a
        for r in (8, 4, 2, 1):
            a(f'v_add_f32_dpp v{v}, v{v}, v{v} row_ror:{r} row_mask:0xf bank_mask:0xf')
        a(f'v_mov_b32 v{t}, v{v}')
        a(f'v_permlane16_swap_b32 v{v}, v{t}')
        a(f'v_add_f32 v{v}, v{v}, v{t}')

    def bf16r(self, dst, src):
        a = self.a
        a(f'v_cvt_pk_bf16_f32 v{dst}, v{src}, v{src}')
        a(f'v_and_b32 v{dst}, 0xffff0000, v{dst}')

    def ln1_compute(self, nlater):
        a = self.a
        F = 20
        a(f's_waitcnt vmcnt({nlater})')
        self.stamp('xarr')
        for k in range(10):
            a(f'v_lshlrev_b32 v{F+2*k}, 16, v{8+k}')
            a(f'v_and_b32 v{F+2*k+1}, 0xffff0000, v{8+k}')
        a(f'v_pk_add_f32 v[40:41], {vr(F,2)}, {vr(F+2,2)}')
        for k in range(2, 10):
            a(f'v_pk_add_f32 v[40:41], v[40:41], {vr(F+2*k,2)}')
        a('v_add_f32 v40, v40, v41')
        self.rowsum32(40, 41)
        a(f'v_mul_f32 v40, {f2u(1.0/640):#x}, v40')
        a('v_mov_b32 v41, v40')
        for k in range(10):
            a(f'v_pk_add_f32 v[44:45], {vr(F+2*k,2)}, v[40:41] neg_lo:[0,1] neg_hi:[0,1]')
            if k == 0:
                a('v_pk_mul_f32 v[42:43], v[44:45], v[44:45]')
            else:
                a('v_pk_fma_f32 v[42:43], v[44:45], v[44:45], v[42:43]')
        a('v_add_f32 v42, v42, v43')
        self.rowsum32(42, 43)
        a(f'v_mul_f32 v42, {f2u(1.0/640):#x}, v42')
        self.bf16r(40, 40)
        a('v_mov_b32 v41, v40')
        self.bf16r(42, 42)
        a(f'v_add_f32 v42, {f2u(1e-5):#x}, v42')
        self.bf16r(42, 42)
        a('v_sqrt_f32 v42, v42')
        self.bf16r(42, 42)
        a('v_rcp_f32 v42, v42')
        a('v_mov_b32 v43, v42')
        U = 48
        for k in range(10):
            a(f'v_pk_add_f32 v[44:45], {vr(F+2*k,2)}, v[40:41] neg_lo:[0,1] neg_hi:[0,1]')
            a('v_cvt_pk_bf16_f32 v46, v44, v45')
            a('v_lshlrev_b32 v44, 16, v46')
            a('v_and_b32 v45, 0xffff0000, v46')
            a('v_pk_mul_f32 v[44:45], v[44:45], v[42:43]')
            a(f'v_cvt_pk_bf16_f32 v{U+2*k}, v44, v{F+2*k}')
            a(f'v_cvt_pk_bf16_f32 v{U+2*k+1}, v45, v{F+2*k+1}')
        a('v_mul_u32_u24 v6, 2624, v3')
        a('v_lshl_add_u32 v6, v4, 4, v6')
        for q in range(5):
            a(f'ds_write_b128 v6, {vr(U+4*q,4)} offset:{512*q}')
        a('v_bfe_u32 v7, v2, 2, 2')
        a('v_mul_u32_u24 v7, 2624, v7')
        a('v_lshrrev_b32 v6, 4, v2')
        a('v_lshl_add_u32 v7, v6, 5, v7')
        a('v_and_b32 v6, 3, v2')
        a('v_lshl_add_u32 v7, v6, 3, v7')
        a(f's_lshl_b32 s3, s{sWAVE}, 7')
        a('v_add_u32 v7, s3, v7')
        a('s_waitcnt lgkmcnt(0)')
        self.stamp('lncomp')
        a('s_barrier')
        T = 68
        for k in range(5):
            a(f'ds_read_b64_tr_b16 {vr(T+4*k,2)}, v7 offset:{512*k}')
            a(f'ds_read_b64_tr_b16 {vr(T+4*k+2,2)}, v7 offset:{512*k+4*2624}')
        a('v_lshlrev_b32 v6, 4, v2')
        a(f's_lshl_b32 s3, s{sWAVE}, 10')
        a('v_add_u32 v6, s3, v6')
        a('s_mul_i32 s3, s2, 20480')
        if BLK: a(f's_add_u32 s3, s3, {BLK}')
        for k in range(5):
            a(f's_waitcnt lgkmcnt({2*(4-k)})')
            a(f'buffer_store_dwordx4 {vr(T+4*k,4)}, v6, {sr(SRD_WS)}, s3 offen{self.sc}')
            if k < 4: a('s_add_u32 s3, s3, 4096')

    LDSP = 24576
    def prep_issue(self):
        a = self.a
        Lw2 = a.label('Lpw2'); Lnone = a.label('Lpnone'); Ldone = a.label('Lpdone')
        a('s_sub_u32 s5, s2, 160')
        a('s_mov_b32 s60, 0')
        a('s_cmp_lt_u32 s5, 27')
        a(f's_cbranch_scc0 {Lw2}')
        a('s_mov_b32 s60, 1')
        a('s_mov_b32 s61, s5')
        a(f's_mov_b32 s62, s{sWAVE}')
        self.srd(SRD_B, P_W1, 640 * 3456)
        a('v_lshrrev_b32 v90, 3, v2')
        a('v_mul_u32_u24 v90, 3456, v90')
        a('v_and_b32 v91, 7, v2')
        a('v_lshl_add_u32 v90, v91, 4, v90')
        a('s_mul_i32 s6, s62, %d' % (160 * 3456))
        a('s_lshl_b32 s7, s61, 7')
        a('s_add_u32 s6, s6, s7')
        a(f's_mul_i32 s7, s{sWAVE}, 20480')
        a(f's_add_u32 m0, s7, {self.LDSP}')
        for i in range(20):
            a(f'buffer_load_dwordx4 v90, {sr(SRD_B)}, s6 offen lds')
            if i < 19:
                a('s_add_u32 m0, m0, 1024')
                a(f's_add_u32 s6, s6, {8*3456}')
        a(f's_branch {Ldone}')
        a(f'{Lw2}:')
        a('s_cmp_lt_u32 s5, 72')
        a(f's_cbranch_scc0 {Ldone}')
        a('s_mov_b32 s60, 2')
        a('s_sub_u32 s5, s5, 27')
        a('s_lshl_b32 s5, s5, 2')
        a(f's_add_u32 s5, s5, s{sWAVE}')
        a('s_mul_i32 s61, s5, 3641')
        a('s_lshr_b32 s61, s61, 16')
        a('s_mul_i32 s6, s61, 18')
        a('s_sub_u32 s62, s5, s6')
        self.srd(SRD_B, P_W2, 1728 * 1280)
        a('v_lshrrev_b32 v90, 3, v2')
        a('v_mul_u32_u24 v90, 1280, v90')
        a('v_and_b32 v91, 7, v2')
        a('v_lshl_add_u32 v90, v91, 4, v90')
        a('s_mul_i32 s6, s62, %d' % (96 * 1280))
        a('s_lshl_b32 s7, s61, 7')
        a('s_add_u32 s6, s6, s7')
        a(f's_mul_i32 s7, s{sWAVE}, 20480')
        a(f's_add_u32 m0, s7, {self.LDSP}')
        for i in range(12):
            a(f'buffer_load_dwordx4 v90, {sr(SRD_B)}, s6 offen lds')
            if i < 11:
                a('s_add_u32 m0, m0, 1024')
                a(f's_add_u32 s6, s6, {8*1280}')
        a(f'{Ldone}:')

    def ct_of_T(self):
        a = self.a
        a('s_mul_i32 s64, s63, 4682')
        a('s_lshr_b32 s64, s64, 16')
        a('s_mul_i32 s65, s64, 14')
        a('s_sub_u32 s65, s63, s65')
        a('s_lshl_b32 s66, s64, 1')
        a('s_add_u32 s67, s66, 1')
        a('s_sub_u32 s68, s65, 8')
        a('s_cmp_eq_u32 s65, 7')
        a('s_cselect_b32 s68, 6, s68')
        a('s_cmp_lt_u32 s65, 7')
        a('s_cselect_b32 s66, s66, s67')
        a('s_cselect_b32 s68, s65, s68')
        a('s_sub_u32 s64, s63, 84')
        a('s_mul_i32 s65, s64, 10923')
        a('s_lshr_b32 s65, s65, 16')
        a('s_mul_i32 s67, s65, 6')
        a('s_sub_u32 s67, s64, s67')
        a('s_add_u32 s65, s65, 12')
        a('s_cmp_ge_u32 s63, 84')
        a('s_cselect_b32 s66, s65, s66')
        a('s_cselect_b32 s68, s67, s68')
        a('s_cmp_eq_u32 s68, 5')
        a('s_cselect_b32 s69, 1, 0')
        a('s_cmp_ge_u32 s66, 12')
        a('s_cselect_b32 s69, s69, 0')

    def ln1_compute_multi(self):
        self.ln1_compute(0)

    def dump_kc(self):
        a = self.a
        a('s_lshl_b32 s5, s2, 2')
        a(f's_add_u32 s5, s5, s{sWAVE}')
        a('s_mul_i32 s5, s5, 17408')
        a(f's_add_u32 s5, s5, {DBGW}')
        a('v_lshlrev_b32 v4, 4, v2')
        a('v_add_u32 v5, s61, v4')
        for i in range(17):
            a(f'ds_read_b128 v[8:11], v5 offset:{1024*i}')
            a('s_waitcnt lgkmcnt(0)')
            a(f'buffer_store_dwordx4 v[8:11], v4, {sr(SRD_WS)}, s5 offen')
            a('s_add_u32 s5, s5, 1024')

    def prep_compute(self):
        a = self.a
        Lw2 = a.label('Lqw2'); Ldone = a.label('Lqdone')
        a('s_cmp_eq_u32 s60, 0')
        a(f's_cbranch_scc1 {Ldone}')
        a('s_waitcnt vmcnt(0)')
        a('v_lshrrev_b32 v90, 4, v2')
        a('v_bfe_u32 v91, v2, 2, 2')
        a('v_and_b32 v92, 3, v2')
        a('v_lshlrev_b32 v93, 4, v2')
        a(f's_mul_i32 s7, s{sWAVE}, 20480')
        a(f's_add_u32 s7, s7, {self.LDSP}')
        a('s_cmp_eq_u32 s60, 1')
        a(f's_cbranch_scc0 {Lw2}')
        a('v_lshl_add_u32 v94, v90, 3, v91')
        a('v_lshlrev_b32 v94, 7, v94')
        a('v_lshl_add_u32 v94, v92, 3, v94')
        a('v_add_u32 v94, s7, v94')
        a('s_mov_b32 s70, 0x3f803f80')
        for tt in range(4):
            a('s_lshl_b32 s63, s61, 2')
            a(f's_add_u32 s63, s63, {tt}')
            self.ct_of_T()
            a('s_mul_i32 s64, s66, 140')
            a('s_add_u32 s64, s64, s68')
            a('s_lshl_b32 s64, s64, 10')
            a('s_mul_i32 s65, s62, %d' % (5 * 7168))
            a('s_add_u32 s64, s64, s65')
            a(f's_add_u32 s64, s64, {W1F}')
            for kk in range(5):
                R = 100 + 4 * kk
                a(f'ds_read_b64_tr_b16 {vr(R,2)}, v94 offset:{kk*4096+tt*32}')
                a(f'ds_read_b64_tr_b16 {vr(R+2,2)}, v94 offset:{kk*4096+tt*32+512}')
            S = 120 + tt
            for kk in range(5):
                R = 100 + 4 * kk
                a(f's_waitcnt lgkmcnt({2*(4-kk)})')
                a(f'buffer_store_dwordx4 {vr(R,4)}, v93, {sr(SRD_WS)}, s64 offen{self.sc}')
                for j in range(4):
                    c = '0' if (kk == 0 and j == 0) else f'v{S}'
                    a(f'v_dot2_f32_bf16 v{S}, v{R+j}, s70, {c}')
                Lskip = a.label('Ldup')
                a('s_cmp_eq_u32 s69, 0')
                a(f's_cbranch_scc1 {Lskip}')
                a('s_add_u32 s65, s64, 1024')
                a(f'buffer_store_dwordx4 {vr(R,4)}, v93, {sr(SRD_WS)}, s65 offen{self.sc}')
                a(f'{Lskip}:')
                if kk < 4: a('s_add_u32 s64, s64, 7168')
            a(f'v_mov_b32 v97, v{S}')
            a(f'v_permlane16_swap_b32 v{S}, v97')
            a(f'v_add_f32 v{S}, v{S}, v97')
            a(f'v_mov_b32 v97, v{S}')
            a(f'v_permlane32_swap_b32 v{S}, v97')
            a(f'v_add_f32 v{S}, v{S}, v97')
        SB = self.LDSP + 4 * 20480
        a('v_and_b32 v98, 15, v2')
        a('v_lshlrev_b32 v98, 2, v98')
        a(f's_lshl_b32 s64, s{sWAVE}, 8')
        a(f's_add_u32 s64, s64, {SB}')
        a('v_add_u32 v97, s64, v98')
        for tt in range(4):
            a(f'ds_write_b32 v97, v{120+tt} offset:{64*tt}')
        a('s_waitcnt lgkmcnt(0)')
        a('s_barrier')
        a(f's_lshl_b32 s64, s{sWAVE}, 6')
        a(f's_add_u32 s64, s64, {SB}')
        a('v_add_u32 v97, s64, v98')
        for w in range(4):
            a(f'ds_read_b32 v{120+w}, v97 offset:{256*w}')
        a('s_lshl_b32 s63, s61, 2')
        a(f's_add_u32 s63, s63, s{sWAVE}')
        self.ct_of_T()
        a('s_mul_i32 s64, s66, 112')
        a('s_lshl_b32 s65, s68, 4')
        a('s_add_u32 s64, s64, s65')
        a('s_lshl_b32 s64, s64, 2')
        a(f's_add_u32 s64, s64, {SP}')
        a('s_waitcnt lgkmcnt(0)')
        a('v_add_f32 v120, v120, v121')
        a('v_add_f32 v122, v122, v123')
        a('v_add_f32 v120, v120, v122')
        a(f'buffer_store_dword v120, v98, {sr(SRD_WS)}, s64 offen{self.sc}')
        Lskip = a.label('Ldup')
        a('s_cmp_eq_u32 s69, 0')
        a(f's_cbranch_scc1 {Lskip}')
        a('s_add_u32 s64, s64, 64')
        a(f'buffer_store_dword v120, v98, {sr(SRD_WS)}, s64 offen{self.sc}')
        a(f'{Lskip}:')
        a(f's_branch {Ldone}')
        a(f'{Lw2}:')
        a('v_lshl_add_u32 v94, v90, 2, v91')
        a('v_lshlrev_b32 v94, 7, v94')
        a('v_lshl_add_u32 v94, v92, 3, v94')
        a('v_add_u32 v94, s7, v94')
        for tt in range(4):
            a('s_lshl_b32 s63, s61, 2')
            a(f's_add_u32 s63, s63, {tt}')
            a('s_mul_i32 s64, s63, 13108')
            a('s_lshr_b32 s64, s64, 16')
            a('s_mul_i32 s65, s64, 5')
            a('s_sub_u32 s65, s63, s65')
            a('s_mul_i32 s64, s64, 270')
            a('s_add_u32 s64, s64, s65')
            a('s_mul_i32 s65, s62, 15')
            a('s_add_u32 s64, s64, s65')
            a('s_lshl_b32 s64, s64, 10')
            a(f's_add_u32 s64, s64, {W2F}')
            for kk in range(3):
                R = 100 + 4 * kk
                a(f'ds_read_b64_tr_b16 {vr(R,2)}, v94 offset:{kk*4096+tt*32}')
                a(f'ds_read_b64_tr_b16 {vr(R+2,2)}, v94 offset:{kk*4096+tt*32+2048}')
            for kk in range(3):
                R = 100 + 4 * kk
                a(f's_waitcnt lgkmcnt({2*(2-kk)})')
                a(f'buffer_store_dwordx4 {vr(R,4)}, v93, {sr(SRD_WS)}, s64 offen{self.sc}')
                if kk < 2: a('s_add_u32 s64, s64, 5120')
        a(f'{Ldone}:')

    WSTRIDE = 30272
    UXB = 4 * 30272
    ROWB = 528
    CPY = 4160
    TBL = 16640
    GA = 100
    VB = 136
    VA = 144; VEU = 145; VHW = 146
    PL = 148

    def kgen_issue(self):
        a = self.a
        a('s_lshl_b32 s5, s2, 2')
        a(f's_add_u32 s5, s5, s{sWAVE}')
        a('s_lshl_b32 s6, s5, 8')
        a('v_lshlrev_b32 v98, 2, v2')
        a('v_add_u32 v98, s6, v98')
        P = self.PL
        a(f'global_load_dword v{P}, v98, s[{P_LA}:{P_LA+1}]')
        a(f'global_load_dword v{P+1}, v98, s[{P_AI}:{P_AI+1}]')
        a(f'global_load_dword v{P+2}, v98, s[{P_CR}:{P_CR+1}]')
        a(f'global_load_dword v{P+3}, v98, s[{P_CI}:{P_CI+1}]')
        a('s_lshl_b32 s6, s5, 1')
        a('v_mov_b32 v99, s6')
        a(f'global_load_ushort v{P+4}, v99, s[{P_LDT}:{P_LDT+1}]')
        a(f'global_load_ushort v{P+5}, v99, s[{P_DSK}:{P_DSK+1}]')
        return 6

    def p2_consts(self):
        a = self.a
        GA, VB, VA = self.GA, self.VB, self.VA
        t0, t1, t2, t3, t4, t5 = 90, 91, 92, 93, 94, 95
        a(f's_mul_i32 s61, s{sWAVE}, {self.WSTRIDE}')
        a(f'v_lshlrev_b32 v{t0}, 5, v2')
        a(f'v_sub_u32 v{t0}, 2047, v{t0}')
        a(f's_add_u32 s6, s61, {self.TBL}')
        a('s_movk_i32 s7, 0x80')
        for e in range(0, 36, 2):
            a(f'v_subrev_u32 v{t1}, {e}, v{t0}')
            a(f'v_subrev_u32 v{t2}, {e+1}, v{t0}')
            a(f'v_cvt_f32_i32 v{t3}, v{t1}')
            a(f'v_cvt_f32_i32 v{t4}, v{t2}')
            a(f'v_cvt_pk_bf16_f32 v{t3}, v{t3}, v{t4}')
            a(f'v_lshrrev_b32 v{t4}, 16, v{t3}')
            a(f'v_and_b32 v{t3}, 0xffff, v{t3}')
            a(f'v_subrev_u32 v{t3}, 0x4280, v{t3}')
            a(f'v_med3_i32 v{t3}, v{t3}, v{t1}, s7')
            a(f'v_lshl_add_u32 v{GA+e}, v{t3}, 1, s6')
            if e + 1 < 35:
                a(f'v_subrev_u32 v{t4}, 0x4280, v{t4}')
                a(f'v_med3_i32 v{t4}, v{t4}, v{t2}, s7')
                a(f'v_lshl_add_u32 v{GA+e+1}, v{t4}, 1, s6')
        i_, g_ = t0, t1
        a(f'v_and_b32 v{i_}, 15, v2')
        a(f'v_lshrrev_b32 v{g_}, 4, v2')
        a(f'v_and_b32 v{t2}, 3, v{i_}')
        a(f'v_sub_u32 v{t2}, 3, v{t2}')
        a(f'v_mul_u32_u24 v{t2}, {self.CPY}, v{t2}')
        a(f'v_lshrrev_b32 v{t3}, 2, v{i_}')
        a(f'v_lshlrev_b32 v{t3}, 3, v{t3}')
        a(f'v_sub_u32 v{t2}, v{t2}, v{t3}')
        a(f'v_lshl_add_u32 v{t2}, v{g_}, 4, v{t2}')
        a(f's_add_u32 s6, s61, {2*(2044-16) - (512*7+64*7)}')
        a(f'v_add_u32 v{VA}, s6, v{t2}')
        a(f'v_lshlrev_b32 v{t2}, 1, v{i_}')
        a(f'v_add_u32 v{t2}, v{t2}, v{g_}')
        a(f'v_lshlrev_b32 v{t2}, 7, v{t2}')
        a(f'v_lshrrev_b32 v{t3}, 1, v{g_}')
        a(f'v_add_u32 v{t3}, v{t3}, v{i_}')
        a(f's_lshl_b32 s7, s{sWAVE}, 1')
        for b in range(8):
            a(f'v_subrev_u32 v{t4}, {2*b+1}, v{t3}')
            a(f'v_and_b32 v{t4}, 7, v{t4}')
            a(f'v_xor_b32 v{t4}, s7, v{t4}')
            a(f'v_lshl_add_u32 v{t4}, v{t4}, 4, v{t2}')
            a(f'v_add_u32 v{VB+b}, {self.UXB + (30-4*b)*128}, v{t4}')
        a(f'v_lshlrev_b32 v{t2}, 1, v{i_}')
        a(f'v_lshrrev_b32 v{t3}, 1, v{g_}')
        a(f'v_add_u32 v{t2}, v{t2}, v{t3}')
        a(f'v_lshlrev_b32 v{t2}, 7, v{t2}')
        a(f'v_and_b32 v{t3}, 7, v{i_}')
        a(f'v_xor_b32 v{t3}, s7, v{t3}')
        a(f'v_lshl_add_u32 v{t2}, v{t3}, 4, v{t2}')
        a(f'v_and_b32 v{t3}, 1, v{g_}')
        a(f'v_lshl_add_u32 v{t2}, v{t3}, 3, v{t2}')
        a(f'v_add_u32 v{self.VEU}, {self.UXB + 32*128}, v{t2}')
        a(f'v_lshlrev_b32 v{t2}, 5, v{i_}')
        a(f'v_lshl_add_u32 v{t2}, v{g_}, 3, v{t2}')
        a(f'v_add_u32 v{self.VHW}, s61, v{t2}')

    def exp_precise(self, dst, x, t1, t2):
        a = self.a
        a(f'v_mul_f32 v{t1}, s62, v{x}')
        a(f'v_fma_f32 v{t2}, v{x}, s62, -v{t1}')
        a(f'v_fma_f32 v{t2}, v{x}, s63, v{t2}')
        a(f'v_exp_f32 v{dst}, v{t1}')
        a(f'v_mul_f32 v{t2}, v{dst}, v{t2}')
        a(f'v_fma_f32 v{dst}, v{t2}, s64, v{dst}')

    def cmul2(self, d0, x0, y0, d1, x1, y1):
        a = self.a
        a(f'v_pk_mul_f32 {vr(d0,2)}, {vr(x0,2)}, {vr(y0,2)} op_sel:[0,0] op_sel_hi:[0,1]')
        a(f'v_pk_mul_f32 {vr(d1,2)}, {vr(x1,2)}, {vr(y1,2)} op_sel:[0,0] op_sel_hi:[0,1]')
        a(f'v_pk_fma_f32 {vr(d0,2)}, {vr(x0,2)}, {vr(y0,2)}, {vr(d0,2)} op_sel:[1,1,0] op_sel_hi:[1,0,1] neg_lo:[1,0,0]')
        a(f'v_pk_fma_f32 {vr(d1,2)}, {vr(x1,2)}, {vr(y1,2)}, {vr(d1,2)} op_sel:[1,1,0] op_sel_hi:[1,0,1] neg_lo:[1,0,0]')

    def kgen(self, nlater):
        a = self.a
        P = self.PL
        ROWB = self.ROWB
        a('s_mov_b32 s62, 0x3fb8aa3b')
        a('s_mov_b32 s63, 0x32a57060')
        a(f's_mov_b32 s64, {f2u(0.6931471805599453):#x}')
        a(f's_mov_b32 s65, {f2u(0.15915494309189535):#x}')
        a(f's_waitcnt vmcnt({nlater})')
        a(f'v_lshlrev_b32 v4, 16, v{P+4}')
        self.exp_precise(10, 4, 5, 6)
        self.bf16r(10, 10)
        for s in range(2):
            def unpack(dst, src):
                if s == 0: a(f'v_lshlrev_b32 v{dst}, 16, v{src}')
                else: a(f'v_and_b32 v{dst}, 0xffff0000, v{src}')
            unpack(4, P)
            self.exp_precise(7, 4, 5, 6)
            self.bf16r(7, 7)
            a('v_mul_f32 v7, v7, v10')
            a(f'v_mul_f32 v{12+s}, s62, v7')
            a(f'v_sub_f32 v{12+s}, 0, v{12+s}')
            unpack(4, P + 1)
            a('v_mul_f32 v4, v4, v10')
            a(f'v_mul_f32 v{14+s}, s65, v4')
            unpack(4, P + 2)
            a('v_mul_f32 v4, v4, v10')
            a(f'v_add_f32 v{16+2*s}, v4, v4')
            unpack(4, P + 3)
            a('v_mul_f32 v4, v4, v10')
            a(f'v_add_f32 v{17+2*s}, v4, v4')
        for zi, p in enumerate((1.0, 8.0, 128.0)):
            for s in range(2):
                d = 20 + 4 * zi + 2 * s
                a(f'v_mul_f32 v4, {f2u(p):#x}, v{12+s}')
                a(f'v_mul_f32 v5, {f2u(p):#x}, v{14+s}')
                a('v_exp_f32 v4, v4')
                a('v_rndne_f32 v6, v5')
                a('v_sub_f32 v5, v5, v6')
                a('v_cos_f32 v6, v5')
                a('v_sin_f32 v7, v5')
                a(f'v_mul_f32 v{d}, v4, v6')
                a(f'v_mul_f32 v{d+1}, v4, v7')
        self.stamp('kz')
        a('v_lshlrev_b32 v11, 3, v2')
        a('v_add_u32 v11, s61, v11')
        wt = [0]
        def put(row, x0, x1, neg=False):
            w = 88 + 2 * wt[0]; wt[0] = (wt[0] + 1) % 4
            n = '-' if neg else ''
            a(f'v_cvt_pk_bf16_f32 v{w}, v{x0}, {n}v{x0+1}')
            a(f'v_cvt_pk_bf16_f32 v{w+1}, v{x1}, {n}v{x1+1}')
            a(f'ds_write_b64 v11, {vr(w,2)} offset:{row*ROWB}')
        LO = 32
        def lo(c, s): return (20 + 2 * s) if c == 1 else LO + 4 * (c - 2) + 2 * s
        def mk(c, x, y): self.cmul2(lo(c, 0), lo(x, 0), lo(y, 0), lo(c, 1), lo(x, 1), lo(y, 1))
        mk(2, 1, 1); mk(3, 2, 1); mk(4, 2, 2); mk(5, 4, 1); mk(6, 4, 2); mk(7, 4, 3)
        a('v_mov_b32 v60, 1.0'); a('v_mov_b32 v61, 0'); a('v_mov_b32 v62, 1.0'); a('v_mov_b32 v63, 0')
        put(41, 60, 62, neg=True)
        put(42, 24, 26, neg=True)
        cur = 24; E = [64, 68]
        for j in range(2, 16):
            nx = E[j & 1]
            self.cmul2(nx, cur, 24, nx + 2, cur + 2, 26)
            put(41 + j, nx, nx + 2, neg=True)
            cur = nx
        H = [72, 76]; T = [80, 84]
        cur = 16; tt = 0
        for i in range(17):
            if i > 0:
                nx = H[i & 1]
                self.cmul2(nx, cur, 28, nx + 2, cur + 2, 30)
                cur = nx
            if i < 2: rows = [(8 * i + c, c) for c in range(8)]
            elif i < 4: rows = [(16 + 4 * (i - 2) + c, 2 * c) for c in range(4)]
            elif i < 8: rows = [(24 + 2 * (i - 4) + c, 4 * c) for c in range(2)]
            else: rows = [(32 + (i - 8), 0)]
            for (row, c) in rows:
                if c == 0:
                    put(row, cur, cur + 2)
                else:
                    t = T[tt]; tt ^= 1
                    self.cmul2(t, cur, lo(c, 0), t + 2, cur + 2, lo(c, 1))
                    put(row, t, t + 2)
        self.stamp('kchain')
        a('v_and_b32 v5, 15, v2')
        a('v_lshrrev_b32 v6, 4, v2')
        a(f'v_mul_u32_u24 v11, {ROWB}, v5')
        a('v_lshl_add_u32 v11, v6, 4, v11')
        a('v_add_u32 v11, s61, v11')
        FR = 164
        for half in range(2):
            for kk in range(4):
                kap = 4 * half + kk
                a(f'ds_read_b128 {vr(FR+16*kk,4)}, v11 offset:{41*ROWB + kap*64}')
                for T_ in range(3):
                    a(f'ds_read_b128 {vr(FR+16*kk+4+4*T_,4)}, v11 offset:{16*T_*ROWB + kap*64}')
            for kk in range(4):
                kap = 4 * half + kk
                a(f's_waitcnt lgkmcnt({4*(3-kk)})')
                for T_ in range(3):
                    c = '0' if kap == 0 else vr(12 + 4 * T_, 4)
                    a(f'v_mfma_f32_16x16x32_bf16 {vr(12+4*T_,4)}, {vr(FR+16*kk+4+4*T_,4)}, {vr(FR+16*kk,4)}, {c}')
        a(f's_add_u32 s6, s61, {self.TBL}')
        a('v_lshrrev_b32 v7, 1, v6'); a('v_lshlrev_b32 v7, 7, v7')
        a('v_and_b32 v8, 1, v6'); a('v_lshl_add_u32 v7, v8, 2, v7')
        a('v_lshl_add_u32 v7, v5, 3, v7')
        a('v_lshl_add_u32 v7, v7, 1, s6')
        a('v_lshlrev_b32 v8, 6, v6')
        a('v_lshlrev_b32 v9, 2, v5')
        a('v_lshlrev_b32 v10, 1, v5')
        a('v_cmp_gt_u32 vcc, 2, v6')
        a('v_cndmask_b32 v9, v10, v9, vcc')
        a('v_add_u32 v8, v8, v9')
        a('v_add_u32 v8, 256, v8')
        a('v_lshl_add_u32 v8, v8, 1, s6')
        a('v_mov_b32 v9, 64')
        a('v_mov_b32 v10, 4')
        a('v_cndmask_b32 v9, v9, v10, vcc')
        a('v_add_u32 v9, v8, v9')
        a('v_lshlrev_b32 v10, 6, v6')
        a('v_add_u32 v10, v10, v5')
        a('v_lshl_add_u32 v10, v10, 1, s6')
        a('v_cvt_pk_bf16_f32 v24, v12, v13'); a('v_cvt_pk_bf16_f32 v25, v14, v15')
        a('ds_write_b64 v7, v[24:25]')
        a('v_cvt_pk_bf16_f32 v26, v16, v17'); a('v_cvt_pk_bf16_f32 v27, v18, v19')
        a('ds_write_b32 v8, v26'); a('ds_write_b32 v9, v27')
        a('v_cvt_pk_bf16_f32 v28, v20, v21'); a('v_cvt_pk_bf16_f32 v29, v22, v23')
        a('ds_write_b16 v10, v28 offset:1024'); a('ds_write_b16_d16_hi v10, v28 offset:1056')
        a('ds_write_b16 v10, v29 offset:1088'); a('ds_write_b16_d16_hi v10, v29 offset:1120')
        self.stamp('kmfma')
        self.kgen_tail()

    def kgen_tail(self):
        a = self.a
        D = 32
        HI = 70
        for w in range(17):
            a(f'ds_read_u16 v{D+w}, v{self.GA+2*w}')
            a(f'ds_read_u16 v{HI+w}, v{self.GA+2*w+1}')
        a(f'ds_read_u16 v{D+17}, v{self.GA+34}')
        a('v_lshlrev_b32 v7, 6, v2')
        a('v_add_u32 v7, s61, v7')
        a(f'v_add_u32 v8, {2*self.CPY}, v7')
        a(f'v_add_u32 v9, {3*self.CPY}, v7')
        a('v_and_b32 v10, 15, v2')
        a('v_lshlrev_b32 v10, 2, v10')
        a('v_add_u32 v10, s61, v10')
        a('v_mov_b32 v11, 0')
        a('s_waitcnt lgkmcnt(0)')
        for w in range(17):
            a(f'v_lshl_or_b32 v{D+w}, v{HI+w}, 16, v{D+w}')
        a(f'v_writelane_b32 v{D+16}, 0, 63')
        a(f'v_writelane_b32 v{D+17}, 0, 63')
        self.stamp('kgath')
        O = 52
        for w in range(17):
            a(f'v_alignbit_b32 v{O+w}, v{D+w+1}, v{D+w}, 16')
        for i in range(4):
            a(f'ds_write_b128 v7, {vr(D+4*i,4)} offset:{16*i}')
            a(f'ds_write_b128 v7, {vr(O+4*i,4)} offset:{self.CPY+16*i}')
        for i in range(0, 16, 2):
            a(f'ds_write2_b32 v8, v{D+i+1}, v{D+i+2} offset0:{i} offset1:{i+1}')
            a(f'ds_write2_b32 v9, v{O+i+1}, v{O+i+2} offset0:{i} offset1:{i+1}')
        for c in range(4):
            a(f'ds_write_b32 v10, v11 offset:{c*self.CPY+4096}')

    def conv_load_ux(self):
        a = self.a
        a('v_lshrrev_b32 v4, 3, v2')
        a('v_mul_u32_u24 v5, 20480, v4')
        a('v_and_b32 v6, 7, v2')
        a('v_lshl_add_u32 v5, v6, 4, v5')
        a(f's_mul_i32 s5, s{sWAVE}, {64*20480}')
        a('s_lshl_b32 s6, s2, 7')
        a('s_add_u32 s5, s5, s6')
        if BLK: a(f's_add_u32 s5, s5, {BLK}')
        for k in range(8):
            a(f'buffer_load_dwordx4 {vr(160+4*k,4)}, v5, {sr(SRD_WS)}, s5 offen{self.sc}')
            if k < 7: a(f's_add_u32 s5, s5, {8*20480}')
        a('v_lshrrev_b32 v7, 4, v2')
        a('v_xor_b32 v8, v6, v7')
        a('v_xor_b32 v9, 4, v8')
        a('v_lshlrev_b32 v4, 7, v4')
        a(f's_lshl_b32 s6, s{sWAVE}, 13')
        a(f's_add_u32 s6, s6, {self.UXB + 4096}')
        a('v_add_u32 v4, s6, v4')
        a('v_lshl_add_u32 v8, v8, 4, v4')
        a('v_lshl_add_u32 v9, v9, 4, v4')
        a('v_mov_b32 v12, 0'); a('v_mov_b32 v13, 0'); a('v_mov_b32 v14, 0'); a('v_mov_b32 v15, 0')
        a('v_lshlrev_b32 v10, 4, v0')
        a(f'v_add_u32 v10, {self.UXB}, v10')
        a('ds_write_b128 v10, v[12:15]')
        for k in range(8):
            a(f's_waitcnt vmcnt({7-k})')
            a(f'ds_write_b128 v{8 + (k&1)}, {vr(160+4*k,4)} offset:{k*1024}')
        a('s_waitcnt lgkmcnt(0)')
        a('s_barrier')

    def conv_main(self, hook=None):
        a = self.a
        ACC = 12
        bufA = [44, 156]; bufB = [76, 188]
        def reads(b):
            sel = b & 1
            lst = []
            for aa in range(8):
                off = 512 * (7 - aa) + 64 * (7 - b)
                lst.append(f'ds_read_b64 {vr(bufA[sel]+4*aa,2)}, v{self.VA} offset:{off}')
                lst.append(f'ds_read_b64 {vr(bufA[sel]+4*aa+2,2)}, v{self.VA} offset:{off+8}')
            for e in range(8):
                lst.append(f'ds_read_b128 {vr(bufB[sel]+4*e,4)}, v{self.VB+b} offset:{4096*e}')
            order = []
            for k in range(8):
                order += [lst[2*k], lst[2*k+1], lst[16+k]]
            return order
        for r in reads(0): a(r)
        for b in range(8):
            sel = b & 1
            nxt = reads(b + 1) if b < 7 else []
            a('s_waitcnt lgkmcnt(0)')
            n = 0
            for aa in range(8):
                for e in range(8 - aa):
                    t = aa + e
                    c = '0' if (b == 0 and aa == 0) else vr(ACC + 4 * t, 4)
                    a(f'v_mfma_f32_16x16x32_bf16 {vr(ACC+4*t,4)}, {vr(bufA[sel]+4*aa,4)}, {vr(bufB[sel]+4*e,4)}, {c}')
                    if n < len(nxt): a(nxt[n])
                    if hook: hook(b, n)
                    n += 1

    def conv_epilogue(self):
        a = self.a
        ACC = 12
        P = self.PL
        a(f'v_xor_b32 v4, 16, v{self.VEU}')
        for t in range(8):
            a(f'ds_read_b64 {vr(44+4*t,2)}, v{self.VEU} offset:{4096*t}')
            a(f'ds_read_b64 {vr(46+4*t,2)}, v4 offset:{4096*t}')
        a(f'v_lshlrev_b32 v6, 16, v{P+5}')
        a('v_mov_b32 v7, v6')
        for t in range(8):
            a(f's_waitcnt lgkmcnt({2*(7-t)})')
            for h in range(2):
                u = 44 + 4 * t + h; x = 46 + 4 * t + h; y0 = ACC + 4 * t + 2 * h
                a(f'v_lshlrev_b32 v8, 16, v{u}')
                a(f'v_and_b32 v9, 0xffff0000, v{u}')
                a('v_pk_mul_f32 v[8:9], v[8:9], v[6:7]')
                a('v_cvt_pk_bf16_f32 v10, v8, v9')
                a(f'v_cvt_pk_bf16_f32 v11, v{y0}, v{y0+1}')
                a('v_lshlrev_b32 v8, 16, v10')
                a('v_and_b32 v9, 0xffff0000, v10')
                a('v_lshlrev_b32 v76, 16, v11')
                a('v_and_b32 v77, 0xffff0000, v11')
                a('v_pk_add_f32 v[8:9], v[8:9], v[76:77]')
                a('v_cvt_pk_bf16_f32 v10, v8, v9')
                a('v_lshlrev_b32 v8, 16, v10')
                a('v_and_b32 v9, 0xffff0000, v10')
                a(f'v_lshlrev_b32 v76, 16, v{x}')
                a(f'v_and_b32 v77, 0xffff0000, v{x}')
                a('v_pk_add_f32 v[8:9], v[8:9], v[76:77]')
                a(f'v_cvt_pk_bf16_f32 v{80+2*t+h}, v8, v9')
            a(f'ds_write_b64 v{self.VHW}, {vr(80+2*t,2)} offset:{512*t}')
        self.stamp('cep1')
        a('v_bfe_u32 v4, v2, 2, 2')
        a(f'v_mul_u32_u24 v4, {self.WSTRIDE}, v4')
        a('v_lshrrev_b32 v5, 4, v2')
        a('v_lshl_add_u32 v4, v5, 5, v4')
        a('v_and_b32 v6, 3, v2')
        a('v_lshl_add_u32 v4, v6, 3, v4')
        a(f's_lshl_b32 s5, s{sWAVE}, 10')
        a('v_add_u32 v4, s5, v4')
        a('v_mul_u32_u24 v5, 20480, v5')
        a('v_and_b32 v6, 15, v2')
        a('v_lshl_add_u32 v5, v6, 4, v5')
        a(f's_mul_i32 s5, s{sWAVE}, {8*81920}')
        a('s_lshr_b32 s6, s2, 3')
        a('s_lshl_b32 s6, s6, 10')
        a('s_add_u32 s5, s5, s6')
        a('s_bfe_u32 s6, s2, 0x20001')
        a('s_lshl_b32 s6, s6, 8')
        a('s_add_u32 s5, s5, s6')
        a('s_and_b32 s6, s2, 1')
        a('s_lshl_b32 s6, s6, 3')
        a('s_add_u32 s5, s5, s6')
        a(f's_add_u32 s5, s5, {HF}')
        a('s_waitcnt lgkmcnt(0)')
        a('s_barrier')
        for m in range(8):
            a(f'ds_read_b64_tr_b16 {vr(44+2*m,2)}, v4 offset:{128*m}')
        for m in range(8):
            a(f's_waitcnt lgkmcnt({7-m})')
            a(f'buffer_store_dwordx2 {vr(44+2*m,2)}, v5, {sr(SRD_WS)}, s5 offen{self.sc}')
            if m < 7: a('s_add_u32 s5, s5, 81920')

    def p3_ids(self):
        a = self.a
        a('s_and_b32 s66, s2, 7')
        a('s_lshl_b32 s66, s66, 1')
        a('s_bfe_u32 s5, s2, 0x10003')
        a('s_add_u32 s66, s66, s5')
        a('s_lshr_b32 s67, s2, 4')

    def p3_w1_dma(self):
        a = self.a
        a('v_lshlrev_b32 v3, 4, v2')
        a(f's_mul_i32 s5, s67, {140*1024}')
        a(f's_lshl_b32 s6, s{sWAVE}, 10')
        a('s_add_u32 s5, s5, s6')
        a(f's_add_u32 s5, s5, {W1F}')
        a('s_mov_b32 m0, s6')
        for i in range(35):
            a(f'buffer_load_dwordx4 v3, {sr(SRD_WS)}, s5 offen{self.sc} lds')
            if i < 34:
                a('s_add_u32 m0, m0, 4096')
                a('s_add_u32 s5, s5, 4096')
        return 35

    P3H = 96
    def p3_h_loads(self):
        a = self.a
        a('v_lshlrev_b32 v3, 4, v2')
        a('s_lshl_b32 s5, s66, 3')
        a(f's_lshl_b32 s6, s{sWAVE}, 1')
        a('s_add_u32 s5, s5, s6')
        a('s_mul_i32 s5, s5, 20480')
        a(f's_add_u32 s5, s5, {HF}')
        a('s_add_u32 s6, s5, 20480')
        for kap in range(20):
            for lt in range(2):
                base = 's5' if lt == 0 else 's6'
                a(f'buffer_load_dwordx4 {vr(self.P3H+(2*kap+lt)*4,4)}, v3, {sr(SRD_WS)}, {base} offen offset:{(kap%4)*1024}{self.sc}')
            if kap % 4 == 3 and kap < 19:
                a('s_add_u32 s5, s5, 4096'); a('s_add_u32 s6, s6, 4096')
        return 40

    def p3_s_load(self):
        a = self.a
        a('v_lshrrev_b32 v3, 4, v2')
        a('v_lshlrev_b32 v3, 4, v3')
        a('s_mul_i32 s5, s67, 448')
        a(f's_add_u32 s5, s5, {SP}')
        for t in range(7):
            a(f'buffer_load_dwordx4 {vr(64+4*t,4)}, v3, {sr(SRD_WS)}, s5 offen offset:{64*t}{self.sc}')
        return 7

    def p3_b1_load(self):
        a = self.a
        self.srd(SRD_B, P_B1, 1728 * 2)
        a('s_lshr_b32 s5, s67, 1'); a('s_mul_i32 s5, s5, 14')
        a('s_and_b32 s6, s67, 1'); a('s_lshl_b32 s7, s6, 3'); a('s_add_u32 s5, s5, s7')
        a('s_sub_u32 s7, s67, 12'); a('s_mul_i32 s7, s7, 6'); a('s_add_u32 s7, s7, 84')
        a('s_cmp_lt_u32 s67, 12')
        a('s_cselect_b32 s5, s5, s7')
        a('s_add_u32 s7, s5, 6'); a('s_sub_u32 s68, s5, 1')
        a('s_cmp_eq_u32 s6, 0'); a('s_cselect_b32 s7, s7, s68')
        a('s_add_u32 s68, s5, 5')
        a('s_cmp_lt_u32 s67, 12'); a('s_cselect_b32 s7, s7, s68')
        a('s_mov_b32 s68, s5')
        a('s_mov_b32 s69, s7')
        a('s_lshl_b32 s5, s5, 5'); a('s_lshl_b32 s7, s7, 5')
        a('v_lshrrev_b32 v94, 4, v2')
        a('v_lshlrev_b32 v94, 3, v94')
        for t in range(6):
            a(f'buffer_load_dwordx2 {vr(96+2*t,2)}, v94, {sr(SRD_B)}, s5 offen offset:{32*t}')
        a(f'buffer_load_dwordx2 {vr(108,2)}, v94, {sr(SRD_B)}, s7 offen')
        return 7

    def p3_main(self, hwait):
        a = self.a
        ACC = 8
        WB = [200, 228]
        a('v_lshlrev_b32 v3, 4, v2')
        a('s_mov_b32 s70, 0x3f803f80')
        a('v_add_u32 v92, 0x10000, v3')
        a('v_add_u32 v93, 0x20000, v3')
        def rd(kap, t):
            off = (kap * 7 + t) * 1024
            reg = ['v3', 'v92', 'v93'][off >> 16]
            return f'ds_read_b128 {ar(WB[kap&1]+4*t,4)}, {reg} offset:{off & 0xffff}'
        for t in range(7): a(rd(0, t))
        for kap in range(20):
            a(f's_waitcnt vmcnt({hwait(kap)}) lgkmcnt(0)')
            h0 = self.P3H + (2 * kap) * 4; h1 = h0 + 4
            extra = []
            if kap < 19: extra += [rd(kap + 1, t) for t in range(7)]
            dots = []
            for lt, h in ((0, h0), (1, h1)):
                for j in range(4):
                    if kap == 0 and j == 0:
                        dots.append(f'v_dot2_f32_bf16 v{4+2*lt}, v{h+j}, s70, 0')
                        dots.append(f'v_dot2_f32_bf16 v{5+2*lt}, v{h+j}, v{h+j}, 0')
                    else:
                        dots.append(f'v_dot2_f32_bf16 v{4+2*lt}, v{h+j}, s70, v{4+2*lt}')
                        dots.append(f'v_dot2_f32_bf16 v{5+2*lt}, v{h+j}, v{h+j}, v{5+2*lt}')
            n = 0
            for t in range(7):
                for lt, h in ((0, h0), (1, h1)):
                    acc = ACC + (t * 2 + lt) * 4
                    c = '0' if kap == 0 else vr(acc, 4)
                    a(f'v_mfma_f32_16x16x32_bf16 {vr(acc,4)}, {ar(WB[kap&1]+4*t,4)}, {vr(h,4)}, {c}')
                    if extra: a(extra.pop(0)) if n % 2 == 0 else None
                    if dots: a(dots.pop(0))
                    n += 1
            for e in extra: a(e)
            for d in dots: a(d)
            if self.p3_hook: self.p3_hook(kap)

    def p3_epilogue(self):
        a = self.a
        ACC = 8
        for v in (4, 5, 6, 7):
            a(f'v_mov_b32 v94, v{v}')
            a(f'v_permlane16_swap_b32 v{v}, v94')
            a(f'v_add_f32 v{v}, v{v}, v94')
            a(f'v_mov_b32 v94, v{v}')
            a(f'v_permlane32_swap_b32 v{v}, v94')
            a(f'v_add_f32 v{v}, v{v}, v94')
        for lt in range(2):
            s_, q_ = 4 + 2 * lt, 5 + 2 * lt
            a(f'v_mul_f32 v{s_}, {f2u(1.0/640):#x}, v{s_}')
            a(f'v_mul_f32 v{q_}, {f2u(1.0/640):#x}, v{q_}')
            a(f'v_fma_f32 v{q_}, -v{s_}, v{s_}, v{q_}')
            a(f'v_max_f32 v{q_}, 0, v{q_}')
            self.bf16r(s_, s_)
            self.bf16r(q_, q_)
            a(f'v_add_f32 v{q_}, {f2u(1e-5):#x}, v{q_}')
            self.bf16r(q_, q_)
            a(f'v_sqrt_f32 v{q_}, v{q_}')
            self.bf16r(q_, q_)
            R = 112 + 4 * lt
            a(f'v_rcp_f32 v{R}, v{q_}')
            a(f'v_mov_b32 v{R+2}, v{s_}')
            a(f'v_mov_b32 v{R+1}, v{R}')
            a(f'v_mov_b32 v{R+3}, v{s_}')
        a('s_mov_b32 s70, 0x00003f80')
        a('s_mov_b32 s71, 0x3f800000')
        a('s_waitcnt vmcnt(0)')
        for t in range(7):
            for h in range(2):
                a(f'v_lshlrev_b32 v{120+4*t+2*h}, 16, v{96+2*t+h}')
                a(f'v_and_b32 v{120+4*t+2*h+1}, 0xffff0000, v{96+2*t+h}')
        OUT = 150
        def outreg(t, lt):
            if t < 6: return OUT + ((t >> 1) * 2 + lt) * 4 + (t & 1) * 2
            return OUT + 24 + lt * 2
        for t in range(7):
            for lt in range(2):
                acc = ACC + (t * 2 + lt) * 4
                R = 112 + 4 * lt
                for h in range(2):
                    x = acc + 2 * h; S = 64 + 4 * t + 2 * h; B = 120 + 4 * t + 2 * h
                    a(f'v_pk_fma_f32 {vr(x,2)}, {vr(S,2)}, {vr(R+2,2)}, {vr(x,2)} neg_lo:[1,0,0] neg_hi:[1,0,0]')
                    a(f'v_pk_mul_f32 {vr(x,2)}, {vr(x,2)}, {vr(R,2)}')
                    a(f'v_cvt_pk_bf16_f32 v94, v{x}, v{x+1}')
                    a(f'v_dot2_f32_bf16 v{x}, v94, s70, v{B}')
                    a(f'v_dot2_f32_bf16 v{x+1}, v94, s71, v{B+1}')
                    a(f'v_cvt_pk_bf16_f32 v94, v{x}, v{x+1}')
                    a('v_pk_max_i16 v94, v94, 0')
                    a(f'v_lshlrev_b32 v{x}, 16, v94')
                    a(f'v_and_b32 v{x+1}, 0xffff0000, v94')
                    a(f'v_pk_mul_f32 {vr(x,2)}, {vr(x,2)}, {vr(x,2)}')
                    a(f'v_cvt_pk_bf16_f32 v{outreg(t,lt)+h}, v{x}, v{x+1}')
        a('v_lshlrev_b32 v3, 4, v2')
        a('s_lshl_b32 s5, s66, 3')
        a(f's_lshl_b32 s6, s{sWAVE}, 1')
        a('s_add_u32 s5, s5, s6')
        a(f's_mul_i32 s5, s5, {54*1024}')
        a(f's_add_u32 s5, s5, {HH}')
        a('s_lshr_b32 s6, s68, 1')
        a('s_lshl_b32 s6, s6, 10')
        a('s_add_u32 s6, s6, s5')
        a(f's_add_u32 s7, s6, {54*1024}')
        for p in range(3):
            for lt, sb in ((0, 's6'), (1, 's7')):
                a(f'buffer_store_dwordx4 {vr(OUT+(p*2+lt)*4,4)}, v3, {sr(SRD_WS)}, {sb} offen offset:{1024*p}{self.sc}')
        Lsk = a.label('Lp3s')
        a('s_cmp_ge_u32 s67, 12')
        a(f's_cbranch_scc1 {Lsk}')
        a('s_lshr_b32 s6, s69, 1')
        a('s_lshl_b32 s6, s6, 10')
        a('s_and_b32 s7, s69, 1')
        a('s_lshl_b32 s7, s7, 3')
        a('s_add_u32 s6, s6, s7')
        a('s_add_u32 s6, s6, s5')
        a(f's_add_u32 s7, s6, {54*1024}')
        for lt, sb in ((0, 's6'), (1, 's7')):
            a(f'buffer_store_dwordx2 {vr(OUT+24+lt*2,2)}, v3, {sr(SRD_WS)}, {sb} offen{self.sc}')
        a(f'{Lsk}:')

    def p4_ids(self):
        a = self.a
        a('s_and_b32 s72, s2, 7')
        a('s_lshl_b32 s72, s72, 2')
        a('s_bfe_u32 s5, s2, 0x20003')
        a('s_add_u32 s72, s72, s5')
        a('s_lshr_b32 s73, s2, 5')
        a(f's_mul_i32 s74, s{sWAVE}, 14')
        a(f's_cmp_eq_u32 s{sWAVE}, 3')
        a('s_cselect_b32 s5, 1, 0')
        a('s_sub_u32 s74, s74, s5')
        a(f's_cmp_ge_u32 s{sWAVE}, 2')
        a('s_cselect_b32 s75, 12, 13')

    def w2reg(self, idx):
        if idx < 64: return ar(4 * idx, 4)
        return vr(88 + 4 * (idx - 64), 4)

    def p4_w2_loads(self, lo, hi):
        a = self.a
        a('v_lshlrev_b32 v3, 4, v2')
        a('s_mul_i32 s5, s73, 54')
        a('s_add_u32 s5, s5, s74')
        a('s_mul_i32 s5, s5, 5120')
        a(f's_add_u32 s5, s5, {W2F}')
        a('s_mul_i32 s6, s75, 5120')
        a('s_add_u32 s6, s6, s5')
        n = 0
        cur = None
        for idx in range(lo, hi):
            kk, t = divmod(idx, 5)
            if kk < 13:
                off = idx * 1024
                blk = off // 4096
                if cur != blk:
                    a(f's_add_u32 s7, s5, {blk*4096}')
                    cur = blk
                a(f'buffer_load_dwordx4 {self.w2reg(idx)}, v3, {sr(SRD_WS)}, s7 offen offset:{off%4096}{self.sc}')
            else:
                if t < 4:
                    a(f'buffer_load_dwordx4 {self.w2reg(idx)}, v3, {sr(SRD_WS)}, s6 offen offset:{t*1024}{self.sc}')
                else:
                    a('s_add_u32 s7, s6, 4096')
                    a(f'buffer_load_dwordx4 {self.w2reg(idx)}, v3, {sr(SRD_WS)}, s7 offen{self.sc}')
            n += 1
        return n

    P4H = 112
    def p4_h_setup(self):
        a = self.a
        a('v_lshlrev_b32 v3, 4, v2')
        a('s_lshl_b32 s5, s72, 2')
        a('s_mul_i32 s5, s5, 54')
        a('s_add_u32 s5, s5, s74')
        a('s_lshl_b32 s5, s5, 10')
        a(f's_add_u32 s76, s5, {HH}')
        for lt in range(1, 4):
            a(f's_add_u32 s{76+lt}, s76, {lt*54*1024}')
        a('s_lshl_b32 s80, s75, 10')

    def p4_h_load(self, kk):
        a = self.a
        slot = kk % 9
        for lt in range(4):
            reg = vr(self.P4H + slot * 16 + lt * 4, 4)
            if kk < 13:
                if kk < 4:
                    a(f'buffer_load_dwordx4 {reg}, v3, {sr(SRD_WS)}, s{76+lt} offen offset:{kk*1024}{self.sc}')
                else:
                    a(f's_add_u32 s5, s{76+lt}, {kk*1024}')
                    a(f'buffer_load_dwordx4 {reg}, v3, {sr(SRD_WS)}, s5 offen{self.sc}')
            else:
                a(f's_add_u32 s5, s{76+lt}, s80')
                a(f'buffer_load_dwordx4 {reg}, v3, {sr(SRD_WS)}, s5 offen{self.sc}')
        return 4

    def p4_main(self):
        a = self.a
        ACC = 8
        for kk in range(14):
            issued_to = min(8 + kk, 13)
            a(f's_waitcnt vmcnt({(issued_to - kk) * 4})')
            Lsk = None
            if kk == 13:
                Lsk = a.label('Lp4s')
                a(f's_cmp_ge_u32 s{sWAVE}, 2')
                a(f's_cbranch_scc1 {Lsk}')
            slot = kk % 9
            for t in range(5):
                for lt in range(4):
                    acc = ACC + (t * 4 + lt) * 4
                    c = '0' if kk == 0 else vr(acc, 4)
                    a(f'v_mfma_f32_16x16x32_bf16 {vr(acc,4)}, {self.w2reg(kk*5+t)}, {vr(self.P4H+slot*16+lt*4,4)}, {c}')
            if Lsk: a(f'{Lsk}:')
            if kk + 9 <= 13: self.p4_h_load(kk + 9)

    def p4_epilogue(self):
        a = self.a
        ACC = 8
        self.srd(SRD_B, P_B2, 640 * 2)
        a('v_and_b32 v4, 15, v2')
        a('v_lshrrev_b32 v5, 4, v2')
        a('s_mul_i32 s5, s73, 20')
        a('s_lshl_b32 s6, s72, 2')
        a(f's_add_u32 s6, s6, s{sWAVE}')
        a('s_mul_i32 s7, s6, 20480')
        a(f's_add_u32 s7, s7, {HF}')
        for t in range(5):
            a(f'v_add_u32 v6, s5, v5')
            a(f'v_add_u32 v6, {4*t}, v6')
            a('v_lshrrev_b32 v7, 3, v6')
            a('v_lshlrev_b32 v7, 10, v7')
            a('v_bfe_u32 v88, v6, 1, 2')
            a('v_lshl_add_u32 v7, v88, 8, v7')
            a('v_and_b32 v88, 1, v6')
            a('v_lshl_add_u32 v7, v88, 3, v7')
            a('v_lshl_add_u32 v7, v4, 4, v7')
            a(f'buffer_load_dwordx2 {vr(112+2*t,2)}, v7, {sr(SRD_WS)}, s7 offen{self.sc}')
            a('v_lshlrev_b32 v6, 3, v6')
            a(f'buffer_load_dwordx2 {vr(132+2*t,2)}, v6, {sr(SRD_B)}, 0 offen')
        a('v_lshlrev_b32 v3, 4, v2')
        a(f's_mul_i32 s5, s{sWAVE}, 20480')
        a('v_add_u32 v6, s5, v3')
        for tl in range(20):
            a(f'ds_write_b128 v6, {vr(ACC+4*tl,4)} offset:{1024*tl}')
        a('s_waitcnt lgkmcnt(0)')
        a('s_barrier')
        a(f's_lshl_b32 s5, s{sWAVE}, 10')
        a('v_add_u32 v6, s5, v3')
        a('v_add_u32 v7, 40960, v6')
        for t in range(5):
            for w in range(4):
                reg = 'v6' if w < 2 else 'v7'
                a(f'ds_read_b128 {vr(144+(t*4+w)*4,4)}, {reg} offset:{(w&1)*20480 + t*4096}')
        self.srd(SRD_A, P_OUT, 2048 * 1280)
        a('s_lshl_b32 s5, s72, 6')
        a(f's_lshl_b32 s6, s{sWAVE}, 4')
        a('s_add_u32 s5, s5, s6')
        a('s_mul_i32 s5, s5, 1280')
        a('s_mul_i32 s6, s73, 160')
        a('s_add_u32 s5, s5, s6')
        a('v_mul_u32_u24 v4, 1280, v4')
        a('v_lshl_add_u32 v4, v5, 3, v4')
        a('s_mov_b32 s70, 0x00003f80')
        a('s_mov_b32 s71, 0x3f800000')
        a('s_waitcnt vmcnt(0)')
        for t in range(5):
            a(f's_waitcnt lgkmcnt({min(15, 4*(4-t))})')
            R = 144 + t * 16
            for h in range(2):
                x = R + 2 * h
                a(f'v_pk_add_f32 {vr(x,2)}, {vr(x,2)}, {vr(x+4,2)}')
                a(f'v_pk_add_f32 {vr(x+8,2)}, {vr(x+8,2)}, {vr(x+12,2)}')
                a(f'v_pk_add_f32 {vr(x,2)}, {vr(x,2)}, {vr(x+8,2)}')
                a(f'v_cvt_pk_bf16_f32 v88, v{x}, v{x+1}')
                b = 132 + 2 * t + h; hh = 112 + 2 * t + h
                a(f'v_lshlrev_b32 v90, 16, v{b}')
                a(f'v_and_b32 v91, 0xffff0000, v{b}')
                a(f'v_dot2_f32_bf16 v{x}, v88, s70, v90')
                a(f'v_dot2_f32_bf16 v{x+1}, v88, s71, v91')
                a(f'v_cvt_pk_bf16_f32 v88, v{x}, v{x+1}')
                a(f'v_lshlrev_b32 v90, 16, v{hh}')
                a(f'v_and_b32 v91, 0xffff0000, v{hh}')
                a(f'v_dot2_f32_bf16 v{x}, v88, s70, v90')
                a(f'v_dot2_f32_bf16 v{x+1}, v88, s71, v91')
                a(f'v_cvt_pk_bf16_f32 v{R+4+h}, v{x}, v{x+1}')
            a(f'buffer_store_dwordx2 {vr(R+4,2)}, v4, {sr(SRD_A)}, s5 offen offset:{32*t}')

def kernel_header(name):
    return f""".globl {name}
.p2align 8
.type {name},@function
{name}:
"""

def kernel_desc(name, vgpr=512, sgpr=102):
    acc = 256 if vgpr > 256 else (vgpr + 3) // 4 * 4
    return f""".p2align 6
.amdhsa_kernel {name}
  .amdhsa_next_free_vgpr {vgpr}
  .amdhsa_next_free_sgpr {sgpr}
  .amdhsa_accum_offset {acc}
  .amdhsa_group_segment_fixed_size 0
  .amdhsa_kernarg_size 120
  .amdhsa_user_sgpr_count 2
  .amdhsa_user_sgpr_kernarg_segment_ptr 1
  .amdhsa_system_sgpr_workgroup_id_x 1
.end_amdhsa_kernel
"""

LDS_SIZE = 163840

def build_multi(debug=False):
    out = []
    names = [f'k{i}_kernel' for i in range(1, 5)]
    for n in names:
        out.append(f'; @launch kernel={n} grid=(256,1,1) block=(256,1,1) lds={LDS_SIZE}')
    out.append('.amdgcn_target "amdgcn-amd-amdhsa--gfx950"')
    out.append('.text')
    g = Gen(False, debug); g.kname = 'k1'; a = g.a
    g.stamp('start')
    g.prologue()
    g.stamp('prol')
    g.ln1_issue()
    Lc = a.label('Lk1c')
    a('s_mov_b32 s60, 0')
    a('s_cmp_lt_u32 s2, 160'); a(f's_cbranch_scc1 {Lc}')
    g.prep_issue()
    a(f'{Lc}:')
    g.ln1_compute_multi()
    g.stamp('ln1')
    g.prep_compute()
    g.stamp_flush(0)
    g.end()
    out.append(kernel_header(names[0])); out += a.finalize()
    g = Gen(False, debug); g.kname = 'k2'; a = g.a
    g.stamp('start')
    g.prologue()
    a('s_cmp_ge_u32 s2, 160'); a('s_cbranch_scc1 L_end_k2')
    n = g.kgen_issue()
    g.p2_consts()
    g.stamp('consts')
    g.kgen(0)
    g.stamp('kgen')
    if debug:
        g.dump_kc()
    g.conv_load_ux()
    g.stamp('ux')
    g.conv_main()
    g.stamp('main')
    g.conv_epilogue()
    g.stamp_flush(1)
    g.end()
    out.append(kernel_header(names[1])); out += a.finalize()
    g = Gen(False, debug); g.kname = 'k3'; a = g.a
    g.stamp('start')
    g.prologue()
    g.p3_ids()
    g.p3_w1_dma()
    a('s_waitcnt vmcnt(10)')
    g.p3_h_loads()
    g.p3_s_load()
    g.stamp('issued')
    a('s_waitcnt vmcnt(47)')
    a('s_barrier')
    g.stamp('w1')
    state = {'later': 7}
    def hook(kap):
        if kap == 2:
            state['later'] += g.p3_b1_load()
    g.p3_hook = hook
    g.p3_main(lambda kap: (40 - 2 * (kap + 1)) + state['later'])
    g.stamp('main')
    g.p3_epilogue()
    g.stamp_flush(2)
    g.end()
    out.append(kernel_header(names[2])); out += a.finalize()
    g = Gen(False, debug); g.kname = 'k4'; a = g.a
    g.stamp('start')
    g.prologue()
    g.p4_ids()
    g.p4_w2_loads(0, 50)
    a('s_waitcnt vmcnt(0)')
    g.p4_w2_loads(50, 70)
    g.p4_h_setup()
    for kk in range(9): g.p4_h_load(kk)
    g.stamp('issued')
    g.p4_main()
    g.stamp('main')
    g.p4_epilogue()
    g.stamp_flush(3)
    g.end()
    out.append(kernel_header(names[3])); out += a.finalize()
    out.append('.section .rodata,"a"')
    for n in names: out.append(kernel_desc(n))
    return '\n'.join(out) + '\n'

def build_fused(debug=False):
    out = []
    kn = NAME + '_kernel'
    out.append(f'; @launch grid=(256,1,1) block=(256,1,1) lds={LDS_SIZE}')
    out.append('.amdgcn_target "amdgcn-amd-amdhsa--gfx950"')
    out.append('.text')
    g = Gen(True, debug); g.kname = 'f'; a = g.a
    if g.timing:
        for i in range(16): a(f's_mov_b32 s{86+i}, 0')
    g.stamp('start')
    g.prologue()
    g.sync_setup()
    g.ln1_issue()
    Laux = a.label('Laux'); Lp3 = a.label('Lp3')
    a('s_mov_b32 s60, 0')
    a('s_cmp_lt_u32 s2, 160'); a(f's_cbranch_scc0 {Laux}')
    g.kgen_issue()
    g.p2_consts()
    g.ln1_compute(6)
    g.stamp('lnst')
    g.signal(1)
    g.stamp('ln1')
    g.kgen(0)
    g.stamp('kgen')
    g.wait_flags(1, 'all')
    g.stamp('B1')
    g.conv_load_ux()
    g.stamp('ux')
    g.conv_main()
    g.stamp('conv')
    g.conv_epilogue()
    g.stamp('cep2')
    g.signal(2)
    a(f's_branch {Lp3}')
    a(f'{Laux}:')
    g.prep_issue()
    g.ln1_compute(0)
    g.signal(1)
    g.prep_compute()
    g.signal(2)
    a(f'{Lp3}:')
    g.stamp('P2end')
    g.p3_ids()
    g.wait_flags(2, 'all')
    g.stamp('B2')
    g.p3_w1_dma()
    a('s_waitcnt vmcnt(10)')
    g.p3_h_loads()
    g.p3_s_load()
    g.stamp('p3iss')
    a('s_waitcnt vmcnt(47)')
    a('s_barrier')
    g.stamp('p3w1')
    state = {'later': 7}
    def hook(kap):
        if kap == 2:
            state['later'] += g.p3_b1_load()
    g.p3_hook = hook
    g.p3_main(lambda kap: (40 - 2 * (kap + 1)) + state['later'])
    g.stamp('p3main')
    g.p3_epilogue()
    g.stamp('p3ep')
    g.signal(3)
    g.stamp('P3end')
    g.p4_ids()
    a('s_lshr_b32 s82, s72, 1')
    g.p4_w2_loads(0, 50)
    a('s_waitcnt vmcnt(0)')
    g.p4_w2_loads(50, 70)
    g.stamp('p4w2')
    g.wait_flags(3, 'row')
    g.stamp('B3')
    g.p4_h_setup()
    for kk in range(9): g.p4_h_load(kk)
    g.p4_main()
    g.stamp('p4main')
    g.p4_epilogue()
    g.stamp_flush(0)
    g.end()
    out.append(kernel_header(kn)); out += a.finalize()
    out.append('.section .rodata,"a"')
    out.append(kernel_desc(kn))
    return '\n'.join(out) + '\n'

if __name__ == '__main__':
    mode = sys.argv[1]; dst = sys.argv[2]
    debug = 'debug' in sys.argv[3:]
    TIMING = 'timing' in sys.argv[3:]
    for x in sys.argv[3:]:
        if x.startswith('set='): STAMPSET = set(x[4:].split(','))
    if mode == 'multi': s = build_multi(debug)
    if mode == 'fused': s = build_fused(debug)
    open(dst, 'w').write(s)
    print('wrote', dst, len(s), 'bytes')
```

```python
import sys
sys.path.insert(0, 'work')
import gen
from gen import Gen, sr, vr, ar, f2u, sWAVE, SRD_A, SRD_WS, SRD_B, SRD_C, SRD_D
from gen import P_X, P_LA, P_AI, P_CR, P_CI, P_LDT, P_DSK, P_W1, P_B1, P_W2, P_B2, P_OUT, P_DBG, P_WS
from gen import kernel_header, kernel_desc

BLK = 0x0000000
HF  = 0x0500000
W1F = 0x0800000
W2F = 0x0B00000
SP  = 0x0E00000
HH  = 0x1000000
EPX = 0x2000000
BFL = 0x2001000
RFL = 0x2004000
LDS_SIZE = 163840
NK2 = 56

class G2(Gen):
    GA = 100; VB = 144; VA = 152; VEU = 153; VHW = 154; VDSK = 155; PL = 156

    def epoch_issue(self):
        a = self.a
        a(f'v_mov_b32 v97, {EPX}')
        a(f'buffer_load_dword v96, v97, {sr(SRD_WS)}, 0 offen sc1')
        return 1

    def epoch_get(self):
        a = self.a
        a('v_readfirstlane_b32 s83, v96')
        a('s_add_u32 s83, s83, 1')

    def bar_signal(self):
        a = self.a
        L = a.label('Lsig')
        a('s_waitcnt vmcnt(0) lgkmcnt(0)')
        a('s_barrier')
        a(f's_cmp_eq_u32 s{sWAVE}, 0')
        a(f's_cbranch_scc0 {L}')
        a('v_lshlrev_b32 v5, 10, v2')
        a('s_lshl_b32 s5, s2, 2')
        a(f's_add_u32 s5, s5, {BFL}')
        a('v_mov_b32 v4, s83')
        a('s_mov_b64 exec, 0xff')
        a(f'buffer_store_dword v4, v5, {sr(SRD_WS)}, s5 offen sc1')
        a('s_mov_b64 exec, -1')
        a(f'{L}:')

    def bar_wait(self):
        a = self.a
        Lp = a.label('Lpoll'); Ld = a.label('Lpolld'); Lo = a.label('Lpollo'); Lx = a.label('Lpollx')
        a(f's_cmp_eq_u32 s{sWAVE}, 0')
        a(f's_cbranch_scc0 {Lo}')
        a('v_lshlrev_b32 v4, 4, v2')
        a('s_and_b32 s5, s2, 7')
        a('s_lshl_b32 s5, s5, 10')
        a(f's_add_u32 s5, s5, {BFL}')
        a('s_mov_b32 s6, 0')
        a(f'{Lp}:')
        a(f'buffer_load_dwordx4 v[8:11], v4, {sr(SRD_WS)}, s5 offen sc1')
        a('s_waitcnt vmcnt(0)')
        a('v_xor_b32 v8, s83, v8'); a('v_xor_b32 v9, s83, v9'); a('v_xor_b32 v10, s83, v10'); a('v_xor_b32 v11, s83, v11')
        a('v_or_b32 v8, v8, v9')
        a('v_or3_b32 v8, v8, v10, v11')
        a('v_cmp_ne_u32 vcc, 0, v8')
        a(f's_cbranch_vccz {Ld}')
        a('s_sleep 1')
        a('s_add_u32 s6, s6, 1')
        a('s_cmp_lt_u32 s6, 0x40000')
        a(f's_cbranch_scc1 {Lp}')
        a(f'{Ld}:')
        a('s_cmp_eq_u32 s2, 0')
        a(f's_cbranch_scc0 {Lx}')
        a('s_mov_b64 exec, 1')
        a('v_mov_b32 v4, s83')
        a(f'v_mov_b32 v5, {EPX}')
        a(f'buffer_store_dword v4, v5, {sr(SRD_WS)}, 0 offen sc1')
        a('s_mov_b64 exec, -1')
        a(f'{Lx}:')
        a(f'{Lo}:')
        a('s_barrier')

    def row_zero(self):
        a = self.a
        L = a.label('Lrz')
        a('s_cmp_eq_u32 s2, 255')
        a(f's_cbranch_scc0 {L}')
        a('v_lshlrev_b32 v4, 3, v0')
        a('v_mov_b32 v6, 0'); a('v_mov_b32 v7, 0')
        a(f's_mov_b32 s5, {RFL}')
        a(f'buffer_store_dwordx2 v[6:7], v4, {sr(SRD_WS)}, s5 offen')
        a(f'{L}:')

    def row_signal(self, nlater):
        a = self.a
        L = a.label('Lrs')
        a(f's_waitcnt vmcnt({nlater})')
        a('s_barrier')
        a(f's_cmp_eq_u32 s{sWAVE}, 0')
        a(f's_cbranch_scc0 {L}')
        a('s_lshl_b32 s5, s66, 7')
        a('s_lshl_b32 s6, s67, 2')
        a('s_add_u32 s5, s5, s6')
        a(f's_add_u32 s5, s5, {RFL}')
        a('s_mov_b64 exec, 1')
        a('v_mov_b32 v4, 1')
        a('v_mov_b32 v5, 0')
        a(f'buffer_store_dword v4, v5, {sr(SRD_WS)}, s5 offen sc1')
        a('s_mov_b64 exec, -1')
        a(f'{L}:')

    def row_wait(self):
        a = self.a
        Lp = a.label('Lpoll'); Ld = a.label('Lpolld'); Lo = a.label('Lpollo')
        a(f's_cmp_eq_u32 s{sWAVE}, 0')
        a(f's_cbranch_scc0 {Lo}')
        a('v_and_b32 v4, 15, v2')
        a('v_lshlrev_b32 v4, 2, v4')
        a('s_lshr_b32 s5, s72, 1')
        a('s_lshl_b32 s5, s5, 7')
        a(f's_add_u32 s5, s5, {RFL}')
        a('s_mov_b32 s6, 0')
        a(f'{Lp}:')
        a(f'buffer_load_dword v5, v4, {sr(SRD_WS)}, s5 offen sc1')
        a('s_waitcnt vmcnt(0)')
        a('v_cmp_ne_u32 vcc, 1, v5')
        a(f's_cbranch_vccz {Ld}')
        a('s_sleep 1')
        a('s_add_u32 s6, s6, 1')
        a('s_cmp_lt_u32 s6, 0x40000')
        a(f's_cbranch_scc1 {Lp}')
        a(f'{Ld}:')
        a(f'{Lo}:')
        a('s_barrier')

    def row_signal_pre(self, a):
        a('s_waitcnt vmcnt(0)')
        a('s_barrier')
        self.stamp('p3sig')

    def row_flag_store(self):
        a = self.a
        a('s_lshl_b32 s5, s66, 7')
        a('s_lshl_b32 s6, s67, 2')
        a('s_add_u32 s5, s5, s6')
        a(f's_add_u32 s5, s5, {RFL}')
        a('s_mov_b64 exec, 1')
        a('v_mov_b32 v4, 1')
        a('v_mov_b32 v5, 0')
        a(f'buffer_store_dword v4, v5, {sr(SRD_WS)}, s5 offen sc1')
        a('s_mov_b64 exec, -1')

    def row_poll(self):
        a = self.a
        Lp = a.label('Lpoll'); Ld = a.label('Lpolld')
        a('v_and_b32 v4, 15, v2')
        a('v_lshlrev_b32 v4, 2, v4')
        a('s_lshr_b32 s5, s72, 1')
        a('s_lshl_b32 s5, s5, 7')
        a(f's_add_u32 s5, s5, {RFL}')
        a('s_mov_b32 s6, 0')
        a(f'{Lp}:')
        a(f'buffer_load_dword v5, v4, {sr(SRD_WS)}, s5 offen sc1')
        a('s_waitcnt vmcnt(0)')
        a('v_cmp_ne_u32 vcc, 1, v5')
        a(f's_cbranch_vccz {Ld}')
        a('s_sleep 1')
        a('s_add_u32 s6, s6, 1')
        a('s_cmp_lt_u32 s6, 0x40000')
        a(f's_cbranch_scc1 {Lp}')
        a(f'{Ld}:')

    def prep(self):
        a = self.a
        Lw2 = a.label('Lpw2'); Ldone = a.label('Lpdone')
        a('s_sub_u32 s5, s2, 160')
        a('v_lshrrev_b32 v90, 4, v2')
        a('v_bfe_u32 v91, v2, 2, 2')
        a('v_and_b32 v92, 3, v2')
        a('v_lshlrev_b32 v93, 4, v2')
        a('s_cmp_lt_u32 s5, 16')
        a(f's_cbranch_scc0 {Lw2}')
        self.srd(SRD_B, P_W1, 640 * 3456)
        a('v_mul_u32_u24 v94, 4682, v2')
        a('v_lshrrev_b32 v94, 16, v94')
        a('v_mul_u32_u24 v95, 14, v94')
        a('v_sub_u32 v95, v2, v95')
        a('v_mul_u32_u24 v94, 3456, v94')
        a('v_lshl_add_u32 v94, v95, 4, v94')
        a(f's_mul_i32 s6, s{sWAVE}, {160*3456}')
        a('s_mul_i32 s7, s5, 216')
        a('s_add_u32 s6, s6, s7')
        WB = 35840
        a(f's_mul_i32 s61, s{sWAVE}, {WB}')
        a('s_mov_b32 m0, s61')
        a('s_mov_b32 exec_hi, 0x00ffffff')
        for i in range(40):
            a(f'buffer_load_dwordx4 v94, {sr(SRD_B)}, s6 offen lds')
            if i < 39:
                a('s_add_u32 m0, m0, 896')
                a(f's_add_u32 s6, s6, {4*3456}')
        a('s_mov_b64 exec, -1')
        a('v_lshl_add_u32 v94, v90, 3, v91')
        a('v_mul_u32_u24 v94, 224, v94')
        a('v_lshl_add_u32 v94, v92, 3, v94')
        a('v_add_u32 v94, s61, v94')
        a('s_mov_b32 s70, 0x3f803f80')
        a('v_and_b32 v95, 15, v2')
        a('v_cmp_lt_u32 s[62:63], 11, v95')
        a('v_cmp_eq_u32 vcc, 12, v95')
        a('v_mov_b32 v96, 0'); a('v_mov_b32 v97, s70')
        a('v_cndmask_b32 v96, v96, v97, vcc')
        a('s_mul_i32 s64, s5, 143360')
        a(f's_mul_i32 s65, s{sWAVE}, {5*7168}')
        a('s_add_u32 s64, s64, s65')
        a(f's_add_u32 s64, s64, {W1F}')
        a('s_waitcnt vmcnt(0)')
        for t in range(7):
            for kk in range(5):
                R = 100 + 4 * kk
                a(f'ds_read_b64_tr_b16 {vr(R,2)}, v94 offset:{kk*32*224+t*32}')
                a(f'ds_read_b64_tr_b16 {vr(R+2,2)}, v94 offset:{kk*32*224+t*32+4*224}')
            S = 120 + t
            a(f's_add_u32 s65, s64, {t*1024}')
            for kk in range(5):
                R = 100 + 4 * kk
                a(f's_waitcnt lgkmcnt({2*(4-kk)})')
                if t == 6:
                    for j in range(4):
                        a(f'v_cndmask_b32 v{R+j}, v{R+j}, v96, s[62:63]')
                a(f'buffer_store_dwordx4 {vr(R,4)}, v93, {sr(SRD_WS)}, s65 offen')
                for j in range(4):
                    c = '0' if (kk == 0 and j == 0) else f'v{S}'
                    a(f'v_dot2_f32_bf16 v{S}, v{R+j}, s70, {c}')
                if kk < 4: a('s_add_u32 s65, s65, 7168')
            a(f'v_mov_b32 v98, v{S}')
            a(f'v_permlane16_swap_b32 v{S}, v98')
            a(f'v_add_f32 v{S}, v{S}, v98')
            a(f'v_mov_b32 v98, v{S}')
            a(f'v_permlane32_swap_b32 v{S}, v98')
            a(f'v_add_f32 v{S}, v{S}, v98')
        SB = 4 * WB
        a('v_lshlrev_b32 v98, 2, v95')
        a(f's_mul_i32 s64, s{sWAVE}, 448')
        a(f's_add_u32 s64, s64, {SB}')
        a('v_add_u32 v97, s64, v98')
        for t in range(7):
            a(f'ds_write_b32 v97, v{120+t} offset:{64*t}')
        a('s_waitcnt lgkmcnt(0)')
        a('s_barrier')
        a('v_lshlrev_b32 v97, 2, v0')
        a(f'v_add_u32 v98, {SB}, v97')
        for w in range(4):
            a(f'ds_read_b32 v{120+w}, v98 offset:{448*w}')
        a('s_mul_i32 s64, s5, 448')
        a(f's_add_u32 s64, s64, {SP}')
        a('s_waitcnt lgkmcnt(0)')
        a('v_add_f32 v120, v120, v121'); a('v_add_f32 v122, v122, v123'); a('v_add_f32 v120, v120, v122')
        a('v_cmp_gt_u32 vcc, 112, v0')
        Ls = a.label('Lsp')
        a('s_and_saveexec_b64 s[62:63], vcc')
        a(f's_cbranch_execz {Ls}')
        a(f'buffer_store_dword v120, v97, {sr(SRD_WS)}, s64 offen')
        a(f'{Ls}:')
        a('s_mov_b64 exec, s[62:63]')
        a(f's_branch {Ldone}')
        a(f'{Lw2}:')
        a('s_cmp_lt_u32 s5, 51')
        a(f's_cbranch_scc0 {Ldone}')
        a('s_sub_u32 s5, s5, 16')
        a('s_lshl_b32 s5, s5, 2')
        a(f's_add_u32 s5, s5, s{sWAVE}')
        a('s_mul_i32 s61, s5, 4682')
        a('s_lshr_b32 s61, s61, 16')
        a('s_mul_i32 s6, s61, 14')
        a('s_sub_u32 s62, s5, s6')
        self.srd(SRD_B, P_W2, 1728 * 1280)
        a('v_lshrrev_b32 v94, 3, v2')
        a('v_mul_u32_u24 v94, 1280, v94')
        a('v_and_b32 v95, 7, v2')
        a('v_lshl_add_u32 v94, v95, 4, v94')
        a(f's_lshl_b32 s63, s{sWAVE}, 14')
        a('s_mov_b32 m0, s63')
        for kk in range(4):
            a('s_lshl_b32 s64, s62, 2')
            a(f's_add_u32 s64, s64, {kk}')
            a('s_mul_i32 s65, s64, 9363')
            a('s_lshr_b32 s65, s65, 16')
            a('s_mul_i32 s66, s65, 7')
            a('s_sub_u32 s66, s64, s66')
            for half in range(2):
                a('s_lshl_b32 s67, s65, 1')
                a('s_lshl_b32 s68, s66, 1')
                a(f's_add_u32 s68, s68, {half}')
                a('s_sub_u32 s69, s68, 8')
                a('s_add_u32 s70, s67, 1')
                a('s_cmp_gt_u32 s66, 3')
                a('s_cselect_b32 s67, s70, s67')
                a('s_cselect_b32 s68, s69, s68')
                a('s_lshl_b32 s69, s65, 1')
                a(f's_add_u32 s69, s69, {half}')
                a('s_cmp_eq_u32 s66, 3')
                a('s_cselect_b32 s67, s69, s67')
                a('s_cselect_b32 s68, 6, s68')
                a('s_mul_i32 s67, s67, 108')
                a('s_lshl_b32 s68, s68, 4')
                a('s_add_u32 s67, s67, s68')
                a('s_mul_i32 s67, s67, 1280')
                a('s_lshl_b32 s68, s61, 7')
                a('s_add_u32 s67, s67, s68')
                for i in range(2):
                    a(f'buffer_load_dwordx4 v94, {sr(SRD_B)}, s67 offen lds')
                    a('s_add_u32 m0, m0, 1024')
                    if i == 0: a(f's_add_u32 s67, s67, {8*1280}')
        a('v_lshl_add_u32 v94, v90, 2, v91')
        a('v_lshlrev_b32 v94, 7, v94')
        a('v_lshl_add_u32 v94, v92, 3, v94')
        a('v_add_u32 v94, s63, v94')
        a('v_cmp_eq_u32 s[68:69], 3, v90')
        a('s_waitcnt vmcnt(0)')
        for kk in range(4):
            a('s_lshl_b32 s64, s62, 2')
            a(f's_add_u32 s64, s64, {kk}')
            a('s_mul_i32 s65, s64, 9363')
            a('s_lshr_b32 s65, s65, 16')
            a('s_mul_i32 s66, s65, 7')
            a('s_sub_u32 s66, s64, s66')
            for tt in range(4):
                R = 100 + 4 * tt
                a(f'ds_read_b64_tr_b16 {vr(R,2)}, v94 offset:{kk*4096+tt*32}')
                a(f'ds_read_b64_tr_b16 {vr(R+2,2)}, v94 offset:{kk*4096+tt*32+2048}')
            Lnz = a.label('Lnz')
            a('s_waitcnt lgkmcnt(0)')
            a('s_cmp_eq_u32 s66, 3')
            a(f's_cbranch_scc0 {Lnz}')
            for tt in range(4):
                for j in range(4):
                    a(f'v_cndmask_b32 v{100+4*tt+j}, v{100+4*tt+j}, 0, s[68:69]')
            a(f'{Lnz}:')
            for tt in range(4):
                a('s_lshl_b32 s65, s61, 2')
                a(f's_add_u32 s65, s65, {tt}')
                a('s_mul_i32 s67, s65, 13108')
                a('s_lshr_b32 s67, s67, 16')
                a('s_mul_i32 s70, s67, 5')
                a('s_sub_u32 s70, s65, s70')
                a(f's_mul_i32 s67, s67, {NK2}')
                a('s_add_u32 s67, s67, s64')
                a('s_mul_i32 s67, s67, 5')
                a('s_add_u32 s67, s67, s70')
                a('s_lshl_b32 s67, s67, 10')
                a(f's_add_u32 s67, s67, {W2F}')
                a(f'buffer_store_dwordx4 {vr(100+4*tt,4)}, v93, {sr(SRD_WS)}, s67 offen')
        a(f'{Ldone}:')

    def p2_consts(self):
        a = self.a
        GA, VB, VA = self.GA, self.VB, self.VA
        t0, t1, t2, t3, t4 = 90, 91, 92, 93, 94
        a(f's_mul_i32 s61, s{sWAVE}, {self.WSTRIDE}')
        a(f'v_lshlrev_b32 v{t0}, 3, v2')
        a(f'v_sub_u32 v{t0}, 2047, v{t0}')
        a(f's_add_u32 s6, s61, {self.TBL}')
        a('s_movk_i32 s7, 0x80')
        for k in range(4):
            for e in range(0, 11, 2):
                n = 2 if e + 1 < 11 else 1
                a(f'v_subrev_u32 v{t1}, {512*k+e}, v{t0}')
                a(f'v_cvt_f32_i32 v{t3}, v{t1}')
                if n == 2:
                    a(f'v_subrev_u32 v{t2}, {512*k+e+1}, v{t0}')
                    a(f'v_cvt_f32_i32 v{t4}, v{t2}')
                    a(f'v_cvt_pk_bf16_f32 v{t3}, v{t3}, v{t4}')
                    a(f'v_lshrrev_b32 v{t4}, 16, v{t3}')
                else:
                    a(f'v_cvt_pk_bf16_f32 v{t3}, v{t3}, v{t3}')
                a(f'v_and_b32 v{t3}, 0xffff, v{t3}')
                a(f'v_subrev_u32 v{t3}, 0x4280, v{t3}')
                a(f'v_med3_i32 v{t3}, v{t3}, v{t1}, s7')
                a(f'v_lshl_add_u32 v{GA+11*k+e}, v{t3}, 1, s6')
                if n == 2:
                    a(f'v_subrev_u32 v{t4}, 0x4280, v{t4}')
                    a(f'v_med3_i32 v{t4}, v{t4}, v{t2}, s7')
                    a(f'v_lshl_add_u32 v{GA+11*k+e+1}, v{t4}, 1, s6')
        i_, g_ = t0, t1
        a(f'v_and_b32 v{i_}, 15, v2')
        a(f'v_lshrrev_b32 v{g_}, 4, v2')
        a(f'v_and_b32 v{t2}, 3, v{i_}')
        a(f'v_sub_u32 v{t2}, 3, v{t2}')
        a(f'v_mul_u32_u24 v{t2}, {self.CPY}, v{t2}')
        a(f'v_lshrrev_b32 v{t3}, 2, v{i_}')
        a(f'v_lshlrev_b32 v{t3}, 3, v{t3}')
        a(f'v_sub_u32 v{t2}, v{t2}, v{t3}')
        a(f'v_lshl_add_u32 v{t2}, v{g_}, 4, v{t2}')
        a(f's_add_u32 s6, s61, {2*(2044-16) - (512*7+64*7)}')
        a(f'v_add_u32 v{VA}, s6, v{t2}')
        a(f'v_lshlrev_b32 v{t2}, 1, v{i_}')
        a(f'v_add_u32 v{t2}, v{t2}, v{g_}')
        a(f'v_lshlrev_b32 v{t2}, 7, v{t2}')
        a(f'v_lshrrev_b32 v{t3}, 1, v{g_}')
        a(f'v_add_u32 v{t3}, v{t3}, v{i_}')
        a(f's_lshl_b32 s7, s{sWAVE}, 1')
        for b in range(8):
            a(f'v_subrev_u32 v{t4}, {2*b+1}, v{t3}')
            a(f'v_and_b32 v{t4}, 7, v{t4}')
            a(f'v_xor_b32 v{t4}, s7, v{t4}')
            a(f'v_lshl_add_u32 v{t4}, v{t4}, 4, v{t2}')
            a(f'v_add_u32 v{VB+b}, {self.UXB + (30-4*b)*128}, v{t4}')
        a(f'v_lshlrev_b32 v{t2}, 1, v{i_}')
        a(f'v_lshrrev_b32 v{t3}, 1, v{g_}')
        a(f'v_add_u32 v{t2}, v{t2}, v{t3}')
        a(f'v_lshlrev_b32 v{t2}, 7, v{t2}')
        a(f'v_and_b32 v{t3}, 7, v{i_}')
        a(f'v_xor_b32 v{t3}, s7, v{t3}')
        a(f'v_lshl_add_u32 v{t2}, v{t3}, 4, v{t2}')
        a(f'v_and_b32 v{t3}, 1, v{g_}')
        a(f'v_lshl_add_u32 v{t2}, v{t3}, 3, v{t2}')
        a(f'v_add_u32 v{self.VEU}, {self.UXB + 32*128}, v{t2}')
        a(f'v_lshlrev_b32 v{t2}, 5, v{i_}')
        a(f'v_lshl_add_u32 v{t2}, v{g_}, 3, v{t2}')
        a(f'v_add_u32 v{self.VHW}, s61, v{t2}')

    def kgen_tail(self):
        a = self.a
        GA = self.GA
        a('v_lshlrev_b32 v7, 4, v2')
        a('v_add_u32 v7, s61, v7')
        a('v_and_b32 v10, 15, v2')
        a('v_lshlrev_b32 v10, 2, v10')
        a('v_add_u32 v10, s61, v10')
        a('v_mov_b32 v11, 0')
        for k in range(4):
            L = 12 + 12 * k
            for e in range(11):
                dst = L + (e >> 1) if e % 2 == 0 else L + 6 + (e >> 1)
                a(f'ds_read_u16 v{dst}, v{GA+11*k+e}')
        for c in range(4):
            a(f'ds_write_b32 v10, v11 offset:{c*self.CPY+4096}')
        for k in range(4):
            L = 12 + 12 * k
            if k == 0: a('s_waitcnt lgkmcnt(0)')
            D = 64 + 0
            for w in range(5):
                a(f'v_lshl_or_b32 v{D+w}, v{L+6+w}, 16, v{L+w}')
            a(f'v_mov_b32 v{D+5}, v{L+5}')
            if k == 3:
                a(f'v_writelane_b32 v{D+4}, 0, 63')
                a(f'v_writelane_b32 v{D+5}, 0, 63')
            for w in range(5):
                a(f'v_alignbit_b32 v{72+w}, v{D+w+1}, v{D+w}, 16')
            a(f'ds_write_b128 v7, {vr(D,4)} offset:{k*1024}')
            a(f'ds_write_b128 v7, {vr(72,4)} offset:{self.CPY+k*1024}')
            a(f'v_pk_mov_b32 v[80:81], {vr(D,2)}, {vr(D+2,2)} op_sel:[1,0]')
            a(f'v_pk_mov_b32 v[82:83], {vr(D+2,2)}, {vr(D+4,2)} op_sel:[1,0]')
            a('v_pk_mov_b32 v[84:85], v[72:73], v[74:75] op_sel:[1,0]')
            a('v_pk_mov_b32 v[86:87], v[74:75], v[76:77] op_sel:[1,0]')
            a(f'ds_write_b128 v7, v[80:83] offset:{2*self.CPY+k*1024}')
            a(f'ds_write_b128 v7, v[84:87] offset:{3*self.CPY+k*1024}')

    def conv_load_ux(self):
        a = self.a
        R = 164
        a('v_lshrrev_b32 v4, 3, v2')
        a('v_mul_u32_u24 v5, 20480, v4')
        a('v_and_b32 v6, 7, v2')
        a('v_lshl_add_u32 v5, v6, 4, v5')
        a(f's_mul_i32 s5, s{sWAVE}, {64*20480}')
        a('s_lshl_b32 s6, s2, 7')
        a('s_add_u32 s5, s5, s6')
        for k in range(8):
            a(f'buffer_load_dwordx4 {vr(R+4*k,4)}, v5, {sr(SRD_WS)}, s5 offen sc1')
            if k < 7: a(f's_add_u32 s5, s5, {8*20480}')
        a('v_lshrrev_b32 v7, 4, v2')
        a('v_xor_b32 v8, v6, v7')
        a('v_xor_b32 v9, 4, v8')
        a('v_lshlrev_b32 v4, 7, v4')
        a(f's_lshl_b32 s6, s{sWAVE}, 13')
        a(f's_add_u32 s6, s6, {self.UXB + 4096}')
        a('v_add_u32 v4, s6, v4')
        a('v_lshl_add_u32 v8, v8, 4, v4')
        a('v_lshl_add_u32 v9, v9, 4, v4')
        for k in range(8):
            a(f's_waitcnt vmcnt({7-k})')
            a(f'ds_write_b128 v{8 + (k&1)}, {vr(R+4*k,4)} offset:{k*1024}')
        a('s_waitcnt lgkmcnt(0)')
        a('s_barrier')

    def ux_zero_pad(self):
        a = self.a
        a('v_mov_b32 v12, 0'); a('v_mov_b32 v13, 0'); a('v_mov_b32 v14, 0'); a('v_mov_b32 v15, 0')
        a('v_lshlrev_b32 v10, 4, v0')
        a(f'v_add_u32 v10, {self.UXB}, v10')
        a('ds_write_b128 v10, v[12:15]')

    def conv_main(self, hook=None):
        a = self.a
        ACC = 12
        bufA = [44, 164]; bufB = [76, 196]
        def reads(b):
            sel = b & 1
            lst = []
            for aa in range(8):
                off = 512 * (7 - aa) + 64 * (7 - b)
                lst.append(f'ds_read_b64 {vr(bufA[sel]+4*aa,2)}, v{self.VA} offset:{off}')
                lst.append(f'ds_read_b64 {vr(bufA[sel]+4*aa+2,2)}, v{self.VA} offset:{off+8}')
            for e in range(8):
                lst.append(f'ds_read_b128 {vr(bufB[sel]+4*e,4)}, v{self.VB+b} offset:{4096*e}')
            order = []
            for k in range(8):
                order += [lst[2*k], lst[2*k+1], lst[16+k]]
            return order
        for r in reads(0): a(r)
        for b in range(8):
            sel = b & 1
            nxt = reads(b + 1) if b < 7 else []
            a('s_waitcnt lgkmcnt(0)')
            n = 0
            for aa in range(8):
                for e in range(8 - aa):
                    t = aa + e
                    c = '0' if (b == 0 and aa == 0) else vr(ACC + 4 * t, 4)
                    a(f'v_mfma_f32_16x16x32_bf16 {vr(ACC+4*t,4)}, {vr(bufA[sel]+4*aa,4)}, {vr(bufB[sel]+4*e,4)}, {c}')
                    if n < len(nxt): a(nxt[n])
                    n += 1

    def p34_ids(self):
        a = self.a
        a('s_and_b32 s5, s2, 7')
        a('s_lshr_b32 s6, s2, 3')
        a('s_lshr_b32 s66, s5, 1'); a('s_lshl_b32 s66, s66, 2')
        a('s_and_b32 s7, s6, 3'); a('s_add_u32 s66, s66, s7')
        a('s_and_b32 s67, s5, 1'); a('s_lshl_b32 s67, s67, 3')
        a('s_lshr_b32 s7, s6, 2'); a('s_add_u32 s67, s67, s7')
        a('s_lshl_b32 s72, s5, 2'); a('s_and_b32 s7, s6, 3'); a('s_add_u32 s72, s72, s7')
        a('s_lshr_b32 s73, s6, 2')
        a(f's_mul_i32 s74, s{sWAVE}, 14')

    P3H = 96
    def p3_setup(self):
        a = self.a
        a('v_lshlrev_b32 v3, 4, v2')
        a('s_mul_i32 s76, s67, 143360')
        a(f's_lshl_b32 s6, s{sWAVE}, 10')
        a('s_add_u32 s76, s76, s6')
        a(f's_add_u32 s76, s76, {W1F}')
        a('s_mov_b32 m0, s6')
        a('s_lshl_b32 s77, s66, 3')
        a(f's_lshl_b32 s6, s{sWAVE}, 1')
        a('s_add_u32 s77, s77, s6')
        a('s_mul_i32 s77, s77, 20480')
        a(f's_add_u32 s77, s77, {HF}')
        a('s_add_u32 s78, s77, 20480')
        a('v_lshrrev_b32 v94, 4, v2')
        a('v_lshlrev_b32 v94, 4, v94')
        a('s_mul_i32 s80, s67, 448')
        a(f's_add_u32 s80, s80, {SP}')
        self.srd(SRD_B, P_B1, 1728 * 2)
        a('s_mul_i32 s81, s67, 216')
        def dma():
            a(f'buffer_load_dwordx4 v3, {sr(SRD_WS)}, s76 offen lds')
            a('s_add_u32 m0, m0, 4096')
            a('s_add_u32 s76, s76, 4096')
        def hload(kap, lt):
            def f():
                a(f'buffer_load_dwordx4 {vr(self.P3H+(2*kap+lt)*4,4)}, v3, {sr(SRD_WS)}, s{77+lt} offen offset:{(kap%4)*1024}')
                if kap % 4 == 3 and kap < 19: a(f's_add_u32 s{77+lt}, s{77+lt}, 4096')
            return f
        chunks = []
        for q in range(5):
            L = []
            hs = [hload(4 * q + kk, lt) for kk in range(4) for lt in range(2)]
            for i in range(7):
                L.append(dma); L.append(hs[i])
            L.append(hs[7])
            chunks.append(L)
        def sload(t):
            return lambda: a(f'buffer_load_dwordx4 {vr(64+4*t,4)}, v94, {sr(SRD_WS)}, s80 offen offset:{64*t}')
        def bload(t):
            return lambda: a(f'buffer_load_dwordx2 {vr(96+2*t,2)}, v4, {sr(SRD_B)}, s81 offen offset:{32*t}')
        a('v_lshrrev_b32 v4, 4, v2')
        a('v_lshlrev_b32 v4, 3, v4')
        self.p3_chunks = chunks
        self.p3_s = [sload(t) for t in range(7)]
        self.p3_b = [bload(t) for t in range(7)]

    def w2reg(self, idx):
        if idx < 64: return ar(4 * idx, 4)
        return vr(88 + 4 * (idx - 64), 4)

    def w2_setup(self):
        a = self.a
        a(f's_mul_i32 s79, s73, {NK2}')
        a('s_add_u32 s79, s79, s74')
        a('s_mul_i32 s79, s79, 5120')
        a(f's_add_u32 s79, s79, {W2F}')

    def w2_load(self, idx):
        a = self.a
        off = idx * 1024
        a(f's_add_u32 s5, s79, {(off // 4096) * 4096}')
        a(f'buffer_load_dwordx4 {self.w2reg(idx)}, v3, {sr(SRD_WS)}, s5 offen offset:{off % 4096}')

    def p3_main(self):
        a = self.a
        ACC = 8
        WB = [200, 228]
        a('v_add_u32 v92, 0x10000, v3')
        a('v_add_u32 v93, 0x20000, v3')
        def rd(kap, t):
            off = (kap * 7 + t) * 1024
            reg = ['v3', 'v92', 'v93'][off >> 16]
            return f'ds_read_b128 {ar(WB[kap&1]+4*t,4)}, {reg} offset:{off & 0xffff}'
        issued = []
        def issue(tag, f):
            f(); issued.append(tag)
        def wait_chunk(q):
            last = max(i for i, tg in enumerate(issued) if tg == q)
            n = len(issued) - 1 - last
            a(f's_waitcnt vmcnt({min(63, n)})')
            a('s_barrier')
            self.stamp(f'ch{q}')
        for f in self.p3_chunks[0]: issue(0, f)
        for f in self.p3_chunks[1]: issue(1, f)
        self.stamp('p3iss')
        S = list(self.p3_s); B = list(self.p3_b)
        w2q = list(range(self.NW2_MAIN))
        pend = {0: [(2, f) for f in self.p3_chunks[2]],
                1: [(3, f) for f in self.p3_chunks[3]],
                2: [(4, f) for f in self.p3_chunks[4]],
                3: [('s', f) for f in S] + [('s', f) for f in B],
                4: []}
        def w2f(idx): return lambda: self.w2_load(idx)
        while len(pend[4]) < 16 and w2q: pend[4].append(('w', w2f(w2q.pop(0))))
        assert not w2q
        wait_chunk(0)
        for t in range(7): a(rd(0, t))
        for kap in range(20):
            q = kap // 4
            if kap % 4 == 3 and kap < 19:
                wait_chunk(q + 1)
            a('s_waitcnt lgkmcnt(0)')
            h0 = self.P3H + (2 * kap) * 4; h1 = h0 + 4
            extra = [rd(kap + 1, t) for t in range(7)] if kap < 19 else []
            n = 0
            def slot():
                if pend[q]:
                    tg, f = pend[q].pop(0); issue(tg, f)
            for t in range(7):
                for lt, h in ((0, h0), (1, h1)):
                    acc = ACC + (t * 2 + lt) * 4
                    c = '0' if kap == 0 else vr(acc, 4)
                    a(f'v_mfma_f32_16x16x32_bf16 {vr(acc,4)}, {ar(WB[kap&1]+4*t,4)}, {vr(h,4)}, {c}')
                    if extra and n >= 1: a(extra.pop(0))
                    if n in (8, 10, 12): slot()
                    n += 1
            for lt, h in ((0, h0), (1, h1)):
                g = self.GRAM + 4 * lt
                c = '0' if kap == 0 else ar(g, 4)
                a(f'v_mfma_f32_16x16x32_bf16 {ar(g,4)}, {vr(h,4)}, {vr(h,4)}, {c}')
                if lt == 0: slot()
        for q in range(5): assert not pend[q], (q, len(pend[q]))
        last = max(i for i, tg in enumerate(issued) if tg == 's')
        self.p3_w2_inflight = len(issued) - 1 - last

    NW2_MAIN = 16
    NW2_EPI = 28
    GRAM = 192

    def p3_epilogue(self):
        a = self.a
        ACC = 8
        a('v_and_b32 v4, 15, v2')
        a('v_lshrrev_b32 v5, 4, v2')
        a('v_cmp_eq_u32 s[62:63], 3, v5')
        a('v_lshrrev_b32 v6, 2, v4')
        a('v_cmp_eq_u32 s[64:65], v6, v5')
        a('v_and_b32 v6, 3, v4')
        for lt in range(2):
            S_ = 112 + 2 * lt; Q_ = 113 + 2 * lt
            acc = ACC + (6 * 2 + lt) * 4
            a(f'v_cndmask_b32 v{S_}, 0, v{acc}, s[62:63]')
            for j in range(4):
                a(f'v_accvgpr_read_b32 v{116+j}, a{self.GRAM+4*lt+j}')
            a('v_cmp_eq_u32 vcc, 1, v6'); a('v_cndmask_b32 v116, v116, v117, vcc')
            a('v_cmp_eq_u32 vcc, 2, v6'); a('v_cndmask_b32 v116, v116, v118, vcc')
            a('v_cmp_eq_u32 vcc, 3, v6'); a('v_cndmask_b32 v116, v116, v119, vcc')
            a(f'v_cndmask_b32 v{Q_}, 0, v116, s[64:65]')
        for v in (112, 113, 114, 115):
            a(f'v_mov_b32 v94, v{v}')
            a(f'v_permlane16_swap_b32 v{v}, v94')
            a(f'v_add_f32 v{v}, v{v}, v94')
            a(f'v_mov_b32 v94, v{v}')
            a(f'v_permlane32_swap_b32 v{v}, v94')
            a(f'v_add_f32 v{v}, v{v}, v94')
        for lt in range(2):
            s_, q_ = 112 + 2 * lt, 113 + 2 * lt
            a(f'v_mul_f32 v{s_}, {f2u(1.0/640):#x}, v{s_}')
            a(f'v_mul_f32 v{q_}, {f2u(1.0/640):#x}, v{q_}')
            a(f'v_fma_f32 v{q_}, -v{s_}, v{s_}, v{q_}')
            a(f'v_max_f32 v{q_}, 0, v{q_}')
            self.bf16r(s_, s_)
            self.bf16r(q_, q_)
            a(f'v_add_f32 v{q_}, {f2u(1e-5):#x}, v{q_}')
            self.bf16r(q_, q_)
            a(f'v_sqrt_f32 v{q_}, v{q_}')
            self.bf16r(q_, q_)
            R = 116 + 4 * lt
            a(f'v_rcp_f32 v{R}, v{q_}')
            a(f'v_mov_b32 v{R+2}, v{s_}')
            a(f'v_mov_b32 v{R+1}, v{R}')
            a(f'v_mov_b32 v{R+3}, v{s_}')
        a('s_mov_b32 s70, 0x00003f80')
        a('s_mov_b32 s71, 0x3f800000')
        a(f's_waitcnt vmcnt({self.p3_w2_inflight})')
        for t in range(7):
            for h in range(2):
                a(f'v_lshlrev_b32 v{124+4*t+2*h}, 16, v{96+2*t+h}')
                a(f'v_and_b32 v{124+4*t+2*h+1}, 0xffff0000, v{96+2*t+h}')
        OUT = 152
        def outreg(t, lt):
            if t < 6: return OUT + ((t >> 1) * 2 + lt) * 4 + (t & 1) * 2
            return OUT + 24 + lt * 2
        a('v_lshlrev_b32 v3, 4, v2')
        a('s_lshl_b32 s5, s66, 3')
        a(f's_lshl_b32 s6, s{sWAVE}, 1')
        a('s_add_u32 s5, s5, s6')
        a(f's_mul_i32 s5, s5, {NK2*1024}')
        a(f's_add_u32 s5, s5, {HH}')
        a('s_lshr_b32 s6, s67, 1'); a('s_mul_i32 s6, s6, 7')
        a('s_and_b32 s7, s67, 1')
        a('s_lshl_b32 s62, s7, 2'); a('s_add_u32 s62, s62, s6'); a('s_lshl_b32 s62, s62, 10'); a('s_add_u32 s62, s62, s5')
        a(f's_add_u32 s63, s62, {NK2*1024}')
        a('s_add_u32 s64, s6, 3'); a('s_lshl_b32 s64, s64, 10'); a('s_lshl_b32 s7, s7, 3'); a('s_add_u32 s64, s64, s7'); a('s_add_u32 s64, s64, s5')
        a(f's_add_u32 s65, s64, {NK2*1024}')
        tmp = [94, 111]
        w2e = list(range(self.NW2_MAIN, self.NW2_MAIN + self.NW2_EPI))
        assert max(w2e) < 48
        for t in range(7):
            for lt in range(2):
                acc = ACC + (t * 2 + lt) * 4
                R = 116 + 4 * lt
                for h in range(2):
                    x = acc + 2 * h; S = 64 + 4 * t + 2 * h; B = 124 + 4 * t + 2 * h
                    T = tmp[h]
                    a(f'v_pk_fma_f32 {vr(x,2)}, {vr(S,2)}, {vr(R+2,2)}, {vr(x,2)} neg_lo:[1,0,0] neg_hi:[1,0,0]')
                    a(f'v_pk_mul_f32 {vr(x,2)}, {vr(x,2)}, {vr(R,2)}')
                    a(f'v_cvt_pk_bf16_f32 v{T}, v{x}, v{x+1}')
                    a(f'v_lshlrev_b32 v{x}, 16, v{T}')
                    a(f'v_and_b32 v{x+1}, 0xffff0000, v{T}')
                    a(f'v_pk_add_f32 {vr(x,2)}, {vr(x,2)}, {vr(B,2)}')
                    a(f'v_cvt_pk_bf16_f32 v{T}, v{x}, v{x+1}')
                    a(f'v_pk_max_i16 v{T}, v{T}, 0')
                    a(f'v_lshlrev_b32 v{x}, 16, v{T}')
                    a(f'v_and_b32 v{x+1}, 0xffff0000, v{T}')
                    a(f'v_pk_mul_f32 {vr(x,2)}, {vr(x,2)}, {vr(x,2)}')
                    a(f'v_cvt_pk_bf16_f32 v{outreg(t,lt)+h}, v{x}, v{x+1}')
                    if w2e: self.w2_load(w2e.pop(0))
            if t in (1, 3, 5):
                p = t >> 1
                for lt, sb in ((0, 's62'), (1, 's63')):
                    a(f'buffer_store_dwordx4 {vr(OUT+(p*2+lt)*4,4)}, v3, {sr(SRD_WS)}, {sb} offen offset:{1024*p} sc1')
        for lt, sb in ((0, 's64'), (1, 's65')):
            a(f'buffer_store_dwordx2 {vr(OUT+24+lt*2,2)}, v3, {sr(SRD_WS)}, {sb} offen sc1')

    P4H = 112
    def p4_h_setup(self):
        a = self.a
        a('v_lshlrev_b32 v3, 4, v2')
        a('s_lshl_b32 s5, s72, 2')
        a(f's_mul_i32 s5, s5, {NK2}')
        a('s_add_u32 s5, s5, s74')
        a('s_lshl_b32 s5, s5, 10')
        a(f's_add_u32 s76, s5, {HH}')
        for lt in range(1, 4):
            a(f's_add_u32 s{76+lt}, s76, {lt*NK2*1024}')

    def p4_h_load(self, kk):
        a = self.a
        slot = kk % 9
        for lt in range(4):
            reg = vr(self.P4H + slot * 16 + lt * 4, 4)
            if kk < 4:
                a(f'buffer_load_dwordx4 {reg}, v3, {sr(SRD_WS)}, s{76+lt} offen offset:{kk*1024} sc1')
            else:
                a(f's_add_u32 s5, s{76+lt}, {(kk//4)*4096}')
                a(f'buffer_load_dwordx4 {reg}, v3, {sr(SRD_WS)}, s5 offen offset:{(kk%4)*1024} sc1')

    def p4_h_load1(self, kk, lt):
        a = self.a
        slot = kk % 9
        reg = vr(self.P4H + slot * 16 + lt * 4, 4)
        if kk < 4:
            a(f'buffer_load_dwordx4 {reg}, v3, {sr(SRD_WS)}, s{76+lt} offen offset:{kk*1024} sc1')
        else:
            a(f's_add_u32 s5, s{76+lt}, {(kk//4)*4096}')
            a(f'buffer_load_dwordx4 {reg}, v3, {sr(SRD_WS)}, s5 offen offset:{(kk%4)*1024} sc1')

    P4_AHEAD = 4
    def p4_main(self):
        a = self.a
        ACC = 8
        AH = self.P4_AHEAD
        for kk in range(AH):
            for lt in range(4): self.p4_h_load1(kk, lt)
        for kk in range(14):
            issued_to = min(AH - 1 + kk, 13)
            a(f's_waitcnt vmcnt({(issued_to - kk) * 4})')
            if kk in (0, 4, 9): self.stamp(f'p4k{kk}')
            slot = kk % 9
            n = 0
            for t in range(5):
                for lt in range(4):
                    acc = ACC + (t * 4 + lt) * 4
                    c = '0' if kk == 0 else vr(acc, 4)
                    a(f'v_mfma_f32_16x16x32_bf16 {vr(acc,4)}, {self.w2reg(kk*5+t)}, {vr(self.P4H+slot*16+lt*4,4)}, {c}')
                    if n % 5 == 2 and kk + AH <= 13: self.p4_h_load1(kk + AH, n // 5)
                    n += 1

def build(timing=False):
    out = []
    out.append(f'; @launch kernel=k12_kernel grid=(256,1,1) block=(256,1,1) lds={LDS_SIZE}')
    out.append(f'; @launch kernel=k34_kernel grid=(256,1,1) block=(256,1,1) lds={LDS_SIZE}')
    out.append('.amdgcn_target "amdgcn-amd-amdhsa--gfx950"')
    out.append('.text')
    g = G2(True); g.kname = 'k12'; a = g.a
    if g.timing:
        for i in range(16): a(f's_mov_b32 s{86+i}, 0')
    g.stamp('start')
    g.prologue()
    g.ln1_issue()
    g.epoch_issue()
    Laux = a.label('Laux')
    a('s_cmp_lt_u32 s2, 160'); a(f's_cbranch_scc0 {Laux}')
    g.kgen_issue()
    g.p2_consts()
    g.ln1_compute(7)
    a('s_waitcnt vmcnt(11)')
    g.epoch_get()
    g.bar_signal()
    g.stamp('ln1')
    g.ux_zero_pad()
    g.kgen(0)
    g.stamp('kgen')
    g.bar_wait()
    g.stamp('B1')
    g.conv_load_ux()
    g.stamp('ux')
    g.conv_main()
    g.stamp('conv')
    g.sc = ''
    g.conv_epilogue()
    g.stamp('cep2')
    a('s_branch L_flush_k12')
    a(f'{Laux}:')
    g.sc = ' sc1'
    g.ln1_compute(1)
    a('s_waitcnt vmcnt(5)')
    g.epoch_get()
    g.bar_signal()
    g.row_zero()
    g.prep()
    g.stamp('prep')
    a('L_flush_k12:')
    g.stamp_flush(0)
    g.end()
    out.append(kernel_header('k12_kernel')); out += a.finalize()
    g = G2(True); g.kname = 'k34'; a = g.a
    if g.timing:
        for i in range(16): a(f's_mov_b32 s{86+i}, 0')
    g.stamp('start')
    g.prologue()
    g.p34_ids()
    g.p3_setup()
    g.w2_setup()
    g.p3_main()
    g.stamp('p3main')
    g.p3_epilogue()
    g.stamp('p3ep')
    rest = [i for i in range(g.NW2_MAIN + g.NW2_EPI, 70)]
    Lw0 = a.label('Lw0'); Lj = a.label('Lj')
    g.row_signal_pre(a)
    a(f's_cmp_eq_u32 s{sWAVE}, 0'); a(f's_cbranch_scc0 {Lw0}')
    g.row_flag_store()
    a(f'{Lw0}:')
    for idx in rest: g.w2_load(idx)
    a(f's_cmp_eq_u32 s{sWAVE}, 0'); a(f's_cbranch_scc0 {Lj}')
    g.row_poll()
    a(f'{Lj}:')
    a('s_barrier')
    g.stamp('B3')
    g.p4_h_setup()
    g.p4_main()
    g.stamp('p4main')
    g.p4_epilogue()
    g.stamp_flush(1)
    g.end()
    out.append(kernel_header('k34_kernel')); out += a.finalize()
    out.append('.section .rodata,"a"')
    for n in ('k12_kernel', 'k34_kernel'): out.append(kernel_desc(n))
    return '\n'.join(out) + '\n'

if __name__ == '__main__':
    dst = sys.argv[1]
    gen.TIMING = 'timing' in sys.argv[2:]
    for x in sys.argv[2:]:
        if x.startswith('set='): gen.STAMPSET = set(x[4:].split(','))
    gen.HF = HF; gen.BLK = BLK; gen.HH = HH; gen.W1F = W1F; gen.W2F = W2F; gen.SP = SP
    s = build()
    open(dst, 'w').write(s)
    print('wrote', dst, len(s), 'bytes')
```

```python
import sys
sys.path.insert(0, 'work')
import gen
from gen import Gen, sr, vr, ar, f2u, sWAVE, SRD_A, SRD_WS, SRD_B, SRD_C, SRD_D
from gen import P_X, P_LA, P_AI, P_CR, P_CI, P_LDT, P_DSK, P_W1, P_B1, P_W2, P_B2, P_OUT, P_DBG, P_WS
from gen import kernel_header, kernel_desc

BLK = 0x0000000
HF  = 0x0500000
W1F = 0x0800000
W2F = 0x0B00000
SP  = 0x0E00000
HH  = 0x1000000
EPX = 0x2000000
BFL = 0x2001000
RFL = 0x2004000
LDS_SIZE = 163840
NK2 = 56

class G2(Gen):
    GA = 100; VB = 144; VA = 152; VEU = 153; VHW = 154; VDSK = 155; PL = 156

    def epoch_issue(self):
        a = self.a
        a(f'v_mov_b32 v97, {EPX}')
        a(f'buffer_load_dword v96, v97, {sr(SRD_WS)}, 0 offen sc1')
        return 1

    def epoch_get(self):
        a = self.a
        a('v_readfirstlane_b32 s83, v96')
        a('s_add_u32 s83, s83, 1')

    def bar_signal(self):
        a = self.a
        L = a.label('Lsig')
        a('s_waitcnt vmcnt(0) lgkmcnt(0)')
        a('s_barrier')
        a(f's_cmp_eq_u32 s{sWAVE}, 0')
        a(f's_cbranch_scc0 {L}')
        a('v_lshlrev_b32 v5, 10, v2')
        a('s_lshl_b32 s5, s2, 2')
        a(f's_add_u32 s5, s5, {BFL}')
        a('v_mov_b32 v4, s83')
        a('s_mov_b64 exec, 0xff')
        a(f'buffer_store_dword v4, v5, {sr(SRD_WS)}, s5 offen sc1')
        a('s_mov_b64 exec, -1')
        a(f'{L}:')

    def bar_wait(self):
        a = self.a
        Lp = a.label('Lpoll'); Ld = a.label('Lpolld'); Lo = a.label('Lpollo'); Lx = a.label('Lpollx')
        a(f's_cmp_eq_u32 s{sWAVE}, 0')
        a(f's_cbranch_scc0 {Lo}')
        a('v_lshlrev_b32 v4, 4, v2')
        a('s_and_b32 s5, s2, 7')
        a('s_lshl_b32 s5, s5, 10')
        a(f's_add_u32 s5, s5, {BFL}')
        a('s_mov_b32 s6, 0')
        a(f'{Lp}:')
        a(f'buffer_load_dwordx4 v[8:11], v4, {sr(SRD_WS)}, s5 offen sc1')
        a('s_waitcnt vmcnt(0)')
        a('v_xor_b32 v8, s83, v8'); a('v_xor_b32 v9, s83, v9'); a('v_xor_b32 v10, s83, v10'); a('v_xor_b32 v11, s83, v11')
        a('v_or_b32 v8, v8, v9')
        a('v_or3_b32 v8, v8, v10, v11')
        a('v_cmp_ne_u32 vcc, 0, v8')
        a(f's_cbranch_vccz {Ld}')
        a('s_sleep 1')
        a('s_add_u32 s6, s6, 1')
        a('s_cmp_lt_u32 s6, 0x40000')
        a(f's_cbranch_scc1 {Lp}')
        a(f'{Ld}:')
        a('s_cmp_eq_u32 s2, 0')
        a(f's_cbranch_scc0 {Lx}')
        a('s_mov_b64 exec, 1')
        a('v_mov_b32 v4, s83')
        a(f'v_mov_b32 v5, {EPX}')
        a(f'buffer_store_dword v4, v5, {sr(SRD_WS)}, 0 offen sc1')
        a('s_mov_b64 exec, -1')
        a(f'{Lx}:')
        a(f'{Lo}:')
        a('s_barrier')

    def row_zero(self):
        a = self.a
        L = a.label('Lrz')
        a('s_cmp_eq_u32 s2, 255')
        a(f's_cbranch_scc0 {L}')
        a('v_lshlrev_b32 v4, 3, v0')
        a('v_mov_b32 v6, 0'); a('v_mov_b32 v7, 0')
        a(f's_mov_b32 s5, {RFL}')
        a(f'buffer_store_dwordx2 v[6:7], v4, {sr(SRD_WS)}, s5 offen')
        a(f'{L}:')

    def row_signal(self, nlater):
        a = self.a
        L = a.label('Lrs')
        a(f's_waitcnt vmcnt({nlater})')
        a('s_barrier')
        a(f's_cmp_eq_u32 s{sWAVE}, 0')
        a(f's_cbranch_scc0 {L}')
        a('s_lshl_b32 s5, s66, 7')
        a('s_lshl_b32 s6, s67, 2')
        a('s_add_u32 s5, s5, s6')
        a(f's_add_u32 s5, s5, {RFL}')
        a('s_mov_b64 exec, 1')
        a('v_mov_b32 v4, 1')
        a('v_mov_b32 v5, 0')
        a(f'buffer_store_dword v4, v5, {sr(SRD_WS)}, s5 offen sc1')
        a('s_mov_b64 exec, -1')
        a(f'{L}:')

    def row_wait(self):
        a = self.a
        Lp = a.label('Lpoll'); Ld = a.label('Lpolld'); Lo = a.label('Lpollo')
        a(f's_cmp_eq_u32 s{sWAVE}, 0')
        a(f's_cbranch_scc0 {Lo}')
        a('v_and_b32 v4, 15, v2')
        a('v_lshlrev_b32 v4, 2, v4')
        a('s_lshr_b32 s5, s72, 1')
        a('s_lshl_b32 s5, s5, 7')
        a(f's_add_u32 s5, s5, {RFL}')
        a('s_mov_b32 s6, 0')
        a(f'{Lp}:')
        a(f'buffer_load_dword v5, v4, {sr(SRD_WS)}, s5 offen sc1')
        a('s_waitcnt vmcnt(0)')
        a('v_cmp_ne_u32 vcc, 1, v5')
        a(f's_cbranch_vccz {Ld}')
        a('s_sleep 1')
        a('s_add_u32 s6, s6, 1')
        a('s_cmp_lt_u32 s6, 0x40000')
        a(f's_cbranch_scc1 {Lp}')
        a(f'{Ld}:')
        a(f'{Lo}:')
        a('s_barrier')

    def row_signal_pre(self, a):
        a('s_waitcnt vmcnt(0)')
        a('s_barrier')
        self.stamp('p3sig')

    def row_flag_store(self):
        a = self.a
        a('s_lshl_b32 s5, s66, 7')
        a('s_lshl_b32 s6, s67, 2')
        a('s_add_u32 s5, s5, s6')
        a(f's_add_u32 s5, s5, {RFL}')
        a('s_mov_b64 exec, 1')
        a('v_mov_b32 v4, 1')
        a('v_mov_b32 v5, 0')
        a(f'buffer_store_dword v4, v5, {sr(SRD_WS)}, s5 offen sc1')
        a('s_mov_b64 exec, -1')

    def row_poll(self):
        a = self.a
        Lp = a.label('Lpoll'); Ld = a.label('Lpolld')
        a('v_and_b32 v4, 15, v2')
        a('v_lshlrev_b32 v4, 2, v4')
        a('s_lshr_b32 s5, s72, 1')
        a('s_lshl_b32 s5, s5, 7')
        a(f's_add_u32 s5, s5, {RFL}')
        a('s_mov_b32 s6, 0')
        a(f'{Lp}:')
        a(f'buffer_load_dword v5, v4, {sr(SRD_WS)}, s5 offen sc1')
        a('s_waitcnt vmcnt(0)')
        a('v_cmp_ne_u32 vcc, 1, v5')
        a(f's_cbranch_vccz {Ld}')
        a('s_sleep 1')
        a('s_add_u32 s6, s6, 1')
        a('s_cmp_lt_u32 s6, 0x40000')
        a(f's_cbranch_scc1 {Lp}')
        a(f'{Ld}:')

    def prep(self):
        a = self.a
        Lw2 = a.label('Lpw2'); Ldone = a.label('Lpdone')
        a('s_sub_u32 s5, s2, 160')
        a('v_lshrrev_b32 v90, 4, v2')
        a('v_bfe_u32 v91, v2, 2, 2')
        a('v_and_b32 v92, 3, v2')
        a('v_lshlrev_b32 v93, 4, v2')
        a('s_cmp_lt_u32 s5, 16')
        a(f's_cbranch_scc0 {Lw2}')
        self.srd(SRD_B, P_W1, 640 * 3456)
        a('v_mul_u32_u24 v94, 4682, v2')
        a('v_lshrrev_b32 v94, 16, v94')
        a('v_mul_u32_u24 v95, 14, v94')
        a('v_sub_u32 v95, v2, v95')
        a('v_mul_u32_u24 v94, 3456, v94')
        a('v_lshl_add_u32 v94, v95, 4, v94')
        a(f's_mul_i32 s6, s{sWAVE}, {160*3456}')
        a('s_mul_i32 s7, s5, 216')
        a('s_add_u32 s6, s6, s7')
        WB = 35840
        a(f's_mul_i32 s61, s{sWAVE}, {WB}')
        a('s_mov_b32 m0, s61')
        a('s_mov_b32 exec_hi, 0x00ffffff')
        for i in range(40):
            a(f'buffer_load_dwordx4 v94, {sr(SRD_B)}, s6 offen lds')
            if i < 39:
                a('s_add_u32 m0, m0, 896')
                a(f's_add_u32 s6, s6, {4*3456}')
        a('s_mov_b64 exec, -1')
        a('v_lshl_add_u32 v94, v90, 3, v91')
        a('v_mul_u32_u24 v94, 224, v94')
        a('v_lshl_add_u32 v94, v92, 3, v94')
        a('v_add_u32 v94, s61, v94')
        a('s_mov_b32 s70, 0x3f803f80')
        a('v_and_b32 v95, 15, v2')
        a('v_cmp_lt_u32 s[62:63], 11, v95')
        a('v_cmp_eq_u32 vcc, 12, v95')
        a('v_mov_b32 v96, 0'); a('v_mov_b32 v97, s70')
        a('v_cndmask_b32 v96, v96, v97, vcc')
        a('s_mul_i32 s64, s5, 143360')
        a(f's_mul_i32 s65, s{sWAVE}, {5*7168}')
        a('s_add_u32 s64, s64, s65')
        a(f's_add_u32 s64, s64, {W1F}')
        a('s_waitcnt vmcnt(0)')
        for t in range(7):
            for kk in range(5):
                R = 100 + 4 * kk
                a(f'ds_read_b64_tr_b16 {vr(R,2)}, v94 offset:{kk*32*224+t*32}')
                a(f'ds_read_b64_tr_b16 {vr(R+2,2)}, v94 offset:{kk*32*224+t*32+4*224}')
            S = 120 + t
            a(f's_add_u32 s65, s64, {t*1024}')
            for kk in range(5):
                R = 100 + 4 * kk
                a(f's_waitcnt lgkmcnt({2*(4-kk)})')
                if t == 6:
                    for j in range(4):
                        a(f'v_cndmask_b32 v{R+j}, v{R+j}, v96, s[62:63]')
                a(f'buffer_store_dwordx4 {vr(R,4)}, v93, {sr(SRD_WS)}, s65 offen')
                for j in range(4):
                    c = '0' if (kk == 0 and j == 0) else f'v{S}'
                    a(f'v_dot2_f32_bf16 v{S}, v{R+j}, s70, {c}')
                if kk < 4: a('s_add_u32 s65, s65, 7168')
            a(f'v_mov_b32 v98, v{S}')
            a(f'v_permlane16_swap_b32 v{S}, v98')
            a(f'v_add_f32 v{S}, v{S}, v98')
            a(f'v_mov_b32 v98, v{S}')
            a(f'v_permlane32_swap_b32 v{S}, v98')
            a(f'v_add_f32 v{S}, v{S}, v98')
        SB = 4 * WB
        a('v_lshlrev_b32 v98, 2, v95')
        a(f's_mul_i32 s64, s{sWAVE}, 448')
        a(f's_add_u32 s64, s64, {SB}')
        a('v_add_u32 v97, s64, v98')
        for t in range(7):
            a(f'ds_write_b32 v97, v{120+t} offset:{64*t}')
        a('s_waitcnt lgkmcnt(0)')
        a('s_barrier')
        a('v_lshlrev_b32 v97, 2, v0')
        a(f'v_add_u32 v98, {SB}, v97')
        for w in range(4):
            a(f'ds_read_b32 v{120+w}, v98 offset:{448*w}')
        a('s_mul_i32 s64, s5, 448')
        a(f's_add_u32 s64, s64, {SP}')
        a('s_waitcnt lgkmcnt(0)')
        a('v_add_f32 v120, v120, v121'); a('v_add_f32 v122, v122, v123'); a('v_add_f32 v120, v120, v122')
        a('v_cmp_gt_u32 vcc, 112, v0')
        Ls = a.label('Lsp')
        a('s_and_saveexec_b64 s[62:63], vcc')
        a(f's_cbranch_execz {Ls}')
        a(f'buffer_store_dword v120, v97, {sr(SRD_WS)}, s64 offen')
        a(f'{Ls}:')
        a('s_mov_b64 exec, s[62:63]')
        a(f's_branch {Ldone}')
        a(f'{Lw2}:')
        a('s_cmp_lt_u32 s5, 51')
        a(f's_cbranch_scc0 {Ldone}')
        a('s_sub_u32 s5, s5, 16')
        a('s_lshl_b32 s5, s5, 2')
        a(f's_add_u32 s5, s5, s{sWAVE}')
        a('s_mul_i32 s61, s5, 4682')
        a('s_lshr_b32 s61, s61, 16')
        a('s_mul_i32 s6, s61, 14')
        a('s_sub_u32 s62, s5, s6')
        self.srd(SRD_B, P_W2, 1728 * 1280)
        a('v_lshrrev_b32 v94, 3, v2')
        a('v_mul_u32_u24 v94, 1280, v94')
        a('v_and_b32 v95, 7, v2')
        a('v_lshl_add_u32 v94, v95, 4, v94')
        a(f's_lshl_b32 s63, s{sWAVE}, 14')
        a('s_mov_b32 m0, s63')
        for kk in range(4):
            a('s_lshl_b32 s64, s62, 2')
            a(f's_add_u32 s64, s64, {kk}')
            a('s_mul_i32 s65, s64, 9363')
            a('s_lshr_b32 s65, s65, 16')
            a('s_mul_i32 s66, s65, 7')
            a('s_sub_u32 s66, s64, s66')
            for half in range(2):
                a('s_lshl_b32 s67, s65, 1')
                a('s_lshl_b32 s68, s66, 1')
                a(f's_add_u32 s68, s68, {half}')
                a('s_sub_u32 s69, s68, 8')
                a('s_add_u32 s70, s67, 1')
                a('s_cmp_gt_u32 s66, 3')
                a('s_cselect_b32 s67, s70, s67')
                a('s_cselect_b32 s68, s69, s68')
                a('s_lshl_b32 s69, s65, 1')
                a(f's_add_u32 s69, s69, {half}')
                a('s_cmp_eq_u32 s66, 3')
                a('s_cselect_b32 s67, s69, s67')
                a('s_cselect_b32 s68, 6, s68')
                a('s_mul_i32 s67, s67, 108')
                a('s_lshl_b32 s68, s68, 4')
                a('s_add_u32 s67, s67, s68')
                a('s_mul_i32 s67, s67, 1280')
                a('s_lshl_b32 s68, s61, 7')
                a('s_add_u32 s67, s67, s68')
                for i in range(2):
                    a(f'buffer_load_dwordx4 v94, {sr(SRD_B)}, s67 offen lds')
                    a('s_add_u32 m0, m0, 1024')
                    if i == 0: a(f's_add_u32 s67, s67, {8*1280}')
        a('v_lshl_add_u32 v94, v90, 2, v91')
        a('v_lshlrev_b32 v94, 7, v94')
        a('v_lshl_add_u32 v94, v92, 3, v94')
        a('v_add_u32 v94, s63, v94')
        a('v_cmp_eq_u32 s[68:69], 3, v90')
        a('s_waitcnt vmcnt(0)')
        for kk in range(4):
            a('s_lshl_b32 s64, s62, 2')
            a(f's_add_u32 s64, s64, {kk}')
            a('s_mul_i32 s65, s64, 9363')
            a('s_lshr_b32 s65, s65, 16')
            a('s_mul_i32 s66, s65, 7')
            a('s_sub_u32 s66, s64, s66')
            for tt in range(4):
                R = 100 + 4 * tt
                a(f'ds_read_b64_tr_b16 {vr(R,2)}, v94 offset:{kk*4096+tt*32}')
                a(f'ds_read_b64_tr_b16 {vr(R+2,2)}, v94 offset:{kk*4096+tt*32+2048}')
            Lnz = a.label('Lnz')
            a('s_waitcnt lgkmcnt(0)')
            a('s_cmp_eq_u32 s66, 3')
            a(f's_cbranch_scc0 {Lnz}')
            for tt in range(4):
                for j in range(4):
                    a(f'v_cndmask_b32 v{100+4*tt+j}, v{100+4*tt+j}, 0, s[68:69]')
            a(f'{Lnz}:')
            for tt in range(4):
                a('s_lshl_b32 s65, s61, 2')
                a(f's_add_u32 s65, s65, {tt}')
                a('s_mul_i32 s67, s65, 13108')
                a('s_lshr_b32 s67, s67, 16')
                a('s_mul_i32 s70, s67, 5')
                a('s_sub_u32 s70, s65, s70')
                a(f's_mul_i32 s67, s67, {NK2}')
                a('s_add_u32 s67, s67, s64')
                a('s_mul_i32 s67, s67, 5')
                a('s_add_u32 s67, s67, s70')
                a('s_lshl_b32 s67, s67, 10')
                a(f's_add_u32 s67, s67, {W2F}')
                a(f'buffer_store_dwordx4 {vr(100+4*tt,4)}, v93, {sr(SRD_WS)}, s67 offen')
        a(f'{Ldone}:')

    def p2_consts(self):
        a = self.a
        GA, VB, VA = self.GA, self.VB, self.VA
        t0, t1, t2, t3, t4 = 90, 91, 92, 93, 94
        a(f's_mul_i32 s61, s{sWAVE}, {self.WSTRIDE}')
        a(f'v_lshlrev_b32 v{t0}, 3, v2')
        a(f'v_sub_u32 v{t0}, 2047, v{t0}')
        a(f's_add_u32 s6, s61, {self.TBL}')
        a('s_movk_i32 s7, 0x80')
        for k in range(4):
            for e in range(0, 11, 2):
                n = 2 if e + 1 < 11 else 1
                a(f'v_subrev_u32 v{t1}, {512*k+e}, v{t0}')
                a(f'v_cvt_f32_i32 v{t3}, v{t1}')
                if n == 2:
                    a(f'v_subrev_u32 v{t2}, {512*k+e+1}, v{t0}')
                    a(f'v_cvt_f32_i32 v{t4}, v{t2}')
                    a(f'v_cvt_pk_bf16_f32 v{t3}, v{t3}, v{t4}')
                    a(f'v_lshrrev_b32 v{t4}, 16, v{t3}')
                else:
                    a(f'v_cvt_pk_bf16_f32 v{t3}, v{t3}, v{t3}')
                a(f'v_and_b32 v{t3}, 0xffff, v{t3}')
                a(f'v_subrev_u32 v{t3}, 0x4280, v{t3}')
                a(f'v_med3_i32 v{t3}, v{t3}, v{t1}, s7')
                a(f'v_lshl_add_u32 v{GA+11*k+e}, v{t3}, 1, s6')
                if n == 2:
                    a(f'v_subrev_u32 v{t4}, 0x4280, v{t4}')
                    a(f'v_med3_i32 v{t4}, v{t4}, v{t2}, s7')
                    a(f'v_lshl_add_u32 v{GA+11*k+e+1}, v{t4}, 1, s6')
        i_, g_ = t0, t1
        a(f'v_and_b32 v{i_}, 15, v2')
        a(f'v_lshrrev_b32 v{g_}, 4, v2')
        a(f'v_and_b32 v{t2}, 3, v{i_}')
        a(f'v_sub_u32 v{t2}, 3, v{t2}')
        a(f'v_mul_u32_u24 v{t2}, {self.CPY}, v{t2}')
        a(f'v_lshrrev_b32 v{t3}, 2, v{i_}')
        a(f'v_lshlrev_b32 v{t3}, 3, v{t3}')
        a(f'v_sub_u32 v{t2}, v{t2}, v{t3}')
        a(f'v_lshl_add_u32 v{t2}, v{g_}, 4, v{t2}')
        a(f's_add_u32 s6, s61, {2*(2044-16) - (512*7+64*7)}')
        a(f'v_add_u32 v{VA}, s6, v{t2}')
        a(f'v_lshlrev_b32 v{t2}, 1, v{i_}')
        a(f'v_add_u32 v{t2}, v{t2}, v{g_}')
        a(f'v_lshlrev_b32 v{t2}, 7, v{t2}')
        a(f'v_lshrrev_b32 v{t3}, 1, v{g_}')
        a(f'v_add_u32 v{t3}, v{t3}, v{i_}')
        a(f's_lshl_b32 s7, s{sWAVE}, 1')
        for b in range(8):
            a(f'v_subrev_u32 v{t4}, {2*b+1}, v{t3}')
            a(f'v_and_b32 v{t4}, 7, v{t4}')
            a(f'v_xor_b32 v{t4}, s7, v{t4}')
            a(f'v_lshl_add_u32 v{t4}, v{t4}, 4, v{t2}')
            a(f'v_add_u32 v{VB+b}, {self.UXB + (30-4*b)*128}, v{t4}')
        a(f'v_lshlrev_b32 v{t2}, 1, v{i_}')
        a(f'v_lshrrev_b32 v{t3}, 1, v{g_}')
        a(f'v_add_u32 v{t2}, v{t2}, v{t3}')
        a(f'v_lshlrev_b32 v{t2}, 7, v{t2}')
        a(f'v_and_b32 v{t3}, 7, v{i_}')
        a(f'v_xor_b32 v{t3}, s7, v{t3}')
        a(f'v_lshl_add_u32 v{t2}, v{t3}, 4, v{t2}')
        a(f'v_and_b32 v{t3}, 1, v{g_}')
        a(f'v_lshl_add_u32 v{t2}, v{t3}, 3, v{t2}')
        a(f'v_add_u32 v{self.VEU}, {self.UXB + 32*128}, v{t2}')
        a(f'v_lshlrev_b32 v{t2}, 5, v{i_}')
        a(f'v_lshl_add_u32 v{t2}, v{g_}, 3, v{t2}')
        a(f'v_add_u32 v{self.VHW}, s61, v{t2}')

    def kgen_tail(self):
        a = self.a
        GA = self.GA
        a('v_lshlrev_b32 v7, 4, v2')
        a('v_add_u32 v7, s61, v7')
        a('v_and_b32 v10, 15, v2')
        a('v_lshlrev_b32 v10, 2, v10')
        a('v_add_u32 v10, s61, v10')
        a('v_mov_b32 v11, 0')
        for k in range(4):
            L = 12 + 12 * k
            for e in range(11):
                dst = L + (e >> 1) if e % 2 == 0 else L + 6 + (e >> 1)
                a(f'ds_read_u16 v{dst}, v{GA+11*k+e}')
        for c in range(4):
            a(f'ds_write_b32 v10, v11 offset:{c*self.CPY+4096}')
        for k in range(4):
            L = 12 + 12 * k
            if k == 0: a('s_waitcnt lgkmcnt(0)')
            D = 64 + 0
            for w in range(5):
                a(f'v_lshl_or_b32 v{D+w}, v{L+6+w}, 16, v{L+w}')
            a(f'v_mov_b32 v{D+5}, v{L+5}')
            if k == 3:
                a(f'v_writelane_b32 v{D+4}, 0, 63')
                a(f'v_writelane_b32 v{D+5}, 0, 63')
            for w in range(5):
                a(f'v_alignbit_b32 v{72+w}, v{D+w+1}, v{D+w}, 16')
            a(f'ds_write_b128 v7, {vr(D,4)} offset:{k*1024}')
            a(f'ds_write_b128 v7, {vr(72,4)} offset:{self.CPY+k*1024}')
            a(f'v_pk_mov_b32 v[80:81], {vr(D,2)}, {vr(D+2,2)} op_sel:[1,0]')
            a(f'v_pk_mov_b32 v[82:83], {vr(D+2,2)}, {vr(D+4,2)} op_sel:[1,0]')
            a('v_pk_mov_b32 v[84:85], v[72:73], v[74:75] op_sel:[1,0]')
            a('v_pk_mov_b32 v[86:87], v[74:75], v[76:77] op_sel:[1,0]')
            a(f'ds_write_b128 v7, v[80:83] offset:{2*self.CPY+k*1024}')
            a(f'ds_write_b128 v7, v[84:87] offset:{3*self.CPY+k*1024}')

    def conv_load_ux(self):
        a = self.a
        R = 164
        a('v_lshrrev_b32 v4, 3, v2')
        a('v_mul_u32_u24 v5, 20480, v4')
        a('v_and_b32 v6, 7, v2')
        a('v_lshl_add_u32 v5, v6, 4, v5')
        a(f's_mul_i32 s5, s{sWAVE}, {64*20480}')
        a('s_lshl_b32 s6, s2, 7')
        a('s_add_u32 s5, s5, s6')
        for k in range(8):
            a(f'buffer_load_dwordx4 {vr(R+4*k,4)}, v5, {sr(SRD_WS)}, s5 offen sc1')
            if k < 7: a(f's_add_u32 s5, s5, {8*20480}')
        a('v_lshrrev_b32 v7, 4, v2')
        a('v_xor_b32 v8, v6, v7')
        a('v_xor_b32 v9, 4, v8')
        a('v_lshlrev_b32 v4, 7, v4')
        a(f's_lshl_b32 s6, s{sWAVE}, 13')
        a(f's_add_u32 s6, s6, {self.UXB + 4096}')
        a('v_add_u32 v4, s6, v4')
        a('v_lshl_add_u32 v8, v8, 4, v4')
        a('v_lshl_add_u32 v9, v9, 4, v4')
        for k in range(8):
            a(f's_waitcnt vmcnt({7-k})')
            a(f'ds_write_b128 v{8 + (k&1)}, {vr(R+4*k,4)} offset:{k*1024}')
        a('s_waitcnt lgkmcnt(0)')
        a('s_barrier')

    def ux_zero_pad(self):
        a = self.a
        a('v_mov_b32 v12, 0'); a('v_mov_b32 v13, 0'); a('v_mov_b32 v14, 0'); a('v_mov_b32 v15, 0')
        a('v_lshlrev_b32 v10, 4, v0')
        a(f'v_add_u32 v10, {self.UXB}, v10')
        a('ds_write_b128 v10, v[12:15]')

    def conv_main(self, hook=None):
        a = self.a
        ACC = 12
        bufA = [44, 164]; bufB = [76, 196]
        def reads(b):
            sel = b & 1
            lst = []
            for aa in range(8):
                off = 512 * (7 - aa) + 64 * (7 - b)
                lst.append(f'ds_read_b64 {vr(bufA[sel]+4*aa,2)}, v{self.VA} offset:{off}')
                lst.append(f'ds_read_b64 {vr(bufA[sel]+4*aa+2,2)}, v{self.VA} offset:{off+8}')
            for e in range(8):
                lst.append(f'ds_read_b128 {vr(bufB[sel]+4*e,4)}, v{self.VB+b} offset:{4096*e}')
            order = []
            for k in range(8):
                order += [lst[2*k], lst[2*k+1], lst[16+k]]
            return order
        for r in reads(0): a(r)
        for b in range(8):
            sel = b & 1
            nxt = reads(b + 1) if b < 7 else []
            a('s_waitcnt lgkmcnt(0)')
            n = 0
            for aa in range(8):
                for e in range(8 - aa):
                    t = aa + e
                    c = '0' if (b == 0 and aa == 0) else vr(ACC + 4 * t, 4)
                    a(f'v_mfma_f32_16x16x32_bf16 {vr(ACC+4*t,4)}, {vr(bufA[sel]+4*aa,4)}, {vr(bufB[sel]+4*e,4)}, {c}')
                    if n < len(nxt): a(nxt[n])
                    n += 1

    def p34_ids(self):
        a = self.a
        a('s_and_b32 s5, s2, 7')
        a('s_lshr_b32 s6, s2, 3')
        a('s_lshr_b32 s66, s5, 1'); a('s_lshl_b32 s66, s66, 2')
        a('s_and_b32 s7, s6, 3'); a('s_add_u32 s66, s66, s7')
        a('s_and_b32 s67, s5, 1'); a('s_lshl_b32 s67, s67, 3')
        a('s_lshr_b32 s7, s6, 2'); a('s_add_u32 s67, s67, s7')
        a('s_lshl_b32 s72, s5, 2'); a('s_and_b32 s7, s6, 3'); a('s_add_u32 s72, s72, s7')
        a('s_lshr_b32 s73, s6, 2')
        a(f's_mul_i32 s74, s{sWAVE}, 14')

    P3H = 96
    def p3_setup(self):
        a = self.a
        a('v_lshlrev_b32 v3, 4, v2')
        a('s_mul_i32 s76, s67, 143360')
        a(f's_lshl_b32 s6, s{sWAVE}, 10')
        a('s_add_u32 s76, s76, s6')
        a(f's_add_u32 s76, s76, {W1F}')
        a('s_mov_b32 m0, s6')
        a('s_lshl_b32 s77, s66, 3')
        a(f's_lshl_b32 s6, s{sWAVE}, 1')
        a('s_add_u32 s77, s77, s6')
        a('s_mul_i32 s77, s77, 20480')
        a(f's_add_u32 s77, s77, {HF}')
        a('s_add_u32 s78, s77, 20480')
        a('v_lshrrev_b32 v94, 4, v2')
        a('v_lshlrev_b32 v94, 4, v94')
        a('s_mul_i32 s80, s67, 448')
        a(f's_add_u32 s80, s80, {SP}')
        self.srd(SRD_B, P_B1, 1728 * 2)
        a('s_mul_i32 s81, s67, 216')
        def dma():
            a(f'buffer_load_dwordx4 v3, {sr(SRD_WS)}, s76 offen lds')
            a('s_add_u32 m0, m0, 4096')
            a('s_add_u32 s76, s76, 4096')
        def hload(kap, lt):
            def f():
                a(f'buffer_load_dwordx4 {vr(self.P3H+(2*kap+lt)*4,4)}, v3, {sr(SRD_WS)}, s{77+lt} offen offset:{(kap%4)*1024}')
                if kap % 4 == 3 and kap < 19: a(f's_add_u32 s{77+lt}, s{77+lt}, 4096')
            return f
        chunks = []
        for q in range(5):
            L = []
            hs = [hload(4 * q + kk, lt) for kk in range(4) for lt in range(2)]
            for i in range(7):
                L.append(dma); L.append(hs[i])
            L.append(hs[7])
            chunks.append(L)
        def sload(t):
            return lambda: a(f'buffer_load_dwordx4 {vr(64+4*t,4)}, v94, {sr(SRD_WS)}, s80 offen offset:{64*t}')
        def bload(t):
            return lambda: a(f'buffer_load_dwordx2 {vr(96+2*t,2)}, v4, {sr(SRD_B)}, s81 offen offset:{32*t}')
        a('v_lshrrev_b32 v4, 4, v2')
        a('v_lshlrev_b32 v4, 3, v4')
        self.p3_chunks = chunks
        self.p3_s = [sload(t) for t in range(7)]
        self.p3_b = [bload(t) for t in range(7)]

    def w2reg(self, idx):
        if idx < 64: return ar(4 * idx, 4)
        return vr(88 + 4 * (idx - 64), 4)

    def w2_setup(self):
        a = self.a
        a(f's_mul_i32 s79, s73, {NK2}')
        a('s_add_u32 s79, s79, s74')
        a('s_mul_i32 s79, s79, 5120')
        a(f's_add_u32 s79, s79, {W2F}')

    def w2_load(self, idx):
        a = self.a
        off = idx * 1024
        a(f's_add_u32 s5, s79, {(off // 4096) * 4096}')
        a(f'buffer_load_dwordx4 {self.w2reg(idx)}, v3, {sr(SRD_WS)}, s5 offen offset:{off % 4096}')

    def p3_main(self):
        a = self.a
        ACC = 8
        WB = [200, 228]
        a('v_add_u32 v92, 0x10000, v3')
        a('v_add_u32 v93, 0x20000, v3')
        def rd(kap, t):
            off = (kap * 7 + t) * 1024
            reg = ['v3', 'v92', 'v93'][off >> 16]
            return f'ds_read_b128 {ar(WB[kap&1]+4*t,4)}, {reg} offset:{off & 0xffff}'
        issued = []
        def issue(tag, f):
            f(); issued.append(tag)
        def wait_chunk(q):
            last = max(i for i, tg in enumerate(issued) if tg == q)
            n = len(issued) - 1 - last
            a(f's_waitcnt vmcnt({min(63, n)})')
            a('s_barrier')
            self.stamp(f'ch{q}')
        for f in self.p3_chunks[0]: issue(0, f)
        for f in self.p3_chunks[1]: issue(1, f)
        self.stamp('p3iss')
        S = list(self.p3_s); B = list(self.p3_b)
        w2q = list(range(self.NW2_MAIN))
        pend = {0: [(2, f) for f in self.p3_chunks[2]],
                1: [(3, f) for f in self.p3_chunks[3]],
                2: [(4, f) for f in self.p3_chunks[4]],
                3: [('s', f) for f in S] + [('s', f) for f in B],
                4: []}
        def w2f(idx): return lambda: self.w2_load(idx)
        while len(pend[4]) < 16 and w2q: pend[4].append(('w', w2f(w2q.pop(0))))
        assert not w2q
        wait_chunk(0)
        for t in range(7): a(rd(0, t))
        for kap in range(20):
            q = kap // 4
            if kap % 4 == 3 and kap < 19:
                wait_chunk(q + 1)
            a('s_waitcnt lgkmcnt(0)')
            h0 = self.P3H + (2 * kap) * 4; h1 = h0 + 4
            extra = [rd(kap + 1, t) for t in range(7)] if kap < 19 else []
            n = 0
            def slot():
                if pend[q]:
                    tg, f = pend[q].pop(0); issue(tg, f)
            for t in range(7):
                for lt, h in ((0, h0), (1, h1)):
                    acc = ACC + (t * 2 + lt) * 4
                    c = '0' if kap == 0 else vr(acc, 4)
                    a(f'v_mfma_f32_16x16x32_bf16 {vr(acc,4)}, {ar(WB[kap&1]+4*t,4)}, {vr(h,4)}, {c}')
                    if extra and n >= 1: a(extra.pop(0))
                    if n in (8, 10, 12): slot()
                    n += 1
            for lt, h in ((0, h0), (1, h1)):
                g = self.GRAM + 4 * lt
                c = '0' if kap == 0 else ar(g, 4)
                a(f'v_mfma_f32_16x16x32_bf16 {ar(g,4)}, {vr(h,4)}, {vr(h,4)}, {c}')
                if lt == 0: slot()
        for q in range(5): assert not pend[q], (q, len(pend[q]))
        last = max(i for i, tg in enumerate(issued) if tg == 's')
        self.p3_w2_inflight = len(issued) - 1 - last

    NW2_MAIN = 16
    NW2_EPI = 28
    GRAM = 192

    def p3_epilogue(self):
        a = self.a
        ACC = 8
        a('v_and_b32 v4, 15, v2')
        a('v_lshrrev_b32 v5, 4, v2')
        a('v_cmp_eq_u32 s[62:63], 3, v5')
        a('v_lshrrev_b32 v6, 2, v4')
        a('v_cmp_eq_u32 s[64:65], v6, v5')
        a('v_and_b32 v6, 3, v4')
        for lt in range(2):
            S_ = 112 + 2 * lt; Q_ = 113 + 2 * lt
            acc = ACC + (6 * 2 + lt) * 4
            a(f'v_cndmask_b32 v{S_}, 0, v{acc}, s[62:63]')
            for j in range(4):
                a(f'v_accvgpr_read_b32 v{116+j}, a{self.GRAM+4*lt+j}')
            a('v_cmp_eq_u32 vcc, 1, v6'); a('v_cndmask_b32 v116, v116, v117, vcc')
            a('v_cmp_eq_u32 vcc, 2, v6'); a('v_cndmask_b32 v116, v116, v118, vcc')
            a('v_cmp_eq_u32 vcc, 3, v6'); a('v_cndmask_b32 v116, v116, v119, vcc')
            a(f'v_cndmask_b32 v{Q_}, 0, v116, s[64:65]')
        for v in (112, 113, 114, 115):
            a(f'v_mov_b32 v94, v{v}')
            a(f'v_permlane16_swap_b32 v{v}, v94')
            a(f'v_add_f32 v{v}, v{v}, v94')
            a(f'v_mov_b32 v94, v{v}')
            a(f'v_permlane32_swap_b32 v{v}, v94')
            a(f'v_add_f32 v{v}, v{v}, v94')
        for lt in range(2):
            s_, q_ = 112 + 2 * lt, 113 + 2 * lt
            a(f'v_mul_f32 v{s_}, {f2u(1.0/640):#x}, v{s_}')
            a(f'v_mul_f32 v{q_}, {f2u(1.0/640):#x}, v{q_}')
            a(f'v_fma_f32 v{q_}, -v{s_}, v{s_}, v{q_}')
            a(f'v_max_f32 v{q_}, 0, v{q_}')
            self.bf16r(s_, s_)
            self.bf16r(q_, q_)
            a(f'v_add_f32 v{q_}, {f2u(1e-5):#x}, v{q_}')
            self.bf16r(q_, q_)
            a(f'v_sqrt_f32 v{q_}, v{q_}')
            self.bf16r(q_, q_)
            R = 116 + 4 * lt
            a(f'v_rcp_f32 v{R}, v{q_}')
            a(f'v_mov_b32 v{R+2}, v{s_}')
            a(f'v_mov_b32 v{R+1}, v{R}')
            a(f'v_mov_b32 v{R+3}, v{s_}')
        a('s_mov_b32 s70, 0x00003f80')
        a('s_mov_b32 s71, 0x3f800000')
        a(f's_waitcnt vmcnt({self.p3_w2_inflight})')
        if getattr(self, 'S2', False):
            for j in range(14):
                a(f'v_pk_add_f32 {vr(64+2*j,2)}, {vr(64+2*j,2)}, {vr(180+2*j,2)}')
        for t in range(7):
            for h in range(2):
                a(f'v_lshlrev_b32 v{124+4*t+2*h}, 16, v{96+2*t+h}')
                a(f'v_and_b32 v{124+4*t+2*h+1}, 0xffff0000, v{96+2*t+h}')
        OUT = 152
        def outreg(t, lt):
            if t < 6: return OUT + ((t >> 1) * 2 + lt) * 4 + (t & 1) * 2
            return OUT + 24 + lt * 2
        a('v_lshlrev_b32 v3, 4, v2')
        a('s_lshl_b32 s5, s66, 3')
        a(f's_lshl_b32 s6, s{sWAVE}, 1')
        a('s_add_u32 s5, s5, s6')
        a(f's_mul_i32 s5, s5, {NK2*1024}')
        a(f's_add_u32 s5, s5, {HH}')
        a('s_lshr_b32 s6, s67, 1'); a('s_mul_i32 s6, s6, 7')
        a('s_and_b32 s7, s67, 1')
        a('s_lshl_b32 s62, s7, 2'); a('s_add_u32 s62, s62, s6'); a('s_lshl_b32 s62, s62, 10'); a('s_add_u32 s62, s62, s5')
        a(f's_add_u32 s63, s62, {NK2*1024}')
        a('s_add_u32 s64, s6, 3'); a('s_lshl_b32 s64, s64, 10'); a('s_lshl_b32 s7, s7, 3'); a('s_add_u32 s64, s64, s7'); a('s_add_u32 s64, s64, s5')
        a(f's_add_u32 s65, s64, {NK2*1024}')
        tmp = [94, 111]
        w2e = list(range(self.NW2_MAIN, self.NW2_MAIN + self.NW2_EPI))
        assert not w2e or max(w2e) < 48
        for t in range(7):
            for lt in range(2):
                acc = ACC + (t * 2 + lt) * 4
                R = 116 + 4 * lt
                for h in range(2):
                    x = acc + 2 * h; S = 64 + 4 * t + 2 * h; B = 124 + 4 * t + 2 * h
                    T = tmp[h]
                    a(f'v_pk_fma_f32 {vr(x,2)}, {vr(S,2)}, {vr(R+2,2)}, {vr(x,2)} neg_lo:[1,0,0] neg_hi:[1,0,0]')
                    a(f'v_pk_mul_f32 {vr(x,2)}, {vr(x,2)}, {vr(R,2)}')
                    a(f'v_cvt_pk_bf16_f32 v{T}, v{x}, v{x+1}')
                    a(f'v_lshlrev_b32 v{x}, 16, v{T}')
                    a(f'v_and_b32 v{x+1}, 0xffff0000, v{T}')
                    a(f'v_pk_add_f32 {vr(x,2)}, {vr(x,2)}, {vr(B,2)}')
                    a(f'v_cvt_pk_bf16_f32 v{T}, v{x}, v{x+1}')
                    a(f'v_pk_max_i16 v{T}, v{T}, 0')
                    a(f'v_lshlrev_b32 v{x}, 16, v{T}')
                    a(f'v_and_b32 v{x+1}, 0xffff0000, v{T}')
                    a(f'v_pk_mul_f32 {vr(x,2)}, {vr(x,2)}, {vr(x,2)}')
                    a(f'v_cvt_pk_bf16_f32 v{outreg(t,lt)+h}, v{x}, v{x+1}')
                    if w2e: self.w2_load(w2e.pop(0))
            if t in (1, 3, 5):
                p = t >> 1
                for lt, sb in ((0, 's62'), (1, 's63')):
                    a(f'buffer_store_dwordx4 {vr(OUT+(p*2+lt)*4,4)}, v3, {sr(SRD_WS)}, {sb} offen offset:{1024*p} sc1')
        for lt, sb in ((0, 's64'), (1, 's65')):
            a(f'buffer_store_dwordx2 {vr(OUT+24+lt*2,2)}, v3, {sr(SRD_WS)}, {sb} offen sc1')

    P4H = 112
    def p4_h_setup(self):
        a = self.a
        a('v_lshlrev_b32 v3, 4, v2')
        a('s_lshl_b32 s5, s72, 2')
        a(f's_mul_i32 s5, s5, {NK2}')
        a('s_add_u32 s5, s5, s74')
        a('s_lshl_b32 s5, s5, 10')
        a(f's_add_u32 s76, s5, {HH}')
        for lt in range(1, 4):
            a(f's_add_u32 s{76+lt}, s76, {lt*NK2*1024}')

    def p4_h_load(self, kk):
        a = self.a
        slot = kk % 9
        for lt in range(4):
            reg = vr(self.P4H + slot * 16 + lt * 4, 4)
            if kk < 4:
                a(f'buffer_load_dwordx4 {reg}, v3, {sr(SRD_WS)}, s{76+lt} offen offset:{kk*1024} sc1')
            else:
                a(f's_add_u32 s5, s{76+lt}, {(kk//4)*4096}')
                a(f'buffer_load_dwordx4 {reg}, v3, {sr(SRD_WS)}, s5 offen offset:{(kk%4)*1024} sc1')

    def p4_h_load1(self, kk, lt):
        a = self.a
        slot = kk % 9
        reg = vr(self.P4H + slot * 16 + lt * 4, 4)
        if kk < 4:
            a(f'buffer_load_dwordx4 {reg}, v3, {sr(SRD_WS)}, s{76+lt} offen offset:{kk*1024} sc1')
        else:
            a(f's_add_u32 s5, s{76+lt}, {(kk//4)*4096}')
            a(f'buffer_load_dwordx4 {reg}, v3, {sr(SRD_WS)}, s5 offen offset:{(kk%4)*1024} sc1')

    P4_AHEAD = 4
    def p4_main(self):
        a = self.a
        ACC = 8
        AH = self.P4_AHEAD
        for kk in range(AH):
            for lt in range(4): self.p4_h_load1(kk, lt)
        for kk in range(14):
            issued_to = min(AH - 1 + kk, 13)
            a(f's_waitcnt vmcnt({(issued_to - kk) * 4})')
            if kk in (0, 4, 9): self.stamp(f'p4k{kk}')
            slot = kk % 9
            n = 0
            for t in range(5):
                for lt in range(4):
                    acc = ACC + (t * 4 + lt) * 4
                    c = '0' if kk == 0 else vr(acc, 4)
                    a(f'v_mfma_f32_16x16x32_bf16 {vr(acc,4)}, {self.w2reg(kk*5+t)}, {vr(self.P4H+slot*16+lt*4,4)}, {c}')
                    if n % 5 == 2 and kk + AH <= 13: self.p4_h_load1(kk + AH, n // 5)
                    n += 1

def build(timing=False):
    out = []
    out.append(f'; @launch kernel=k12_kernel grid=(256,1,1) block=(256,1,1) lds={LDS_SIZE}')
    out.append(f'; @launch kernel=k34_kernel grid=(256,1,1) block=(256,1,1) lds={LDS_SIZE}')
    out.append('.amdgcn_target "amdgcn-amd-amdhsa--gfx950"')
    out.append('.text')
    g = G2(True); g.kname = 'k12'; a = g.a
    if g.timing:
        for i in range(16): a(f's_mov_b32 s{86+i}, 0')
    g.stamp('start')
    g.prologue()
    g.ln1_issue()
    g.epoch_issue()
    Laux = a.label('Laux')
    a('s_cmp_lt_u32 s2, 160'); a(f's_cbranch_scc0 {Laux}')
    g.kgen_issue()
    g.p2_consts()
    g.ln1_compute(7)
    a('s_waitcnt vmcnt(11)')
    g.epoch_get()
    g.bar_signal()
    g.stamp('ln1')
    g.ux_zero_pad()
    g.kgen(0)
    g.stamp('kgen')
    g.bar_wait()
    g.stamp('B1')
    g.conv_load_ux()
    g.stamp('ux')
    g.conv_main()
    g.stamp('conv')
    g.sc = ''
    g.conv_epilogue()
    g.stamp('cep2')
    a('s_branch L_flush_k12')
    a(f'{Laux}:')
    g.sc = ' sc1'
    g.ln1_compute(1)
    a('s_waitcnt vmcnt(5)')
    g.epoch_get()
    g.bar_signal()
    g.row_zero()
    g.prep()
    g.stamp('prep')
    a('L_flush_k12:')
    g.stamp_flush(0)
    g.end()
    out.append(kernel_header('k12_kernel')); out += a.finalize()
    g = G2(True); g.kname = 'k34'; a = g.a
    if g.timing:
        for i in range(16): a(f's_mov_b32 s{86+i}, 0')
    g.stamp('start')
    g.prologue()
    g.p34_ids()
    g.p3_setup()
    g.w2_setup()
    g.p3_main()
    g.stamp('p3main')
    g.p3_epilogue()
    g.stamp('p3ep')
    rest = [i for i in range(g.NW2_MAIN + g.NW2_EPI, 70)]
    Lw0 = a.label('Lw0'); Lj = a.label('Lj')
    g.row_signal_pre(a)
    a(f's_cmp_eq_u32 s{sWAVE}, 0'); a(f's_cbranch_scc0 {Lw0}')
    g.row_flag_store()
    a(f'{Lw0}:')
    for idx in rest: g.w2_load(idx)
    a(f's_cmp_eq_u32 s{sWAVE}, 0'); a(f's_cbranch_scc0 {Lj}')
    g.row_poll()
    a(f'{Lj}:')
    a('s_barrier')
    g.stamp('B3')
    g.p4_h_setup()
    g.p4_main()
    g.stamp('p4main')
    g.p4_epilogue()
    g.stamp_flush(1)
    g.end()
    out.append(kernel_header('k34_kernel')); out += a.finalize()
    out.append('.section .rodata,"a"')
    for n in ('k12_kernel', 'k34_kernel'): out.append(kernel_desc(n))
    return '\n'.join(out) + '\n'

if __name__ == '__main__':
    dst = sys.argv[1]
    gen.TIMING = 'timing' in sys.argv[2:]
    for x in sys.argv[2:]:
        if x.startswith('set='): gen.STAMPSET = set(x[4:].split(','))
    gen.HF = HF; gen.BLK = BLK; gen.HH = HH; gen.W1F = W1F; gen.W2F = W2F; gen.SP = SP
    s = build()
    open(dst, 'w').write(s)
    print('wrote', dst, len(s), 'bytes')
```

```python
import sys
sys.path.insert(0, 'work')
import gen, gen2
from gen import sr, vr, ar, f2u, sWAVE, SRD_A, SRD_WS, SRD_B, SRD_C, SRD_D
from gen import P_X, P_LA, P_AI, P_CR, P_CI, P_LDT, P_DSK, P_W1, P_B1, P_W2, P_B2, P_OUT, P_DBG, P_WS
from gen import kernel_header, kernel_desc, NAME
from gen2 import G2, BLK, HF, W1F, W2F, SP, HH, EPX, LDS_SIZE, NK2

BFL1 = 0x2001000
BFL2 = 0x2003000
PFL  = 0x2005000
RFL  = 0x2008000
UFL  = 0x200A000

class G3(G2):
    S2 = False
    def code_prefetch(self):
        a = self.a
        L = a.label('Lcp')
        a('s_getpc_b64 s[62:63]')
        a(f'{L}_pc:')
        a(f's_sub_u32 s62, s62, {L}_pc-{NAME}_kernel')
        a('s_subb_u32 s63, s63, 0')
        a('s_lshr_b32 s5, s2, 3')
        a('s_lshl_b32 s5, s5, 2')
        a(f's_add_u32 s5, s5, s{sWAVE}')
        a('s_min_u32 s5, s5, (L_end_f-%s_kernel)/1024-1' % NAME)
        a('s_lshl_b32 s5, s5, 10')
        a('v_lshlrev_b32 v97, 4, v2')
        a('v_add_u32 v97, s5, v97')
        a('global_load_dwordx4 v[232:235], v97, s[62:63]')

    def flag_signal(self, base, drain=True):
        a = self.a
        L = a.label('Lsig')
        if drain: a('s_waitcnt vmcnt(0) lgkmcnt(0)')
        a('s_barrier')
        a(f's_cmp_eq_u32 s{sWAVE}, 0')
        a(f's_cbranch_scc0 {L}')
        a('v_lshlrev_b32 v5, 10, v2')
        a('s_lshl_b32 s5, s2, 2')
        a(f's_add_u32 s5, s5, {base}')
        a('v_mov_b32 v4, s83')
        a('s_mov_b64 exec, 0xff')
        a(f'buffer_store_dword v4, v5, {sr(SRD_WS)}, s5 offen sc1')
        a('s_mov_b64 exec, -1')
        a(f'{L}:')

    def flag_poll(self, base, lanes=None, publish_epoch=False):
        a = self.a
        Lp = a.label('Lpoll'); Ld = a.label('Lpolld'); Lx = a.label('Lpollx')
        a('v_lshlrev_b32 v4, 4, v2')
        a('s_and_b32 s5, s2, 7')
        a('s_lshl_b32 s5, s5, 10')
        a(f's_add_u32 s5, s5, {base}')
        a('s_mov_b32 s6, 0')
        if lanes:
            lo, hi = lanes
            m = ((1 << hi) - 1) ^ ((1 << lo) - 1)
            a(f's_mov_b32 s62, {m & 0xffffffff:#x}'); a(f's_mov_b32 s63, {m >> 32:#x}')
        a(f'{Lp}:')
        a(f'buffer_load_dwordx4 v[8:11], v4, {sr(SRD_WS)}, s5 offen sc1')
        a('s_waitcnt vmcnt(0)')
        a('v_xor_b32 v8, s83, v8'); a('v_xor_b32 v9, s83, v9'); a('v_xor_b32 v10, s83, v10'); a('v_xor_b32 v11, s83, v11')
        a('v_or_b32 v8, v8, v9')
        a('v_or3_b32 v8, v8, v10, v11')
        a('v_cmp_ne_u32 vcc, 0, v8')
        if lanes:
            a('s_and_b64 vcc, vcc, s[62:63]')
        a(f's_cbranch_vccz {Ld}')
        a('s_sleep 1')
        a('s_add_u32 s6, s6, 1')
        a('s_cmp_lt_u32 s6, 0x40000')
        a(f's_cbranch_scc1 {Lp}')
        a(f'{Ld}:')
        if publish_epoch:
            a('s_cmp_eq_u32 s2, 0')
            a(f's_cbranch_scc0 {Lx}')
            a('s_mov_b64 exec, 1')
            a('v_mov_b32 v4, s83')
            a(f'v_mov_b32 v5, {EPX}')
            a(f'buffer_store_dword v4, v5, {sr(SRD_WS)}, 0 offen sc1')
            a('s_mov_b64 exec, -1')
            a(f'{Lx}:')

    def flag_wait(self, base, lanes=None, publish_epoch=False, drain=False, mid=None):
        a = self.a
        Lo = a.label('Lpollo')
        if mid:
            a('s_waitcnt vmcnt(0)')
            mid()
        a(f's_cmp_eq_u32 s{sWAVE}, 0')
        a(f's_cbranch_scc0 {Lo}')
        self.flag_poll(base, lanes, publish_epoch)
        a(f'{Lo}:')
        if drain: a('s_waitcnt vmcnt(0)')
        a('s_barrier')

    def row_flag_store(self):
        a = self.a
        a('s_lshl_b32 s5, s66, 7')
        a('s_lshl_b32 s6, s67, 2')
        a('s_add_u32 s5, s5, s6')
        a(f's_add_u32 s5, s5, {RFL}')
        a('s_mov_b64 exec, 1')
        a('v_mov_b32 v4, s83')
        a('v_mov_b32 v5, 0')
        a(f'buffer_store_dword v4, v5, {sr(SRD_WS)}, s5 offen sc1')
        a('s_mov_b64 exec, -1')

    def row_poll(self):
        a = self.a
        Lp = a.label('Lpoll'); Ld = a.label('Lpolld')
        a('v_and_b32 v4, 15, v2')
        a('v_lshlrev_b32 v4, 2, v4')
        a('s_lshr_b32 s5, s72, 1')
        a('s_lshl_b32 s5, s5, 7')
        a(f's_add_u32 s5, s5, {RFL}')
        a('s_mov_b32 s6, 0')
        a(f'{Lp}:')
        a(f'buffer_load_dword v5, v4, {sr(SRD_WS)}, s5 offen sc1')
        a('s_waitcnt vmcnt(0)')
        a('v_cmp_ne_u32 vcc, s83, v5')
        a(f's_cbranch_vccz {Ld}')
        a('s_sleep 1')
        a('s_add_u32 s6, s6, 1')
        a('s_cmp_lt_u32 s6, 0x40000')
        a(f's_cbranch_scc1 {Lp}')
        a(f'{Ld}:')


    LDSP = 24576
    def prep_issue3(self):
        a = self.a
        Lw2 = a.label('Lpw2'); Ldone = a.label('Lpdone')
        a('s_sub_u32 s60, s2, 160')
        a('s_cmp_lt_u32 s60, 48')
        a(f's_cbranch_scc0 {Lw2}')
        self.srd(SRD_B, P_W1, 640 * 3456)
        a('v_mul_u32_u24 v94, 4682, v2')
        a('v_lshrrev_b32 v94, 16, v94')
        a('v_mul_u32_u24 v95, 14, v94')
        a('v_sub_u32 v95, v2, v95')
        a('v_mul_u32_u24 v94, 3456, v94')
        a('v_lshl_add_u32 v94, v95, 4, v94')
        a('s_mul_i32 s64, s60, 21846')
        a('s_lshr_b32 s64, s64, 16')
        a('s_mul_i32 s65, s64, 3')
        a('s_sub_u32 s65, s60, s65')
        a('s_mul_i32 s62, s65, 7')
        a(f's_lshl_b32 s61, s{sWAVE}, 1')
        a('s_add_u32 s62, s62, s61')
        a('s_mul_i32 s63, s65, 7'); a('s_add_u32 s63, s63, 7'); a('s_min_u32 s63, s63, 20')
        a('s_sub_u32 s63, s63, s62'); a('s_min_i32 s63, s63, 2')
        a(f's_mul_i32 s6, s62, {32*3456}')
        a('s_mul_i32 s7, s64, 216')
        a('s_add_u32 s6, s6, s7')
        a(f's_mul_i32 s61, s61, {32*224}')
        a(f's_add_u32 s61, s61, {self.LDSP}')
        a('s_mov_b32 m0, s61')
        a('s_mov_b32 exec_hi, 0x00ffffff')
        Lsk = a.label('Lpk')
        a('s_cmp_lt_i32 s63, 1'); a(f's_cbranch_scc1 {Lsk}')
        for i in range(16):
            if i == 8:
                a('s_cmp_lt_i32 s63, 2'); a(f's_cbranch_scc1 {Lsk}')
            a(f'buffer_load_dwordx4 v94, {sr(SRD_B)}, s6 offen lds')
            if i < 15:
                a('s_add_u32 m0, m0, 896')
                a(f's_add_u32 s6, s6, {4*3456}')
        a(f'{Lsk}:')
        a('s_mov_b64 exec, -1')
        a(f's_branch {Ldone}')
        a(f'{Lw2}:')
        a('s_cmp_lt_u32 s60, 83')
        a(f's_cbranch_scc0 {Ldone}')
        a('s_sub_u32 s5, s60, 48')
        a('s_lshl_b32 s5, s5, 2')
        a(f's_add_u32 s5, s5, s{sWAVE}')
        a('s_mul_i32 s61, s5, 4682')
        a('s_lshr_b32 s61, s61, 16')
        a('s_mul_i32 s6, s61, 14')
        a('s_sub_u32 s62, s5, s6')
        self.srd(SRD_B, P_W2, 1728 * 1280)
        a('v_lshrrev_b32 v94, 3, v2')
        a('v_mul_u32_u24 v94, 1280, v94')
        a('v_and_b32 v95, 7, v2')
        a('v_lshl_add_u32 v94, v95, 4, v94')
        a(f's_lshl_b32 s63, s{sWAVE}, 14')
        a(f's_add_u32 s63, s63, {self.LDSP}')
        a('s_mov_b32 m0, s63')
        for kk in range(4):
            a('s_lshl_b32 s64, s62, 2')
            a(f's_add_u32 s64, s64, {kk}')
            a('s_mul_i32 s65, s64, 9363')
            a('s_lshr_b32 s65, s65, 16')
            a('s_mul_i32 s66, s65, 7')
            a('s_sub_u32 s66, s64, s66')
            for half in range(2):
                a('s_lshl_b32 s67, s65, 1')
                a('s_lshl_b32 s68, s66, 1')
                a(f's_add_u32 s68, s68, {half}')
                a('s_sub_u32 s69, s68, 8')
                a('s_add_u32 s70, s67, 1')
                a('s_cmp_gt_u32 s66, 3')
                a('s_cselect_b32 s67, s70, s67')
                a('s_cselect_b32 s68, s69, s68')
                a('s_lshl_b32 s69, s65, 1')
                a(f's_add_u32 s69, s69, {half}')
                a('s_cmp_eq_u32 s66, 3')
                a('s_cselect_b32 s67, s69, s67')
                a('s_cselect_b32 s68, 6, s68')
                a('s_mul_i32 s67, s67, 108')
                a('s_lshl_b32 s68, s68, 4')
                a('s_add_u32 s67, s67, s68')
                a('s_mul_i32 s67, s67, 1280')
                a('s_lshl_b32 s68, s61, 7')
                a('s_add_u32 s67, s67, s68')
                for i in range(2):
                    a(f'buffer_load_dwordx4 v94, {sr(SRD_B)}, s67 offen lds')
                    a('s_add_u32 m0, m0, 1024')
                    if i == 0: a(f's_add_u32 s67, s67, {8*1280}')
        a(f'{Ldone}:')

    def prep_compute3(self):
        a = self.a
        Lw2 = a.label('Lqw2'); Ldone = a.label('Lqdone')
        a('v_lshrrev_b32 v90, 4, v2')
        a('v_bfe_u32 v91, v2, 2, 2')
        a('v_and_b32 v92, 3, v2')
        a('v_lshlrev_b32 v93, 4, v2')
        a('s_cmp_lt_u32 s60, 48')
        a(f's_cbranch_scc0 {Lw2}')
        a('v_lshl_add_u32 v94, v90, 3, v91')
        a('v_mul_u32_u24 v94, 224, v94')
        a('v_lshl_add_u32 v94, v92, 3, v94')
        a('v_add_u32 v94, s61, v94')
        a('s_mov_b32 s70, 0x3f803f80')
        a('v_and_b32 v95, 15, v2')
        a('v_cmp_lt_u32 s[68:69], 11, v95')
        a('v_cmp_eq_u32 vcc, 12, v95')
        a('v_mov_b32 v96, 0'); a('v_mov_b32 v97, s70')
        a('v_cndmask_b32 v96, v96, v97, vcc')
        a('s_mul_i32 s66, s64, 143360')
        a('s_mul_i32 s67, s62, 7168')
        a('s_add_u32 s66, s66, s67')
        a(f's_add_u32 s66, s66, {W1F}')
        for t in range(7): a(f'v_mov_b32 v{120+t}, 0')
        Lk3 = a.label('Lk3')
        for kk in range(2):
            a(f's_cmp_lt_i32 s63, {kk+1}'); a(f's_cbranch_scc1 {Lk3}')
            for t in range(7):
                R = 128 + 4 * t
                a(f'ds_read_b64_tr_b16 {vr(R,2)}, v94 offset:{kk*32*224+t*32}')
                a(f'ds_read_b64_tr_b16 {vr(R+2,2)}, v94 offset:{kk*32*224+t*32+4*224}')
            a(f's_add_u32 s67, s66, {kk*7168}')
            for t in range(7):
                R = 128 + 4 * t
                a(f's_waitcnt lgkmcnt({2*(6-t)})')
                if t == 6:
                    for j in range(4):
                        a(f'v_cndmask_b32 v{R+j}, v{R+j}, v96, s[68:69]')
                if t == 4: a('s_add_u32 s67, s67, 4096')
                a(f'buffer_store_dwordx4 {vr(R,4)}, v93, {sr(SRD_WS)}, s67 offen offset:{(t%4)*1024} sc1')
                for j in range(4):
                    a(f'v_dot2_f32_bf16 v{120+t}, v{R+j}, s70, v{120+t}')
        a(f'{Lk3}:')
        for t in range(7):
            S = 120 + t
            a(f'v_mov_b32 v98, v{S}')
            a(f'v_permlane16_swap_b32 v{S}, v98')
            a(f'v_add_f32 v{S}, v{S}, v98')
            a(f'v_mov_b32 v98, v{S}')
            a(f'v_permlane32_swap_b32 v{S}, v98')
            a(f'v_add_f32 v{S}, v{S}, v98')
        SB = self.LDSP + 8 * 32 * 224
        a('v_lshlrev_b32 v98, 2, v95')
        a(f's_mul_i32 s66, s{sWAVE}, 448')
        a(f's_add_u32 s66, s66, {SB}')
        a('v_add_u32 v97, s66, v98')
        for t in range(7):
            a(f'ds_write_b32 v97, v{120+t} offset:{64*t}')
        a('s_waitcnt lgkmcnt(0)')
        a('s_barrier')
        a('v_lshlrev_b32 v97, 2, v0')
        a(f'v_add_u32 v98, {SB}, v97')
        for w in range(4):
            a(f'ds_read_b32 v{120+w}, v98 offset:{448*w}')
        a('s_mul_i32 s66, s64, 448')
        a('s_mul_i32 s67, s65, 7168')
        a('s_add_u32 s66, s66, s67')
        a(f's_add_u32 s66, s66, {SP}')
        a('s_waitcnt lgkmcnt(0)')
        a('v_add_f32 v120, v120, v121'); a('v_add_f32 v122, v122, v123'); a('v_add_f32 v120, v120, v122')
        a('v_cmp_gt_u32 vcc, 112, v0')
        Ls = a.label('Lsp')
        a('s_and_saveexec_b64 s[68:69], vcc')
        a(f's_cbranch_execz {Ls}')
        a(f'buffer_store_dword v120, v97, {sr(SRD_WS)}, s66 offen sc1')
        a(f'{Ls}:')
        a('s_mov_b64 exec, s[68:69]')
        a(f's_branch {Ldone}')
        a(f'{Lw2}:')
        a('s_cmp_lt_u32 s60, 83')
        a(f's_cbranch_scc0 {Ldone}')
        a('v_lshl_add_u32 v94, v90, 2, v91')
        a('v_lshlrev_b32 v94, 7, v94')
        a('v_lshl_add_u32 v94, v92, 3, v94')
        a('v_add_u32 v94, s63, v94')
        a('v_cmp_eq_u32 s[68:69], 3, v90')
        for kk in range(4):
            a('s_lshl_b32 s64, s62, 2')
            a(f's_add_u32 s64, s64, {kk}')
            a('s_mul_i32 s65, s64, 9363')
            a('s_lshr_b32 s65, s65, 16')
            a('s_mul_i32 s66, s65, 7')
            a('s_sub_u32 s66, s64, s66')
            RB = 100 + 16 * (kk & 1)
            for tt in range(4):
                R = RB + 4 * tt
                a(f'ds_read_b64_tr_b16 {vr(R,2)}, v94 offset:{kk*4096+tt*32}')
                a(f'ds_read_b64_tr_b16 {vr(R+2,2)}, v94 offset:{kk*4096+tt*32+2048}')
            Lnz = a.label('Lnz')
            a('s_waitcnt lgkmcnt(0)')
            a('s_cmp_eq_u32 s66, 3')
            a(f's_cbranch_scc0 {Lnz}')
            for tt in range(4):
                for j in range(4):
                    a(f'v_cndmask_b32 v{RB+4*tt+j}, v{RB+4*tt+j}, 0, s[68:69]')
            a(f'{Lnz}:')
            for tt in range(4):
                a('s_lshl_b32 s65, s61, 2')
                a(f's_add_u32 s65, s65, {tt}')
                a('s_mul_i32 s67, s65, 13108')
                a('s_lshr_b32 s67, s67, 16')
                a('s_mul_i32 s70, s67, 5')
                a('s_sub_u32 s70, s65, s70')
                a(f's_mul_i32 s67, s67, {NK2}')
                a('s_add_u32 s67, s67, s64')
                a('s_mul_i32 s67, s67, 5')
                a('s_add_u32 s67, s67, s70')
                a('s_lshl_b32 s67, s67, 10')
                a(f's_add_u32 s67, s67, {W2F}')
                a(f'buffer_store_dwordx4 {vr(RB+4*tt,4)}, v93, {sr(SRD_WS)}, s67 offen sc1')
        a(f'{Ldone}:')

    def w1_lds(self, idx):
        WS = self.WSTRIDE
        if idx < 44:
            return (idx // 11) * WS + 18176 + (idx % 11) * 1024
        if idx < 49:
            return 157952 + (idx - 44) * 1024
        j = idx - 49
        if j < 68:
            return (j // 17) * WS + (j % 17) * 1024
        return self.UXB + (j - 68) * 1024

    def pref_setup(self):
        a = self.a
        a('s_mul_i32 s76, s67, 143360')
        a(f's_add_u32 s76, s76, {W1F}')
        a(f's_mul_i32 s75, s{sWAVE}, {self.WSTRIDE}')
        a('v_lshlrev_b32 v3, 4, v2')
        a(f's_mul_i32 s77, s{sWAVE}, {11*1024}')
        a('s_add_u32 s77, s77, s76')
        a(f's_mul_i32 s78, s{sWAVE}, {17*1024}')
        a('s_add_u32 s78, s78, s76')
        a(f's_add_u32 s78, s78, {49*1024}')
        a(f's_lshl_b32 s82, s{sWAVE}, 10')

    def dma(self, m0expr, soff):
        a = self.a
        for l in m0expr: a(l)
        for l in soff: a(l)
        a(f'buffer_load_dwordx4 v3, {sr(SRD_WS)}, s5 offen sc1 lds')

    def w1A(self, j):
        self.dma([f's_add_u32 m0, s75, {18176 + 1024*j}'], [f's_add_u32 s5, s77, {1024*j}'])
    def w1T(self):
        self.dma([f's_add_u32 m0, s82, 157952'], [f's_add_u32 s5, s76, s82', f's_add_u32 s5, s5, {44*1024}'])
    def w1T2(self):
        self.dma([f's_mov_b32 m0, {157952 + 4096}'], [f's_add_u32 s5, s76, {48*1024}'])
    def w1B(self, i):
        self.dma([f's_add_u32 m0, s75, {1024*i}'], [f's_add_u32 s5, s78, {1024*i}'])
    def w1C(self, i):
        a = self.a
        if i < 5:
            self.dma([f's_add_u32 m0, s82, {self.UXB + 4096*i}'], [f's_add_u32 s5, s76, s82', f's_add_u32 s5, s5, {(117+4*i)*1024}'])
        else:
            L = a.label('Lw1c')
            a(f's_cmp_eq_u32 s{sWAVE}, 3'); a(f's_cbranch_scc1 {L}')
            self.dma([f's_add_u32 m0, s82, {self.UXB + 4096*i}'], [f's_add_u32 s5, s76, s82', f's_add_u32 s5, s5, {(117+4*i)*1024}'])
            a(f'{L}:')

    def list_e1(self):
        return [lambda j=j: self.w1A(j) for j in range(11)] + [self.w1T, self.w1T2] + [lambda i=i: self.w2_load(i) for i in range(self.NW2_E1)]

    def list_e2(self):
        return [lambda i=i: self.w1B(i) for i in range(17)] + [lambda i=i: self.w1C(i) for i in range(6)] + \
               [lambda i=i: self.w2_load(i) for i in range(self.NW2_E1, self.NW2_E1 + self.NW2_E2)]

    def flag_store_only(self, base):
        a = self.a
        L = a.label('Lsig')
        a(f's_cmp_eq_u32 s{sWAVE}, 0')
        a(f's_cbranch_scc0 {L}')
        a('v_lshlrev_b32 v5, 10, v2')
        a('s_lshl_b32 s5, s2, 2')
        a(f's_add_u32 s5, s5, {base}')
        a('v_mov_b32 v4, s83')
        a('s_mov_b64 exec, 0xff')
        a(f'buffer_store_dword v4, v5, {sr(SRD_WS)}, s5 offen sc1')
        a('s_mov_b64 exec, -1')
        a(f'{L}:')

    SBL = 121088 + 24576
    def sb_stage(self):
        a = self.a
        L = a.label('Lsb')
        a(f's_cmp_eq_u32 s{sWAVE}, 1'); a(f's_cbranch_scc0 {L}')
        a('s_mov_b32 exec_hi, 0x00ffffff')
        a('v_lshlrev_b32 v94, 3, v2')
        a('s_mul_i32 s80, s67, 448')
        a(f's_add_u32 s80, s80, {SP}')
        for part in range(3):
            a(f'buffer_load_dwordx2 {vr(64+2*part,2)}, v94, {sr(SRD_WS)}, s80 offen sc1')
            if part < 2: a('s_add_u32 s80, s80, 7168')
        self.srd(SRD_B, P_B1, 1728 * 2)
        a('s_mul_i32 s81, s67, 216')
        a('v_lshlrev_b32 v95, 2, v2')
        a(f'buffer_load_dword v70, v95, {sr(SRD_B)}, s81 offen')
        a(f'v_add_u32 v94, {self.SBL}, v94')
        a('s_waitcnt vmcnt(0)')
        a('v_pk_add_f32 v[64:65], v[64:65], v[66:67]')
        a('v_pk_add_f32 v[64:65], v[64:65], v[68:69]')
        a('v_lshlrev_b32 v72, 16, v70')
        a('v_and_b32 v73, 0xffff0000, v70')
        a('ds_write_b64 v94, v[64:65]')
        a('ds_write_b64 v94, v[72:73] offset:448')
        a('s_waitcnt lgkmcnt(0)')
        a('s_mov_b64 exec, -1')
        a(f'{L}:')

    def pfl_issue(self):
        a = self.a
        a('v_lshlrev_b32 v7, 4, v2')
        a('s_and_b32 s5, s2, 7')
        a('s_lshl_b32 s5, s5, 10')
        a(f's_add_u32 s5, s5, {PFL}')
        a(f'buffer_load_dwordx4 v[8:11], v7, {sr(SRD_WS)}, s5 offen sc1')

    def pfl_check(self):
        a = self.a
        Lp = a.label('Lpf'); Lc = a.label('Lpfc'); Ld = a.label('Lpfd')
        m = ((1 << 61) - 1) ^ ((1 << 40) - 1)
        a(f's_mov_b32 s62, {m & 0xffffffff:#x}'); a(f's_mov_b32 s63, {m >> 32:#x}')
        a('s_mov_b32 s6, 0')
        a(f's_branch {Lc}')
        a(f'{Lp}:')
        a('s_sleep 2')
        self.pfl_issue()
        a(f'{Lc}:')
        a('s_waitcnt vmcnt(0)')
        a('v_xor_b32 v8, s83, v8'); a('v_xor_b32 v9, s83, v9'); a('v_xor_b32 v10, s83, v10'); a('v_xor_b32 v11, s83, v11')
        a('v_or_b32 v8, v8, v9')
        a('v_or3_b32 v8, v8, v10, v11')
        a('v_cmp_ne_u32 vcc, 0, v8')
        a('s_and_b64 vcc, vcc, s[62:63]')
        a(f's_cbranch_vccz {Ld}')
        a('s_add_u32 s6, s6, 1')
        a('s_cmp_lt_u32 s6, 0x40000')
        a(f's_cbranch_scc1 {Lp}')
        a(f'{Ld}:')

    UD = 108
    def xreg(self, i):
        return 228 + i if i < 28 else 140 + (i - 28)

    def conv_main(self, pref=None, pref_from=8):
        a = self.a
        P = self.PL
        ACC = 12
        bufA = [44, 164]; bufB = [76, 196]
        pref = list(pref or [])
        def reads(b):
            sel = b & 1
            lst = []
            for aa in range(8):
                off = 512 * (7 - aa) + 64 * (7 - b)
                lst.append(f'ds_read_b64 {vr(bufA[sel]+4*aa,2)}, v{self.VA} offset:{off}')
                lst.append(f'ds_read_b64 {vr(bufA[sel]+4*aa+2,2)}, v{self.VA} offset:{off+8}')
            for e in range(8):
                lst.append(f'ds_read_b128 {vr(bufB[sel]+4*e,4)}, v{self.VB+b} offset:{4096*e}')
            order = []
            for k in range(8):
                order += [lst[2*k], lst[2*k+1], lst[16+k]]
            return order
        for r in reads(0): a(r)
        a(f'v_xor_b32 v4, 16, v{self.VEU}')
        a(f'v_lshlrev_b32 v6, 16, v{P+5}')
        side_rd = []
        for t in range(8):
            side_rd.append(f'ds_read_b64 {vr(self.UD+4*t+2,2)}, v{self.VEU} offset:{4096*t}')
            side_rd.append(f'ds_read_b64 {vr(self.xreg(4*t+2),2)}, v4 offset:{4096*t}')
        side = []
        for t in range(8):
            U = self.UD + 4 * t
            X = [self.xreg(4 * t + j) for j in range(4)]
            side += [f'v_lshlrev_b32 v{U}, 16, v{U+2}', f'v_and_b32 v{U+1}, 0xffff0000, v{U+2}',
                     f'v_lshlrev_b32 v{U+2}, 16, v{U+3}', f'v_and_b32 v{U+3}, 0xffff0000, v{U+3}']
            side += [f'v_mul_f32 v{U+j}, v{U+j}, v6' for j in range(4)]
            side += [f'v_cvt_pk_bf16_f32 v{U+1}, v{U}, v{U+1}', f'v_cvt_pk_bf16_f32 v{U+3}, v{U+2}, v{U+3}',
                     f'v_lshlrev_b32 v{U}, 16, v{U+1}', f'v_and_b32 v{U+1}, 0xffff0000, v{U+1}',
                     f'v_lshlrev_b32 v{U+2}, 16, v{U+3}', f'v_and_b32 v{U+3}, 0xffff0000, v{U+3}']
            side += [f'v_lshlrev_b32 v{X[0]}, 16, v{X[2]}', f'v_and_b32 v{X[1]}, 0xffff0000, v{X[2]}',
                     f'v_lshlrev_b32 v{X[2]}, 16, v{X[3]}', f'v_and_b32 v{X[3]}, 0xffff0000, v{X[3]}']
        cnt = 0
        for b in range(8):
            sel = b & 1
            nxt = reads(b + 1) if b < 7 else []
            if b == 0: nxt = nxt + side_rd[:12]
            if b == 1: nxt = nxt + side_rd[12:]
            if b == pref_from and pref: self.pfl_check()
            a('s_waitcnt lgkmcnt(0)')
            n = 0
            for aa in range(8):
                for e in range(8 - aa):
                    t = aa + e
                    c = '0' if (b == 0 and aa == 0) else vr(ACC + 4 * t, 4)
                    a(f'v_mfma_f32_16x16x32_bf16 {vr(ACC+4*t,4)}, {vr(bufA[sel]+4*aa,4)}, {vr(bufB[sel]+4*e,4)}, {c}')
                    if n < len(nxt): a(nxt[n])
                    n += 1
                    if b >= 2 and side: a(side.pop(0))
                    if b >= pref_from:
                        cnt += 1
                        if cnt % 4 == 0 and pref: pref.pop(0)()
        assert not pref and not side

    def conv_epilogue(self, pref=None):
        a = self.a
        ACC = 12
        pref = list(pref or [])
        a('s_mov_b32 s70, 0x00003f80')
        a('s_mov_b32 s71, 0x3f800000')
        a('v_bfe_u32 v4, v2, 2, 2')
        a(f'v_mul_u32_u24 v4, {self.WSTRIDE}, v4')
        a('v_lshrrev_b32 v5, 4, v2')
        a('v_lshl_add_u32 v4, v5, 5, v4')
        a('v_and_b32 v6, 3, v2')
        a('v_lshl_add_u32 v4, v6, 3, v4')
        a(f's_lshl_b32 s5, s{sWAVE}, 10')
        a('v_add_u32 v4, s5, v4')
        a('v_mul_u32_u24 v5, 20480, v5')
        a('v_and_b32 v6, 15, v2')
        a('v_lshl_add_u32 v5, v6, 4, v5')
        a(f's_mul_i32 s62, s{sWAVE}, {8*81920}')
        a('s_lshr_b32 s6, s2, 3')
        a('s_lshl_b32 s6, s6, 10')
        a('s_add_u32 s62, s62, s6')
        a('s_bfe_u32 s6, s2, 0x20001')
        a('s_lshl_b32 s6, s6, 8')
        a('s_add_u32 s62, s62, s6')
        a('s_and_b32 s6, s2, 1')
        a('s_lshl_b32 s6, s6, 3')
        a('s_add_u32 s62, s62, s6')
        a(f's_add_u32 s62, s62, {HF}')
        for tp in range(4):
            P = [(2 * tp + tt, h) for tt in range(2) for h in range(2)]
            Y = {p: ACC + 4 * p[0] + 2 * p[1] for p in P}
            T = {p: 44 + i for i, p in enumerate(P)}
            U = {p: self.UD + 4 * p[0] + 2 * p[1] for p in P}
            X = {p: self.xreg(4 * p[0] + 2 * p[1]) for p in P}
            O = {p: 80 + 2 * p[0] + p[1] for p in P}
            def step(f):
                for p in P: a(f(p))
            step(lambda p: f'v_cvt_pk_bf16_f32 v{T[p]}, v{Y[p]}, v{Y[p]+1}')
            step(lambda p: f'v_dot2_f32_bf16 v{Y[p]}, v{T[p]}, s70, v{U[p]}')
            step(lambda p: f'v_dot2_f32_bf16 v{Y[p]+1}, v{T[p]}, s71, v{U[p]+1}')
            step(lambda p: f'v_cvt_pk_bf16_f32 v{T[p]}, v{Y[p]}, v{Y[p]+1}')
            step(lambda p: f'v_dot2_f32_bf16 v{Y[p]}, v{T[p]}, s70, v{X[p]}')
            step(lambda p: f'v_dot2_f32_bf16 v{Y[p]+1}, v{T[p]}, s71, v{X[p]+1}')
            step(lambda p: f'v_cvt_pk_bf16_f32 v{O[p]}, v{Y[p]}, v{Y[p]+1}')
            for tt in range(2):
                tq = 2 * tp + tt
                a(f'ds_write_b64 v{self.VHW}, {vr(80+2*tq,2)} offset:{512*tq}')
            for _ in range(self.CEP_PER):
                if pref: pref.pop(0)()
        self.stamp('cep1')
        a('s_waitcnt lgkmcnt(0)')
        a('s_barrier')
        for m in range(8):
            a(f'ds_read_b64_tr_b16 {vr(44+2*m,2)}, v4 offset:{128*m}')
        for m in range(8):
            a(f's_waitcnt lgkmcnt({7-m})')
            a(f'buffer_store_dwordx2 {vr(44+2*m,2)}, v5, {sr(SRD_WS)}, s62 offen sc1')
            if m < 7: a('s_add_u32 s62, s62, 81920')
        assert not pref
    CEP_PER = 4

    def w1_dma_all(self):
        a = self.a
        a('v_lshlrev_b32 v3, 4, v2')
        a('s_mul_i32 s76, s67, 143360')
        a(f's_lshl_b32 s6, s{sWAVE}, 10')
        a('s_add_u32 s76, s76, s6')
        a(f's_add_u32 s76, s76, {W1F}')
        a('s_mov_b32 m0, s6')
        for i in range(35):
            a(f'buffer_load_dwordx4 v3, {sr(SRD_WS)}, s76 offen sc1 lds')
            if i < 34:
                a('s_add_u32 m0, m0, 4096')
                a('s_add_u32 s76, s76, 4096')
        a('v_lshrrev_b32 v94, 4, v2')
        a('v_lshlrev_b32 v94, 4, v94')
        a('s_mul_i32 s80, s67, 448')
        a(f's_add_u32 s80, s80, {SP}')
        for t in range(7):
            a(f'buffer_load_dwordx4 {vr(64+4*t,4)}, v94, {sr(SRD_WS)}, s80 offen offset:{64*t} sc1')

    def w2_load(self, idx):
        a = self.a
        off = idx * 1024
        a(f's_add_u32 s5, s79, {(off // 4096) * 4096}')
        a(f'buffer_load_dwordx4 {self.w2reg(idx)}, v3, {sr(SRD_WS)}, s5 offen offset:{off % 4096} sc1')


    def p3_epilogue(self):
        a = self.a
        ACC = 8
        a('v_lshrrev_b32 v5, 4, v2')
        a('v_lshlrev_b32 v6, 4, v5')
        a(f'v_add_u32 v6, {self.SBL}, v6')
        for t in range(7):
            a(f'ds_read_b128 {vr(64+4*t,4)}, v6 offset:{64*t}')
            a(f'ds_read_b128 {vr(124+4*t,4)}, v6 offset:{448+64*t}')
        a('v_and_b32 v4, 15, v2')
        a('v_cmp_eq_u32 s[62:63], 3, v5')
        a('v_lshrrev_b32 v6, 2, v4')
        a('v_cmp_eq_u32 s[64:65], v6, v5')
        a('v_and_b32 v6, 3, v4')
        a('v_cmp_eq_u32 s[68:69], 1, v6')
        a('v_cmp_eq_u32 s[70:71], 2, v6')
        a('v_cmp_eq_u32 vcc, 3, v6')
        for lt in range(2):
            S_ = 112 + 2 * lt; Q_ = 113 + 2 * lt
            acc = ACC + (6 * 2 + lt) * 4
            B = 96 + 4 * lt
            for j in range(4):
                a(f'v_accvgpr_read_b32 v{B+j}, a{self.GRAM+4*lt+j}')
            a(f'v_cndmask_b32 v{S_}, 0, v{acc}, s[62:63]')
            a(f'v_cndmask_b32 v{B}, v{B}, v{B+1}, s[68:69]')
            a(f'v_cndmask_b32 v{B}, v{B}, v{B+2}, s[70:71]')
            a(f'v_cndmask_b32 v{B}, v{B}, v{B+3}, vcc')
            a(f'v_cndmask_b32 v{Q_}, 0, v{B}, s[64:65]')
        for rnd in ('16', '32'):
            for k, v in enumerate((112, 113, 114, 115)):
                a(f'v_mov_b32 v{104+k}, v{v}')
            for k, v in enumerate((112, 113, 114, 115)):
                a(f'v_permlane{rnd}_swap_b32 v{v}, v{104+k}')
            for k, v in enumerate((112, 113, 114, 115)):
                a(f'v_add_f32 v{v}, v{v}, v{104+k}')
        def both(f):
            for lt in range(2): f(112 + 2 * lt, 113 + 2 * lt, lt)
        both(lambda s_, q_, lt: a(f'v_mul_f32 v{s_}, {f2u(1.0/640):#x}, v{s_}'))
        both(lambda s_, q_, lt: a(f'v_mul_f32 v{q_}, {f2u(1.0/640):#x}, v{q_}'))
        both(lambda s_, q_, lt: a(f'v_fma_f32 v{q_}, -v{s_}, v{s_}, v{q_}'))
        both(lambda s_, q_, lt: a(f'v_max_f32 v{q_}, 0, v{q_}'))
        both(lambda s_, q_, lt: a(f'v_cvt_pk_bf16_f32 v{q_}, v{q_}, v{s_}'))
        both(lambda s_, q_, lt: a(f'v_and_b32 v{s_}, 0xffff0000, v{q_}'))
        both(lambda s_, q_, lt: a(f'v_lshlrev_b32 v{q_}, 16, v{q_}'))
        both(lambda s_, q_, lt: a(f'v_add_f32 v{q_}, {f2u(1e-5):#x}, v{q_}'))
        both(lambda s_, q_, lt: self.bf16r(q_, q_))
        both(lambda s_, q_, lt: a(f'v_sqrt_f32 v{q_}, v{q_}'))
        both(lambda s_, q_, lt: self.bf16r(q_, q_))
        both(lambda s_, q_, lt: a(f'v_rcp_f32 v{116+4*lt}, v{q_}'))
        both(lambda s_, q_, lt: a(f'v_mov_b32 v{116+4*lt+2}, v{s_}'))
        both(lambda s_, q_, lt: a(f'v_mov_b32 v{116+4*lt+3}, v{s_}'))
        both(lambda s_, q_, lt: a(f'v_mov_b32 v{116+4*lt+1}, v{116+4*lt}'))
        OUT = 152
        def outreg(t, lt):
            if t < 6: return OUT + ((t >> 1) * 2 + lt) * 4 + (t & 1) * 2
            return OUT + 24 + lt * 2
        a('v_lshlrev_b32 v3, 4, v2')
        a('s_lshl_b32 s5, s66, 3')
        a(f's_lshl_b32 s6, s{sWAVE}, 1')
        a('s_add_u32 s5, s5, s6')
        a(f's_mul_i32 s5, s5, {NK2*1024}')
        a(f's_add_u32 s5, s5, {HH}')
        a('s_lshr_b32 s6, s67, 1'); a('s_mul_i32 s6, s6, 7')
        a('s_and_b32 s7, s67, 1')
        a('s_lshl_b32 s62, s7, 2'); a('s_add_u32 s62, s62, s6'); a('s_lshl_b32 s62, s62, 10'); a('s_add_u32 s62, s62, s5')
        a(f's_add_u32 s63, s62, {NK2*1024}')
        a('s_add_u32 s64, s6, 3'); a('s_lshl_b32 s64, s64, 10'); a('s_lshl_b32 s7, s7, 3'); a('s_add_u32 s64, s64, s7'); a('s_add_u32 s64, s64, s5')
        a(f's_add_u32 s65, s64, {NK2*1024}')
        a('s_mov_b32 s70, 0x00003f80')
        a('s_mov_b32 s71, 0x3f800000')
        a('s_waitcnt lgkmcnt(0)')
        for t in range(7):
            P = [(lt, h) for lt in range(2) for h in range(2)]
            X = {p: ACC + (t * 2 + p[0]) * 4 + 2 * p[1] for p in P}
            T = {p: 100 + i for i, p in enumerate(P)}
            def step(f):
                for p in P: a(f(p))
            S = lambda p: 64 + 4 * t + 2 * p[1]
            Bq = lambda p: 124 + 4 * t + 2 * p[1]
            R = lambda p: 116 + 4 * p[0]
            step(lambda p: f'v_pk_fma_f32 {vr(X[p],2)}, {vr(S(p),2)}, {vr(R(p)+2,2)}, {vr(X[p],2)} neg_lo:[1,0,0] neg_hi:[1,0,0]')
            step(lambda p: f'v_pk_mul_f32 {vr(X[p],2)}, {vr(X[p],2)}, {vr(R(p),2)}')
            step(lambda p: f'v_cvt_pk_bf16_f32 v{T[p]}, v{X[p]}, v{X[p]+1}')
            step(lambda p: f'v_dot2_f32_bf16 v{X[p]}, v{T[p]}, s70, v{Bq(p)}')
            step(lambda p: f'v_dot2_f32_bf16 v{X[p]+1}, v{T[p]}, s71, v{Bq(p)+1}')
            step(lambda p: f'v_cvt_pk_bf16_f32 v{T[p]}, v{X[p]}, v{X[p]+1}')
            step(lambda p: f'v_pk_max_i16 v{T[p]}, v{T[p]}, 0')
            step(lambda p: f'v_lshlrev_b32 v{X[p]}, 16, v{T[p]}')
            step(lambda p: f'v_and_b32 v{X[p]+1}, 0xffff0000, v{T[p]}')
            step(lambda p: f'v_pk_mul_f32 {vr(X[p],2)}, {vr(X[p],2)}, {vr(X[p],2)}')
            step(lambda p: f'v_cvt_pk_bf16_f32 v{outreg(t,p[0])+p[1]}, v{X[p]}, v{X[p]+1}')
            if t == 0:
                pass
            if t in (1, 3, 5):
                p_ = t >> 1
                for lt, sb in ((0, 's62'), (1, 's63')):
                    a(f'buffer_store_dwordx4 {vr(OUT+(p_*2+lt)*4,4)}, v3, {sr(SRD_WS)}, {sb} offen offset:{1024*p_} sc1')
        for lt, sb in ((0, 's64'), (1, 's65')):
            a(f'buffer_store_dwordx2 {vr(OUT+24+lt*2,2)}, v3, {sr(SRD_WS)}, {sb} offen sc1')


    P3_AHEAD = 5
    NW2_E1 = 3
    NW2_E2 = 21
    NW2_P3 = 24
    NW2_CONV = 24
    NW2_MAIN = 48
    NW2_EPI = 0
    def p3_main3(self):
        a = self.a
        ACC = 8
        WB = [200, 228]
        a('v_lshlrev_b32 v3, 4, v2')
        a('v_add_u32 v92, 0x10000, v3')
        a('v_add_u32 v93, 0x20000, v3')
        a('s_lshl_b32 s77, s66, 3')
        a(f's_lshl_b32 s6, s{sWAVE}, 1')
        a('s_add_u32 s77, s77, s6')
        a('s_mul_i32 s77, s77, 20480')
        a(f's_add_u32 s77, s77, {HF}')
        a('s_add_u32 s78, s77, 20480')
        def rd(kap, t):
            off = self.w1_lds(kap * 7 + t)
            reg = ['v3', 'v92', 'v93'][off >> 16]
            return f'ds_read_b128 {ar(WB[kap&1]+4*t,4)}, {reg} offset:{off & 0xffff}'
        issued = []
        def hload(kap, lt):
            blk = kap // 4
            if blk == 0:
                a(f'buffer_load_dwordx4 {vr(self.P3H+(2*kap+lt)*4,4)}, v3, {sr(SRD_WS)}, s{77+lt} offen offset:{(kap%4)*1024} sc1')
            else:
                a(f's_add_u32 s5, s{77+lt}, {blk*4096}')
                a(f'buffer_load_dwordx4 {vr(self.P3H+(2*kap+lt)*4,4)}, v3, {sr(SRD_WS)}, s5 offen offset:{(kap%4)*1024} sc1')
            issued.append(('h', kap))
        AH = self.P3_AHEAD
        for kap in range(AH):
            hload(kap, 0); hload(kap, 1)
        for t in range(7): a(rd(0, t))
        self.stamp('p3iss')
        misc = [('w', lambda idx=idx: self.w2_load(idx)) for idx in range(self.NW2_CONV, self.NW2_CONV + self.NW2_P3)]
        for kap in range(20):
            last = max(i for i, tg in enumerate(issued) if tg == ('h', kap))
            a(f's_waitcnt vmcnt({min(63, len(issued) - 1 - last)}) lgkmcnt(0)')
            if kap in (0, 4, 12): self.stamp(f'k{kap}')
            h0 = self.P3H + (2 * kap) * 4; h1 = h0 + 4
            extra = [rd(kap + 1, t) for t in range(7)] if kap < 19 else []
            n = 0
            for t in range(7):
                for lt, h in ((0, h0), (1, h1)):
                    acc = ACC + (t * 2 + lt) * 4
                    c = '0' if kap == 0 else vr(acc, 4)
                    a(f'v_mfma_f32_16x16x32_bf16 {vr(acc,4)}, {ar(WB[kap&1]+4*t,4)}, {vr(h,4)}, {c}')
                    if extra and n >= 1: a(extra.pop(0))
                    if n in (8, 12) and kap + AH < 20: hload(kap + AH, 0 if n == 8 else 1)
                    if n in (4, 10) and kap >= 2 and misc and (n == 10 or kap >= 8):
                        tg, f = misc.pop(0); f(); issued.append((tg, 0))
                    n += 1
            for lt, h in ((0, h0), (1, h1)):
                g = self.GRAM + 4 * lt
                c = '0' if kap == 0 else ar(g, 4)
                a(f'v_mfma_f32_16x16x32_bf16 {ar(g,4)}, {vr(h,4)}, {vr(h,4)}, {c}')
                if lt == 0 and kap >= 20 - AH and misc:
                    tg, f = misc.pop(0); f(); issued.append((tg, 0))
        while misc:
            tg, f = misc.pop(0); f(); issued.append((tg, 0))
        self.p3_w2_inflight = 63

def build():
    out = []
    kn = NAME + '_kernel'
    out.append(f'; @launch grid=(256,1,1) block=(256,1,1) lds={LDS_SIZE}')
    out.append('.amdgcn_target "amdgcn-amd-amdhsa--gfx950"')
    out.append('.text')
    g = G3(True); g.kname = 'f'; a = g.a
    if g.timing:
        for i in range(16): a(f's_mov_b32 s{86+i}, 0')
    g.stamp('start')
    g.prologue()
    g.ln1_issue()
    g.epoch_issue()
    g.code_prefetch()
    Laux = a.label('Laux'); Lp3 = a.label('Lp3')
    a('s_cmp_lt_u32 s2, 160'); a(f's_cbranch_scc0 {Laux}')
    g.kgen_issue()
    g.p2_consts()
    g.ln1_compute(8)
    a('s_waitcnt vmcnt(12)')
    g.epoch_get()
    g.flag_signal(BFL1)
    g.stamp('ln1')
    g.ux_zero_pad()
    g.kgen(0)
    g.p34_ids()
    g.w2_setup()
    g.pref_setup()
    g.stamp('kgen')
    g.flag_wait(BFL1, publish_epoch=True)
    g.stamp('B1')
    g.conv_load_ux()
    g.flag_store_only(UFL)
    g.pfl_issue()
    g.stamp('ux')
    g.conv_main()
    g.pfl_check()
    g.stamp('conv')
    g.conv_epilogue(g.list_e1())
    g.stamp('cep2')
    g.flag_signal(BFL2)
    g.stamp('P2end')
    for f in g.list_e2(): f()
    g.sb_stage()
    a(f's_branch {Lp3}')
    a(f'{Laux}:')
    g.prep_issue3()
    g.ln1_compute(0)
    g.epoch_get()
    g.flag_signal(BFL1)
    g.prep_compute3()
    g.flag_signal(PFL)
    g.flag_signal(BFL2, drain=False)
    g.stamp('P2end')
    g.p34_ids()
    g.w2_setup()
    g.pref_setup()
    g.flag_wait(UFL, lanes=(0, 40))
    g.pfl_issue()
    g.pfl_check()
    for f in g.list_e1() + g.list_e2(): f()
    g.sb_stage()
    a(f'{Lp3}:')
    g.flag_wait(BFL2, drain=True)
    g.stamp('B2')
    g.p3_main3()
    g.stamp('p3main')
    g.p3_epilogue()
    g.stamp('p3ep')
    rest = [i for i in range(g.NW2_MAIN + g.NW2_EPI, 70)]
    Lw0 = a.label('Lw0'); Lj = a.label('Lj')
    g.row_signal_pre(a)
    a(f's_cmp_eq_u32 s{sWAVE}, 0'); a(f's_cbranch_scc0 {Lw0}')
    g.row_flag_store()
    a(f'{Lw0}:')
    for idx in rest: g.w2_load(idx)
    a(f's_cmp_eq_u32 s{sWAVE}, 0'); a(f's_cbranch_scc0 {Lj}')
    g.row_poll()
    a(f'{Lj}:')
    a('s_barrier')
    g.stamp('B3')
    g.p4_h_setup()
    g.p4_main()
    g.stamp('p4main')
    g.p4_epilogue()
    g.stamp_flush(0)
    g.end()
    out.append(kernel_header(kn)); out += a.finalize()
    out.append('.section .rodata,"a"')
    out.append(kernel_desc(kn))
    return '\n'.join(out) + '\n'

def prep3(self):
    n0 = len(self.a.lines)
    self.prep()
    for i in range(n0, len(self.a.lines)):
        l = self.a.lines[i]
        if l.startswith('buffer_store') and 'sc1' not in l:
            self.a.lines[i] = l + ' sc1'
G3.prep3 = prep3

if __name__ == '__main__':
    dst = sys.argv[1]
    gen.TIMING = 'timing' in sys.argv[2:]
    for x in sys.argv[2:]:
        if x.startswith('set='): gen.STAMPSET = set(x[4:].split(','))
        if x.startswith('dbg='): gen.DBGSTAMP = int(x[4:])
    gen.HF = HF; gen.BLK = BLK; gen.HH = HH; gen.W1F = W1F; gen.W2F = W2F; gen.SP = SP
    s = build()
    open(dst, 'w').write(s)
    print('wrote', dst, len(s), 'bytes')
```

```python
import sys, struct
sys.path.insert(0, 'work')
from asmlib import Asm

NAME = "sequential_preLN__ssm_conv_s4d__dense_activation_squared_relu__prompt"

BLK = 0x0000000
HF  = 0x0500000
W1F = 0x0800000
W2F = 0x0B00000
SP  = 0x0E00000
HH  = 0x1000000
DBGW = 0x1800000
WS_SIZE = 0x4000000

TIMING = False
STAMPSET = None
DBGSTAMP = 0

def f2u(x):
    return struct.unpack('<I', struct.pack('<f', x))[0]

sWAVE = 4
SRD_A = 8; SRD_WS = 12; SRD_B = 48; SRD_C = 52; SRD_D = 56
P_X, P_LA, P_AI, P_CR, P_CI, P_LDT, P_DSK = 16, 18, 20, 22, 24, 26, 28
P_W1, P_B1, P_W2, P_B2, P_OUT, P_DBG, P_WS = 32, 34, 36, 38, 40, 42, 44

def sr(b, n=4): return f's[{b}:{b+n-1}]'
def vr(b, n): return f'v[{b}:{b+n-1}]' if n > 1 else f'v{b}'
def ar(b, n): return f'a[{b}:{b+n-1}]' if n > 1 else f'a{b}'

class Gen:
    def __init__(self, fused, debug=False):
        self.a = Asm()
        self.fused = fused
        self.debug = debug
        self.sc = ' sc1' if fused else ''
        self.p3_hook = None
        self.timing = TIMING
        self.nstamp = 0
        self.stamp_tags = []

    TSW = 0x3000000
    def stamp(self, tag=''):
        if not self.timing: return
        if STAMPSET and tag not in STAMPSET and tag not in ('start', 'end'): return
        if tag in self.stamp_tags:
            i = self.stamp_tags.index(tag)
        else:
            i = self.nstamp; self.nstamp += 1
            self.stamp_tags.append(tag)
        assert i < 16
        a = self.a
        a('s_memrealtime s[84:85]')
        a('s_waitcnt lgkmcnt(0)')
        a(f's_mov_b32 s{86+i}, s84')
    def stamp_flush(self, kidx):
        if not self.timing: return
        a = self.a
        a('s_waitcnt vmcnt(0) lgkmcnt(0)')
        self.stamp('end')
        n = self.nstamp
        a(f's_lshl_b32 s5, s2, 2'); a(f's_add_u32 s5, s5, s{sWAVE}'); a('s_lshl_b32 s5, s5, 6')
        a(f's_add_u32 s5, s5, {self.TSW + kidx * 0x10000}')
        for i in range(n):
            a(f'v_mov_b32 v4, s{86+i}')
            a(f'v_mov_b32 v5, {4*i}')
            a(f'buffer_store_dword v4, v5, {sr(SRD_WS)}, s5 offen')
        if DBGSTAMP:
            L = a.label('Ldbgs')
            a('s_cmp_eq_u32 s2, %d' % DBGSTAMP); a(f's_cbranch_scc0 {L}')
            a(f's_cmp_eq_u32 s{sWAVE}, 0'); a(f's_cbranch_scc0 {L}')
            self.srd(SRD_D, P_DBG, 256)
            for i in range(n):
                a(f's_sub_u32 s5, s{86+i}, s86')
                a('v_mov_b32 v4, s5')
                a(f'v_mov_b32 v5, {4*i}')
                a(f'buffer_store_dword v4, v5, {sr(SRD_D)}, 0 offen')
            a(f'{L}:')
        print('kernel', kidx, 'stamps:', self.stamp_tags)
        open(f'stamps_k{kidx}.txt', 'w').write(' '.join(self.stamp_tags))

    def srd(self, dst, ptr, size):
        a = self.a
        a(f's_mov_b32 s{dst}, s{ptr}')
        a(f's_mov_b32 s{dst+1}, s{ptr+1}')
        a(f's_mov_b32 s{dst+2}, {size}')
        a(f's_mov_b32 s{dst+3}, 0x20000')

    def prologue(self):
        a = self.a
        a('s_cmp_ge_u32 s2, 256')
        a('s_cbranch_scc1 L_end_%s' % self.kname)
        a('s_load_dwordx16 s[16:31], s[0:1], 0')
        a('s_load_dwordx8 s[32:39], s[0:1], 64')
        a('s_load_dwordx4 s[40:43], s[0:1], 96')
        a('s_load_dwordx2 s[44:45], s[0:1], 112')
        a('v_lshrrev_b32 v1, 6, v0')
        a('v_and_b32 v2, 63, v0')
        a(f'v_readfirstlane_b32 s{sWAVE}, v1')
        a('s_waitcnt lgkmcnt(0)')
        self.srd(SRD_WS, P_WS, WS_SIZE)

    def end(self):
        a = self.a
        a('L_end_%s:' % self.kname)
        a('s_endpgm')


    SRD_DBG = SRD_D
    def sync_setup(self):
        a = self.a
        self.srd(SRD_D, P_DBG, 256)
        a('s_and_b32 s81, s2, 7')
        a('s_lshl_b32 s81, s81, 1')
        a('s_bfe_u32 s5, s2, 0x10003')
        a('s_add_u32 s81, s81, s5')
        a('s_lshl_b32 s81, s81, 4')
        a('s_lshr_b32 s5, s2, 4')
        a('s_add_u32 s81, s81, s5')

    def signal(self, phase):
        a = self.a
        L = a.label('Lsig')
        a('s_waitcnt vmcnt(0) lgkmcnt(0)')
        a('s_barrier')
        a(f's_cmp_eq_u32 s{sWAVE}, 0')
        a(f's_cbranch_scc0 {L}')
        a('s_mov_b64 exec, 1')
        a(f'v_mov_b32 v4, {phase}')
        a('v_mov_b32 v5, s81')
        a(f'buffer_store_byte v4, v5, {sr(SRD_D)}, 0 offen sc1')
        a('s_mov_b64 exec, -1')
        a(f'{L}:')

    def wait_flags(self, phase, mode):
        a = self.a
        Lp = a.label('Lpoll'); Ld = a.label('Lpolld'); Lo = a.label('Lpollo')
        a(f's_cmp_eq_u32 s{sWAVE}, 0')
        a(f's_cbranch_scc0 {Lo}')
        if mode == 'row':
            a('v_and_b32 v4, 3, v2')
            a('v_lshlrev_b32 v4, 2, v4')
            a('s_lshl_b32 s5, s82, 4')
            a('v_add_u32 v4, s5, v4')
        else:
            a('v_lshlrev_b32 v4, 2, v2')
        a('s_mov_b32 s6, 0')
        a(f's_mov_b32 s7, {phase * 0x01010101:#x}')
        a(f'{Lp}:')
        a(f'buffer_load_dword v5, v4, {sr(SRD_D)}, 0 offen sc1')
        a('s_waitcnt vmcnt(0)')
        a('v_or_b32 v5, 0x80808080, v5')
        a('v_subrev_u32 v5, s7, v5')
        if mode == 'aux':
            a('v_or_b32 v5, v5, v6')
        a('v_and_b32 v5, 0x80808080, v5')
        a('v_cmp_ne_u32 vcc, 0x80808080, v5')
        a(f's_cbranch_vccz {Ld}')
        a('s_sleep 1')
        a('s_add_u32 s6, s6, 1')
        a('s_cmp_lt_u32 s6, 0x40000')
        a(f's_cbranch_scc1 {Lp}')
        a(f'{Ld}:')
        a(f'{Lo}:')
        a('s_barrier')

    def ln1_issue(self):
        a = self.a
        self.srd(SRD_A, P_X, 2048 * 1280)
        a('v_lshrrev_b32 v3, 5, v0')
        a('v_and_b32 v4, 31, v0')
        a('v_mul_u32_u24 v5, 0x500, v3')
        a('v_lshl_add_u32 v5, v4, 3, v5')
        a('s_mul_i32 s3, s2, 10240')
        for q in range(5):
            a(f'buffer_load_dwordx2 {vr(8+2*q,2)}, v5, {sr(SRD_A)}, s3 offen offset:{256*q}')

    def rowsum32(self, v, t):
        a = self.a
        for r in (8, 4, 2, 1):
            a(f'v_add_f32_dpp v{v}, v{v}, v{v} row_ror:{r} row_mask:0xf bank_mask:0xf')
        a(f'v_mov_b32 v{t}, v{v}')
        a(f'v_permlane16_swap_b32 v{v}, v{t}')
        a(f'v_add_f32 v{v}, v{v}, v{t}')

    def bf16r(self, dst, src):
        a = self.a
        a(f'v_cvt_pk_bf16_f32 v{dst}, v{src}, v{src}')
        a(f'v_and_b32 v{dst}, 0xffff0000, v{dst}')

    def ln1_compute(self, nlater):
        a = self.a
        F = 20
        a(f's_waitcnt vmcnt({nlater})')
        self.stamp('xarr')
        for k in range(10):
            a(f'v_lshlrev_b32 v{F+2*k}, 16, v{8+k}')
            a(f'v_and_b32 v{F+2*k+1}, 0xffff0000, v{8+k}')
        a(f'v_pk_add_f32 v[40:41], {vr(F,2)}, {vr(F+2,2)}')
        for k in range(2, 10):
            a(f'v_pk_add_f32 v[40:41], v[40:41], {vr(F+2*k,2)}')
        a('v_add_f32 v40, v40, v41')
        self.rowsum32(40, 41)
        a(f'v_mul_f32 v40, {f2u(1.0/640):#x}, v40')
        a('v_mov_b32 v41, v40')
        for k in range(10):
            a(f'v_pk_add_f32 v[44:45], {vr(F+2*k,2)}, v[40:41] neg_lo:[0,1] neg_hi:[0,1]')
            if k == 0:
                a('v_pk_mul_f32 v[42:43], v[44:45], v[44:45]')
            else:
                a('v_pk_fma_f32 v[42:43], v[44:45], v[44:45], v[42:43]')
        a('v_add_f32 v42, v42, v43')
        self.rowsum32(42, 43)
        a(f'v_mul_f32 v42, {f2u(1.0/640):#x}, v42')
        self.bf16r(40, 40)
        a('v_mov_b32 v41, v40')
        self.bf16r(42, 42)
        a(f'v_add_f32 v42, {f2u(1e-5):#x}, v42')
        self.bf16r(42, 42)
        a('v_sqrt_f32 v42, v42')
        self.bf16r(42, 42)
        a('v_rcp_f32 v42, v42')
        a('v_mov_b32 v43, v42')
        U = 48
        for k in range(10):
            a(f'v_pk_add_f32 v[44:45], {vr(F+2*k,2)}, v[40:41] neg_lo:[0,1] neg_hi:[0,1]')
            a('v_cvt_pk_bf16_f32 v46, v44, v45')
            a('v_lshlrev_b32 v44, 16, v46')
            a('v_and_b32 v45, 0xffff0000, v46')
            a('v_pk_mul_f32 v[44:45], v[44:45], v[42:43]')
            a(f'v_cvt_pk_bf16_f32 v{U+2*k}, v44, v{F+2*k}')
            a(f'v_cvt_pk_bf16_f32 v{U+2*k+1}, v45, v{F+2*k+1}')
        a('v_mul_u32_u24 v6, 2624, v3')
        a('v_lshl_add_u32 v6, v4, 4, v6')
        for q in range(5):
            a(f'ds_write_b128 v6, {vr(U+4*q,4)} offset:{512*q}')
        a('v_bfe_u32 v7, v2, 2, 2')
        a('v_mul_u32_u24 v7, 2624, v7')
        a('v_lshrrev_b32 v6, 4, v2')
        a('v_lshl_add_u32 v7, v6, 5, v7')
        a('v_and_b32 v6, 3, v2')
        a('v_lshl_add_u32 v7, v6, 3, v7')
        a(f's_lshl_b32 s3, s{sWAVE}, 7')
        a('v_add_u32 v7, s3, v7')
        a('s_waitcnt lgkmcnt(0)')
        self.stamp('lncomp')
        a('s_barrier')
        T = 68
        for k in range(5):
            a(f'ds_read_b64_tr_b16 {vr(T+4*k,2)}, v7 offset:{512*k}')
            a(f'ds_read_b64_tr_b16 {vr(T+4*k+2,2)}, v7 offset:{512*k+4*2624}')
        a('v_lshlrev_b32 v6, 4, v2')
        a(f's_lshl_b32 s3, s{sWAVE}, 10')
        a('v_add_u32 v6, s3, v6')
        a('s_mul_i32 s3, s2, 20480')
        if BLK: a(f's_add_u32 s3, s3, {BLK}')
        for k in range(5):
            a(f's_waitcnt lgkmcnt({2*(4-k)})')
            a(f'buffer_store_dwordx4 {vr(T+4*k,4)}, v6, {sr(SRD_WS)}, s3 offen{self.sc}')
            if k < 4: a('s_add_u32 s3, s3, 4096')

    LDSP = 24576
    def prep_issue(self):
        a = self.a
        Lw2 = a.label('Lpw2'); Lnone = a.label('Lpnone'); Ldone = a.label('Lpdone')
        a('s_sub_u32 s5, s2, 160')
        a('s_mov_b32 s60, 0')
        a('s_cmp_lt_u32 s5, 27')
        a(f's_cbranch_scc0 {Lw2}')
        a('s_mov_b32 s60, 1')
        a('s_mov_b32 s61, s5')
        a(f's_mov_b32 s62, s{sWAVE}')
        self.srd(SRD_B, P_W1, 640 * 3456)
        a('v_lshrrev_b32 v90, 3, v2')
        a('v_mul_u32_u24 v90, 3456, v90')
        a('v_and_b32 v91, 7, v2')
        a('v_lshl_add_u32 v90, v91, 4, v90')
        a('s_mul_i32 s6, s62, %d' % (160 * 3456))
        a('s_lshl_b32 s7, s61, 7')
        a('s_add_u32 s6, s6, s7')
        a(f's_mul_i32 s7, s{sWAVE}, 20480')
        a(f's_add_u32 m0, s7, {self.LDSP}')
        for i in range(20):
            a(f'buffer_load_dwordx4 v90, {sr(SRD_B)}, s6 offen lds')
            if i < 19:
                a('s_add_u32 m0, m0, 1024')
                a(f's_add_u32 s6, s6, {8*3456}')
        a(f's_branch {Ldone}')
        a(f'{Lw2}:')
        a('s_cmp_lt_u32 s5, 72')
        a(f's_cbranch_scc0 {Ldone}')
        a('s_mov_b32 s60, 2')
        a('s_sub_u32 s5, s5, 27')
        a('s_lshl_b32 s5, s5, 2')
        a(f's_add_u32 s5, s5, s{sWAVE}')
        a('s_mul_i32 s61, s5, 3641')
        a('s_lshr_b32 s61, s61, 16')
        a('s_mul_i32 s6, s61, 18')
        a('s_sub_u32 s62, s5, s6')
        self.srd(SRD_B, P_W2, 1728 * 1280)
        a('v_lshrrev_b32 v90, 3, v2')
        a('v_mul_u32_u24 v90, 1280, v90')
        a('v_and_b32 v91, 7, v2')
        a('v_lshl_add_u32 v90, v91, 4, v90')
        a('s_mul_i32 s6, s62, %d' % (96 * 1280))
        a('s_lshl_b32 s7, s61, 7')
        a('s_add_u32 s6, s6, s7')
        a(f's_mul_i32 s7, s{sWAVE}, 20480')
        a(f's_add_u32 m0, s7, {self.LDSP}')
        for i in range(12):
            a(f'buffer_load_dwordx4 v90, {sr(SRD_B)}, s6 offen lds')
            if i < 11:
                a('s_add_u32 m0, m0, 1024')
                a(f's_add_u32 s6, s6, {8*1280}')
        a(f'{Ldone}:')

    def ct_of_T(self):
        a = self.a
        a('s_mul_i32 s64, s63, 4682')
        a('s_lshr_b32 s64, s64, 16')
        a('s_mul_i32 s65, s64, 14')
        a('s_sub_u32 s65, s63, s65')
        a('s_lshl_b32 s66, s64, 1')
        a('s_add_u32 s67, s66, 1')
        a('s_sub_u32 s68, s65, 8')
        a('s_cmp_eq_u32 s65, 7')
        a('s_cselect_b32 s68, 6, s68')
        a('s_cmp_lt_u32 s65, 7')
        a('s_cselect_b32 s66, s66, s67')
        a('s_cselect_b32 s68, s65, s68')
        a('s_sub_u32 s64, s63, 84')
        a('s_mul_i32 s65, s64, 10923')
        a('s_lshr_b32 s65, s65, 16')
        a('s_mul_i32 s67, s65, 6')
        a('s_sub_u32 s67, s64, s67')
        a('s_add_u32 s65, s65, 12')
        a('s_cmp_ge_u32 s63, 84')
        a('s_cselect_b32 s66, s65, s66')
        a('s_cselect_b32 s68, s67, s68')
        a('s_cmp_eq_u32 s68, 5')
        a('s_cselect_b32 s69, 1, 0')
        a('s_cmp_ge_u32 s66, 12')
        a('s_cselect_b32 s69, s69, 0')

    def ln1_compute_multi(self):
        self.ln1_compute(0)

    def dump_kc(self):
        a = self.a
        a('s_lshl_b32 s5, s2, 2')
        a(f's_add_u32 s5, s5, s{sWAVE}')
        a('s_mul_i32 s5, s5, 17408')
        a(f's_add_u32 s5, s5, {DBGW}')
        a('v_lshlrev_b32 v4, 4, v2')
        a('v_add_u32 v5, s61, v4')
        for i in range(17):
            a(f'ds_read_b128 v[8:11], v5 offset:{1024*i}')
            a('s_waitcnt lgkmcnt(0)')
            a(f'buffer_store_dwordx4 v[8:11], v4, {sr(SRD_WS)}, s5 offen')
            a('s_add_u32 s5, s5, 1024')

    def prep_compute(self):
        a = self.a
        Lw2 = a.label('Lqw2'); Ldone = a.label('Lqdone')
        a('s_cmp_eq_u32 s60, 0')
        a(f's_cbranch_scc1 {Ldone}')
        a('s_waitcnt vmcnt(0)')
        a('v_lshrrev_b32 v90, 4, v2')
        a('v_bfe_u32 v91, v2, 2, 2')
        a('v_and_b32 v92, 3, v2')
        a('v_lshlrev_b32 v93, 4, v2')
        a(f's_mul_i32 s7, s{sWAVE}, 20480')
        a(f's_add_u32 s7, s7, {self.LDSP}')
        a('s_cmp_eq_u32 s60, 1')
        a(f's_cbranch_scc0 {Lw2}')
        a('v_lshl_add_u32 v94, v90, 3, v91')
        a('v_lshlrev_b32 v94, 7, v94')
        a('v_lshl_add_u32 v94, v92, 3, v94')
        a('v_add_u32 v94, s7, v94')
        a('s_mov_b32 s70, 0x3f803f80')
        for tt in range(4):
            a('s_lshl_b32 s63, s61, 2')
            a(f's_add_u32 s63, s63, {tt}')
            self.ct_of_T()
            a('s_mul_i32 s64, s66, 140')
            a('s_add_u32 s64, s64, s68')
            a('s_lshl_b32 s64, s64, 10')
            a('s_mul_i32 s65, s62, %d' % (5 * 7168))
            a('s_add_u32 s64, s64, s65')
            a(f's_add_u32 s64, s64, {W1F}')
            for kk in range(5):
                R = 100 + 4 * kk
                a(f'ds_read_b64_tr_b16 {vr(R,2)}, v94 offset:{kk*4096+tt*32}')
                a(f'ds_read_b64_tr_b16 {vr(R+2,2)}, v94 offset:{kk*4096+tt*32+512}')
            S = 120 + tt
            for kk in range(5):
                R = 100 + 4 * kk
                a(f's_waitcnt lgkmcnt({2*(4-kk)})')
                a(f'buffer_store_dwordx4 {vr(R,4)}, v93, {sr(SRD_WS)}, s64 offen{self.sc}')
                for j in range(4):
                    c = '0' if (kk == 0 and j == 0) else f'v{S}'
                    a(f'v_dot2_f32_bf16 v{S}, v{R+j}, s70, {c}')
                Lskip = a.label('Ldup')
                a('s_cmp_eq_u32 s69, 0')
                a(f's_cbranch_scc1 {Lskip}')
                a('s_add_u32 s65, s64, 1024')
                a(f'buffer_store_dwordx4 {vr(R,4)}, v93, {sr(SRD_WS)}, s65 offen{self.sc}')
                a(f'{Lskip}:')
                if kk < 4: a('s_add_u32 s64, s64, 7168')
            a(f'v_mov_b32 v97, v{S}')
            a(f'v_permlane16_swap_b32 v{S}, v97')
            a(f'v_add_f32 v{S}, v{S}, v97')
            a(f'v_mov_b32 v97, v{S}')
            a(f'v_permlane32_swap_b32 v{S}, v97')
            a(f'v_add_f32 v{S}, v{S}, v97')
        SB = self.LDSP + 4 * 20480
        a('v_and_b32 v98, 15, v2')
        a('v_lshlrev_b32 v98, 2, v98')
        a(f's_lshl_b32 s64, s{sWAVE}, 8')
        a(f's_add_u32 s64, s64, {SB}')
        a('v_add_u32 v97, s64, v98')
        for tt in range(4):
            a(f'ds_write_b32 v97, v{120+tt} offset:{64*tt}')
        a('s_waitcnt lgkmcnt(0)')
        a('s_barrier')
        a(f's_lshl_b32 s64, s{sWAVE}, 6')
        a(f's_add_u32 s64, s64, {SB}')
        a('v_add_u32 v97, s64, v98')
        for w in range(4):
            a(f'ds_read_b32 v{120+w}, v97 offset:{256*w}')
        a('s_lshl_b32 s63, s61, 2')
        a(f's_add_u32 s63, s63, s{sWAVE}')
        self.ct_of_T()
        a('s_mul_i32 s64, s66, 112')
        a('s_lshl_b32 s65, s68, 4')
        a('s_add_u32 s64, s64, s65')
        a('s_lshl_b32 s64, s64, 2')
        a(f's_add_u32 s64, s64, {SP}')
        a('s_waitcnt lgkmcnt(0)')
        a('v_add_f32 v120, v120, v121')
        a('v_add_f32 v122, v122, v123')
        a('v_add_f32 v120, v120, v122')
        a(f'buffer_store_dword v120, v98, {sr(SRD_WS)}, s64 offen{self.sc}')
        Lskip = a.label('Ldup')
        a('s_cmp_eq_u32 s69, 0')
        a(f's_cbranch_scc1 {Lskip}')
        a('s_add_u32 s64, s64, 64')
        a(f'buffer_store_dword v120, v98, {sr(SRD_WS)}, s64 offen{self.sc}')
        a(f'{Lskip}:')
        a(f's_branch {Ldone}')
        a(f'{Lw2}:')
        a('v_lshl_add_u32 v94, v90, 2, v91')
        a('v_lshlrev_b32 v94, 7, v94')
        a('v_lshl_add_u32 v94, v92, 3, v94')
        a('v_add_u32 v94, s7, v94')
        for tt in range(4):
            a('s_lshl_b32 s63, s61, 2')
            a(f's_add_u32 s63, s63, {tt}')
            a('s_mul_i32 s64, s63, 13108')
            a('s_lshr_b32 s64, s64, 16')
            a('s_mul_i32 s65, s64, 5')
            a('s_sub_u32 s65, s63, s65')
            a('s_mul_i32 s64, s64, 270')
            a('s_add_u32 s64, s64, s65')
            a('s_mul_i32 s65, s62, 15')
            a('s_add_u32 s64, s64, s65')
            a('s_lshl_b32 s64, s64, 10')
            a(f's_add_u32 s64, s64, {W2F}')
            for kk in range(3):
                R = 100 + 4 * kk
                a(f'ds_read_b64_tr_b16 {vr(R,2)}, v94 offset:{kk*4096+tt*32}')
                a(f'ds_read_b64_tr_b16 {vr(R+2,2)}, v94 offset:{kk*4096+tt*32+2048}')
            for kk in range(3):
                R = 100 + 4 * kk
                a(f's_waitcnt lgkmcnt({2*(2-kk)})')
                a(f'buffer_store_dwordx4 {vr(R,4)}, v93, {sr(SRD_WS)}, s64 offen{self.sc}')
                if kk < 2: a('s_add_u32 s64, s64, 5120')
        a(f'{Ldone}:')

    WSTRIDE = 30272
    UXB = 4 * 30272
    ROWB = 528
    CPY = 4160
    TBL = 16640
    GA = 100
    VB = 136
    VA = 144; VEU = 145; VHW = 146
    PL = 148

    def kgen_issue(self):
        a = self.a
        a('s_lshl_b32 s5, s2, 2')
        a(f's_add_u32 s5, s5, s{sWAVE}')
        a('s_lshl_b32 s6, s5, 8')
        a('v_lshlrev_b32 v98, 2, v2')
        a('v_add_u32 v98, s6, v98')
        P = self.PL
        a(f'global_load_dword v{P}, v98, s[{P_LA}:{P_LA+1}]')
        a(f'global_load_dword v{P+1}, v98, s[{P_AI}:{P_AI+1}]')
        a(f'global_load_dword v{P+2}, v98, s[{P_CR}:{P_CR+1}]')
        a(f'global_load_dword v{P+3}, v98, s[{P_CI}:{P_CI+1}]')
        a('s_lshl_b32 s6, s5, 1')
        a('v_mov_b32 v99, s6')
        a(f'global_load_ushort v{P+4}, v99, s[{P_LDT}:{P_LDT+1}]')
        a(f'global_load_ushort v{P+5}, v99, s[{P_DSK}:{P_DSK+1}]')
        return 6

    def p2_consts(self):
        a = self.a
        GA, VB, VA = self.GA, self.VB, self.VA
        t0, t1, t2, t3, t4, t5 = 90, 91, 92, 93, 94, 95
        a(f's_mul_i32 s61, s{sWAVE}, {self.WSTRIDE}')
        a(f'v_lshlrev_b32 v{t0}, 5, v2')
        a(f'v_sub_u32 v{t0}, 2047, v{t0}')
        a(f's_add_u32 s6, s61, {self.TBL}')
        a('s_movk_i32 s7, 0x80')
        for e in range(0, 36, 2):
            a(f'v_subrev_u32 v{t1}, {e}, v{t0}')
            a(f'v_subrev_u32 v{t2}, {e+1}, v{t0}')
            a(f'v_cvt_f32_i32 v{t3}, v{t1}')
            a(f'v_cvt_f32_i32 v{t4}, v{t2}')
            a(f'v_cvt_pk_bf16_f32 v{t3}, v{t3}, v{t4}')
            a(f'v_lshrrev_b32 v{t4}, 16, v{t3}')
            a(f'v_and_b32 v{t3}, 0xffff, v{t3}')
            a(f'v_subrev_u32 v{t3}, 0x4280, v{t3}')
            a(f'v_med3_i32 v{t3}, v{t3}, v{t1}, s7')
            a(f'v_lshl_add_u32 v{GA+e}, v{t3}, 1, s6')
            if e + 1 < 35:
                a(f'v_subrev_u32 v{t4}, 0x4280, v{t4}')
                a(f'v_med3_i32 v{t4}, v{t4}, v{t2}, s7')
                a(f'v_lshl_add_u32 v{GA+e+1}, v{t4}, 1, s6')
        i_, g_ = t0, t1
        a(f'v_and_b32 v{i_}, 15, v2')
        a(f'v_lshrrev_b32 v{g_}, 4, v2')
        a(f'v_and_b32 v{t2}, 3, v{i_}')
        a(f'v_sub_u32 v{t2}, 3, v{t2}')
        a(f'v_mul_u32_u24 v{t2}, {self.CPY}, v{t2}')
        a(f'v_lshrrev_b32 v{t3}, 2, v{i_}')
        a(f'v_lshlrev_b32 v{t3}, 3, v{t3}')
        a(f'v_sub_u32 v{t2}, v{t2}, v{t3}')
        a(f'v_lshl_add_u32 v{t2}, v{g_}, 4, v{t2}')
        a(f's_add_u32 s6, s61, {2*(2044-16) - (512*7+64*7)}')
        a(f'v_add_u32 v{VA}, s6, v{t2}')
        a(f'v_lshlrev_b32 v{t2}, 1, v{i_}')
        a(f'v_add_u32 v{t2}, v{t2}, v{g_}')
        a(f'v_lshlrev_b32 v{t2}, 7, v{t2}')
        a(f'v_lshrrev_b32 v{t3}, 1, v{g_}')
        a(f'v_add_u32 v{t3}, v{t3}, v{i_}')
        a(f's_lshl_b32 s7, s{sWAVE}, 1')
        for b in range(8):
            a(f'v_subrev_u32 v{t4}, {2*b+1}, v{t3}')
            a(f'v_and_b32 v{t4}, 7, v{t4}')
            a(f'v_xor_b32 v{t4}, s7, v{t4}')
            a(f'v_lshl_add_u32 v{t4}, v{t4}, 4, v{t2}')
            a(f'v_add_u32 v{VB+b}, {self.UXB + (30-4*b)*128}, v{t4}')
        a(f'v_lshlrev_b32 v{t2}, 1, v{i_}')
        a(f'v_lshrrev_b32 v{t3}, 1, v{g_}')
        a(f'v_add_u32 v{t2}, v{t2}, v{t3}')
        a(f'v_lshlrev_b32 v{t2}, 7, v{t2}')
        a(f'v_and_b32 v{t3}, 7, v{i_}')
        a(f'v_xor_b32 v{t3}, s7, v{t3}')
        a(f'v_lshl_add_u32 v{t2}, v{t3}, 4, v{t2}')
        a(f'v_and_b32 v{t3}, 1, v{g_}')
        a(f'v_lshl_add_u32 v{t2}, v{t3}, 3, v{t2}')
        a(f'v_add_u32 v{self.VEU}, {self.UXB + 32*128}, v{t2}')
        a(f'v_lshlrev_b32 v{t2}, 5, v{i_}')
        a(f'v_lshl_add_u32 v{t2}, v{g_}, 3, v{t2}')
        a(f'v_add_u32 v{self.VHW}, s61, v{t2}')

    def exp_precise(self, dst, x, t1, t2):
        a = self.a
        a(f'v_mul_f32 v{t1}, s62, v{x}')
        a(f'v_fma_f32 v{t2}, v{x}, s62, -v{t1}')
        a(f'v_fma_f32 v{t2}, v{x}, s63, v{t2}')
        a(f'v_exp_f32 v{dst}, v{t1}')
        a(f'v_mul_f32 v{t2}, v{dst}, v{t2}')
        a(f'v_fma_f32 v{dst}, v{t2}, s64, v{dst}')

    def cmul2(self, d0, x0, y0, d1, x1, y1):
        a = self.a
        a(f'v_pk_mul_f32 {vr(d0,2)}, {vr(x0,2)}, {vr(y0,2)} op_sel:[0,0] op_sel_hi:[0,1]')
        a(f'v_pk_mul_f32 {vr(d1,2)}, {vr(x1,2)}, {vr(y1,2)} op_sel:[0,0] op_sel_hi:[0,1]')
        a(f'v_pk_fma_f32 {vr(d0,2)}, {vr(x0,2)}, {vr(y0,2)}, {vr(d0,2)} op_sel:[1,1,0] op_sel_hi:[1,0,1] neg_lo:[1,0,0]')
        a(f'v_pk_fma_f32 {vr(d1,2)}, {vr(x1,2)}, {vr(y1,2)}, {vr(d1,2)} op_sel:[1,1,0] op_sel_hi:[1,0,1] neg_lo:[1,0,0]')

    def kgen(self, nlater):
        a = self.a
        P = self.PL
        ROWB = self.ROWB
        a('s_mov_b32 s62, 0x3fb8aa3b')
        a('s_mov_b32 s63, 0x32a57060')
        a(f's_mov_b32 s64, {f2u(0.6931471805599453):#x}')
        a(f's_mov_b32 s65, {f2u(0.15915494309189535):#x}')
        a(f's_waitcnt vmcnt({nlater})')
        a(f'v_lshlrev_b32 v4, 16, v{P+4}')
        self.exp_precise(10, 4, 5, 6)
        self.bf16r(10, 10)
        for s in range(2):
            def unpack(dst, src):
                if s == 0: a(f'v_lshlrev_b32 v{dst}, 16, v{src}')
                else: a(f'v_and_b32 v{dst}, 0xffff0000, v{src}')
            unpack(4, P)
            self.exp_precise(7, 4, 5, 6)
            self.bf16r(7, 7)
            a('v_mul_f32 v7, v7, v10')
            a(f'v_mul_f32 v{12+s}, s62, v7')
            a(f'v_sub_f32 v{12+s}, 0, v{12+s}')
            unpack(4, P + 1)
            a('v_mul_f32 v4, v4, v10')
            a(f'v_mul_f32 v{14+s}, s65, v4')
            unpack(4, P + 2)
            a('v_mul_f32 v4, v4, v10')
            a(f'v_add_f32 v{16+2*s}, v4, v4')
            unpack(4, P + 3)
            a('v_mul_f32 v4, v4, v10')
            a(f'v_add_f32 v{17+2*s}, v4, v4')
        for zi, p in enumerate((1.0, 8.0, 128.0)):
            for s in range(2):
                d = 20 + 4 * zi + 2 * s
                a(f'v_mul_f32 v4, {f2u(p):#x}, v{12+s}')
                a(f'v_mul_f32 v5, {f2u(p):#x}, v{14+s}')
                a('v_exp_f32 v4, v4')
                a('v_rndne_f32 v6, v5')
                a('v_sub_f32 v5, v5, v6')
                a('v_cos_f32 v6, v5')
                a('v_sin_f32 v7, v5')
                a(f'v_mul_f32 v{d}, v4, v6')
                a(f'v_mul_f32 v{d+1}, v4, v7')
        self.stamp('kz')
        a('v_lshlrev_b32 v11, 3, v2')
        a('v_add_u32 v11, s61, v11')
        wt = [0]
        def put(row, x0, x1, neg=False):
            w = 88 + 2 * wt[0]; wt[0] = (wt[0] + 1) % 4
            n = '-' if neg else ''
            a(f'v_cvt_pk_bf16_f32 v{w}, v{x0}, {n}v{x0+1}')
            a(f'v_cvt_pk_bf16_f32 v{w+1}, v{x1}, {n}v{x1+1}')
            a(f'ds_write_b64 v11, {vr(w,2)} offset:{row*ROWB}')
        LO = 32
        def lo(c, s): return (20 + 2 * s) if c == 1 else LO + 4 * (c - 2) + 2 * s
        def mk(c, x, y): self.cmul2(lo(c, 0), lo(x, 0), lo(y, 0), lo(c, 1), lo(x, 1), lo(y, 1))
        mk(2, 1, 1); mk(3, 2, 1); mk(4, 2, 2); mk(5, 4, 1); mk(6, 4, 2); mk(7, 4, 3)
        a('v_mov_b32 v60, 1.0'); a('v_mov_b32 v61, 0'); a('v_mov_b32 v62, 1.0'); a('v_mov_b32 v63, 0')
        put(41, 60, 62, neg=True)
        put(42, 24, 26, neg=True)
        cur = 24; E = [64, 68]
        for j in range(2, 16):
            nx = E[j & 1]
            self.cmul2(nx, cur, 24, nx + 2, cur + 2, 26)
            put(41 + j, nx, nx + 2, neg=True)
            cur = nx
        H = [72, 76]; T = [80, 84]
        cur = 16; tt = 0
        for i in range(17):
            if i > 0:
                nx = H[i & 1]
                self.cmul2(nx, cur, 28, nx + 2, cur + 2, 30)
                cur = nx
            if i < 2: rows = [(8 * i + c, c) for c in range(8)]
            elif i < 4: rows = [(16 + 4 * (i - 2) + c, 2 * c) for c in range(4)]
            elif i < 8: rows = [(24 + 2 * (i - 4) + c, 4 * c) for c in range(2)]
            else: rows = [(32 + (i - 8), 0)]
            for (row, c) in rows:
                if c == 0:
                    put(row, cur, cur + 2)
                else:
                    t = T[tt]; tt ^= 1
                    self.cmul2(t, cur, lo(c, 0), t + 2, cur + 2, lo(c, 1))
                    put(row, t, t + 2)
        self.stamp('kchain')
        a('v_and_b32 v5, 15, v2')
        a('v_lshrrev_b32 v6, 4, v2')
        a(f'v_mul_u32_u24 v11, {ROWB}, v5')
        a('v_lshl_add_u32 v11, v6, 4, v11')
        a('v_add_u32 v11, s61, v11')
        FR = 164
        for half in range(2):
            for kk in range(4):
                kap = 4 * half + kk
                a(f'ds_read_b128 {vr(FR+16*kk,4)}, v11 offset:{41*ROWB + kap*64}')
                for T_ in range(3):
                    a(f'ds_read_b128 {vr(FR+16*kk+4+4*T_,4)}, v11 offset:{16*T_*ROWB + kap*64}')
            for kk in range(4):
                kap = 4 * half + kk
                a(f's_waitcnt lgkmcnt({4*(3-kk)})')
                for T_ in range(3):
                    c = '0' if kap == 0 else vr(12 + 4 * T_, 4)
                    a(f'v_mfma_f32_16x16x32_bf16 {vr(12+4*T_,4)}, {vr(FR+16*kk+4+4*T_,4)}, {vr(FR+16*kk,4)}, {c}')
        a(f's_add_u32 s6, s61, {self.TBL}')
        a('v_lshrrev_b32 v7, 1, v6'); a('v_lshlrev_b32 v7, 7, v7')
        a('v_and_b32 v8, 1, v6'); a('v_lshl_add_u32 v7, v8, 2, v7')
        a('v_lshl_add_u32 v7, v5, 3, v7')
        a('v_lshl_add_u32 v7, v7, 1, s6')
        a('v_lshlrev_b32 v8, 6, v6')
        a('v_lshlrev_b32 v9, 2, v5')
        a('v_lshlrev_b32 v10, 1, v5')
        a('v_cmp_gt_u32 vcc, 2, v6')
        a('v_cndmask_b32 v9, v10, v9, vcc')
        a('v_add_u32 v8, v8, v9')
        a('v_add_u32 v8, 256, v8')
        a('v_lshl_add_u32 v8, v8, 1, s6')
        a('v_mov_b32 v9, 64')
        a('v_mov_b32 v10, 4')
        a('v_cndmask_b32 v9, v9, v10, vcc')
        a('v_add_u32 v9, v8, v9')
        a('v_lshlrev_b32 v10, 6, v6')
        a('v_add_u32 v10, v10, v5')
        a('v_lshl_add_u32 v10, v10, 1, s6')
        a('v_cvt_pk_bf16_f32 v24, v12, v13'); a('v_cvt_pk_bf16_f32 v25, v14, v15')
        a('ds_write_b64 v7, v[24:25]')
        a('v_cvt_pk_bf16_f32 v26, v16, v17'); a('v_cvt_pk_bf16_f32 v27, v18, v19')
        a('ds_write_b32 v8, v26'); a('ds_write_b32 v9, v27')
        a('v_cvt_pk_bf16_f32 v28, v20, v21'); a('v_cvt_pk_bf16_f32 v29, v22, v23')
        a('ds_write_b16 v10, v28 offset:1024'); a('ds_write_b16_d16_hi v10, v28 offset:1056')
        a('ds_write_b16 v10, v29 offset:1088'); a('ds_write_b16_d16_hi v10, v29 offset:1120')
        self.stamp('kmfma')
        self.kgen_tail()

    def kgen_tail(self):
        a = self.a
        D = 32
        HI = 70
        for w in range(17):
            a(f'ds_read_u16 v{D+w}, v{self.GA+2*w}')
            a(f'ds_read_u16 v{HI+w}, v{self.GA+2*w+1}')
        a(f'ds_read_u16 v{D+17}, v{self.GA+34}')
        a('v_lshlrev_b32 v7, 6, v2')
        a('v_add_u32 v7, s61, v7')
        a(f'v_add_u32 v8, {2*self.CPY}, v7')
        a(f'v_add_u32 v9, {3*self.CPY}, v7')
        a('v_and_b32 v10, 15, v2')
        a('v_lshlrev_b32 v10, 2, v10')
        a('v_add_u32 v10, s61, v10')
        a('v_mov_b32 v11, 0')
        a('s_waitcnt lgkmcnt(0)')
        for w in range(17):
            a(f'v_lshl_or_b32 v{D+w}, v{HI+w}, 16, v{D+w}')
        a(f'v_writelane_b32 v{D+16}, 0, 63')
        a(f'v_writelane_b32 v{D+17}, 0, 63')
        self.stamp('kgath')
        O = 52
        for w in range(17):
            a(f'v_alignbit_b32 v{O+w}, v{D+w+1}, v{D+w}, 16')
        for i in range(4):
            a(f'ds_write_b128 v7, {vr(D+4*i,4)} offset:{16*i}')
            a(f'ds_write_b128 v7, {vr(O+4*i,4)} offset:{self.CPY+16*i}')
        for i in range(0, 16, 2):
            a(f'ds_write2_b32 v8, v{D+i+1}, v{D+i+2} offset0:{i} offset1:{i+1}')
            a(f'ds_write2_b32 v9, v{O+i+1}, v{O+i+2} offset0:{i} offset1:{i+1}')
        for c in range(4):
            a(f'ds_write_b32 v10, v11 offset:{c*self.CPY+4096}')

    def conv_load_ux(self):
        a = self.a
        a('v_lshrrev_b32 v4, 3, v2')
        a('v_mul_u32_u24 v5, 20480, v4')
        a('v_and_b32 v6, 7, v2')
        a('v_lshl_add_u32 v5, v6, 4, v5')
        a(f's_mul_i32 s5, s{sWAVE}, {64*20480}')
        a('s_lshl_b32 s6, s2, 7')
        a('s_add_u32 s5, s5, s6')
        if BLK: a(f's_add_u32 s5, s5, {BLK}')
        for k in range(8):
            a(f'buffer_load_dwordx4 {vr(160+4*k,4)}, v5, {sr(SRD_WS)}, s5 offen{self.sc}')
            if k < 7: a(f's_add_u32 s5, s5, {8*20480}')
        a('v_lshrrev_b32 v7, 4, v2')
        a('v_xor_b32 v8, v6, v7')
        a('v_xor_b32 v9, 4, v8')
        a('v_lshlrev_b32 v4, 7, v4')
        a(f's_lshl_b32 s6, s{sWAVE}, 13')
        a(f's_add_u32 s6, s6, {self.UXB + 4096}')
        a('v_add_u32 v4, s6, v4')
        a('v_lshl_add_u32 v8, v8, 4, v4')
        a('v_lshl_add_u32 v9, v9, 4, v4')
        a('v_mov_b32 v12, 0'); a('v_mov_b32 v13, 0'); a('v_mov_b32 v14, 0'); a('v_mov_b32 v15, 0')
        a('v_lshlrev_b32 v10, 4, v0')
        a(f'v_add_u32 v10, {self.UXB}, v10')
        a('ds_write_b128 v10, v[12:15]')
        for k in range(8):
            a(f's_waitcnt vmcnt({7-k})')
            a(f'ds_write_b128 v{8 + (k&1)}, {vr(160+4*k,4)} offset:{k*1024}')
        a('s_waitcnt lgkmcnt(0)')
        a('s_barrier')

    def conv_main(self, hook=None):
        a = self.a
        ACC = 12
        bufA = [44, 156]; bufB = [76, 188]
        def reads(b):
            sel = b & 1
            lst = []
            for aa in range(8):
                off = 512 * (7 - aa) + 64 * (7 - b)
                lst.append(f'ds_read_b64 {vr(bufA[sel]+4*aa,2)}, v{self.VA} offset:{off}')
                lst.append(f'ds_read_b64 {vr(bufA[sel]+4*aa+2,2)}, v{self.VA} offset:{off+8}')
            for e in range(8):
                lst.append(f'ds_read_b128 {vr(bufB[sel]+4*e,4)}, v{self.VB+b} offset:{4096*e}')
            order = []
            for k in range(8):
                order += [lst[2*k], lst[2*k+1], lst[16+k]]
            return order
        for r in reads(0): a(r)
        for b in range(8):
            sel = b & 1
            nxt = reads(b + 1) if b < 7 else []
            a('s_waitcnt lgkmcnt(0)')
            n = 0
            for aa in range(8):
                for e in range(8 - aa):
                    t = aa + e
                    c = '0' if (b == 0 and aa == 0) else vr(ACC + 4 * t, 4)
                    a(f'v_mfma_f32_16x16x32_bf16 {vr(ACC+4*t,4)}, {vr(bufA[sel]+4*aa,4)}, {vr(bufB[sel]+4*e,4)}, {c}')
                    if n < len(nxt): a(nxt[n])
                    if hook: hook(b, n)
                    n += 1

    def conv_epilogue(self):
        a = self.a
        ACC = 12
        P = self.PL
        a(f'v_xor_b32 v4, 16, v{self.VEU}')
        for t in range(8):
            a(f'ds_read_b64 {vr(44+4*t,2)}, v{self.VEU} offset:{4096*t}')
            a(f'ds_read_b64 {vr(46+4*t,2)}, v4 offset:{4096*t}')
        a(f'v_lshlrev_b32 v6, 16, v{P+5}')
        a('v_mov_b32 v7, v6')
        for t in range(8):
            a(f's_waitcnt lgkmcnt({2*(7-t)})')
            for h in range(2):
                u = 44 + 4 * t + h; x = 46 + 4 * t + h; y0 = ACC + 4 * t + 2 * h
                a(f'v_lshlrev_b32 v8, 16, v{u}')
                a(f'v_and_b32 v9, 0xffff0000, v{u}')
                a('v_pk_mul_f32 v[8:9], v[8:9], v[6:7]')
                a('v_cvt_pk_bf16_f32 v10, v8, v9')
                a(f'v_cvt_pk_bf16_f32 v11, v{y0}, v{y0+1}')
                a('v_lshlrev_b32 v8, 16, v10')
                a('v_and_b32 v9, 0xffff0000, v10')
                a('v_lshlrev_b32 v76, 16, v11')
                a('v_and_b32 v77, 0xffff0000, v11')
                a('v_pk_add_f32 v[8:9], v[8:9], v[76:77]')
                a('v_cvt_pk_bf16_f32 v10, v8, v9')
                a('v_lshlrev_b32 v8, 16, v10')
                a('v_and_b32 v9, 0xffff0000, v10')
                a(f'v_lshlrev_b32 v76, 16, v{x}')
                a(f'v_and_b32 v77, 0xffff0000, v{x}')
                a('v_pk_add_f32 v[8:9], v[8:9], v[76:77]')
                a(f'v_cvt_pk_bf16_f32 v{80+2*t+h}, v8, v9')
            a(f'ds_write_b64 v{self.VHW}, {vr(80+2*t,2)} offset:{512*t}')
        self.stamp('cep1')
        a('v_bfe_u32 v4, v2, 2, 2')
        a(f'v_mul_u32_u24 v4, {self.WSTRIDE}, v4')
        a('v_lshrrev_b32 v5, 4, v2')
        a('v_lshl_add_u32 v4, v5, 5, v4')
        a('v_and_b32 v6, 3, v2')
        a('v_lshl_add_u32 v4, v6, 3, v4')
        a(f's_lshl_b32 s5, s{sWAVE}, 10')
        a('v_add_u32 v4, s5, v4')
        a('v_mul_u32_u24 v5, 20480, v5')
        a('v_and_b32 v6, 15, v2')
        a('v_lshl_add_u32 v5, v6, 4, v5')
        a(f's_mul_i32 s5, s{sWAVE}, {8*81920}')
        a('s_lshr_b32 s6, s2, 3')
        a('s_lshl_b32 s6, s6, 10')
        a('s_add_u32 s5, s5, s6')
        a('s_bfe_u32 s6, s2, 0x20001')
        a('s_lshl_b32 s6, s6, 8')
        a('s_add_u32 s5, s5, s6')
        a('s_and_b32 s6, s2, 1')
        a('s_lshl_b32 s6, s6, 3')
        a('s_add_u32 s5, s5, s6')
        a(f's_add_u32 s5, s5, {HF}')
        a('s_waitcnt lgkmcnt(0)')
        a('s_barrier')
        for m in range(8):
            a(f'ds_read_b64_tr_b16 {vr(44+2*m,2)}, v4 offset:{128*m}')
        for m in range(8):
            a(f's_waitcnt lgkmcnt({7-m})')
            a(f'buffer_store_dwordx2 {vr(44+2*m,2)}, v5, {sr(SRD_WS)}, s5 offen{self.sc}')
            if m < 7: a('s_add_u32 s5, s5, 81920')

    def p3_ids(self):
        a = self.a
        a('s_and_b32 s66, s2, 7')
        a('s_lshl_b32 s66, s66, 1')
        a('s_bfe_u32 s5, s2, 0x10003')
        a('s_add_u32 s66, s66, s5')
        a('s_lshr_b32 s67, s2, 4')

    def p3_w1_dma(self):
        a = self.a
        a('v_lshlrev_b32 v3, 4, v2')
        a(f's_mul_i32 s5, s67, {140*1024}')
        a(f's_lshl_b32 s6, s{sWAVE}, 10')
        a('s_add_u32 s5, s5, s6')
        a(f's_add_u32 s5, s5, {W1F}')
        a('s_mov_b32 m0, s6')
        for i in range(35):
            a(f'buffer_load_dwordx4 v3, {sr(SRD_WS)}, s5 offen{self.sc} lds')
            if i < 34:
                a('s_add_u32 m0, m0, 4096')
                a('s_add_u32 s5, s5, 4096')
        return 35

    P3H = 96
    def p3_h_loads(self):
        a = self.a
        a('v_lshlrev_b32 v3, 4, v2')
        a('s_lshl_b32 s5, s66, 3')
        a(f's_lshl_b32 s6, s{sWAVE}, 1')
        a('s_add_u32 s5, s5, s6')
        a('s_mul_i32 s5, s5, 20480')
        a(f's_add_u32 s5, s5, {HF}')
        a('s_add_u32 s6, s5, 20480')
        for kap in range(20):
            for lt in range(2):
                base = 's5' if lt == 0 else 's6'
                a(f'buffer_load_dwordx4 {vr(self.P3H+(2*kap+lt)*4,4)}, v3, {sr(SRD_WS)}, {base} offen offset:{(kap%4)*1024}{self.sc}')
            if kap % 4 == 3 and kap < 19:
                a('s_add_u32 s5, s5, 4096'); a('s_add_u32 s6, s6, 4096')
        return 40

    def p3_s_load(self):
        a = self.a
        a('v_lshrrev_b32 v3, 4, v2')
        a('v_lshlrev_b32 v3, 4, v3')
        a('s_mul_i32 s5, s67, 448')
        a(f's_add_u32 s5, s5, {SP}')
        for t in range(7):
            a(f'buffer_load_dwordx4 {vr(64+4*t,4)}, v3, {sr(SRD_WS)}, s5 offen offset:{64*t}{self.sc}')
        return 7

    def p3_b1_load(self):
        a = self.a
        self.srd(SRD_B, P_B1, 1728 * 2)
        a('s_lshr_b32 s5, s67, 1'); a('s_mul_i32 s5, s5, 14')
        a('s_and_b32 s6, s67, 1'); a('s_lshl_b32 s7, s6, 3'); a('s_add_u32 s5, s5, s7')
        a('s_sub_u32 s7, s67, 12'); a('s_mul_i32 s7, s7, 6'); a('s_add_u32 s7, s7, 84')
        a('s_cmp_lt_u32 s67, 12')
        a('s_cselect_b32 s5, s5, s7')
        a('s_add_u32 s7, s5, 6'); a('s_sub_u32 s68, s5, 1')
        a('s_cmp_eq_u32 s6, 0'); a('s_cselect_b32 s7, s7, s68')
        a('s_add_u32 s68, s5, 5')
        a('s_cmp_lt_u32 s67, 12'); a('s_cselect_b32 s7, s7, s68')
        a('s_mov_b32 s68, s5')
        a('s_mov_b32 s69, s7')
        a('s_lshl_b32 s5, s5, 5'); a('s_lshl_b32 s7, s7, 5')
        a('v_lshrrev_b32 v94, 4, v2')
        a('v_lshlrev_b32 v94, 3, v94')
        for t in range(6):
            a(f'buffer_load_dwordx2 {vr(96+2*t,2)}, v94, {sr(SRD_B)}, s5 offen offset:{32*t}')
        a(f'buffer_load_dwordx2 {vr(108,2)}, v94, {sr(SRD_B)}, s7 offen')
        return 7

    def p3_main(self, hwait):
        a = self.a
        ACC = 8
        WB = [200, 228]
        a('v_lshlrev_b32 v3, 4, v2')
        a('s_mov_b32 s70, 0x3f803f80')
        a('v_add_u32 v92, 0x10000, v3')
        a('v_add_u32 v93, 0x20000, v3')
        def rd(kap, t):
            off = (kap * 7 + t) * 1024
            reg = ['v3', 'v92', 'v93'][off >> 16]
            return f'ds_read_b128 {ar(WB[kap&1]+4*t,4)}, {reg} offset:{off & 0xffff}'
        for t in range(7): a(rd(0, t))
        for kap in range(20):
            a(f's_waitcnt vmcnt({hwait(kap)}) lgkmcnt(0)')
            h0 = self.P3H + (2 * kap) * 4; h1 = h0 + 4
            extra = []
            if kap < 19: extra += [rd(kap + 1, t) for t in range(7)]
            dots = []
            for lt, h in ((0, h0), (1, h1)):
                for j in range(4):
                    if kap == 0 and j == 0:
                        dots.append(f'v_dot2_f32_bf16 v{4+2*lt}, v{h+j}, s70, 0')
                        dots.append(f'v_dot2_f32_bf16 v{5+2*lt}, v{h+j}, v{h+j}, 0')
                    else:
                        dots.append(f'v_dot2_f32_bf16 v{4+2*lt}, v{h+j}, s70, v{4+2*lt}')
                        dots.append(f'v_dot2_f32_bf16 v{5+2*lt}, v{h+j}, v{h+j}, v{5+2*lt}')
            n = 0
            for t in range(7):
                for lt, h in ((0, h0), (1, h1)):
                    acc = ACC + (t * 2 + lt) * 4
                    c = '0' if kap == 0 else vr(acc, 4)
                    a(f'v_mfma_f32_16x16x32_bf16 {vr(acc,4)}, {ar(WB[kap&1]+4*t,4)}, {vr(h,4)}, {c}')
                    if extra: a(extra.pop(0)) if n % 2 == 0 else None
                    if dots: a(dots.pop(0))
                    n += 1
            for e in extra: a(e)
            for d in dots: a(d)
            if self.p3_hook: self.p3_hook(kap)

    def p3_epilogue(self):
        a = self.a
        ACC = 8
        for v in (4, 5, 6, 7):
            a(f'v_mov_b32 v94, v{v}')
            a(f'v_permlane16_swap_b32 v{v}, v94')
            a(f'v_add_f32 v{v}, v{v}, v94')
            a(f'v_mov_b32 v94, v{v}')
            a(f'v_permlane32_swap_b32 v{v}, v94')
            a(f'v_add_f32 v{v}, v{v}, v94')
        for lt in range(2):
            s_, q_ = 4 + 2 * lt, 5 + 2 * lt
            a(f'v_mul_f32 v{s_}, {f2u(1.0/640):#x}, v{s_}')
            a(f'v_mul_f32 v{q_}, {f2u(1.0/640):#x}, v{q_}')
            a(f'v_fma_f32 v{q_}, -v{s_}, v{s_}, v{q_}')
            a(f'v_max_f32 v{q_}, 0, v{q_}')
            self.bf16r(s_, s_)
            self.bf16r(q_, q_)
            a(f'v_add_f32 v{q_}, {f2u(1e-5):#x}, v{q_}')
            self.bf16r(q_, q_)
            a(f'v_sqrt_f32 v{q_}, v{q_}')
            self.bf16r(q_, q_)
            R = 112 + 4 * lt
            a(f'v_rcp_f32 v{R}, v{q_}')
            a(f'v_mov_b32 v{R+2}, v{s_}')
            a(f'v_mov_b32 v{R+1}, v{R}')
            a(f'v_mov_b32 v{R+3}, v{s_}')
        a('s_mov_b32 s70, 0x00003f80')
        a('s_mov_b32 s71, 0x3f800000')
        a('s_waitcnt vmcnt(0)')
        for t in range(7):
            for h in range(2):
                a(f'v_lshlrev_b32 v{120+4*t+2*h}, 16, v{96+2*t+h}')
                a(f'v_and_b32 v{120+4*t+2*h+1}, 0xffff0000, v{96+2*t+h}')
        OUT = 150
        def outreg(t, lt):
            if t < 6: return OUT + ((t >> 1) * 2 + lt) * 4 + (t & 1) * 2
            return OUT + 24 + lt * 2
        for t in range(7):
            for lt in range(2):
                acc = ACC + (t * 2 + lt) * 4
                R = 112 + 4 * lt
                for h in range(2):
                    x = acc + 2 * h; S = 64 + 4 * t + 2 * h; B = 120 + 4 * t + 2 * h
                    a(f'v_pk_fma_f32 {vr(x,2)}, {vr(S,2)}, {vr(R+2,2)}, {vr(x,2)} neg_lo:[1,0,0] neg_hi:[1,0,0]')
                    a(f'v_pk_mul_f32 {vr(x,2)}, {vr(x,2)}, {vr(R,2)}')
                    a(f'v_cvt_pk_bf16_f32 v94, v{x}, v{x+1}')
                    a(f'v_dot2_f32_bf16 v{x}, v94, s70, v{B}')
                    a(f'v_dot2_f32_bf16 v{x+1}, v94, s71, v{B+1}')
                    a(f'v_cvt_pk_bf16_f32 v94, v{x}, v{x+1}')
                    a('v_pk_max_i16 v94, v94, 0')
                    a(f'v_lshlrev_b32 v{x}, 16, v94')
                    a(f'v_and_b32 v{x+1}, 0xffff0000, v94')
                    a(f'v_pk_mul_f32 {vr(x,2)}, {vr(x,2)}, {vr(x,2)}')
                    a(f'v_cvt_pk_bf16_f32 v{outreg(t,lt)+h}, v{x}, v{x+1}')
        a('v_lshlrev_b32 v3, 4, v2')
        a('s_lshl_b32 s5, s66, 3')
        a(f's_lshl_b32 s6, s{sWAVE}, 1')
        a('s_add_u32 s5, s5, s6')
        a(f's_mul_i32 s5, s5, {54*1024}')
        a(f's_add_u32 s5, s5, {HH}')
        a('s_lshr_b32 s6, s68, 1')
        a('s_lshl_b32 s6, s6, 10')
        a('s_add_u32 s6, s6, s5')
        a(f's_add_u32 s7, s6, {54*1024}')
        for p in range(3):
            for lt, sb in ((0, 's6'), (1, 's7')):
                a(f'buffer_store_dwordx4 {vr(OUT+(p*2+lt)*4,4)}, v3, {sr(SRD_WS)}, {sb} offen offset:{1024*p}{self.sc}')
        Lsk = a.label('Lp3s')
        a('s_cmp_ge_u32 s67, 12')
        a(f's_cbranch_scc1 {Lsk}')
        a('s_lshr_b32 s6, s69, 1')
        a('s_lshl_b32 s6, s6, 10')
        a('s_and_b32 s7, s69, 1')
        a('s_lshl_b32 s7, s7, 3')
        a('s_add_u32 s6, s6, s7')
        a('s_add_u32 s6, s6, s5')
        a(f's_add_u32 s7, s6, {54*1024}')
        for lt, sb in ((0, 's6'), (1, 's7')):
            a(f'buffer_store_dwordx2 {vr(OUT+24+lt*2,2)}, v3, {sr(SRD_WS)}, {sb} offen{self.sc}')
        a(f'{Lsk}:')

    def p4_ids(self):
        a = self.a
        a('s_and_b32 s72, s2, 7')
        a('s_lshl_b32 s72, s72, 2')
        a('s_bfe_u32 s5, s2, 0x20003')
        a('s_add_u32 s72, s72, s5')
        a('s_lshr_b32 s73, s2, 5')
        a(f's_mul_i32 s74, s{sWAVE}, 14')
        a(f's_cmp_eq_u32 s{sWAVE}, 3')
        a('s_cselect_b32 s5, 1, 0')
        a('s_sub_u32 s74, s74, s5')
        a(f's_cmp_ge_u32 s{sWAVE}, 2')
        a('s_cselect_b32 s75, 12, 13')

    def w2reg(self, idx):
        if idx < 64: return ar(4 * idx, 4)
        return vr(88 + 4 * (idx - 64), 4)

    def p4_w2_loads(self, lo, hi):
        a = self.a
        a('v_lshlrev_b32 v3, 4, v2')
        a('s_mul_i32 s5, s73, 54')
        a('s_add_u32 s5, s5, s74')
        a('s_mul_i32 s5, s5, 5120')
        a(f's_add_u32 s5, s5, {W2F}')
        a('s_mul_i32 s6, s75, 5120')
        a('s_add_u32 s6, s6, s5')
        n = 0
        cur = None
        for idx in range(lo, hi):
            kk, t = divmod(idx, 5)
            if kk < 13:
                off = idx * 1024
                blk = off // 4096
                if cur != blk:
                    a(f's_add_u32 s7, s5, {blk*4096}')
                    cur = blk
                a(f'buffer_load_dwordx4 {self.w2reg(idx)}, v3, {sr(SRD_WS)}, s7 offen offset:{off%4096}{self.sc}')
            else:
                if t < 4:
                    a(f'buffer_load_dwordx4 {self.w2reg(idx)}, v3, {sr(SRD_WS)}, s6 offen offset:{t*1024}{self.sc}')
                else:
                    a('s_add_u32 s7, s6, 4096')
                    a(f'buffer_load_dwordx4 {self.w2reg(idx)}, v3, {sr(SRD_WS)}, s7 offen{self.sc}')
            n += 1
        return n

    P4H = 112
    def p4_h_setup(self):
        a = self.a
        a('v_lshlrev_b32 v3, 4, v2')
        a('s_lshl_b32 s5, s72, 2')
        a('s_mul_i32 s5, s5, 54')
        a('s_add_u32 s5, s5, s74')
        a('s_lshl_b32 s5, s5, 10')
        a(f's_add_u32 s76, s5, {HH}')
        for lt in range(1, 4):
            a(f's_add_u32 s{76+lt}, s76, {lt*54*1024}')
        a('s_lshl_b32 s80, s75, 10')

    def p4_h_load(self, kk):
        a = self.a
        slot = kk % 9
        for lt in range(4):
            reg = vr(self.P4H + slot * 16 + lt * 4, 4)
            if kk < 13:
                if kk < 4:
                    a(f'buffer_load_dwordx4 {reg}, v3, {sr(SRD_WS)}, s{76+lt} offen offset:{kk*1024}{self.sc}')
                else:
                    a(f's_add_u32 s5, s{76+lt}, {kk*1024}')
                    a(f'buffer_load_dwordx4 {reg}, v3, {sr(SRD_WS)}, s5 offen{self.sc}')
            else:
                a(f's_add_u32 s5, s{76+lt}, s80')
                a(f'buffer_load_dwordx4 {reg}, v3, {sr(SRD_WS)}, s5 offen{self.sc}')
        return 4

    def p4_main(self):
        a = self.a
        ACC = 8
        for kk in range(14):
            issued_to = min(8 + kk, 13)
            a(f's_waitcnt vmcnt({(issued_to - kk) * 4})')
            Lsk = None
            if kk == 13:
                Lsk = a.label('Lp4s')
                a(f's_cmp_ge_u32 s{sWAVE}, 2')
                a(f's_cbranch_scc1 {Lsk}')
            slot = kk % 9
            for t in range(5):
                for lt in range(4):
                    acc = ACC + (t * 4 + lt) * 4
                    c = '0' if kk == 0 else vr(acc, 4)
                    a(f'v_mfma_f32_16x16x32_bf16 {vr(acc,4)}, {self.w2reg(kk*5+t)}, {vr(self.P4H+slot*16+lt*4,4)}, {c}')
            if Lsk: a(f'{Lsk}:')
            if kk + 9 <= 13: self.p4_h_load(kk + 9)

    def p4_epilogue(self):
        a = self.a
        ACC = 8
        self.srd(SRD_B, P_B2, 640 * 2)
        a('v_and_b32 v4, 15, v2')
        a('v_lshrrev_b32 v5, 4, v2')
        a('s_mul_i32 s5, s73, 20')
        a('s_lshl_b32 s6, s72, 2')
        a(f's_add_u32 s6, s6, s{sWAVE}')
        a('s_mul_i32 s7, s6, 20480')
        a(f's_add_u32 s7, s7, {HF}')
        for t in range(5):
            a(f'v_add_u32 v6, s5, v5')
            a(f'v_add_u32 v6, {4*t}, v6')
            a('v_lshrrev_b32 v7, 3, v6')
            a('v_lshlrev_b32 v7, 10, v7')
            a('v_bfe_u32 v88, v6, 1, 2')
            a('v_lshl_add_u32 v7, v88, 8, v7')
            a('v_and_b32 v88, 1, v6')
            a('v_lshl_add_u32 v7, v88, 3, v7')
            a('v_lshl_add_u32 v7, v4, 4, v7')
            a(f'buffer_load_dwordx2 {vr(112+2*t,2)}, v7, {sr(SRD_WS)}, s7 offen{self.sc}')
            a('v_lshlrev_b32 v6, 3, v6')
            a(f'buffer_load_dwordx2 {vr(132+2*t,2)}, v6, {sr(SRD_B)}, 0 offen')
        a('v_lshlrev_b32 v3, 4, v2')
        a(f's_mul_i32 s5, s{sWAVE}, 20480')
        a('v_add_u32 v6, s5, v3')
        for tl in range(20):
            a(f'ds_write_b128 v6, {vr(ACC+4*tl,4)} offset:{1024*tl}')
        a('s_waitcnt lgkmcnt(0)')
        a('s_barrier')
        a(f's_lshl_b32 s5, s{sWAVE}, 10')
        a('v_add_u32 v6, s5, v3')
        a('v_add_u32 v7, 40960, v6')
        for t in range(5):
            for w in range(4):
                reg = 'v6' if w < 2 else 'v7'
                a(f'ds_read_b128 {vr(144+(t*4+w)*4,4)}, {reg} offset:{(w&1)*20480 + t*4096}')
        self.srd(SRD_A, P_OUT, 2048 * 1280)
        a('s_lshl_b32 s5, s72, 6')
        a(f's_lshl_b32 s6, s{sWAVE}, 4')
        a('s_add_u32 s5, s5, s6')
        a('s_mul_i32 s5, s5, 1280')
        a('s_mul_i32 s6, s73, 160')
        a('s_add_u32 s5, s5, s6')
        a('v_mul_u32_u24 v4, 1280, v4')
        a('v_lshl_add_u32 v4, v5, 3, v4')
        a('s_mov_b32 s70, 0x00003f80')
        a('s_mov_b32 s71, 0x3f800000')
        a('s_waitcnt vmcnt(0)')
        for t in range(5):
            a(f's_waitcnt lgkmcnt({min(15, 4*(4-t))})')
            R = 144 + t * 16
            for h in range(2):
                x = R + 2 * h
                a(f'v_pk_add_f32 {vr(x,2)}, {vr(x,2)}, {vr(x+4,2)}')
                a(f'v_pk_add_f32 {vr(x+8,2)}, {vr(x+8,2)}, {vr(x+12,2)}')
                a(f'v_pk_add_f32 {vr(x,2)}, {vr(x,2)}, {vr(x+8,2)}')
                a(f'v_cvt_pk_bf16_f32 v88, v{x}, v{x+1}')
                b = 132 + 2 * t + h; hh = 112 + 2 * t + h
                a(f'v_lshlrev_b32 v90, 16, v{b}')
                a(f'v_and_b32 v91, 0xffff0000, v{b}')
                a(f'v_dot2_f32_bf16 v{x}, v88, s70, v90')
                a(f'v_dot2_f32_bf16 v{x+1}, v88, s71, v91')
                a(f'v_cvt_pk_bf16_f32 v88, v{x}, v{x+1}')
                a(f'v_lshlrev_b32 v90, 16, v{hh}')
                a(f'v_and_b32 v91, 0xffff0000, v{hh}')
                a(f'v_dot2_f32_bf16 v{x}, v88, s70, v90')
                a(f'v_dot2_f32_bf16 v{x+1}, v88, s71, v91')
                a(f'v_cvt_pk_bf16_f32 v{R+4+h}, v{x}, v{x+1}')
            a(f'buffer_store_dwordx2 {vr(R+4,2)}, v4, {sr(SRD_A)}, s5 offen offset:{32*t}')

def kernel_header(name):
    return f""".globl {name}
.p2align 8
.type {name},@function
{name}:
"""

def kernel_desc(name, vgpr=512, sgpr=102):
    acc = 256 if vgpr > 256 else (vgpr + 3) // 4 * 4
    return f""".p2align 6
.amdhsa_kernel {name}
  .amdhsa_next_free_vgpr {vgpr}
  .amdhsa_next_free_sgpr {sgpr}
  .amdhsa_accum_offset {acc}
  .amdhsa_group_segment_fixed_size 0
  .amdhsa_kernarg_size 120
  .amdhsa_user_sgpr_count 2
  .amdhsa_user_sgpr_kernarg_segment_ptr 1
  .amdhsa_system_sgpr_workgroup_id_x 1
.end_amdhsa_kernel
"""

LDS_SIZE = 163840

def build_multi(debug=False):
    out = []
    names = [f'k{i}_kernel' for i in range(1, 5)]
    for n in names:
        out.append(f'; @launch kernel={n} grid=(256,1,1) block=(256,1,1) lds={LDS_SIZE}')
    out.append('.amdgcn_target "amdgcn-amd-amdhsa--gfx950"')
    out.append('.text')
    g = Gen(False, debug); g.kname = 'k1'; a = g.a
    g.stamp('start')
    g.prologue()
    g.stamp('prol')
    g.ln1_issue()
    Lc = a.label('Lk1c')
    a('s_mov_b32 s60, 0')
    a('s_cmp_lt_u32 s2, 160'); a(f's_cbranch_scc1 {Lc}')
    g.prep_issue()
    a(f'{Lc}:')
    g.ln1_compute_multi()
    g.stamp('ln1')
    g.prep_compute()
    g.stamp_flush(0)
    g.end()
    out.append(kernel_header(names[0])); out += a.finalize()
    g = Gen(False, debug); g.kname = 'k2'; a = g.a
    g.stamp('start')
    g.prologue()
    a('s_cmp_ge_u32 s2, 160'); a('s_cbranch_scc1 L_end_k2')
    n = g.kgen_issue()
    g.p2_consts()
    g.stamp('consts')
    g.kgen(0)
    g.stamp('kgen')
    if debug:
        g.dump_kc()
    g.conv_load_ux()
    g.stamp('ux')
    g.conv_main()
    g.stamp('main')
    g.conv_epilogue()
    g.stamp_flush(1)
    g.end()
    out.append(kernel_header(names[1])); out += a.finalize()
    g = Gen(False, debug); g.kname = 'k3'; a = g.a
    g.stamp('start')
    g.prologue()
    g.p3_ids()
    g.p3_w1_dma()
    a('s_waitcnt vmcnt(10)')
    g.p3_h_loads()
    g.p3_s_load()
    g.stamp('issued')
    a('s_waitcnt vmcnt(47)')
    a('s_barrier')
    g.stamp('w1')
    state = {'later': 7}
    def hook(kap):
        if kap == 2:
            state['later'] += g.p3_b1_load()
    g.p3_hook = hook
    g.p3_main(lambda kap: (40 - 2 * (kap + 1)) + state['later'])
    g.stamp('main')
    g.p3_epilogue()
    g.stamp_flush(2)
    g.end()
    out.append(kernel_header(names[2])); out += a.finalize()
    g = Gen(False, debug); g.kname = 'k4'; a = g.a
    g.stamp('start')
    g.prologue()
    g.p4_ids()
    g.p4_w2_loads(0, 50)
    a('s_waitcnt vmcnt(0)')
    g.p4_w2_loads(50, 70)
    g.p4_h_setup()
    for kk in range(9): g.p4_h_load(kk)
    g.stamp('issued')
    g.p4_main()
    g.stamp('main')
    g.p4_epilogue()
    g.stamp_flush(3)
    g.end()
    out.append(kernel_header(names[3])); out += a.finalize()
    out.append('.section .rodata,"a"')
    for n in names: out.append(kernel_desc(n))
    return '\n'.join(out) + '\n'

def build_fused(debug=False):
    out = []
    kn = NAME + '_kernel'
    out.append(f'; @launch grid=(256,1,1) block=(256,1,1) lds={LDS_SIZE}')
    out.append('.amdgcn_target "amdgcn-amd-amdhsa--gfx950"')
    out.append('.text')
    g = Gen(True, debug); g.kname = 'f'; a = g.a
    if g.timing:
        for i in range(16): a(f's_mov_b32 s{86+i}, 0')
    g.stamp('start')
    g.prologue()
    g.sync_setup()
    g.ln1_issue()
    Laux = a.label('Laux'); Lp3 = a.label('Lp3')
    a('s_mov_b32 s60, 0')
    a('s_cmp_lt_u32 s2, 160'); a(f's_cbranch_scc0 {Laux}')
    g.kgen_issue()
    g.p2_consts()
    g.ln1_compute(6)
    g.stamp('lnst')
    g.signal(1)
    g.stamp('ln1')
    g.kgen(0)
    g.stamp('kgen')
    g.wait_flags(1, 'all')
    g.stamp('B1')
    g.conv_load_ux()
    g.stamp('ux')
    g.conv_main()
    g.stamp('conv')
    g.conv_epilogue()
    g.stamp('cep2')
    g.signal(2)
    a(f's_branch {Lp3}')
    a(f'{Laux}:')
    g.prep_issue()
    g.ln1_compute(0)
    g.signal(1)
    g.prep_compute()
    g.signal(2)
    a(f'{Lp3}:')
    g.stamp('P2end')
    g.p3_ids()
    g.wait_flags(2, 'all')
    g.stamp('B2')
    g.p3_w1_dma()
    a('s_waitcnt vmcnt(10)')
    g.p3_h_loads()
    g.p3_s_load()
    g.stamp('p3iss')
    a('s_waitcnt vmcnt(47)')
    a('s_barrier')
    g.stamp('p3w1')
    state = {'later': 7}
    def hook(kap):
        if kap == 2:
            state['later'] += g.p3_b1_load()
    g.p3_hook = hook
    g.p3_main(lambda kap: (40 - 2 * (kap + 1)) + state['later'])
    g.stamp('p3main')
    g.p3_epilogue()
    g.stamp('p3ep')
    g.signal(3)
    g.stamp('P3end')
    g.p4_ids()
    a('s_lshr_b32 s82, s72, 1')
    g.p4_w2_loads(0, 50)
    a('s_waitcnt vmcnt(0)')
    g.p4_w2_loads(50, 70)
    g.stamp('p4w2')
    g.wait_flags(3, 'row')
    g.stamp('B3')
    g.p4_h_setup()
    for kk in range(9): g.p4_h_load(kk)
    g.p4_main()
    g.stamp('p4main')
    g.p4_epilogue()
    g.stamp_flush(0)
    g.end()
    out.append(kernel_header(kn)); out += a.finalize()
    out.append('.section .rodata,"a"')
    out.append(kernel_desc(kn))
    return '\n'.join(out) + '\n'

if __name__ == '__main__':
    mode = sys.argv[1]; dst = sys.argv[2]
    debug = 'debug' in sys.argv[3:]
    TIMING = 'timing' in sys.argv[3:]
    for x in sys.argv[3:]:
        if x.startswith('set='): STAMPSET = set(x[4:].split(','))
    if mode == 'multi': s = build_multi(debug)
    if mode == 'fused': s = build_fused(debug)
    open(dst, 'w').write(s)
    print('wrote', dst, len(s), 'bytes')
```

```python
import sys
sys.path.insert(0, 'work')
import gen, gen2
from gen import sr, vr, ar, f2u, sWAVE, SRD_A, SRD_WS, SRD_B, SRD_C, SRD_D
from gen import P_X, P_LA, P_AI, P_CR, P_CI, P_LDT, P_DSK, P_W1, P_B1, P_W2, P_B2, P_OUT, P_DBG, P_WS
from gen import kernel_header, kernel_desc, NAME
from gen2 import G2, BLK, HF, W1F, W2F, SP, HH, EPX, LDS_SIZE, NK2

BFL1 = 0x2001000
BFL2 = 0x2003000
PFL  = 0x2005000
RFL  = 0x2008000
UFL  = 0x200A000

class G3(G2):
    S2 = False
    def code_prefetch(self):
        a = self.a
        L = a.label('Lcp')
        a('s_getpc_b64 s[46:47]')
        a(f'{L}_pc:')
        a(f's_sub_u32 s46, s46, {L}_pc-{NAME}_kernel')
        a('s_subb_u32 s47, s47, 0')
        a('s_lshr_b32 s5, s2, 3')
        a('s_lshl_b32 s5, s5, 2')
        a(f's_add_u32 s5, s5, s{sWAVE}')
        a('s_min_u32 s5, s5, (L_end_f-%s_kernel)/1024-1' % NAME)
        a('s_lshl_b32 s5, s5, 10')
        a('v_lshlrev_b32 v97, 4, v2')
        a('v_add_u32 v97, s5, v97')
        a('global_load_dwordx4 v[232:235], v97, s[46:47]')

    def flag_signal(self, base, drain=True):
        a = self.a
        L = a.label('Lsig')
        if drain: a('s_waitcnt vmcnt(0) lgkmcnt(0)')
        else: a('s_waitcnt lgkmcnt(0)')
        a('s_barrier')
        a(f's_cmp_eq_u32 s{sWAVE}, 0')
        a(f's_cbranch_scc0 {L}')
        a('v_lshlrev_b32 v5, 10, v2')
        a('s_lshl_b32 s5, s2, 2')
        a(f's_add_u32 s5, s5, {base}')
        a('v_mov_b32 v4, s83')
        a('s_mov_b64 exec, 0xff')
        a(f'buffer_store_dword v4, v5, {sr(SRD_WS)}, s5 offen sc1')
        a('s_mov_b64 exec, -1')
        a(f'{L}:')

    def flag_poll(self, base, lanes=None, publish_epoch=False):
        a = self.a
        Lp = a.label('Lpoll'); Ld = a.label('Lpolld'); Lx = a.label('Lpollx')
        a('v_lshlrev_b32 v4, 4, v2')
        a('s_and_b32 s5, s2, 7')
        a('s_lshl_b32 s5, s5, 10')
        a(f's_add_u32 s5, s5, {base}')
        a('s_mov_b32 s6, 0')
        if lanes:
            lo, hi = lanes
            m = ((1 << hi) - 1) ^ ((1 << lo) - 1)
            a(f's_mov_b32 s62, {m & 0xffffffff:#x}'); a(f's_mov_b32 s63, {m >> 32:#x}')
        a(f'{Lp}:')
        a(f'buffer_load_dwordx4 v[8:11], v4, {sr(SRD_WS)}, s5 offen sc1')
        a('s_waitcnt vmcnt(0)')
        a('v_xor_b32 v8, s83, v8'); a('v_xor_b32 v9, s83, v9'); a('v_xor_b32 v10, s83, v10'); a('v_xor_b32 v11, s83, v11')
        a('v_or_b32 v8, v8, v9')
        a('v_or3_b32 v8, v8, v10, v11')
        a('v_cmp_ne_u32 vcc, 0, v8')
        if lanes:
            a('s_and_b64 vcc, vcc, s[62:63]')
        a(f's_cbranch_vccz {Ld}')
        a('s_sleep 1')
        a('s_add_u32 s6, s6, 1')
        a('s_cmp_lt_u32 s6, 0x40000')
        a(f's_cbranch_scc1 {Lp}')
        a(f'{Ld}:')
        if publish_epoch:
            a('s_cmp_eq_u32 s2, 0')
            a(f's_cbranch_scc0 {Lx}')
            a('s_mov_b64 exec, 1')
            a('v_mov_b32 v4, s83')
            a(f'v_mov_b32 v5, {EPX}')
            a(f'buffer_store_dword v4, v5, {sr(SRD_WS)}, 0 offen sc1')
            a('s_mov_b64 exec, -1')
            a(f'{Lx}:')

    def flag_wait(self, base, lanes=None, publish_epoch=False, drain=False, mid=None):
        a = self.a
        Lo = a.label('Lpollo')
        if mid:
            a('s_waitcnt vmcnt(0)')
            mid()
        a(f's_cmp_eq_u32 s{sWAVE}, 0')
        a(f's_cbranch_scc0 {Lo}')
        self.flag_poll(base, lanes, publish_epoch)
        a(f'{Lo}:')
        if drain: a('s_waitcnt vmcnt(0)')
        a('s_barrier')

    def row_flag_store(self):
        a = self.a
        a('s_lshl_b32 s5, s66, 7')
        a('s_lshl_b32 s6, s67, 2')
        a('s_add_u32 s5, s5, s6')
        a(f's_add_u32 s5, s5, {RFL}')
        a('s_mov_b64 exec, 1')
        a('v_mov_b32 v4, s83')
        a('v_mov_b32 v5, 0')
        a(f'buffer_store_dword v4, v5, {sr(SRD_WS)}, s5 offen sc1')
        a('s_mov_b64 exec, -1')

    def row_poll(self):
        a = self.a
        Lp = a.label('Lpoll'); Ld = a.label('Lpolld')
        a('v_and_b32 v4, 15, v2')
        a('v_lshlrev_b32 v4, 2, v4')
        a('s_lshr_b32 s5, s72, 1')
        a('s_lshl_b32 s5, s5, 7')
        a(f's_add_u32 s5, s5, {RFL}')
        a('s_mov_b32 s6, 0')
        a(f'{Lp}:')
        a(f'buffer_load_dword v5, v4, {sr(SRD_WS)}, s5 offen sc1')
        a('s_waitcnt vmcnt(0)')
        a('v_cmp_ne_u32 vcc, s83, v5')
        a(f's_cbranch_vccz {Ld}')
        a('s_sleep 1')
        a('s_add_u32 s6, s6, 1')
        a('s_cmp_lt_u32 s6, 0x40000')
        a(f's_cbranch_scc1 {Lp}')
        a(f'{Ld}:')


    TILE = 20992
    def ln1x_issue(self):
        a = self.a
        self.srd(SRD_A, P_X, 2048 * 1280)
        a('v_lshrrev_b32 v3, 5, v0')
        a('v_and_b32 v4, 31, v0')
        a('v_mul_u32_u24 v5, 0x500, v3')
        a('v_lshl_add_u32 v5, v4, 3, v5')
        a('s_mov_b32 s82, s2')
        a('s_mov_b32 s81, 1')
        a('s_mul_i32 s3, s82, 10240')
        for k, R in enumerate((8,)):
            L = None
            if k == 2:
                L = a.label('Lln'); a('s_cmp_lt_u32 s81, 3'); a(f's_cbranch_scc1 {L}')
            for q in range(5):
                a(f'buffer_load_dwordx2 {vr(R+2*q,2)}, v5, {sr(SRD_A)}, s3 offen offset:{256*q}')
            if k < 2: a(f's_add_u32 s3, s3, {96*10240}')
            if L: a(f'{L}:')

    def ln1x_compute(self, nlater, after_arrival=None):
        a = self.a
        F = 20
        a('v_mul_u32_u24 v6, 2624, v3')
        a('v_lshl_add_u32 v6, v4, 4, v6')
        a('s_mov_b32 s80, 0')
        a(f's_waitcnt vmcnt({nlater})')
        self.stamp('xarr')
        if after_arrival: after_arrival()
        Lp = a.label('Llnl')
        a(f'{Lp}:')
        for k in range(10):
            a(f'v_lshlrev_b32 v{F+2*k}, 16, v{8+k}')
            a(f'v_and_b32 v{F+2*k+1}, 0xffff0000, v{8+k}')
        a(f'v_pk_add_f32 v[40:41], {vr(F,2)}, {vr(F+2,2)}')
        a(f'v_pk_add_f32 v[42:43], {vr(F+4,2)}, {vr(F+6,2)}')
        for k in range(4, 10, 2):
            a(f'v_pk_add_f32 v[40:41], v[40:41], {vr(F+2*k,2)}')
            a(f'v_pk_add_f32 v[42:43], v[42:43], {vr(F+2*k+2,2)}')
        a('v_pk_add_f32 v[40:41], v[40:41], v[42:43]')
        a('v_add_f32 v40, v40, v41')
        self.rowsum32(40, 41)
        a(f'v_mul_f32 v40, {f2u(1.0/640):#x}, v40')
        a('v_mov_b32 v41, v40')
        D = 48
        for k in range(10):
            a(f'v_pk_add_f32 {vr(D+2*k,2)}, {vr(F+2*k,2)}, v[40:41] neg_lo:[0,1] neg_hi:[0,1]')
        a(f'v_pk_mul_f32 v[42:43], {vr(D,2)}, {vr(D,2)}')
        a(f'v_pk_mul_f32 v[44:45], {vr(D+2,2)}, {vr(D+2,2)}')
        for k in range(2, 10, 2):
            a(f'v_pk_fma_f32 v[42:43], {vr(D+2*k,2)}, {vr(D+2*k,2)}, v[42:43]')
            a(f'v_pk_fma_f32 v[44:45], {vr(D+2*k+2,2)}, {vr(D+2*k+2,2)}, v[44:45]')
        a('v_pk_add_f32 v[42:43], v[42:43], v[44:45]')
        a('v_add_f32 v42, v42, v43')
        self.rowsum32(42, 43)
        a(f'v_mul_f32 v42, {f2u(1.0/640):#x}, v42')
        a('v_cvt_pk_bf16_f32 v42, v42, v40')
        a('v_and_b32 v40, 0xffff0000, v42')
        a('v_lshlrev_b32 v42, 16, v42')
        a('v_mov_b32 v41, v40')
        a(f'v_add_f32 v42, {f2u(1e-5):#x}, v42')
        self.bf16r(42, 42)
        a('v_sqrt_f32 v42, v42')
        self.bf16r(42, 42)
        a('v_rcp_f32 v42, v42')
        a('v_mov_b32 v43, v42')
        U = 48
        for k in range(10):
            a(f'v_pk_add_f32 {vr(U+2*k,2)}, {vr(F+2*k,2)}, v[40:41] neg_lo:[0,1] neg_hi:[0,1]')
        for k in range(10):
            a(f'v_cvt_pk_bf16_f32 v{68+k}, v{U+2*k}, v{U+2*k+1}')
        for k in range(10):
            a(f'v_lshlrev_b32 v{U+2*k}, 16, v{68+k}')
            a(f'v_and_b32 v{U+2*k+1}, 0xffff0000, v{68+k}')
        for k in range(10):
            a(f'v_pk_mul_f32 {vr(U+2*k,2)}, {vr(U+2*k,2)}, v[42:43]')
        for k in range(20):
            a(f'v_cvt_pk_bf16_f32 v{U+k}, v{U+k}, v{F+k}')
        for q in range(5):
            a(f'ds_write_b128 v6, {vr(U+4*q,4)} offset:{512*q}')
        a('v_bfe_u32 v7, v2, 2, 2')
        a('v_mul_u32_u24 v7, 2624, v7')
        a('v_lshrrev_b32 v6, 4, v2')
        a('v_lshl_add_u32 v7, v6, 5, v7')
        a('v_and_b32 v6, 3, v2')
        a('v_lshl_add_u32 v7, v6, 3, v7')
        a(f's_lshl_b32 s3, s{sWAVE}, 7')
        a('v_add_u32 v7, s3, v7')
        a('v_lshlrev_b32 v6, 4, v2')
        a(f's_lshl_b32 s3, s{sWAVE}, 10')
        a('v_add_u32 v6, s3, v6')
        a('s_mul_i32 s3, s82, 20480')
        a('s_mov_b32 s80, 0')
        a('s_waitcnt lgkmcnt(0)')
        self.stamp('lncomp')
        a('s_barrier')
        T = 68
        Lq = a.label('Llns')
        a(f'{Lq}:')
        for k in range(5):
            a(f'ds_read_b64_tr_b16 {vr(T+4*k,2)}, v7 offset:{512*k}')
            a(f'ds_read_b64_tr_b16 {vr(T+4*k+2,2)}, v7 offset:{512*k+4*2624}')
        a('s_mov_b32 s5, s3')
        for k in range(5):
            a(f's_waitcnt lgkmcnt({2*(4-k)})')
            a(f'buffer_store_dwordx4 {vr(T+4*k,4)}, v6, {sr(SRD_WS)}, s5 offen sc1')
            if k < 4: a('s_add_u32 s5, s5, 4096')

    def flags_overlap(self, loads, B, base, lanes=None, publish_epoch=False):
        a = self.a
        loads = list(loads)
        head, tail = loads[:len(loads) - B], loads[len(loads) - B:]
        for f in head: f()
        L1 = a.label('Lfo'); Lp = a.label('Lfp'); Lc = a.label('Lfc'); Ld = a.label('Lfd'); Lo = a.label('Lfe'); Lx = a.label('Lfx')
        def issue():
            a('v_lshlrev_b32 v4, 4, v2')
            a('s_and_b32 s6, s2, 7')
            a('s_lshl_b32 s6, s6, 10')
            a(f's_add_u32 s6, s6, {base}')
            a(f'buffer_load_dwordx4 v[8:11], v4, {sr(SRD_WS)}, s6 offen sc1')
        a(f's_cmp_eq_u32 s{sWAVE}, 0'); a(f's_cbranch_scc0 {L1}')
        issue()
        a(f'{L1}:')
        for f in tail: f()
        a(f's_cmp_eq_u32 s{sWAVE}, 0'); a(f's_cbranch_scc0 {Lo}')
        a('s_mov_b32 s7, 0')
        if lanes:
            lo, hi = lanes
            m = ((1 << hi) - 1) ^ ((1 << lo) - 1)
            a(f's_mov_b32 s62, {m & 0xffffffff:#x}'); a(f's_mov_b32 s63, {m >> 32:#x}')
        a(f's_waitcnt vmcnt({min(63, len(tail))})')
        a(f's_branch {Lc}')
        a(f'{Lp}:')
        a('s_sleep 1')
        issue()
        a('s_waitcnt vmcnt(0)')
        a(f'{Lc}:')
        a('v_xor_b32 v8, s83, v8'); a('v_xor_b32 v9, s83, v9'); a('v_xor_b32 v10, s83, v10'); a('v_xor_b32 v11, s83, v11')
        a('v_or_b32 v8, v8, v9')
        a('v_or3_b32 v8, v8, v10, v11')
        a('v_cmp_ne_u32 vcc, 0, v8')
        if lanes: a('s_and_b64 vcc, vcc, s[62:63]')
        a(f's_cbranch_vccz {Ld}')
        a('s_add_u32 s7, s7, 1')
        a('s_cmp_lt_u32 s7, 0x40000')
        a(f's_cbranch_scc1 {Lp}')
        a(f'{Ld}:')
        if publish_epoch:
            a('s_cmp_eq_u32 s2, 0')
            a(f's_cbranch_scc0 {Lx}')
            a('s_mov_b64 exec, 1')
            a('v_mov_b32 v4, s83')
            a(f'v_mov_b32 v5, {EPX}')
            a(f'buffer_store_dword v4, v5, {sr(SRD_WS)}, 0 offen sc1')
            a('s_mov_b64 exec, -1')
            a(f'{Lx}:')
        a(f'{Lo}:')
        a('s_waitcnt vmcnt(0) lgkmcnt(0)')
        a('s_barrier')

    def row_overlap(self, loads, B):
        a = self.a
        loads = list(loads)
        head, tail = loads[:len(loads) - B], loads[len(loads) - B:]
        for f in head: f()
        L1 = a.label('Lro'); Lp = a.label('Lrp'); Lc = a.label('Lrc'); Ld = a.label('Lrd'); Lo = a.label('Lre')
        def issue():
            a('v_and_b32 v4, 15, v2')
            a('v_lshlrev_b32 v4, 2, v4')
            a('s_lshr_b32 s6, s72, 1')
            a('s_lshl_b32 s6, s6, 7')
            a(f's_add_u32 s6, s6, {RFL}')
            a(f'buffer_load_dword v5, v4, {sr(SRD_WS)}, s6 offen sc1')
        a(f's_cmp_eq_u32 s{sWAVE}, 0'); a(f's_cbranch_scc0 {L1}')
        issue()
        a(f'{L1}:')
        for f in tail: f()
        a(f's_cmp_eq_u32 s{sWAVE}, 0'); a(f's_cbranch_scc0 {Lo}')
        a('s_mov_b32 s7, 0')
        a(f's_waitcnt vmcnt({min(63, len(tail))})')
        a(f's_branch {Lc}')
        a(f'{Lp}:')
        a('s_sleep 1')
        issue()
        a('s_waitcnt vmcnt(0)')
        a(f'{Lc}:')
        a('v_cmp_ne_u32 vcc, s83, v5')
        a(f's_cbranch_vccz {Ld}')
        a('s_add_u32 s7, s7, 1')
        a('s_cmp_lt_u32 s7, 0x40000')
        a(f's_cbranch_scc1 {Lp}')
        a(f'{Ld}:')
        a(f'{Lo}:')
        a('s_barrier')

    LDSP = 24576
    def prep_issue3(self):
        a = self.a
        Lw2 = a.label('Lpw2'); Ldone = a.label('Lpdone')
        a('s_sub_u32 s60, s2, 160')
        a('s_cmp_lt_u32 s60, 48')
        a(f's_cbranch_scc0 {Lw2}')
        self.srd(SRD_B, P_W1, 640 * 3456)
        a('v_mul_u32_u24 v94, 4682, v2')
        a('v_lshrrev_b32 v94, 16, v94')
        a('v_mul_u32_u24 v95, 14, v94')
        a('v_sub_u32 v95, v2, v95')
        a('v_mul_u32_u24 v94, 3456, v94')
        a('v_lshl_add_u32 v94, v95, 4, v94')
        a('s_mul_i32 s64, s60, 21846')
        a('s_lshr_b32 s64, s64, 16')
        a('s_mul_i32 s65, s64, 3')
        a('s_sub_u32 s65, s60, s65')
        a('s_mul_i32 s62, s65, 7')
        a(f's_lshl_b32 s61, s{sWAVE}, 1')
        a('s_add_u32 s62, s62, s61')
        a('s_mul_i32 s63, s65, 7'); a('s_add_u32 s63, s63, 7'); a('s_min_u32 s63, s63, 20')
        a('s_sub_u32 s63, s63, s62'); a('s_min_i32 s63, s63, 2')
        a(f's_mul_i32 s6, s62, {32*3456}')
        a('s_mul_i32 s7, s64, 216')
        a('s_add_u32 s6, s6, s7')
        a(f's_mul_i32 s61, s61, {32*224}')
        a(f's_add_u32 s61, s61, {self.LDSP}')
        a('s_mov_b32 m0, s61')
        a('s_mov_b32 exec_hi, 0x00ffffff')
        Lsk = a.label('Lpk')
        a('s_cmp_lt_i32 s63, 1'); a(f's_cbranch_scc1 {Lsk}')
        for i in range(16):
            if i == 8:
                a('s_cmp_lt_i32 s63, 2'); a(f's_cbranch_scc1 {Lsk}')
            a(f'buffer_load_dwordx4 v94, {sr(SRD_B)}, s6 offen lds')
            if i < 15:
                a('s_add_u32 m0, m0, 896')
                a(f's_add_u32 s6, s6, {4*3456}')
        a(f'{Lsk}:')
        a('s_mov_b64 exec, -1')
        a(f's_branch {Ldone}')
        a(f'{Lw2}:')
        a('s_cmp_lt_u32 s60, 83')
        a(f's_cbranch_scc0 {Ldone}')
        a('s_sub_u32 s5, s60, 48')
        a('s_lshl_b32 s5, s5, 2')
        a(f's_add_u32 s5, s5, s{sWAVE}')
        a('s_mul_i32 s61, s5, 4682')
        a('s_lshr_b32 s61, s61, 16')
        a('s_mul_i32 s6, s61, 14')
        a('s_sub_u32 s62, s5, s6')
        self.srd(SRD_B, P_W2, 1728 * 1280)
        a('v_lshrrev_b32 v94, 3, v2')
        a('v_mul_u32_u24 v94, 1280, v94')
        a('v_and_b32 v95, 7, v2')
        a('v_lshl_add_u32 v94, v95, 4, v94')
        a(f's_lshl_b32 s63, s{sWAVE}, 14')
        a(f's_add_u32 s63, s63, {self.LDSP}')
        a('s_mov_b32 m0, s63')
        for kk in range(4):
            a('s_lshl_b32 s64, s62, 2')
            a(f's_add_u32 s64, s64, {kk}')
            a('s_mul_i32 s65, s64, 9363')
            a('s_lshr_b32 s65, s65, 16')
            a('s_mul_i32 s66, s65, 7')
            a('s_sub_u32 s66, s64, s66')
            for half in range(2):
                a('s_lshl_b32 s67, s65, 1')
                a('s_lshl_b32 s68, s66, 1')
                a(f's_add_u32 s68, s68, {half}')
                a('s_sub_u32 s69, s68, 8')
                a('s_add_u32 s70, s67, 1')
                a('s_cmp_gt_u32 s66, 3')
                a('s_cselect_b32 s67, s70, s67')
                a('s_cselect_b32 s68, s69, s68')
                a('s_lshl_b32 s69, s65, 1')
                a(f's_add_u32 s69, s69, {half}')
                a('s_cmp_eq_u32 s66, 3')
                a('s_cselect_b32 s67, s69, s67')
                a('s_cselect_b32 s68, 6, s68')
                a('s_mul_i32 s67, s67, 108')
                a('s_lshl_b32 s68, s68, 4')
                a('s_add_u32 s67, s67, s68')
                a('s_mul_i32 s67, s67, 1280')
                a('s_lshl_b32 s68, s61, 7')
                a('s_add_u32 s67, s67, s68')
                for i in range(2):
                    a(f'buffer_load_dwordx4 v94, {sr(SRD_B)}, s67 offen lds')
                    a('s_add_u32 m0, m0, 1024')
                    if i == 0: a(f's_add_u32 s67, s67, {8*1280}')
        a(f'{Ldone}:')

    def prep_compute3(self):
        a = self.a
        Lw2 = a.label('Lqw2'); Ldone = a.label('Lqdone')
        a('v_lshrrev_b32 v90, 4, v2')
        a('v_bfe_u32 v91, v2, 2, 2')
        a('v_and_b32 v92, 3, v2')
        a('v_lshlrev_b32 v93, 4, v2')
        a('s_cmp_lt_u32 s60, 48')
        a(f's_cbranch_scc0 {Lw2}')
        a('v_lshl_add_u32 v94, v90, 3, v91')
        a('v_mul_u32_u24 v94, 224, v94')
        a('v_lshl_add_u32 v94, v92, 3, v94')
        a('v_add_u32 v94, s61, v94')
        a('s_mov_b32 s70, 0x3f803f80')
        a('v_and_b32 v95, 15, v2')
        a('v_cmp_lt_u32 s[68:69], 11, v95')
        a('v_cmp_eq_u32 vcc, 12, v95')
        a('v_mov_b32 v96, 0'); a('v_mov_b32 v97, s70')
        a('v_cndmask_b32 v96, v96, v97, vcc')
        a('s_mul_i32 s66, s64, 143360')
        a('s_mul_i32 s67, s62, 7168')
        a('s_add_u32 s66, s66, s67')
        a(f's_add_u32 s66, s66, {W1F}')
        for t in range(7): a(f'v_mov_b32 v{120+t}, 0')
        Lk3 = a.label('Lk3')
        for kk in range(2):
            a(f's_cmp_lt_i32 s63, {kk+1}'); a(f's_cbranch_scc1 {Lk3}')
            for t in range(7):
                R = 128 + 4 * t
                a(f'ds_read_b64_tr_b16 {vr(R,2)}, v94 offset:{kk*32*224+t*32}')
                a(f'ds_read_b64_tr_b16 {vr(R+2,2)}, v94 offset:{kk*32*224+t*32+4*224}')
            a(f's_add_u32 s67, s66, {kk*7168}')
            for t in range(7):
                R = 128 + 4 * t
                a(f's_waitcnt lgkmcnt({2*(6-t)})')
                if t == 6:
                    for j in range(4):
                        a(f'v_cndmask_b32 v{R+j}, v{R+j}, v96, s[68:69]')
                if t == 4: a('s_add_u32 s67, s67, 4096')
                a(f'buffer_store_dwordx4 {vr(R,4)}, v93, {sr(SRD_WS)}, s67 offen offset:{(t%4)*1024} sc1')
                for j in range(4):
                    a(f'v_dot2_f32_bf16 v{120+t}, v{R+j}, s70, v{120+t}')
        a(f'{Lk3}:')
        for t in range(7):
            S = 120 + t
            a(f'v_mov_b32 v98, v{S}')
            a(f'v_permlane16_swap_b32 v{S}, v98')
            a(f'v_add_f32 v{S}, v{S}, v98')
            a(f'v_mov_b32 v98, v{S}')
            a(f'v_permlane32_swap_b32 v{S}, v98')
            a(f'v_add_f32 v{S}, v{S}, v98')
        SB = self.LDSP + 8 * 32 * 224
        a('v_lshlrev_b32 v98, 2, v95')
        a(f's_mul_i32 s66, s{sWAVE}, 448')
        a(f's_add_u32 s66, s66, {SB}')
        a('v_add_u32 v97, s66, v98')
        for t in range(7):
            a(f'ds_write_b32 v97, v{120+t} offset:{64*t}')
        a('s_waitcnt lgkmcnt(0)')
        a('s_barrier')
        a('v_lshlrev_b32 v97, 2, v0')
        a(f'v_add_u32 v98, {SB}, v97')
        for w in range(4):
            a(f'ds_read_b32 v{120+w}, v98 offset:{448*w}')
        a('s_mul_i32 s66, s64, 448')
        a('s_mul_i32 s67, s65, 7168')
        a('s_add_u32 s66, s66, s67')
        a(f's_add_u32 s66, s66, {SP}')
        a('s_waitcnt lgkmcnt(0)')
        a('v_add_f32 v120, v120, v121'); a('v_add_f32 v122, v122, v123'); a('v_add_f32 v120, v120, v122')
        a('v_cmp_gt_u32 vcc, 112, v0')
        Ls = a.label('Lsp')
        a('s_and_saveexec_b64 s[68:69], vcc')
        a(f's_cbranch_execz {Ls}')
        a(f'buffer_store_dword v120, v97, {sr(SRD_WS)}, s66 offen sc1')
        a(f'{Ls}:')
        a('s_mov_b64 exec, s[68:69]')
        a(f's_branch {Ldone}')
        a(f'{Lw2}:')
        a('s_cmp_lt_u32 s60, 83')
        a(f's_cbranch_scc0 {Ldone}')
        a('v_lshl_add_u32 v94, v90, 2, v91')
        a('v_lshlrev_b32 v94, 7, v94')
        a('v_lshl_add_u32 v94, v92, 3, v94')
        a('v_add_u32 v94, s63, v94')
        a('v_cmp_eq_u32 s[68:69], 3, v90')
        for kk in range(4):
            a('s_lshl_b32 s64, s62, 2')
            a(f's_add_u32 s64, s64, {kk}')
            a('s_mul_i32 s65, s64, 9363')
            a('s_lshr_b32 s65, s65, 16')
            a('s_mul_i32 s66, s65, 7')
            a('s_sub_u32 s66, s64, s66')
            RB = 100 + 16 * (kk & 1)
            for tt in range(4):
                R = RB + 4 * tt
                a(f'ds_read_b64_tr_b16 {vr(R,2)}, v94 offset:{kk*4096+tt*32}')
                a(f'ds_read_b64_tr_b16 {vr(R+2,2)}, v94 offset:{kk*4096+tt*32+2048}')
            Lnz = a.label('Lnz')
            a('s_waitcnt lgkmcnt(0)')
            a('s_cmp_eq_u32 s66, 3')
            a(f's_cbranch_scc0 {Lnz}')
            for tt in range(4):
                for j in range(4):
                    a(f'v_cndmask_b32 v{RB+4*tt+j}, v{RB+4*tt+j}, 0, s[68:69]')
            a(f'{Lnz}:')
            for tt in range(4):
                a('s_lshl_b32 s65, s61, 2')
                a(f's_add_u32 s65, s65, {tt}')
                a('s_mul_i32 s67, s65, 13108')
                a('s_lshr_b32 s67, s67, 16')
                a('s_mul_i32 s70, s67, 5')
                a('s_sub_u32 s70, s65, s70')
                a(f's_mul_i32 s67, s67, {NK2}')
                a('s_add_u32 s67, s67, s64')
                a('s_mul_i32 s67, s67, 5')
                a('s_add_u32 s67, s67, s70')
                a('s_lshl_b32 s67, s67, 10')
                a(f's_add_u32 s67, s67, {W2F}')
                a(f'buffer_store_dwordx4 {vr(RB+4*tt,4)}, v93, {sr(SRD_WS)}, s67 offen sc1')
        a(f'{Ldone}:')

    def w1_lds(self, idx):
        WS = self.WSTRIDE
        if idx < 44:
            return (idx // 11) * WS + 18176 + (idx % 11) * 1024
        if idx < 49:
            return 157952 + (idx - 44) * 1024
        j = idx - 49
        if j < 68:
            return (j // 17) * WS + (j % 17) * 1024
        return self.UXB + (j - 68) * 1024

    def pref_setup(self):
        a = self.a
        a('s_mul_i32 s76, s67, 143360')
        a(f's_add_u32 s76, s76, {W1F}')
        a(f's_mul_i32 s75, s{sWAVE}, {self.WSTRIDE}')
        a('v_lshlrev_b32 v3, 4, v2')
        a(f's_mul_i32 s77, s{sWAVE}, {11*1024}')
        a('s_add_u32 s77, s77, s76')
        a(f's_mul_i32 s78, s{sWAVE}, {17*1024}')
        a('s_add_u32 s78, s78, s76')
        a(f's_add_u32 s78, s78, {49*1024}')
        a(f's_lshl_b32 s82, s{sWAVE}, 10')

    def dma(self, m0expr, soff):
        a = self.a
        for l in m0expr: a(l)
        for l in soff: a(l)
        a(f'buffer_load_dwordx4 v3, {sr(SRD_WS)}, s5 offen sc1 lds')

    def w1A(self, j):
        self.dma([f's_add_u32 m0, s75, {18176 + 1024*j}'], [f's_add_u32 s5, s77, {1024*j}'])
    def w1T(self):
        self.dma([f's_add_u32 m0, s82, 157952'], [f's_add_u32 s5, s76, s82', f's_add_u32 s5, s5, {44*1024}'])
    def w1T2(self):
        self.dma([f's_mov_b32 m0, {157952 + 4096}'], [f's_add_u32 s5, s76, {48*1024}'])
    def w1B(self, i):
        self.dma([f's_add_u32 m0, s75, {1024*i}'], [f's_add_u32 s5, s78, {1024*i}'])
    def w1C(self, i):
        a = self.a
        if i < 5:
            self.dma([f's_add_u32 m0, s82, {self.UXB + 4096*i}'], [f's_add_u32 s5, s76, s82', f's_add_u32 s5, s5, {(117+4*i)*1024}'])
        else:
            L = a.label('Lw1c')
            a(f's_cmp_eq_u32 s{sWAVE}, 3'); a(f's_cbranch_scc1 {L}')
            self.dma([f's_add_u32 m0, s82, {self.UXB + 4096*i}'], [f's_add_u32 s5, s76, s82', f's_add_u32 s5, s5, {(117+4*i)*1024}'])
            a(f'{L}:')

    def list_conv(self):
        L = [lambda j=j: self.w1A(j) for j in range(11)] + [self.w1T, self.w1T2]
        W = [lambda i=i: self.w2_load(i) for i in range(self.NW2_CONV)]
        out = []
        while L or W:
            if L: out.append(L.pop(0))
            for _ in range(3):
                if W: out.append(W.pop(0))
        return out

    def list_e2(self):
        return [lambda i=i: self.w1B(i) for i in range(17)] + [lambda i=i: self.w1C(i) for i in range(6)]

    def l2_warm(self):
        a = self.a
        a('s_sub_u32 s5, s2, 160'); a('s_lshr_b32 s5, s5, 3'); a('s_lshl_b32 s5, s5, 2'); a(f's_add_u32 s5, s5, s{sWAVE}')
        a('s_mul_i32 s6, s5, %d' % (24 * 1024))
        a('s_and_b32 s7, s2, 1'); a(f's_mul_i32 s7, s7, {8*143360}')
        a('s_add_u32 s6, s6, s7'); a(f's_add_u32 s6, s6, {W1F}')
        a(f's_add_u32 s7, s7, {W1F + 8*143360 - 1024}')
        for i in range(24):
            a('s_min_u32 s62, s6, s7')
            a(f'buffer_load_dwordx4 {vr(112+4*(i%16),4)}, v3, {sr(SRD_WS)}, s62 offen sc1')
            a('s_add_u32 s6, s6, 1024')
        a('s_mul_i32 s6, s5, %d' % (47 * 1024))
        a(f's_add_u32 s6, s6, {W2F}')
        a(f's_mov_b32 s7, {W2F + 2240*1024 - 1024}')
        for i in range(47):
            a('s_min_u32 s62, s6, s7')
            a(f'buffer_load_dwordx4 {vr(112+4*(i%16),4)}, v3, {sr(SRD_WS)}, s62 offen sc1')
            a('s_add_u32 s6, s6, 1024')

    def flag_store_only(self, base):
        a = self.a
        L = a.label('Lsig')
        a(f's_cmp_eq_u32 s{sWAVE}, 0')
        a(f's_cbranch_scc0 {L}')
        a('v_lshlrev_b32 v5, 10, v2')
        a('s_lshl_b32 s5, s2, 2')
        a(f's_add_u32 s5, s5, {base}')
        a('v_mov_b32 v4, s83')
        a('s_mov_b64 exec, 0xff')
        a(f'buffer_store_dword v4, v5, {sr(SRD_WS)}, s5 offen sc1')
        a('s_mov_b64 exec, -1')
        a(f'{L}:')

    SBL = 121088 + 24576
    def sb_stage(self):
        a = self.a
        L = a.label('Lsb')
        a(f's_cmp_eq_u32 s{sWAVE}, 1'); a(f's_cbranch_scc0 {L}')
        a('s_mov_b32 exec_hi, 0x00ffffff')
        a('v_lshlrev_b32 v94, 3, v2')
        a('s_mul_i32 s80, s67, 448')
        a(f's_add_u32 s80, s80, {SP}')
        for part in range(3):
            a(f'buffer_load_dwordx2 {vr(64+2*part,2)}, v94, {sr(SRD_WS)}, s80 offen sc1')
            if part < 2: a('s_add_u32 s80, s80, 7168')
        self.srd(SRD_B, P_B1, 1728 * 2)
        a('s_mul_i32 s81, s67, 216')
        a('v_lshlrev_b32 v95, 2, v2')
        a(f'buffer_load_dword v70, v95, {sr(SRD_B)}, s81 offen')
        a(f'v_add_u32 v94, {self.SBL}, v94')
        a('s_waitcnt vmcnt(0)')
        a('v_pk_add_f32 v[64:65], v[64:65], v[66:67]')
        a('v_pk_add_f32 v[64:65], v[64:65], v[68:69]')
        a('v_lshlrev_b32 v72, 16, v70')
        a('v_and_b32 v73, 0xffff0000, v70')
        a('ds_write_b64 v94, v[64:65]')
        a('ds_write_b64 v94, v[72:73] offset:448')
        a('s_waitcnt lgkmcnt(0)')
        a('s_mov_b64 exec, -1')
        a(f'{L}:')

    def pfl_issue(self):
        a = self.a
        a('v_lshlrev_b32 v7, 4, v2')
        a('s_and_b32 s5, s2, 7')
        a('s_lshl_b32 s5, s5, 10')
        a(f's_add_u32 s5, s5, {PFL}')
        a(f'buffer_load_dwordx4 v[8:11], v7, {sr(SRD_WS)}, s5 offen sc1')

    def pfl_check(self):
        a = self.a
        Lp = a.label('Lpf'); Lc = a.label('Lpfc'); Ld = a.label('Lpfd')
        m = ((1 << 61) - 1) ^ ((1 << 40) - 1)
        a(f's_mov_b32 s62, {m & 0xffffffff:#x}'); a(f's_mov_b32 s63, {m >> 32:#x}')
        a('s_mov_b32 s6, 0')
        a(f's_branch {Lc}')
        a(f'{Lp}:')
        a('s_sleep 2')
        self.pfl_issue()
        a(f'{Lc}:')
        a('s_waitcnt vmcnt(0)')
        a('v_xor_b32 v8, s83, v8'); a('v_xor_b32 v9, s83, v9'); a('v_xor_b32 v10, s83, v10'); a('v_xor_b32 v11, s83, v11')
        a('v_or_b32 v8, v8, v9')
        a('v_or3_b32 v8, v8, v10, v11')
        a('v_cmp_ne_u32 vcc, 0, v8')
        a('s_and_b64 vcc, vcc, s[62:63]')
        a(f's_cbranch_vccz {Ld}')
        a('s_add_u32 s6, s6, 1')
        a('s_cmp_lt_u32 s6, 0x40000')
        a(f's_cbranch_scc1 {Lp}')
        a(f'{Ld}:')

    CONV_RATE = 4
    CONV_FROM = 1
    UD = 108
    def xreg(self, i):
        return 228 + i if i < 28 else 140 + (i - 28)

    def conv_main(self, pref=None, pref_from=8):
        a = self.a
        P = self.PL
        ACC = 12
        bufA = [44, 164]; bufB = [76, 196]
        pref = list(pref or [])
        def reads(b):
            sel = b & 1
            lst = []
            for aa in range(8):
                off = 512 * (7 - aa) + 64 * (7 - b)
                lst.append(f'ds_read_b64 {vr(bufA[sel]+4*aa,2)}, v{self.VA} offset:{off}')
                lst.append(f'ds_read_b64 {vr(bufA[sel]+4*aa+2,2)}, v{self.VA} offset:{off+8}')
            for e in range(8):
                lst.append(f'ds_read_b128 {vr(bufB[sel]+4*e,4)}, v{self.VB+b} offset:{4096*e}')
            order = []
            for k in range(8):
                order += [lst[2*k], lst[2*k+1], lst[16+k]]
            return order
        for r in reads(0): a(r)
        a(f'v_xor_b32 v4, 16, v{self.VEU}')
        a(f'v_lshlrev_b32 v6, 16, v{P+5}')
        side_rd = []
        for t in range(8):
            side_rd.append(f'ds_read_b64 {vr(self.UD+4*t+2,2)}, v{self.VEU} offset:{4096*t}')
            side_rd.append(f'ds_read_b64 {vr(self.xreg(4*t+2),2)}, v4 offset:{4096*t}')
        side = []
        for t in range(8):
            U = self.UD + 4 * t
            X = [self.xreg(4 * t + j) for j in range(4)]
            side += [f'v_lshlrev_b32 v{U}, 16, v{U+2}', f'v_and_b32 v{U+1}, 0xffff0000, v{U+2}',
                     f'v_lshlrev_b32 v{U+2}, 16, v{U+3}', f'v_and_b32 v{U+3}, 0xffff0000, v{U+3}']
            side += [f'v_mul_f32 v{U+j}, v{U+j}, v6' for j in range(4)]
            side += [f'v_cvt_pk_bf16_f32 v{U+1}, v{U}, v{U+1}', f'v_cvt_pk_bf16_f32 v{U+3}, v{U+2}, v{U+3}',
                     f'v_lshlrev_b32 v{U}, 16, v{U+1}', f'v_and_b32 v{U+1}, 0xffff0000, v{U+1}',
                     f'v_lshlrev_b32 v{U+2}, 16, v{U+3}', f'v_and_b32 v{U+3}, 0xffff0000, v{U+3}']
            side += [f'v_lshlrev_b32 v{X[0]}, 16, v{X[2]}', f'v_and_b32 v{X[1]}, 0xffff0000, v{X[2]}',
                     f'v_lshlrev_b32 v{X[2]}, 16, v{X[3]}', f'v_and_b32 v{X[3]}, 0xffff0000, v{X[3]}']
        cnt = 0
        for b in range(8):
            sel = b & 1
            nxt = reads(b + 1) if b < 7 else []
            if b == 0: nxt = nxt + side_rd[:12]
            if b == 1: nxt = nxt + side_rd[12:]
            if b == pref_from and pref: self.pfl_check()
            a('s_waitcnt lgkmcnt(0)')
            n = 0
            for aa in range(8):
                for e in range(8 - aa):
                    t = aa + e
                    c = '0' if (b == 0 and aa == 0) else vr(ACC + 4 * t, 4)
                    a(f'v_mfma_f32_16x16x32_bf16 {vr(ACC+4*t,4)}, {vr(bufA[sel]+4*aa,4)}, {vr(bufB[sel]+4*e,4)}, {c}')
                    if n < len(nxt): a(nxt[n])
                    n += 1
                    if b >= 2 and side: a(side.pop(0))
                    if b >= pref_from:
                        cnt += 1
                        if cnt % self.CONV_RATE == 0 and pref: pref.pop(0)()
        assert not pref and not side

    def conv_epilogue(self, pref=None):
        a = self.a
        ACC = 12
        pref = list(pref or [])
        a('s_mov_b32 s70, 0x00003f80')
        a('s_mov_b32 s71, 0x3f800000')
        a('v_bfe_u32 v4, v2, 2, 2')
        a(f'v_mul_u32_u24 v4, {self.WSTRIDE}, v4')
        a('v_lshrrev_b32 v5, 4, v2')
        a('v_lshl_add_u32 v4, v5, 5, v4')
        a('v_and_b32 v6, 3, v2')
        a('v_lshl_add_u32 v4, v6, 3, v4')
        a(f's_lshl_b32 s5, s{sWAVE}, 10')
        a('v_add_u32 v4, s5, v4')
        a('v_mul_u32_u24 v5, 20480, v5')
        a('v_and_b32 v6, 15, v2')
        a('v_lshl_add_u32 v5, v6, 4, v5')
        a(f's_mul_i32 s62, s{sWAVE}, {8*81920}')
        a('s_lshr_b32 s6, s2, 3')
        a('s_lshl_b32 s6, s6, 10')
        a('s_add_u32 s62, s62, s6')
        a('s_bfe_u32 s6, s2, 0x20001')
        a('s_lshl_b32 s6, s6, 8')
        a('s_add_u32 s62, s62, s6')
        a('s_and_b32 s6, s2, 1')
        a('s_lshl_b32 s6, s6, 3')
        a('s_add_u32 s62, s62, s6')
        a(f's_add_u32 s62, s62, {HF}')
        for tp in range(4):
            P = [(2 * tp + tt, h) for tt in range(2) for h in range(2)]
            Y = {p: ACC + 4 * p[0] + 2 * p[1] for p in P}
            T = {p: 44 + i for i, p in enumerate(P)}
            U = {p: self.UD + 4 * p[0] + 2 * p[1] for p in P}
            X = {p: self.xreg(4 * p[0] + 2 * p[1]) for p in P}
            O = {p: 80 + 2 * p[0] + p[1] for p in P}
            def step(f):
                for p in P: a(f(p))
            step(lambda p: f'v_cvt_pk_bf16_f32 v{T[p]}, v{Y[p]}, v{Y[p]+1}')
            step(lambda p: f'v_dot2_f32_bf16 v{Y[p]}, v{T[p]}, s70, v{U[p]}')
            step(lambda p: f'v_dot2_f32_bf16 v{Y[p]+1}, v{T[p]}, s71, v{U[p]+1}')
            step(lambda p: f'v_cvt_pk_bf16_f32 v{T[p]}, v{Y[p]}, v{Y[p]+1}')
            step(lambda p: f'v_dot2_f32_bf16 v{Y[p]}, v{T[p]}, s70, v{X[p]}')
            step(lambda p: f'v_dot2_f32_bf16 v{Y[p]+1}, v{T[p]}, s71, v{X[p]+1}')
            step(lambda p: f'v_cvt_pk_bf16_f32 v{O[p]}, v{Y[p]}, v{Y[p]+1}')
            for tt in range(2):
                tq = 2 * tp + tt
                a(f'ds_write_b64 v{self.VHW}, {vr(80+2*tq,2)} offset:{512*tq}')
            for _ in range(self.CEP_PER):
                if pref: pref.pop(0)()
        self.stamp('cep1')
        a('s_waitcnt lgkmcnt(0)')
        a('s_barrier')
        for m in range(8):
            a(f'ds_read_b64_tr_b16 {vr(44+2*m,2)}, v4 offset:{128*m}')
        for m in range(8):
            a(f's_waitcnt lgkmcnt({7-m})')
            a(f'buffer_store_dwordx2 {vr(44+2*m,2)}, v5, {sr(SRD_WS)}, s62 offen sc1')
            if m < 7: a('s_add_u32 s62, s62, 81920')
    CEP_PER = 0

    def w1_dma_all(self):
        a = self.a
        a('v_lshlrev_b32 v3, 4, v2')
        a('s_mul_i32 s76, s67, 143360')
        a(f's_lshl_b32 s6, s{sWAVE}, 10')
        a('s_add_u32 s76, s76, s6')
        a(f's_add_u32 s76, s76, {W1F}')
        a('s_mov_b32 m0, s6')
        for i in range(35):
            a(f'buffer_load_dwordx4 v3, {sr(SRD_WS)}, s76 offen sc1 lds')
            if i < 34:
                a('s_add_u32 m0, m0, 4096')
                a('s_add_u32 s76, s76, 4096')
        a('v_lshrrev_b32 v94, 4, v2')
        a('v_lshlrev_b32 v94, 4, v94')
        a('s_mul_i32 s80, s67, 448')
        a(f's_add_u32 s80, s80, {SP}')
        for t in range(7):
            a(f'buffer_load_dwordx4 {vr(64+4*t,4)}, v94, {sr(SRD_WS)}, s80 offen offset:{64*t} sc1')

    def w2_load(self, idx):
        a = self.a
        off = idx * 1024
        a(f's_add_u32 s5, s79, {(off // 4096) * 4096}')
        a(f'buffer_load_dwordx4 {self.w2reg(idx)}, v3, {sr(SRD_WS)}, s5 offen offset:{off % 4096} sc1')


    def p3_epilogue(self):
        a = self.a
        ACC = 8
        a('v_lshrrev_b32 v5, 4, v2')
        a('v_lshlrev_b32 v6, 4, v5')
        a(f'v_add_u32 v6, {self.SBL}, v6')
        for t in range(7):
            a(f'ds_read_b128 {vr(64+4*t,4)}, v6 offset:{64*t}')
            a(f'ds_read_b128 {vr(124+4*t,4)}, v6 offset:{448+64*t}')
        a('v_and_b32 v4, 15, v2')
        a('v_cmp_eq_u32 s[62:63], 3, v5')
        a('v_lshrrev_b32 v6, 2, v4')
        a('v_cmp_eq_u32 s[64:65], v6, v5')
        a('v_and_b32 v6, 3, v4')
        a('v_cmp_eq_u32 s[68:69], 1, v6')
        a('v_cmp_eq_u32 s[70:71], 2, v6')
        a('v_cmp_eq_u32 vcc, 3, v6')
        for lt in range(2):
            S_ = 112 + 2 * lt; Q_ = 113 + 2 * lt
            acc = ACC + (6 * 2 + lt) * 4
            B = 96 + 4 * lt
            for j in range(4):
                a(f'v_accvgpr_read_b32 v{B+j}, a{self.GRAM+4*lt+j}')
            a(f'v_cndmask_b32 v{S_}, 0, v{acc}, s[62:63]')
            a(f'v_cndmask_b32 v{B}, v{B}, v{B+1}, s[68:69]')
            a(f'v_cndmask_b32 v{B}, v{B}, v{B+2}, s[70:71]')
            a(f'v_cndmask_b32 v{B}, v{B}, v{B+3}, vcc')
            a(f'v_cndmask_b32 v{Q_}, 0, v{B}, s[64:65]')
        for rnd in ('16', '32'):
            for k, v in enumerate((112, 113, 114, 115)):
                a(f'v_mov_b32 v{104+k}, v{v}')
            for k, v in enumerate((112, 113, 114, 115)):
                a(f'v_permlane{rnd}_swap_b32 v{v}, v{104+k}')
            for k, v in enumerate((112, 113, 114, 115)):
                a(f'v_add_f32 v{v}, v{v}, v{104+k}')
        def both(f):
            for lt in range(2): f(112 + 2 * lt, 113 + 2 * lt, lt)
        both(lambda s_, q_, lt: a(f'v_mul_f32 v{s_}, {f2u(1.0/640):#x}, v{s_}'))
        both(lambda s_, q_, lt: a(f'v_mul_f32 v{q_}, {f2u(1.0/640):#x}, v{q_}'))
        both(lambda s_, q_, lt: a(f'v_fma_f32 v{q_}, -v{s_}, v{s_}, v{q_}'))
        both(lambda s_, q_, lt: a(f'v_max_f32 v{q_}, 0, v{q_}'))
        both(lambda s_, q_, lt: a(f'v_cvt_pk_bf16_f32 v{q_}, v{q_}, v{s_}'))
        both(lambda s_, q_, lt: a(f'v_and_b32 v{s_}, 0xffff0000, v{q_}'))
        both(lambda s_, q_, lt: a(f'v_lshlrev_b32 v{q_}, 16, v{q_}'))
        both(lambda s_, q_, lt: a(f'v_add_f32 v{q_}, {f2u(1e-5):#x}, v{q_}'))
        both(lambda s_, q_, lt: self.bf16r(q_, q_))
        both(lambda s_, q_, lt: a(f'v_sqrt_f32 v{q_}, v{q_}'))
        both(lambda s_, q_, lt: self.bf16r(q_, q_))
        both(lambda s_, q_, lt: a(f'v_rcp_f32 v{116+4*lt}, v{q_}'))
        both(lambda s_, q_, lt: a(f'v_mov_b32 v{116+4*lt+2}, v{s_}'))
        both(lambda s_, q_, lt: a(f'v_mov_b32 v{116+4*lt+3}, v{s_}'))
        both(lambda s_, q_, lt: a(f'v_mov_b32 v{116+4*lt+1}, v{116+4*lt}'))
        OUT = 152
        def outreg(t, lt):
            if t < 6: return OUT + ((t >> 1) * 2 + lt) * 4 + (t & 1) * 2
            return OUT + 24 + lt * 2
        a('v_lshlrev_b32 v3, 4, v2')
        a('s_lshl_b32 s5, s66, 3')
        a(f's_lshl_b32 s6, s{sWAVE}, 1')
        a('s_add_u32 s5, s5, s6')
        a(f's_mul_i32 s5, s5, {NK2*1024}')
        a(f's_add_u32 s5, s5, {HH}')
        a('s_lshr_b32 s6, s67, 1'); a('s_mul_i32 s6, s6, 7')
        a('s_and_b32 s7, s67, 1')
        a('s_lshl_b32 s62, s7, 2'); a('s_add_u32 s62, s62, s6'); a('s_lshl_b32 s62, s62, 10'); a('s_add_u32 s62, s62, s5')
        a(f's_add_u32 s63, s62, {NK2*1024}')
        a('s_add_u32 s64, s6, 3'); a('s_lshl_b32 s64, s64, 10'); a('s_lshl_b32 s7, s7, 3'); a('s_add_u32 s64, s64, s7'); a('s_add_u32 s64, s64, s5')
        a(f's_add_u32 s65, s64, {NK2*1024}')
        a('s_mov_b32 s70, 0x00003f80')
        a('s_mov_b32 s71, 0x3f800000')
        a('s_waitcnt lgkmcnt(0)')
        for t in range(7):
            P = [(lt, h) for lt in range(2) for h in range(2)]
            X = {p: ACC + (t * 2 + p[0]) * 4 + 2 * p[1] for p in P}
            T = {p: 100 + i for i, p in enumerate(P)}
            def step(f):
                for p in P: a(f(p))
            S = lambda p: 64 + 4 * t + 2 * p[1]
            Bq = lambda p: 124 + 4 * t + 2 * p[1]
            R = lambda p: 116 + 4 * p[0]
            step(lambda p: f'v_pk_fma_f32 {vr(X[p],2)}, {vr(S(p),2)}, {vr(R(p)+2,2)}, {vr(X[p],2)} neg_lo:[1,0,0] neg_hi:[1,0,0]')
            step(lambda p: f'v_pk_mul_f32 {vr(X[p],2)}, {vr(X[p],2)}, {vr(R(p),2)}')
            step(lambda p: f'v_cvt_pk_bf16_f32 v{T[p]}, v{X[p]}, v{X[p]+1}')
            step(lambda p: f'v_dot2_f32_bf16 v{X[p]}, v{T[p]}, s70, v{Bq(p)}')
            step(lambda p: f'v_dot2_f32_bf16 v{X[p]+1}, v{T[p]}, s71, v{Bq(p)+1}')
            step(lambda p: f'v_cvt_pk_bf16_f32 v{T[p]}, v{X[p]}, v{X[p]+1}')
            step(lambda p: f'v_pk_max_i16 v{T[p]}, v{T[p]}, 0')
            step(lambda p: f'v_lshlrev_b32 v{X[p]}, 16, v{T[p]}')
            step(lambda p: f'v_and_b32 v{X[p]+1}, 0xffff0000, v{T[p]}')
            step(lambda p: f'v_pk_mul_f32 {vr(X[p],2)}, {vr(X[p],2)}, {vr(X[p],2)}')
            step(lambda p: f'v_cvt_pk_bf16_f32 v{outreg(t,p[0])+p[1]}, v{X[p]}, v{X[p]+1}')
            if t == 0:
                pass
            if t in (1, 3, 5):
                p_ = t >> 1
                for lt, sb in ((0, 's62'), (1, 's63')):
                    a(f'buffer_store_dwordx4 {vr(OUT+(p_*2+lt)*4,4)}, v3, {sr(SRD_WS)}, {sb} offen offset:{1024*p_} sc1')
        for lt, sb in ((0, 's64'), (1, 's65')):
            a(f'buffer_store_dwordx2 {vr(OUT+24+lt*2,2)}, v3, {sr(SRD_WS)}, {sb} offen sc1')


    P4_SLOTS = 7
    RES = 224
    def p4_pre_loads(self):
        a = self.a
        L = []
        def setup():
            self.srd(SRD_B, P_B2, 640 * 2)
            a('v_and_b32 v244, 15, v2')
            a('v_lshrrev_b32 v245, 4, v2')
            a('s_mul_i32 s62, s73, 20')
            a('s_lshl_b32 s63, s72, 2')
            a(f's_add_u32 s63, s63, s{sWAVE}')
            a('s_mul_i32 s63, s63, 20480')
            a(f's_add_u32 s63, s63, {HF}')
        def one(t):
            def f():
                if t == 0: setup()
                a(f'v_add_u32 v246, s62, v245')
                a(f'v_add_u32 v246, {4*t}, v246')
                a('v_lshrrev_b32 v247, 3, v246')
                a('v_lshlrev_b32 v247, 10, v247')
                a('v_bfe_u32 v248, v246, 1, 2')
                a('v_lshl_add_u32 v247, v248, 8, v247')
                a('v_and_b32 v248, 1, v246')
                a('v_lshl_add_u32 v247, v248, 3, v247')
                a('v_lshl_add_u32 v247, v244, 4, v247')
                a(f'buffer_load_dwordx2 {vr(self.RES+2*t,2)}, v247, {sr(SRD_WS)}, s63 offen sc1')
            return f
        def two(t):
            def f():
                a(f'v_add_u32 v246, s62, v245')
                a(f'v_add_u32 v246, {4*t}, v246')
                a('v_lshlrev_b32 v246, 3, v246')
                a(f'buffer_load_dwordx2 {vr(self.RES+10+2*t,2)}, v246, {sr(SRD_B)}, 0 offen')
            return f
        for t in range(5): L += [one(t), two(t)]
        return L

    def p4_epilogue(self):
        a = self.a
        ACC = 8
        a('v_lshlrev_b32 v3, 4, v2')
        a(f's_mul_i32 s5, s{sWAVE}, 20480')
        a('v_add_u32 v6, s5, v3')
        for lt in range(4):
            L = a.label('Lp4w')
            a(f's_cmp_eq_u32 s{sWAVE}, {lt}'); a(f's_cbranch_scc1 {L}')
            for t in range(5):
                a(f'ds_write_b128 v6, {vr(ACC+(t*4+lt)*4,4)} offset:{lt*5120+t*1024}')
            a(f'{L}:')
        Lend = a.label('Lp4o')
        for lt in range(4):
            L = a.label('Lp4c')
            a(f's_cmp_eq_u32 s{sWAVE}, {lt}'); a(f's_cbranch_scc0 {L}')
            for t in range(5):
                for h in range(2):
                    a(f'v_pk_mov_b32 {vr(112+4*t+2*h,2)}, {vr(ACC+(t*4+lt)*4+2*h,2)}, {vr(ACC+(t*4+lt)*4+2*h,2)} op_sel:[0,1]')
            a(f's_branch {Lend}')
            a(f'{L}:')
        a(f'{Lend}:')
        a('s_waitcnt lgkmcnt(0)')
        a('s_barrier')
        for k in range(1, 4):
            a(f's_add_u32 s5, s{sWAVE}, {k}'); a('s_and_b32 s5, s5, 3'); a('s_mul_i32 s5, s5, 20480')
            a(f's_mul_i32 s6, s{sWAVE}, 5120'); a('s_add_u32 s5, s5, s6')
            a(f'v_add_u32 v{4+k}, s5, v3')
        for t in range(5):
            for k in range(1, 4):
                a(f'ds_read_b128 {vr(132+(t*3+k-1)*4,4)}, v{4+k} offset:{t*1024}')
        for t in range(5):
            for h in range(2):
                b = self.RES + 10 + 2 * t + h; hh = self.RES + 2 * t + h
                a(f'v_lshlrev_b32 v{8+4*t+2*h}, 16, v{b}'); a(f'v_and_b32 v{8+4*t+2*h+1}, 0xffff0000, v{b}')
                a(f'v_lshlrev_b32 v{28+4*t+2*h}, 16, v{hh}'); a(f'v_and_b32 v{28+4*t+2*h+1}, 0xffff0000, v{hh}')
        self.srd(SRD_A, P_OUT, 2048 * 1280)
        a('s_lshl_b32 s5, s72, 6')
        a(f's_lshl_b32 s6, s{sWAVE}, 4')
        a('s_add_u32 s5, s5, s6')
        a('s_mul_i32 s5, s5, 1280')
        a('s_mul_i32 s6, s73, 160')
        a('s_add_u32 s5, s5, s6')
        a('v_mul_u32_u24 v4, 1280, v244')
        a('v_lshl_add_u32 v4, v245, 3, v4')
        a('s_mov_b32 s70, 0x00003f80')
        a('s_mov_b32 s71, 0x3f800000')
        a('s_waitcnt lgkmcnt(0)')
        P = [(t, h) for t in range(5) for h in range(2)]
        X = {p: 112 + 4 * p[0] + 2 * p[1] for p in P}
        def step(f):
            for p in P: a(f(p))
        for k in range(3):
            step(lambda p: f'v_pk_add_f32 {vr(X[p],2)}, {vr(X[p],2)}, {vr(132+(p[0]*3+k)*4+2*p[1],2)}')
        T = {p: 48 + i for i, p in enumerate(P)}
        step(lambda p: f'v_cvt_pk_bf16_f32 v{T[p]}, v{X[p]}, v{X[p]+1}')
        step(lambda p: f'v_dot2_f32_bf16 v{X[p]}, v{T[p]}, s70, v{8+4*p[0]+2*p[1]}')
        step(lambda p: f'v_dot2_f32_bf16 v{X[p]+1}, v{T[p]}, s71, v{8+4*p[0]+2*p[1]+1}')
        step(lambda p: f'v_cvt_pk_bf16_f32 v{T[p]}, v{X[p]}, v{X[p]+1}')
        step(lambda p: f'v_dot2_f32_bf16 v{X[p]}, v{T[p]}, s70, v{28+4*p[0]+2*p[1]}')
        step(lambda p: f'v_dot2_f32_bf16 v{X[p]+1}, v{T[p]}, s71, v{28+4*p[0]+2*p[1]+1}')
        step(lambda p: f'v_cvt_pk_bf16_f32 v{60+2*p[0]+p[1]}, v{X[p]}, v{X[p]+1}')
        for t in range(5):
            a(f'buffer_store_dwordx2 {vr(60+2*t,2)}, v4, {sr(SRD_A)}, s5 offen offset:{32*t}')

    def p4_h_load1(self, kk, lt):
        a = self.a
        slot = kk % self.P4_SLOTS
        reg = vr(self.P4H + slot * 16 + lt * 4, 4)
        if kk < 4:
            a(f'buffer_load_dwordx4 {reg}, v3, {sr(SRD_WS)}, s{76+lt} offen offset:{kk*1024} sc1')
        else:
            a(f's_add_u32 s5, s{76+lt}, {(kk//4)*4096}')
            a(f'buffer_load_dwordx4 {reg}, v3, {sr(SRD_WS)}, s5 offen offset:{(kk%4)*1024} sc1')

    def p4_main(self):
        a = self.a
        ACC = 8
        AH = self.P4_SLOTS - 1
        for kk in range(AH):
            for lt in range(4): self.p4_h_load1(kk, lt)
        for kk in range(14):
            issued_to = min(AH - 1 + kk, 13)
            a(f's_waitcnt vmcnt({(issued_to - kk) * 4})')
            slot = kk % self.P4_SLOTS
            n = 0
            for t in range(5):
                for lt in range(4):
                    acc = ACC + (t * 4 + lt) * 4
                    c = '0' if kk == 0 else vr(acc, 4)
                    a(f'v_mfma_f32_16x16x32_bf16 {vr(acc,4)}, {self.w2reg(kk*5+t)}, {vr(self.P4H+slot*16+lt*4,4)}, {c}')
                    if n % 5 == 2 and kk + AH <= 13: self.p4_h_load1(kk + AH, n // 5)
                    n += 1


    P3_AHEAD = 5
    P3_NSLOT = 3
    @property
    def P3_SLOTPOS(self):
        return {2: (4, 10), 3: (3, 8, 12), 4: (2, 6, 9, 12)}[self.P3_NSLOT]
    NW2_P3 = 12
    NW2_CONV = 36
    NW2_MAIN = 48
    NW2_EPI = 0
    def p3_main3(self):
        a = self.a
        ACC = 8
        WB = [200, 228]
        a('v_lshlrev_b32 v3, 4, v2')
        a('v_add_u32 v92, 0x10000, v3')
        a('v_add_u32 v93, 0x20000, v3')
        a('s_lshl_b32 s77, s66, 3')
        a(f's_lshl_b32 s6, s{sWAVE}, 1')
        a('s_add_u32 s77, s77, s6')
        a('s_mul_i32 s77, s77, 20480')
        a(f's_add_u32 s77, s77, {HF}')
        a('s_add_u32 s78, s77, 20480')
        def rd(kap, t):
            off = self.w1_lds(kap * 7 + t)
            reg = ['v3', 'v92', 'v93'][off >> 16]
            return f'ds_read_b128 {ar(WB[kap&1]+4*t,4)}, {reg} offset:{off & 0xffff}'
        issued = []
        def hload(kap, lt):
            blk = kap // 4
            if blk == 0:
                a(f'buffer_load_dwordx4 {vr(self.P3H+(2*kap+lt)*4,4)}, v3, {sr(SRD_WS)}, s{77+lt} offen offset:{(kap%4)*1024} sc1')
            else:
                a(f's_add_u32 s5, s{77+lt}, {blk*4096}')
                a(f'buffer_load_dwordx4 {vr(self.P3H+(2*kap+lt)*4,4)}, v3, {sr(SRD_WS)}, s5 offen offset:{(kap%4)*1024} sc1')
            issued.append(('h', kap))
        AH = self.P3_AHEAD
        hq = [(kap, lt) for kap in range(20) for lt in range(2)]
        for _ in range(2 * AH):
            hload(*hq.pop(0))
        for t in range(7): a(rd(0, t))
        self.stamp('p3iss')
        misc = [('w', lambda idx=idx: self.w2_load(idx)) for idx in range(self.NW2_CONV, self.NW2_CONV + self.NW2_P3)]
        for kap in range(20):
            last = max(i for i, tg in enumerate(issued) if tg == ('h', kap))
            a(f's_waitcnt vmcnt({min(63, len(issued) - 1 - last)}) lgkmcnt(0)')
            if kap in (0, 4, 12): self.stamp(f'k{kap}')
            h0 = self.P3H + (2 * kap) * 4; h1 = h0 + 4
            extra = [rd(kap + 1, t) for t in range(7)] if kap < 19 else []
            n = 0
            def slot():
                if hq: hload(*hq.pop(0))
                elif misc:
                    tg, f = misc.pop(0); f(); issued.append((tg, 0))
            for t in range(7):
                for lt, h in ((0, h0), (1, h1)):
                    acc = ACC + (t * 2 + lt) * 4
                    c = '0' if kap == 0 else vr(acc, 4)
                    a(f'v_mfma_f32_16x16x32_bf16 {vr(acc,4)}, {ar(WB[kap&1]+4*t,4)}, {vr(h,4)}, {c}')
                    if extra and n >= 1: a(extra.pop(0))
                    if n in self.P3_SLOTPOS: slot()
                    n += 1
            for lt, h in ((0, h0), (1, h1)):
                g = self.GRAM + 4 * lt
                c = '0' if kap == 0 else ar(g, 4)
                a(f'v_mfma_f32_16x16x32_bf16 {ar(g,4)}, {vr(h,4)}, {vr(h,4)}, {c}')
                if lt == 0 and not hq: slot()
        while misc:
            tg, f = misc.pop(0); f(); issued.append((tg, 0))
        self.p3_w2_inflight = 63

def build():
    out = []
    kn = NAME + '_kernel'
    out.append(f'; @launch grid=(256,1,1) block=(256,1,1) lds={LDS_SIZE}')
    out.append('.amdgcn_target "amdgcn-amd-amdhsa--gfx950"')
    out.append('.text')
    g = G3(True); g.kname = 'f'; a = g.a
    if g.timing:
        for i in range(16): a(f's_mov_b32 s{86+i}, 0')
    g.stamp('start')
    g.prologue()
    g.ln1x_issue()
    g.epoch_issue()
    Laux = a.label('Laux'); Lp3 = a.label('Lp3')
    a('s_cmp_lt_u32 s2, 160'); a(f's_cbranch_scc0 {Laux}')
    g.kgen_issue()
    g.code_prefetch()
    g.p2_consts()
    g.ln1x_compute(8)
    a('s_waitcnt vmcnt(12)')
    g.epoch_get()
    g.flag_signal(BFL1)
    g.stamp('ln1')
    g.ux_zero_pad()
    g.kgen(0)
    g.p34_ids()
    g.w2_setup()
    g.pref_setup()
    g.stamp('kgen')
    g.flag_wait(BFL1)
    g.stamp('B1')
    g.conv_load_ux()
    g.pfl_issue()
    g.stamp('ux')
    g.conv_main(g.list_conv(), pref_from=g.CONV_FROM)
    g.stamp('conv')
    g.conv_epilogue()
    g.stamp('cep2')
    g.flag_signal(BFL2)
    g.stamp('P2end')
    a(f's_branch {Lp3}')
    a(f'{Laux}:')
    g.code_prefetch()
    g.ln1x_compute(2, g.prep_issue3)
    a('s_waitcnt vmcnt(0)')
    g.epoch_get()
    g.flag_signal(BFL1)
    g.stamp('ln1')
    g.prep_compute3()
    g.flag_signal(PFL)
    g.flag_signal(BFL2, drain=False)
    g.stamp('P2end')
    g.p34_ids()
    g.w2_setup()
    g.pref_setup()
    g.flag_wait(BFL1)
    g.pfl_issue()
    g.pfl_check()
    for f in g.list_conv(): f()
    a(f'{Lp3}:')
    g.sb_stage()
    g.flags_overlap(g.list_e2(), 16, BFL2, publish_epoch=True)
    g.stamp('B2')
    g.p3_main3()
    g.stamp('p3main')
    g.p3_epilogue()
    g.stamp('p3ep')
    rest = [i for i in range(g.NW2_CONV + g.NW2_P3, 70)]
    Lw0 = a.label('Lw0')
    g.row_signal_pre(a)
    a(f's_cmp_eq_u32 s{sWAVE}, 0'); a(f's_cbranch_scc0 {Lw0}')
    g.row_flag_store()
    a(f'{Lw0}:')
    g.row_overlap([lambda idx=idx: g.w2_load(idx) for idx in rest] + g.p4_pre_loads(), 16)
    g.stamp('B3')
    g.p4_h_setup()
    g.p4_main()
    g.stamp('p4main')
    g.p4_epilogue()
    g.stamp_flush(0)
    g.end()
    out.append(kernel_header(kn)); out += a.finalize()
    out.append('.section .rodata,"a"')
    out.append(kernel_desc(kn))
    return '\n'.join(out) + '\n'

def prep3(self):
    n0 = len(self.a.lines)
    self.prep()
    for i in range(n0, len(self.a.lines)):
        l = self.a.lines[i]
        if l.startswith('buffer_store') and 'sc1' not in l:
            self.a.lines[i] = l + ' sc1'
G3.prep3 = prep3

if __name__ == '__main__':
    dst = sys.argv[1]
    gen.TIMING = 'timing' in sys.argv[2:]
    for x in sys.argv[2:]:
        if x.startswith('set='): gen.STAMPSET = set(x[4:].split(','))
        if x.startswith('dbg='): gen.DBGSTAMP = int(x[4:])
    for x in sys.argv[2:]:
        if '=' in x and x.split('=')[0].isupper() or (x.split('=')[0].replace('_','').isalnum() and x.split('=')[0].upper() == x.split('=')[0] and '=' in x):
            k, v = x.split('='); setattr(G3, k, int(v))
    gen.HF = HF; gen.BLK = BLK; gen.HH = HH; gen.W1F = W1F; gen.W2F = W2F; gen.SP = SP
    s = build()
    open(dst, 'w').write(s)
    print('wrote', dst, len(s), 'bytes')
```

```python
import sys, struct
sys.path.insert(0, 'work')
from asmlib import Asm

NAME = "sequential_preLN__ssm_conv_s4d__dense_activation_squared_relu__prompt"

BLK = 0x0000000
HF  = 0x0500000
W1F = 0x0800000
W2F = 0x0B00000
SP  = 0x0E00000
HH  = 0x1000000
DBGW = 0x1800000
WS_SIZE = 0x4000000

TIMING = False
STAMPSET = None
DBGSTAMP = 0

def f2u(x):
    return struct.unpack('<I', struct.pack('<f', x))[0]

sWAVE = 4
SRD_A = 8; SRD_WS = 12; SRD_B = 48; SRD_C = 52; SRD_D = 56
P_X, P_LA, P_AI, P_CR, P_CI, P_LDT, P_DSK = 16, 18, 20, 22, 24, 26, 28
P_W1, P_B1, P_W2, P_B2, P_OUT, P_DBG, P_WS = 32, 34, 36, 38, 40, 42, 44

def sr(b, n=4): return f's[{b}:{b+n-1}]'
def vr(b, n): return f'v[{b}:{b+n-1}]' if n > 1 else f'v{b}'
def ar(b, n): return f'a[{b}:{b+n-1}]' if n > 1 else f'a{b}'

class Gen:
    def __init__(self, fused, debug=False):
        self.a = Asm()
        self.fused = fused
        self.debug = debug
        self.sc = ' sc1' if fused else ''
        self.p3_hook = None
        self.timing = TIMING
        self.nstamp = 0
        self.stamp_tags = []

    TSW = 0x3000000
    def stamp(self, tag=''):
        if not self.timing: return
        if STAMPSET and tag not in STAMPSET and tag not in ('start', 'end'): return
        if tag in self.stamp_tags:
            i = self.stamp_tags.index(tag)
        else:
            i = self.nstamp; self.nstamp += 1
            self.stamp_tags.append(tag)
        assert i < 16
        a = self.a
        a('s_memrealtime s[84:85]')
        a('s_waitcnt lgkmcnt(0)')
        a(f's_mov_b32 s{86+i}, s84')
    def stamp_flush(self, kidx):
        if not self.timing: return
        a = self.a
        a('s_waitcnt vmcnt(0) lgkmcnt(0)')
        self.stamp('end')
        n = self.nstamp
        a(f's_lshl_b32 s5, s2, 2'); a(f's_add_u32 s5, s5, s{sWAVE}'); a('s_lshl_b32 s5, s5, 6')
        a(f's_add_u32 s5, s5, {self.TSW + kidx * 0x10000}')
        for i in range(n):
            a(f'v_mov_b32 v4, s{86+i}')
            a(f'v_mov_b32 v5, {4*i}')
            a(f'buffer_store_dword v4, v5, {sr(SRD_WS)}, s5 offen')
        if DBGSTAMP:
            L = a.label('Ldbgs')
            a('s_cmp_eq_u32 s2, %d' % DBGSTAMP); a(f's_cbranch_scc0 {L}')
            a(f's_cmp_eq_u32 s{sWAVE}, 0'); a(f's_cbranch_scc0 {L}')
            self.srd(SRD_D, P_DBG, 256)
            for i in range(n):
                a(f's_sub_u32 s5, s{86+i}, s86')
                a('v_mov_b32 v4, s5')
                a(f'v_mov_b32 v5, {4*i}')
                a(f'buffer_store_dword v4, v5, {sr(SRD_D)}, 0 offen')
            a(f'{L}:')
        print('kernel', kidx, 'stamps:', self.stamp_tags)
        open(f'stamps_k{kidx}.txt', 'w').write(' '.join(self.stamp_tags))

    def srd(self, dst, ptr, size):
        a = self.a
        a(f's_mov_b32 s{dst}, s{ptr}')
        a(f's_mov_b32 s{dst+1}, s{ptr+1}')
        a(f's_mov_b32 s{dst+2}, {size}')
        a(f's_mov_b32 s{dst+3}, 0x20000')

    def prologue(self):
        a = self.a
        a('s_cmp_ge_u32 s2, 256')
        a('s_cbranch_scc1 L_end_%s' % self.kname)
        a('s_load_dwordx16 s[16:31], s[0:1], 0')
        a('s_load_dwordx8 s[32:39], s[0:1], 64')
        a('s_load_dwordx4 s[40:43], s[0:1], 96')
        a('s_load_dwordx2 s[44:45], s[0:1], 112')
        a('v_lshrrev_b32 v1, 6, v0')
        a('v_and_b32 v2, 63, v0')
        a(f'v_readfirstlane_b32 s{sWAVE}, v1')
        a('s_waitcnt lgkmcnt(0)')
        self.srd(SRD_WS, P_WS, WS_SIZE)

    def end(self):
        a = self.a
        a('L_end_%s:' % self.kname)
        a('s_endpgm')


    SRD_DBG = SRD_D
    def sync_setup(self):
        a = self.a
        self.srd(SRD_D, P_DBG, 256)
        a('s_and_b32 s81, s2, 7')
        a('s_lshl_b32 s81, s81, 1')
        a('s_bfe_u32 s5, s2, 0x10003')
        a('s_add_u32 s81, s81, s5')
        a('s_lshl_b32 s81, s81, 4')
        a('s_lshr_b32 s5, s2, 4')
        a('s_add_u32 s81, s81, s5')

    def signal(self, phase):
        a = self.a
        L = a.label('Lsig')
        a('s_waitcnt vmcnt(0) lgkmcnt(0)')
        a('s_barrier')
        a(f's_cmp_eq_u32 s{sWAVE}, 0')
        a(f's_cbranch_scc0 {L}')
        a('s_mov_b64 exec, 1')
        a(f'v_mov_b32 v4, {phase}')
        a('v_mov_b32 v5, s81')
        a(f'buffer_store_byte v4, v5, {sr(SRD_D)}, 0 offen sc1')
        a('s_mov_b64 exec, -1')
        a(f'{L}:')

    def wait_flags(self, phase, mode):
        a = self.a
        Lp = a.label('Lpoll'); Ld = a.label('Lpolld'); Lo = a.label('Lpollo')
        a(f's_cmp_eq_u32 s{sWAVE}, 0')
        a(f's_cbranch_scc0 {Lo}')
        if mode == 'row':
            a('v_and_b32 v4, 3, v2')
            a('v_lshlrev_b32 v4, 2, v4')
            a('s_lshl_b32 s5, s82, 4')
            a('v_add_u32 v4, s5, v4')
        else:
            a('v_lshlrev_b32 v4, 2, v2')
        a('s_mov_b32 s6, 0')
        a(f's_mov_b32 s7, {phase * 0x01010101:#x}')
        a(f'{Lp}:')
        a(f'buffer_load_dword v5, v4, {sr(SRD_D)}, 0 offen sc1')
        a('s_waitcnt vmcnt(0)')
        a('v_or_b32 v5, 0x80808080, v5')
        a('v_subrev_u32 v5, s7, v5')
        if mode == 'aux':
            a('v_or_b32 v5, v5, v6')
        a('v_and_b32 v5, 0x80808080, v5')
        a('v_cmp_ne_u32 vcc, 0x80808080, v5')
        a(f's_cbranch_vccz {Ld}')
        a('s_sleep 1')
        a('s_add_u32 s6, s6, 1')
        a('s_cmp_lt_u32 s6, 0x40000')
        a(f's_cbranch_scc1 {Lp}')
        a(f'{Ld}:')
        a(f'{Lo}:')
        a('s_barrier')

    def ln1_issue(self):
        a = self.a
        self.srd(SRD_A, P_X, 2048 * 1280)
        a('v_lshrrev_b32 v3, 5, v0')
        a('v_and_b32 v4, 31, v0')
        a('v_mul_u32_u24 v5, 0x500, v3')
        a('v_lshl_add_u32 v5, v4, 3, v5')
        a('s_mul_i32 s3, s2, 10240')
        for q in range(5):
            a(f'buffer_load_dwordx2 {vr(8+2*q,2)}, v5, {sr(SRD_A)}, s3 offen offset:{256*q}')

    def rowsum32(self, v, t):
        a = self.a
        for r in (8, 4, 2, 1):
            a(f'v_add_f32_dpp v{v}, v{v}, v{v} row_ror:{r} row_mask:0xf bank_mask:0xf')
        a(f'v_mov_b32 v{t}, v{v}')
        a(f'v_permlane16_swap_b32 v{v}, v{t}')
        a(f'v_add_f32 v{v}, v{v}, v{t}')

    def bf16r(self, dst, src):
        a = self.a
        a(f'v_cvt_pk_bf16_f32 v{dst}, v{src}, v{src}')
        a(f'v_and_b32 v{dst}, 0xffff0000, v{dst}')

    def ln1_compute(self, nlater):
        a = self.a
        F = 20
        a(f's_waitcnt vmcnt({nlater})')
        self.stamp('xarr')
        for k in range(10):
            a(f'v_lshlrev_b32 v{F+2*k}, 16, v{8+k}')
            a(f'v_and_b32 v{F+2*k+1}, 0xffff0000, v{8+k}')
        a(f'v_pk_add_f32 v[40:41], {vr(F,2)}, {vr(F+2,2)}')
        for k in range(2, 10):
            a(f'v_pk_add_f32 v[40:41], v[40:41], {vr(F+2*k,2)}')
        a('v_add_f32 v40, v40, v41')
        self.rowsum32(40, 41)
        a(f'v_mul_f32 v40, {f2u(1.0/640):#x}, v40')
        a('v_mov_b32 v41, v40')
        for k in range(10):
            a(f'v_pk_add_f32 v[44:45], {vr(F+2*k,2)}, v[40:41] neg_lo:[0,1] neg_hi:[0,1]')
            if k == 0:
                a('v_pk_mul_f32 v[42:43], v[44:45], v[44:45]')
            else:
                a('v_pk_fma_f32 v[42:43], v[44:45], v[44:45], v[42:43]')
        a('v_add_f32 v42, v42, v43')
        self.rowsum32(42, 43)
        a(f'v_mul_f32 v42, {f2u(1.0/640):#x}, v42')
        self.bf16r(40, 40)
        a('v_mov_b32 v41, v40')
        self.bf16r(42, 42)
        a(f'v_add_f32 v42, {f2u(1e-5):#x}, v42')
        self.bf16r(42, 42)
        a('v_sqrt_f32 v42, v42')
        self.bf16r(42, 42)
        a('v_rcp_f32 v42, v42')
        a('v_mov_b32 v43, v42')
        U = 48
        for k in range(10):
            a(f'v_pk_add_f32 v[44:45], {vr(F+2*k,2)}, v[40:41] neg_lo:[0,1] neg_hi:[0,1]')
            a('v_cvt_pk_bf16_f32 v46, v44, v45')
            a('v_lshlrev_b32 v44, 16, v46')
            a('v_and_b32 v45, 0xffff0000, v46')
            a('v_pk_mul_f32 v[44:45], v[44:45], v[42:43]')
            a(f'v_cvt_pk_bf16_f32 v{U+2*k}, v44, v{F+2*k}')
            a(f'v_cvt_pk_bf16_f32 v{U+2*k+1}, v45, v{F+2*k+1}')
        a('v_mul_u32_u24 v6, 2624, v3')
        a('v_lshl_add_u32 v6, v4, 4, v6')
        for q in range(5):
            a(f'ds_write_b128 v6, {vr(U+4*q,4)} offset:{512*q}')
        a('v_bfe_u32 v7, v2, 2, 2')
        a('v_mul_u32_u24 v7, 2624, v7')
        a('v_lshrrev_b32 v6, 4, v2')
        a('v_lshl_add_u32 v7, v6, 5, v7')
        a('v_and_b32 v6, 3, v2')
        a('v_lshl_add_u32 v7, v6, 3, v7')
        a(f's_lshl_b32 s3, s{sWAVE}, 7')
        a('v_add_u32 v7, s3, v7')
        a('s_waitcnt lgkmcnt(0)')
        self.stamp('lncomp')
        a('s_barrier')
        T = 68
        for k in range(5):
            a(f'ds_read_b64_tr_b16 {vr(T+4*k,2)}, v7 offset:{512*k}')
            a(f'ds_read_b64_tr_b16 {vr(T+4*k+2,2)}, v7 offset:{512*k+4*2624}')
        a('v_lshlrev_b32 v6, 4, v2')
        a(f's_lshl_b32 s3, s{sWAVE}, 10')
        a('v_add_u32 v6, s3, v6')
        a('s_mul_i32 s3, s2, 20480')
        if BLK: a(f's_add_u32 s3, s3, {BLK}')
        for k in range(5):
            a(f's_waitcnt lgkmcnt({2*(4-k)})')
            a(f'buffer_store_dwordx4 {vr(T+4*k,4)}, v6, {sr(SRD_WS)}, s3 offen{self.sc}')
            if k < 4: a('s_add_u32 s3, s3, 4096')

    LDSP = 24576
    def prep_issue(self):
        a = self.a
        Lw2 = a.label('Lpw2'); Lnone = a.label('Lpnone'); Ldone = a.label('Lpdone')
        a('s_sub_u32 s5, s2, 160')
        a('s_mov_b32 s60, 0')
        a('s_cmp_lt_u32 s5, 27')
        a(f's_cbranch_scc0 {Lw2}')
        a('s_mov_b32 s60, 1')
        a('s_mov_b32 s61, s5')
        a(f's_mov_b32 s62, s{sWAVE}')
        self.srd(SRD_B, P_W1, 640 * 3456)
        a('v_lshrrev_b32 v90, 3, v2')
        a('v_mul_u32_u24 v90, 3456, v90')
        a('v_and_b32 v91, 7, v2')
        a('v_lshl_add_u32 v90, v91, 4, v90')
        a('s_mul_i32 s6, s62, %d' % (160 * 3456))
        a('s_lshl_b32 s7, s61, 7')
        a('s_add_u32 s6, s6, s7')
        a(f's_mul_i32 s7, s{sWAVE}, 20480')
        a(f's_add_u32 m0, s7, {self.LDSP}')
        for i in range(20):
            a(f'buffer_load_dwordx4 v90, {sr(SRD_B)}, s6 offen lds')
            if i < 19:
                a('s_add_u32 m0, m0, 1024')
                a(f's_add_u32 s6, s6, {8*3456}')
        a(f's_branch {Ldone}')
        a(f'{Lw2}:')
        a('s_cmp_lt_u32 s5, 72')
        a(f's_cbranch_scc0 {Ldone}')
        a('s_mov_b32 s60, 2')
        a('s_sub_u32 s5, s5, 27')
        a('s_lshl_b32 s5, s5, 2')
        a(f's_add_u32 s5, s5, s{sWAVE}')
        a('s_mul_i32 s61, s5, 3641')
        a('s_lshr_b32 s61, s61, 16')
        a('s_mul_i32 s6, s61, 18')
        a('s_sub_u32 s62, s5, s6')
        self.srd(SRD_B, P_W2, 1728 * 1280)
        a('v_lshrrev_b32 v90, 3, v2')
        a('v_mul_u32_u24 v90, 1280, v90')
        a('v_and_b32 v91, 7, v2')
        a('v_lshl_add_u32 v90, v91, 4, v90')
        a('s_mul_i32 s6, s62, %d' % (96 * 1280))
        a('s_lshl_b32 s7, s61, 7')
        a('s_add_u32 s6, s6, s7')
        a(f's_mul_i32 s7, s{sWAVE}, 20480')
        a(f's_add_u32 m0, s7, {self.LDSP}')
        for i in range(12):
            a(f'buffer_load_dwordx4 v90, {sr(SRD_B)}, s6 offen lds')
            if i < 11:
                a('s_add_u32 m0, m0, 1024')
                a(f's_add_u32 s6, s6, {8*1280}')
        a(f'{Ldone}:')

    def ct_of_T(self):
        a = self.a
        a('s_mul_i32 s64, s63, 4682')
        a('s_lshr_b32 s64, s64, 16')
        a('s_mul_i32 s65, s64, 14')
        a('s_sub_u32 s65, s63, s65')
        a('s_lshl_b32 s66, s64, 1')
        a('s_add_u32 s67, s66, 1')
        a('s_sub_u32 s68, s65, 8')
        a('s_cmp_eq_u32 s65, 7')
        a('s_cselect_b32 s68, 6, s68')
        a('s_cmp_lt_u32 s65, 7')
        a('s_cselect_b32 s66, s66, s67')
        a('s_cselect_b32 s68, s65, s68')
        a('s_sub_u32 s64, s63, 84')
        a('s_mul_i32 s65, s64, 10923')
        a('s_lshr_b32 s65, s65, 16')
        a('s_mul_i32 s67, s65, 6')
        a('s_sub_u32 s67, s64, s67')
        a('s_add_u32 s65, s65, 12')
        a('s_cmp_ge_u32 s63, 84')
        a('s_cselect_b32 s66, s65, s66')
        a('s_cselect_b32 s68, s67, s68')
        a('s_cmp_eq_u32 s68, 5')
        a('s_cselect_b32 s69, 1, 0')
        a('s_cmp_ge_u32 s66, 12')
        a('s_cselect_b32 s69, s69, 0')

    def ln1_compute_multi(self):
        self.ln1_compute(0)

    def dump_kc(self):
        a = self.a
        a('s_lshl_b32 s5, s2, 2')
        a(f's_add_u32 s5, s5, s{sWAVE}')
        a('s_mul_i32 s5, s5, 17408')
        a(f's_add_u32 s5, s5, {DBGW}')
        a('v_lshlrev_b32 v4, 4, v2')
        a('v_add_u32 v5, s61, v4')
        for i in range(17):
            a(f'ds_read_b128 v[8:11], v5 offset:{1024*i}')
            a('s_waitcnt lgkmcnt(0)')
            a(f'buffer_store_dwordx4 v[8:11], v4, {sr(SRD_WS)}, s5 offen')
            a('s_add_u32 s5, s5, 1024')

    def prep_compute(self):
        a = self.a
        Lw2 = a.label('Lqw2'); Ldone = a.label('Lqdone')
        a('s_cmp_eq_u32 s60, 0')
        a(f's_cbranch_scc1 {Ldone}')
        a('s_waitcnt vmcnt(0)')
        a('v_lshrrev_b32 v90, 4, v2')
        a('v_bfe_u32 v91, v2, 2, 2')
        a('v_and_b32 v92, 3, v2')
        a('v_lshlrev_b32 v93, 4, v2')
        a(f's_mul_i32 s7, s{sWAVE}, 20480')
        a(f's_add_u32 s7, s7, {self.LDSP}')
        a('s_cmp_eq_u32 s60, 1')
        a(f's_cbranch_scc0 {Lw2}')
        a('v_lshl_add_u32 v94, v90, 3, v91')
        a('v_lshlrev_b32 v94, 7, v94')
        a('v_lshl_add_u32 v94, v92, 3, v94')
        a('v_add_u32 v94, s7, v94')
        a('s_mov_b32 s70, 0x3f803f80')
        for tt in range(4):
            a('s_lshl_b32 s63, s61, 2')
            a(f's_add_u32 s63, s63, {tt}')
            self.ct_of_T()
            a('s_mul_i32 s64, s66, 140')
            a('s_add_u32 s64, s64, s68')
            a('s_lshl_b32 s64, s64, 10')
            a('s_mul_i32 s65, s62, %d' % (5 * 7168))
            a('s_add_u32 s64, s64, s65')
            a(f's_add_u32 s64, s64, {W1F}')
            for kk in range(5):
                R = 100 + 4 * kk
                a(f'ds_read_b64_tr_b16 {vr(R,2)}, v94 offset:{kk*4096+tt*32}')
                a(f'ds_read_b64_tr_b16 {vr(R+2,2)}, v94 offset:{kk*4096+tt*32+512}')
            S = 120 + tt
            for kk in range(5):
                R = 100 + 4 * kk
                a(f's_waitcnt lgkmcnt({2*(4-kk)})')
                a(f'buffer_store_dwordx4 {vr(R,4)}, v93, {sr(SRD_WS)}, s64 offen{self.sc}')
                for j in range(4):
                    c = '0' if (kk == 0 and j == 0) else f'v{S}'
                    a(f'v_dot2_f32_bf16 v{S}, v{R+j}, s70, {c}')
                Lskip = a.label('Ldup')
                a('s_cmp_eq_u32 s69, 0')
                a(f's_cbranch_scc1 {Lskip}')
                a('s_add_u32 s65, s64, 1024')
                a(f'buffer_store_dwordx4 {vr(R,4)}, v93, {sr(SRD_WS)}, s65 offen{self.sc}')
                a(f'{Lskip}:')
                if kk < 4: a('s_add_u32 s64, s64, 7168')
            a(f'v_mov_b32 v97, v{S}')
            a(f'v_permlane16_swap_b32 v{S}, v97')
            a(f'v_add_f32 v{S}, v{S}, v97')
            a(f'v_mov_b32 v97, v{S}')
            a(f'v_permlane32_swap_b32 v{S}, v97')
            a(f'v_add_f32 v{S}, v{S}, v97')
        SB = self.LDSP + 4 * 20480
        a('v_and_b32 v98, 15, v2')
        a('v_lshlrev_b32 v98, 2, v98')
        a(f's_lshl_b32 s64, s{sWAVE}, 8')
        a(f's_add_u32 s64, s64, {SB}')
        a('v_add_u32 v97, s64, v98')
        for tt in range(4):
            a(f'ds_write_b32 v97, v{120+tt} offset:{64*tt}')
        a('s_waitcnt lgkmcnt(0)')
        a('s_barrier')
        a(f's_lshl_b32 s64, s{sWAVE}, 6')
        a(f's_add_u32 s64, s64, {SB}')
        a('v_add_u32 v97, s64, v98')
        for w in range(4):
            a(f'ds_read_b32 v{120+w}, v97 offset:{256*w}')
        a('s_lshl_b32 s63, s61, 2')
        a(f's_add_u32 s63, s63, s{sWAVE}')
        self.ct_of_T()
        a('s_mul_i32 s64, s66, 112')
        a('s_lshl_b32 s65, s68, 4')
        a('s_add_u32 s64, s64, s65')
        a('s_lshl_b32 s64, s64, 2')
        a(f's_add_u32 s64, s64, {SP}')
        a('s_waitcnt lgkmcnt(0)')
        a('v_add_f32 v120, v120, v121')
        a('v_add_f32 v122, v122, v123')
        a('v_add_f32 v120, v120, v122')
        a(f'buffer_store_dword v120, v98, {sr(SRD_WS)}, s64 offen{self.sc}')
        Lskip = a.label('Ldup')
        a('s_cmp_eq_u32 s69, 0')
        a(f's_cbranch_scc1 {Lskip}')
        a('s_add_u32 s64, s64, 64')
        a(f'buffer_store_dword v120, v98, {sr(SRD_WS)}, s64 offen{self.sc}')
        a(f'{Lskip}:')
        a(f's_branch {Ldone}')
        a(f'{Lw2}:')
        a('v_lshl_add_u32 v94, v90, 2, v91')
        a('v_lshlrev_b32 v94, 7, v94')
        a('v_lshl_add_u32 v94, v92, 3, v94')
        a('v_add_u32 v94, s7, v94')
        for tt in range(4):
            a('s_lshl_b32 s63, s61, 2')
            a(f's_add_u32 s63, s63, {tt}')
            a('s_mul_i32 s64, s63, 13108')
            a('s_lshr_b32 s64, s64, 16')
            a('s_mul_i32 s65, s64, 5')
            a('s_sub_u32 s65, s63, s65')
            a('s_mul_i32 s64, s64, 270')
            a('s_add_u32 s64, s64, s65')
            a('s_mul_i32 s65, s62, 15')
            a('s_add_u32 s64, s64, s65')
            a('s_lshl_b32 s64, s64, 10')
            a(f's_add_u32 s64, s64, {W2F}')
            for kk in range(3):
                R = 100 + 4 * kk
                a(f'ds_read_b64_tr_b16 {vr(R,2)}, v94 offset:{kk*4096+tt*32}')
                a(f'ds_read_b64_tr_b16 {vr(R+2,2)}, v94 offset:{kk*4096+tt*32+2048}')
            for kk in range(3):
                R = 100 + 4 * kk
                a(f's_waitcnt lgkmcnt({2*(2-kk)})')
                a(f'buffer_store_dwordx4 {vr(R,4)}, v93, {sr(SRD_WS)}, s64 offen{self.sc}')
                if kk < 2: a('s_add_u32 s64, s64, 5120')
        a(f'{Ldone}:')

    WSTRIDE = 30272
    UXB = 4 * 30272
    ROWB = 528
    CPY = 4160
    TBL = 16640
    GA = 100
    VB = 136
    VA = 144; VEU = 145; VHW = 146
    PL = 148

    def kgen_issue(self):
        a = self.a
        a('s_lshl_b32 s5, s2, 2')
        a(f's_add_u32 s5, s5, s{sWAVE}')
        a('s_lshl_b32 s6, s5, 8')
        a('v_lshlrev_b32 v98, 2, v2')
        a('v_add_u32 v98, s6, v98')
        P = self.PL
        a(f'global_load_dword v{P}, v98, s[{P_LA}:{P_LA+1}]')
        a(f'global_load_dword v{P+1}, v98, s[{P_AI}:{P_AI+1}]')
        a(f'global_load_dword v{P+2}, v98, s[{P_CR}:{P_CR+1}]')
        a(f'global_load_dword v{P+3}, v98, s[{P_CI}:{P_CI+1}]')
        a('s_lshl_b32 s6, s5, 1')
        a('v_mov_b32 v99, s6')
        a(f'global_load_ushort v{P+4}, v99, s[{P_LDT}:{P_LDT+1}]')
        a(f'global_load_ushort v{P+5}, v99, s[{P_DSK}:{P_DSK+1}]')
        return 6

    def p2_consts(self):
        a = self.a
        GA, VB, VA = self.GA, self.VB, self.VA
        t0, t1, t2, t3, t4, t5 = 90, 91, 92, 93, 94, 95
        a(f's_mul_i32 s61, s{sWAVE}, {self.WSTRIDE}')
        a(f'v_lshlrev_b32 v{t0}, 5, v2')
        a(f'v_sub_u32 v{t0}, 2047, v{t0}')
        a(f's_add_u32 s6, s61, {self.TBL}')
        a('s_movk_i32 s7, 0x80')
        for e in range(0, 36, 2):
            a(f'v_subrev_u32 v{t1}, {e}, v{t0}')
            a(f'v_subrev_u32 v{t2}, {e+1}, v{t0}')
            a(f'v_cvt_f32_i32 v{t3}, v{t1}')
            a(f'v_cvt_f32_i32 v{t4}, v{t2}')
            a(f'v_cvt_pk_bf16_f32 v{t3}, v{t3}, v{t4}')
            a(f'v_lshrrev_b32 v{t4}, 16, v{t3}')
            a(f'v_and_b32 v{t3}, 0xffff, v{t3}')
            a(f'v_subrev_u32 v{t3}, 0x4280, v{t3}')
            a(f'v_med3_i32 v{t3}, v{t3}, v{t1}, s7')
            a(f'v_lshl_add_u32 v{GA+e}, v{t3}, 1, s6')
            if e + 1 < 35:
                a(f'v_subrev_u32 v{t4}, 0x4280, v{t4}')
                a(f'v_med3_i32 v{t4}, v{t4}, v{t2}, s7')
                a(f'v_lshl_add_u32 v{GA+e+1}, v{t4}, 1, s6')
        i_, g_ = t0, t1
        a(f'v_and_b32 v{i_}, 15, v2')
        a(f'v_lshrrev_b32 v{g_}, 4, v2')
        a(f'v_and_b32 v{t2}, 3, v{i_}')
        a(f'v_sub_u32 v{t2}, 3, v{t2}')
        a(f'v_mul_u32_u24 v{t2}, {self.CPY}, v{t2}')
        a(f'v_lshrrev_b32 v{t3}, 2, v{i_}')
        a(f'v_lshlrev_b32 v{t3}, 3, v{t3}')
        a(f'v_sub_u32 v{t2}, v{t2}, v{t3}')
        a(f'v_lshl_add_u32 v{t2}, v{g_}, 4, v{t2}')
        a(f's_add_u32 s6, s61, {2*(2044-16) - (512*7+64*7)}')
        a(f'v_add_u32 v{VA}, s6, v{t2}')
        a(f'v_lshlrev_b32 v{t2}, 1, v{i_}')
        a(f'v_add_u32 v{t2}, v{t2}, v{g_}')
        a(f'v_lshlrev_b32 v{t2}, 7, v{t2}')
        a(f'v_lshrrev_b32 v{t3}, 1, v{g_}')
        a(f'v_add_u32 v{t3}, v{t3}, v{i_}')
        a(f's_lshl_b32 s7, s{sWAVE}, 1')
        for b in range(8):
            a(f'v_subrev_u32 v{t4}, {2*b+1}, v{t3}')
            a(f'v_and_b32 v{t4}, 7, v{t4}')
            a(f'v_xor_b32 v{t4}, s7, v{t4}')
            a(f'v_lshl_add_u32 v{t4}, v{t4}, 4, v{t2}')
            a(f'v_add_u32 v{VB+b}, {self.UXB + (30-4*b)*128}, v{t4}')
        a(f'v_lshlrev_b32 v{t2}, 1, v{i_}')
        a(f'v_lshrrev_b32 v{t3}, 1, v{g_}')
        a(f'v_add_u32 v{t2}, v{t2}, v{t3}')
        a(f'v_lshlrev_b32 v{t2}, 7, v{t2}')
        a(f'v_and_b32 v{t3}, 7, v{i_}')
        a(f'v_xor_b32 v{t3}, s7, v{t3}')
        a(f'v_lshl_add_u32 v{t2}, v{t3}, 4, v{t2}')
        a(f'v_and_b32 v{t3}, 1, v{g_}')
        a(f'v_lshl_add_u32 v{t2}, v{t3}, 3, v{t2}')
        a(f'v_add_u32 v{self.VEU}, {self.UXB + 32*128}, v{t2}')
        a(f'v_lshlrev_b32 v{t2}, 5, v{i_}')
        a(f'v_lshl_add_u32 v{t2}, v{g_}, 3, v{t2}')
        a(f'v_add_u32 v{self.VHW}, s61, v{t2}')

    def exp_precise(self, dst, x, t1, t2):
        a = self.a
        a(f'v_mul_f32 v{t1}, s62, v{x}')
        a(f'v_fma_f32 v{t2}, v{x}, s62, -v{t1}')
        a(f'v_fma_f32 v{t2}, v{x}, s63, v{t2}')
        a(f'v_exp_f32 v{dst}, v{t1}')
        a(f'v_mul_f32 v{t2}, v{dst}, v{t2}')
        a(f'v_fma_f32 v{dst}, v{t2}, s64, v{dst}')

    def cmul2(self, d0, x0, y0, d1, x1, y1):
        a = self.a
        a(f'v_pk_mul_f32 {vr(d0,2)}, {vr(x0,2)}, {vr(y0,2)} op_sel:[0,0] op_sel_hi:[0,1]')
        a(f'v_pk_mul_f32 {vr(d1,2)}, {vr(x1,2)}, {vr(y1,2)} op_sel:[0,0] op_sel_hi:[0,1]')
        a(f'v_pk_fma_f32 {vr(d0,2)}, {vr(x0,2)}, {vr(y0,2)}, {vr(d0,2)} op_sel:[1,1,0] op_sel_hi:[1,0,1] neg_lo:[1,0,0]')
        a(f'v_pk_fma_f32 {vr(d1,2)}, {vr(x1,2)}, {vr(y1,2)}, {vr(d1,2)} op_sel:[1,1,0] op_sel_hi:[1,0,1] neg_lo:[1,0,0]')

    def kgen(self, nlater):
        a = self.a
        P = self.PL
        ROWB = self.ROWB
        a('s_mov_b32 s62, 0x3fb8aa3b')
        a('s_mov_b32 s63, 0x32a57060')
        a(f's_mov_b32 s64, {f2u(0.6931471805599453):#x}')
        a(f's_mov_b32 s65, {f2u(0.15915494309189535):#x}')
        a(f's_waitcnt vmcnt({nlater})')
        a(f'v_lshlrev_b32 v4, 16, v{P+4}')
        self.exp_precise(10, 4, 5, 6)
        self.bf16r(10, 10)
        for s in range(2):
            def unpack(dst, src):
                if s == 0: a(f'v_lshlrev_b32 v{dst}, 16, v{src}')
                else: a(f'v_and_b32 v{dst}, 0xffff0000, v{src}')
            unpack(4, P)
            self.exp_precise(7, 4, 5, 6)
            self.bf16r(7, 7)
            a('v_mul_f32 v7, v7, v10')
            a(f'v_mul_f32 v{12+s}, s62, v7')
            a(f'v_sub_f32 v{12+s}, 0, v{12+s}')
            unpack(4, P + 1)
            a('v_mul_f32 v4, v4, v10')
            a(f'v_mul_f32 v{14+s}, s65, v4')
            unpack(4, P + 2)
            a('v_mul_f32 v4, v4, v10')
            a(f'v_add_f32 v{16+2*s}, v4, v4')
            unpack(4, P + 3)
            a('v_mul_f32 v4, v4, v10')
            a(f'v_add_f32 v{17+2*s}, v4, v4')
        for zi, p in enumerate((1.0, 8.0, 128.0)):
            for s in range(2):
                d = 20 + 4 * zi + 2 * s
                a(f'v_mul_f32 v4, {f2u(p):#x}, v{12+s}')
                a(f'v_mul_f32 v5, {f2u(p):#x}, v{14+s}')
                a('v_exp_f32 v4, v4')
                a('v_rndne_f32 v6, v5')
                a('v_sub_f32 v5, v5, v6')
                a('v_cos_f32 v6, v5')
                a('v_sin_f32 v7, v5')
                a(f'v_mul_f32 v{d}, v4, v6')
                a(f'v_mul_f32 v{d+1}, v4, v7')
        self.stamp('kz')
        if getattr(self, 'kg_hook0', None): self.kg_hook0()
        a('v_lshlrev_b32 v11, 3, v2')
        a('v_add_u32 v11, s61, v11')
        wt = [0]
        def put(row, x0, x1, neg=False):
            w = 88 + 2 * wt[0]; wt[0] = (wt[0] + 1) % 4
            n = '-' if neg else ''
            a(f'v_cvt_pk_bf16_f32 v{w}, v{x0}, {n}v{x0+1}')
            a(f'v_cvt_pk_bf16_f32 v{w+1}, v{x1}, {n}v{x1+1}')
            a(f'ds_write_b64 v11, {vr(w,2)} offset:{row*ROWB}')
        LO = 32
        def lo(c, s): return (20 + 2 * s) if c == 1 else LO + 4 * (c - 2) + 2 * s
        def mk(c, x, y): self.cmul2(lo(c, 0), lo(x, 0), lo(y, 0), lo(c, 1), lo(x, 1), lo(y, 1))
        mk(2, 1, 1); mk(3, 2, 1); mk(4, 2, 2); mk(5, 4, 1); mk(6, 4, 2); mk(7, 4, 3)
        a('v_mov_b32 v60, 1.0'); a('v_mov_b32 v61, 0'); a('v_mov_b32 v62, 1.0'); a('v_mov_b32 v63, 0')
        put(41, 60, 62, neg=True)
        put(42, 24, 26, neg=True)
        cur = 24; E = [64, 68]
        for j in range(2, 16):
            nx = E[j & 1]
            self.cmul2(nx, cur, 24, nx + 2, cur + 2, 26)
            put(41 + j, nx, nx + 2, neg=True)
            cur = nx
        H = [72, 76]; T = [80, 84]
        cur = 16; tt = 0
        for i in range(17):
            if i == getattr(self, 'KG_MID', -1) and getattr(self, 'kg_hookm', None): self.kg_hookm()
            if i > 0:
                nx = H[i & 1]
                self.cmul2(nx, cur, 28, nx + 2, cur + 2, 30)
                cur = nx
            if i < 2: rows = [(8 * i + c, c) for c in range(8)]
            elif i < 4: rows = [(16 + 4 * (i - 2) + c, 2 * c) for c in range(4)]
            elif i < 8: rows = [(24 + 2 * (i - 4) + c, 4 * c) for c in range(2)]
            else: rows = [(32 + (i - 8), 0)]
            for (row, c) in rows:
                if c == 0:
                    put(row, cur, cur + 2)
                else:
                    t = T[tt]; tt ^= 1
                    self.cmul2(t, cur, lo(c, 0), t + 2, cur + 2, lo(c, 1))
                    put(row, t, t + 2)
        self.stamp('kchain')
        if getattr(self, 'kg_hook1', None): self.kg_hook1()
        a('v_and_b32 v5, 15, v2')
        a('v_lshrrev_b32 v6, 4, v2')
        a(f'v_mul_u32_u24 v11, {ROWB}, v5')
        a('v_lshl_add_u32 v11, v6, 4, v11')
        a('v_add_u32 v11, s61, v11')
        FR = 164
        FR2 = 32
        def fr(kap): return (FR + 16 * kap) if kap < 4 else (FR2 + 16 * (kap - 4))
        for kap in range(8):
            a(f'ds_read_b128 {vr(fr(kap),4)}, v11 offset:{41*ROWB + kap*64}')
            for T_ in range(3):
                a(f'ds_read_b128 {vr(fr(kap)+4+4*T_,4)}, v11 offset:{16*T_*ROWB + kap*64}')
        self.kgen_tbl_addr()
        for kap in range(8):
            a(f's_waitcnt lgkmcnt({min(15, 4*(7-kap))})')
            for T_ in range(3):
                c = '0' if kap == 0 else vr(12 + 4 * T_, 4)
                a(f'v_mfma_f32_16x16x32_bf16 {vr(12+4*T_,4)}, {vr(fr(kap)+4+4*T_,4)}, {vr(fr(kap),4)}, {c}')
        a('v_cvt_pk_bf16_f32 v24, v12, v13'); a('v_cvt_pk_bf16_f32 v25, v14, v15')
        a('ds_write_b64 v7, v[24:25]')
        a('v_cvt_pk_bf16_f32 v26, v16, v17'); a('v_cvt_pk_bf16_f32 v27, v18, v19')
        a('ds_write_b32 v8, v26'); a('ds_write_b32 v9, v27')
        a('v_cvt_pk_bf16_f32 v28, v20, v21'); a('v_cvt_pk_bf16_f32 v29, v22, v23')
        a('ds_write_b16 v10, v28 offset:1024'); a('ds_write_b16_d16_hi v10, v28 offset:1056')
        a('ds_write_b16 v10, v29 offset:1088'); a('ds_write_b16_d16_hi v10, v29 offset:1120')
        self.stamp('kmfma')
        if getattr(self, 'kg_hook2', None): self.kg_hook2()
        self.kgen_tail()

    def kgen_tbl_addr(self):
        a = self.a
        a(f's_add_u32 s6, s61, {self.TBL}')
        a('v_lshrrev_b32 v7, 1, v6'); a('v_lshlrev_b32 v7, 7, v7')
        a('v_and_b32 v8, 1, v6'); a('v_lshl_add_u32 v7, v8, 2, v7')
        a('v_lshl_add_u32 v7, v5, 3, v7')
        a('v_lshl_add_u32 v7, v7, 1, s6')
        a('v_lshlrev_b32 v8, 6, v6')
        a('v_lshlrev_b32 v9, 2, v5')
        a('v_lshlrev_b32 v10, 1, v5')
        a('v_cmp_gt_u32 vcc, 2, v6')
        a('v_cndmask_b32 v9, v10, v9, vcc')
        a('v_add_u32 v8, v8, v9')
        a('v_add_u32 v8, 256, v8')
        a('v_lshl_add_u32 v8, v8, 1, s6')
        a('v_mov_b32 v9, 64')
        a('v_mov_b32 v10, 4')
        a('v_cndmask_b32 v9, v9, v10, vcc')
        a('v_add_u32 v9, v8, v9')
        a('v_lshlrev_b32 v10, 6, v6')
        a('v_add_u32 v10, v10, v5')
        a('v_lshl_add_u32 v10, v10, 1, s6')

    def kgen_tail(self):
        a = self.a
        D = 32
        HI = 70
        for w in range(17):
            a(f'ds_read_u16 v{D+w}, v{self.GA+2*w}')
            a(f'ds_read_u16 v{HI+w}, v{self.GA+2*w+1}')
        a(f'ds_read_u16 v{D+17}, v{self.GA+34}')
        a('v_lshlrev_b32 v7, 6, v2')
        a('v_add_u32 v7, s61, v7')
        a(f'v_add_u32 v8, {2*self.CPY}, v7')
        a(f'v_add_u32 v9, {3*self.CPY}, v7')
        a('v_and_b32 v10, 15, v2')
        a('v_lshlrev_b32 v10, 2, v10')
        a('v_add_u32 v10, s61, v10')
        a('v_mov_b32 v11, 0')
        a('s_waitcnt lgkmcnt(0)')
        for w in range(17):
            a(f'v_lshl_or_b32 v{D+w}, v{HI+w}, 16, v{D+w}')
        a(f'v_writelane_b32 v{D+16}, 0, 63')
        a(f'v_writelane_b32 v{D+17}, 0, 63')
        self.stamp('kgath')
        O = 52
        for w in range(17):
            a(f'v_alignbit_b32 v{O+w}, v{D+w+1}, v{D+w}, 16')
        for i in range(4):
            a(f'ds_write_b128 v7, {vr(D+4*i,4)} offset:{16*i}')
            a(f'ds_write_b128 v7, {vr(O+4*i,4)} offset:{self.CPY+16*i}')
        for i in range(0, 16, 2):
            a(f'ds_write2_b32 v8, v{D+i+1}, v{D+i+2} offset0:{i} offset1:{i+1}')
            a(f'ds_write2_b32 v9, v{O+i+1}, v{O+i+2} offset0:{i} offset1:{i+1}')
        for c in range(4):
            a(f'ds_write_b32 v10, v11 offset:{c*self.CPY+4096}')

    def conv_load_ux(self):
        a = self.a
        a('v_lshrrev_b32 v4, 3, v2')
        a('v_mul_u32_u24 v5, 20480, v4')
        a('v_and_b32 v6, 7, v2')
        a('v_lshl_add_u32 v5, v6, 4, v5')
        a(f's_mul_i32 s5, s{sWAVE}, {64*20480}')
        a('s_lshl_b32 s6, s2, 7')
        a('s_add_u32 s5, s5, s6')
        if BLK: a(f's_add_u32 s5, s5, {BLK}')
        for k in range(8):
            a(f'buffer_load_dwordx4 {vr(160+4*k,4)}, v5, {sr(SRD_WS)}, s5 offen{self.sc}')
            if k < 7: a(f's_add_u32 s5, s5, {8*20480}')
        a('v_lshrrev_b32 v7, 4, v2')
        a('v_xor_b32 v8, v6, v7')
        a('v_xor_b32 v9, 4, v8')
        a('v_lshlrev_b32 v4, 7, v4')
        a(f's_lshl_b32 s6, s{sWAVE}, 13')
        a(f's_add_u32 s6, s6, {self.UXB + 4096}')
        a('v_add_u32 v4, s6, v4')
        a('v_lshl_add_u32 v8, v8, 4, v4')
        a('v_lshl_add_u32 v9, v9, 4, v4')
        a('v_mov_b32 v12, 0'); a('v_mov_b32 v13, 0'); a('v_mov_b32 v14, 0'); a('v_mov_b32 v15, 0')
        a('v_lshlrev_b32 v10, 4, v0')
        a(f'v_add_u32 v10, {self.UXB}, v10')
        a('ds_write_b128 v10, v[12:15]')
        for k in range(8):
            a(f's_waitcnt vmcnt({7-k})')
            a(f'ds_write_b128 v{8 + (k&1)}, {vr(160+4*k,4)} offset:{k*1024}')
        a('s_waitcnt lgkmcnt(0)')
        a('s_barrier')

    def conv_main(self, hook=None):
        a = self.a
        ACC = 12
        bufA = [44, 156]; bufB = [76, 188]
        def reads(b):
            sel = b & 1
            lst = []
            for aa in range(8):
                off = 512 * (7 - aa) + 64 * (7 - b)
                lst.append(f'ds_read_b64 {vr(bufA[sel]+4*aa,2)}, v{self.VA} offset:{off}')
                lst.append(f'ds_read_b64 {vr(bufA[sel]+4*aa+2,2)}, v{self.VA} offset:{off+8}')
            for e in range(8):
                lst.append(f'ds_read_b128 {vr(bufB[sel]+4*e,4)}, v{self.VB+b} offset:{4096*e}')
            order = []
            for k in range(8):
                order += [lst[2*k], lst[2*k+1], lst[16+k]]
            return order
        for r in reads(0): a(r)
        for b in range(8):
            sel = b & 1
            nxt = reads(b + 1) if b < 7 else []
            a('s_waitcnt lgkmcnt(0)')
            n = 0
            for aa in range(8):
                for e in range(8 - aa):
                    t = aa + e
                    c = '0' if (b == 0 and aa == 0) else vr(ACC + 4 * t, 4)
                    a(f'v_mfma_f32_16x16x32_bf16 {vr(ACC+4*t,4)}, {vr(bufA[sel]+4*aa,4)}, {vr(bufB[sel]+4*e,4)}, {c}')
                    if n < len(nxt): a(nxt[n])
                    if hook: hook(b, n)
                    n += 1

    def conv_epilogue(self):
        a = self.a
        ACC = 12
        P = self.PL
        a(f'v_xor_b32 v4, 16, v{self.VEU}')
        for t in range(8):
            a(f'ds_read_b64 {vr(44+4*t,2)}, v{self.VEU} offset:{4096*t}')
            a(f'ds_read_b64 {vr(46+4*t,2)}, v4 offset:{4096*t}')
        a(f'v_lshlrev_b32 v6, 16, v{P+5}')
        a('v_mov_b32 v7, v6')
        for t in range(8):
            a(f's_waitcnt lgkmcnt({2*(7-t)})')
            for h in range(2):
                u = 44 + 4 * t + h; x = 46 + 4 * t + h; y0 = ACC + 4 * t + 2 * h
                a(f'v_lshlrev_b32 v8, 16, v{u}')
                a(f'v_and_b32 v9, 0xffff0000, v{u}')
                a('v_pk_mul_f32 v[8:9], v[8:9], v[6:7]')
                a('v_cvt_pk_bf16_f32 v10, v8, v9')
                a(f'v_cvt_pk_bf16_f32 v11, v{y0}, v{y0+1}')
                a('v_lshlrev_b32 v8, 16, v10')
                a('v_and_b32 v9, 0xffff0000, v10')
                a('v_lshlrev_b32 v76, 16, v11')
                a('v_and_b32 v77, 0xffff0000, v11')
                a('v_pk_add_f32 v[8:9], v[8:9], v[76:77]')
                a('v_cvt_pk_bf16_f32 v10, v8, v9')
                a('v_lshlrev_b32 v8, 16, v10')
                a('v_and_b32 v9, 0xffff0000, v10')
                a(f'v_lshlrev_b32 v76, 16, v{x}')
                a(f'v_and_b32 v77, 0xffff0000, v{x}')
                a('v_pk_add_f32 v[8:9], v[8:9], v[76:77]')
                a(f'v_cvt_pk_bf16_f32 v{80+2*t+h}, v8, v9')
            a(f'ds_write_b64 v{self.VHW}, {vr(80+2*t,2)} offset:{512*t}')
        self.stamp('cep1')
        a('v_bfe_u32 v4, v2, 2, 2')
        a(f'v_mul_u32_u24 v4, {self.WSTRIDE}, v4')
        a('v_lshrrev_b32 v5, 4, v2')
        a('v_lshl_add_u32 v4, v5, 5, v4')
        a('v_and_b32 v6, 3, v2')
        a('v_lshl_add_u32 v4, v6, 3, v4')
        a(f's_lshl_b32 s5, s{sWAVE}, 10')
        a('v_add_u32 v4, s5, v4')
        a('v_mul_u32_u24 v5, 20480, v5')
        a('v_and_b32 v6, 15, v2')
        a('v_lshl_add_u32 v5, v6, 4, v5')
        a(f's_mul_i32 s5, s{sWAVE}, {8*81920}')
        a('s_lshr_b32 s6, s2, 3')
        a('s_lshl_b32 s6, s6, 10')
        a('s_add_u32 s5, s5, s6')
        a('s_bfe_u32 s6, s2, 0x20001')
        a('s_lshl_b32 s6, s6, 8')
        a('s_add_u32 s5, s5, s6')
        a('s_and_b32 s6, s2, 1')
        a('s_lshl_b32 s6, s6, 3')
        a('s_add_u32 s5, s5, s6')
        a(f's_add_u32 s5, s5, {HF}')
        a('s_waitcnt lgkmcnt(0)')
        a('s_barrier')
        for m in range(8):
            a(f'ds_read_b64_tr_b16 {vr(44+2*m,2)}, v4 offset:{128*m}')
        for m in range(8):
            a(f's_waitcnt lgkmcnt({7-m})')
            a(f'buffer_store_dwordx2 {vr(44+2*m,2)}, v5, {sr(SRD_WS)}, s5 offen{self.sc}')
            if m < 7: a('s_add_u32 s5, s5, 81920')

    def p3_ids(self):
        a = self.a
        a('s_and_b32 s66, s2, 7')
        a('s_lshl_b32 s66, s66, 1')
        a('s_bfe_u32 s5, s2, 0x10003')
        a('s_add_u32 s66, s66, s5')
        a('s_lshr_b32 s67, s2, 4')

    def p3_w1_dma(self):
        a = self.a
        a('v_lshlrev_b32 v3, 4, v2')
        a(f's_mul_i32 s5, s67, {140*1024}')
        a(f's_lshl_b32 s6, s{sWAVE}, 10')
        a('s_add_u32 s5, s5, s6')
        a(f's_add_u32 s5, s5, {W1F}')
        a('s_mov_b32 m0, s6')
        for i in range(35):
            a(f'buffer_load_dwordx4 v3, {sr(SRD_WS)}, s5 offen{self.sc} lds')
            if i < 34:
                a('s_add_u32 m0, m0, 4096')
                a('s_add_u32 s5, s5, 4096')
        return 35

    P3H = 96
    def p3_h_loads(self):
        a = self.a
        a('v_lshlrev_b32 v3, 4, v2')
        a('s_lshl_b32 s5, s66, 3')
        a(f's_lshl_b32 s6, s{sWAVE}, 1')
        a('s_add_u32 s5, s5, s6')
        a('s_mul_i32 s5, s5, 20480')
        a(f's_add_u32 s5, s5, {HF}')
        a('s_add_u32 s6, s5, 20480')
        for kap in range(20):
            for lt in range(2):
                base = 's5' if lt == 0 else 's6'
                a(f'buffer_load_dwordx4 {vr(self.P3H+(2*kap+lt)*4,4)}, v3, {sr(SRD_WS)}, {base} offen offset:{(kap%4)*1024}{self.sc}')
            if kap % 4 == 3 and kap < 19:
                a('s_add_u32 s5, s5, 4096'); a('s_add_u32 s6, s6, 4096')
        return 40

    def p3_s_load(self):
        a = self.a
        a('v_lshrrev_b32 v3, 4, v2')
        a('v_lshlrev_b32 v3, 4, v3')
        a('s_mul_i32 s5, s67, 448')
        a(f's_add_u32 s5, s5, {SP}')
        for t in range(7):
            a(f'buffer_load_dwordx4 {vr(64+4*t,4)}, v3, {sr(SRD_WS)}, s5 offen offset:{64*t}{self.sc}')
        return 7

    def p3_b1_load(self):
        a = self.a
        self.srd(SRD_B, P_B1, 1728 * 2)
        a('s_lshr_b32 s5, s67, 1'); a('s_mul_i32 s5, s5, 14')
        a('s_and_b32 s6, s67, 1'); a('s_lshl_b32 s7, s6, 3'); a('s_add_u32 s5, s5, s7')
        a('s_sub_u32 s7, s67, 12'); a('s_mul_i32 s7, s7, 6'); a('s_add_u32 s7, s7, 84')
        a('s_cmp_lt_u32 s67, 12')
        a('s_cselect_b32 s5, s5, s7')
        a('s_add_u32 s7, s5, 6'); a('s_sub_u32 s68, s5, 1')
        a('s_cmp_eq_u32 s6, 0'); a('s_cselect_b32 s7, s7, s68')
        a('s_add_u32 s68, s5, 5')
        a('s_cmp_lt_u32 s67, 12'); a('s_cselect_b32 s7, s7, s68')
        a('s_mov_b32 s68, s5')
        a('s_mov_b32 s69, s7')
        a('s_lshl_b32 s5, s5, 5'); a('s_lshl_b32 s7, s7, 5')
        a('v_lshrrev_b32 v94, 4, v2')
        a('v_lshlrev_b32 v94, 3, v94')
        for t in range(6):
            a(f'buffer_load_dwordx2 {vr(96+2*t,2)}, v94, {sr(SRD_B)}, s5 offen offset:{32*t}')
        a(f'buffer_load_dwordx2 {vr(108,2)}, v94, {sr(SRD_B)}, s7 offen')
        return 7

    def p3_main(self, hwait):
        a = self.a
        ACC = 8
        WB = [200, 228]
        a('v_lshlrev_b32 v3, 4, v2')
        a('s_mov_b32 s70, 0x3f803f80')
        a('v_add_u32 v92, 0x10000, v3')
        a('v_add_u32 v93, 0x20000, v3')
        def rd(kap, t):
            off = (kap * 7 + t) * 1024
            reg = ['v3', 'v92', 'v93'][off >> 16]
            return f'ds_read_b128 {ar(WB[kap&1]+4*t,4)}, {reg} offset:{off & 0xffff}'
        for t in range(7): a(rd(0, t))
        for kap in range(20):
            a(f's_waitcnt vmcnt({hwait(kap)}) lgkmcnt(0)')
            h0 = self.P3H + (2 * kap) * 4; h1 = h0 + 4
            extra = []
            if kap < 19: extra += [rd(kap + 1, t) for t in range(7)]
            dots = []
            for lt, h in ((0, h0), (1, h1)):
                for j in range(4):
                    if kap == 0 and j == 0:
                        dots.append(f'v_dot2_f32_bf16 v{4+2*lt}, v{h+j}, s70, 0')
                        dots.append(f'v_dot2_f32_bf16 v{5+2*lt}, v{h+j}, v{h+j}, 0')
                    else:
                        dots.append(f'v_dot2_f32_bf16 v{4+2*lt}, v{h+j}, s70, v{4+2*lt}')
                        dots.append(f'v_dot2_f32_bf16 v{5+2*lt}, v{h+j}, v{h+j}, v{5+2*lt}')
            n = 0
            for t in range(7):
                for lt, h in ((0, h0), (1, h1)):
                    acc = ACC + (t * 2 + lt) * 4
                    c = '0' if kap == 0 else vr(acc, 4)
                    a(f'v_mfma_f32_16x16x32_bf16 {vr(acc,4)}, {ar(WB[kap&1]+4*t,4)}, {vr(h,4)}, {c}')
                    if extra: a(extra.pop(0)) if n % 2 == 0 else None
                    if dots: a(dots.pop(0))
                    n += 1
            for e in extra: a(e)
            for d in dots: a(d)
            if self.p3_hook: self.p3_hook(kap)

    def p3_epilogue(self):
        a = self.a
        ACC = 8
        for v in (4, 5, 6, 7):
            a(f'v_mov_b32 v94, v{v}')
            a(f'v_permlane16_swap_b32 v{v}, v94')
            a(f'v_add_f32 v{v}, v{v}, v94')
            a(f'v_mov_b32 v94, v{v}')
            a(f'v_permlane32_swap_b32 v{v}, v94')
            a(f'v_add_f32 v{v}, v{v}, v94')
        for lt in range(2):
            s_, q_ = 4 + 2 * lt, 5 + 2 * lt
            a(f'v_mul_f32 v{s_}, {f2u(1.0/640):#x}, v{s_}')
            a(f'v_mul_f32 v{q_}, {f2u(1.0/640):#x}, v{q_}')
            a(f'v_fma_f32 v{q_}, -v{s_}, v{s_}, v{q_}')
            a(f'v_max_f32 v{q_}, 0, v{q_}')
            self.bf16r(s_, s_)
            self.bf16r(q_, q_)
            a(f'v_add_f32 v{q_}, {f2u(1e-5):#x}, v{q_}')
            self.bf16r(q_, q_)
            a(f'v_sqrt_f32 v{q_}, v{q_}')
            self.bf16r(q_, q_)
            R = 112 + 4 * lt
            a(f'v_rcp_f32 v{R}, v{q_}')
            a(f'v_mov_b32 v{R+2}, v{s_}')
            a(f'v_mov_b32 v{R+1}, v{R}')
            a(f'v_mov_b32 v{R+3}, v{s_}')
        a('s_mov_b32 s70, 0x00003f80')
        a('s_mov_b32 s71, 0x3f800000')
        a('s_waitcnt vmcnt(0)')
        for t in range(7):
            for h in range(2):
                a(f'v_lshlrev_b32 v{120+4*t+2*h}, 16, v{96+2*t+h}')
                a(f'v_and_b32 v{120+4*t+2*h+1}, 0xffff0000, v{96+2*t+h}')
        OUT = 150
        def outreg(t, lt):
            if t < 6: return OUT + ((t >> 1) * 2 + lt) * 4 + (t & 1) * 2
            return OUT + 24 + lt * 2
        for t in range(7):
            for lt in range(2):
                acc = ACC + (t * 2 + lt) * 4
                R = 112 + 4 * lt
                for h in range(2):
                    x = acc + 2 * h; S = 64 + 4 * t + 2 * h; B = 120 + 4 * t + 2 * h
                    a(f'v_pk_fma_f32 {vr(x,2)}, {vr(S,2)}, {vr(R+2,2)}, {vr(x,2)} neg_lo:[1,0,0] neg_hi:[1,0,0]')
                    a(f'v_pk_mul_f32 {vr(x,2)}, {vr(x,2)}, {vr(R,2)}')
                    a(f'v_cvt_pk_bf16_f32 v94, v{x}, v{x+1}')
                    a(f'v_dot2_f32_bf16 v{x}, v94, s70, v{B}')
                    a(f'v_dot2_f32_bf16 v{x+1}, v94, s71, v{B+1}')
                    a(f'v_cvt_pk_bf16_f32 v94, v{x}, v{x+1}')
                    a('v_pk_max_i16 v94, v94, 0')
                    a(f'v_lshlrev_b32 v{x}, 16, v94')
                    a(f'v_and_b32 v{x+1}, 0xffff0000, v94')
                    a(f'v_pk_mul_f32 {vr(x,2)}, {vr(x,2)}, {vr(x,2)}')
                    a(f'v_cvt_pk_bf16_f32 v{outreg(t,lt)+h}, v{x}, v{x+1}')
        a('v_lshlrev_b32 v3, 4, v2')
        a('s_lshl_b32 s5, s66, 3')
        a(f's_lshl_b32 s6, s{sWAVE}, 1')
        a('s_add_u32 s5, s5, s6')
        a(f's_mul_i32 s5, s5, {54*1024}')
        a(f's_add_u32 s5, s5, {HH}')
        a('s_lshr_b32 s6, s68, 1')
        a('s_lshl_b32 s6, s6, 10')
        a('s_add_u32 s6, s6, s5')
        a(f's_add_u32 s7, s6, {54*1024}')
        for p in range(3):
            for lt, sb in ((0, 's6'), (1, 's7')):
                a(f'buffer_store_dwordx4 {vr(OUT+(p*2+lt)*4,4)}, v3, {sr(SRD_WS)}, {sb} offen offset:{1024*p}{self.sc}')
        Lsk = a.label('Lp3s')
        a('s_cmp_ge_u32 s67, 12')
        a(f's_cbranch_scc1 {Lsk}')
        a('s_lshr_b32 s6, s69, 1')
        a('s_lshl_b32 s6, s6, 10')
        a('s_and_b32 s7, s69, 1')
        a('s_lshl_b32 s7, s7, 3')
        a('s_add_u32 s6, s6, s7')
        a('s_add_u32 s6, s6, s5')
        a(f's_add_u32 s7, s6, {54*1024}')
        for lt, sb in ((0, 's6'), (1, 's7')):
            a(f'buffer_store_dwordx2 {vr(OUT+24+lt*2,2)}, v3, {sr(SRD_WS)}, {sb} offen{self.sc}')
        a(f'{Lsk}:')

    def p4_ids(self):
        a = self.a
        a('s_and_b32 s72, s2, 7')
        a('s_lshl_b32 s72, s72, 2')
        a('s_bfe_u32 s5, s2, 0x20003')
        a('s_add_u32 s72, s72, s5')
        a('s_lshr_b32 s73, s2, 5')
        a(f's_mul_i32 s74, s{sWAVE}, 14')
        a(f's_cmp_eq_u32 s{sWAVE}, 3')
        a('s_cselect_b32 s5, 1, 0')
        a('s_sub_u32 s74, s74, s5')
        a(f's_cmp_ge_u32 s{sWAVE}, 2')
        a('s_cselect_b32 s75, 12, 13')

    def w2reg(self, idx):
        if idx < 64: return ar(4 * idx, 4)
        return vr(88 + 4 * (idx - 64), 4)

    def p4_w2_loads(self, lo, hi):
        a = self.a
        a('v_lshlrev_b32 v3, 4, v2')
        a('s_mul_i32 s5, s73, 54')
        a('s_add_u32 s5, s5, s74')
        a('s_mul_i32 s5, s5, 5120')
        a(f's_add_u32 s5, s5, {W2F}')
        a('s_mul_i32 s6, s75, 5120')
        a('s_add_u32 s6, s6, s5')
        n = 0
        cur = None
        for idx in range(lo, hi):
            kk, t = divmod(idx, 5)
            if kk < 13:
                off = idx * 1024
                blk = off // 4096
                if cur != blk:
                    a(f's_add_u32 s7, s5, {blk*4096}')
                    cur = blk
                a(f'buffer_load_dwordx4 {self.w2reg(idx)}, v3, {sr(SRD_WS)}, s7 offen offset:{off%4096}{self.sc}')
            else:
                if t < 4:
                    a(f'buffer_load_dwordx4 {self.w2reg(idx)}, v3, {sr(SRD_WS)}, s6 offen offset:{t*1024}{self.sc}')
                else:
                    a('s_add_u32 s7, s6, 4096')
                    a(f'buffer_load_dwordx4 {self.w2reg(idx)}, v3, {sr(SRD_WS)}, s7 offen{self.sc}')
            n += 1
        return n

    P4H = 112
    def p4_h_setup(self):
        a = self.a
        a('v_lshlrev_b32 v3, 4, v2')
        a('s_lshl_b32 s5, s72, 2')
        a('s_mul_i32 s5, s5, 54')
        a('s_add_u32 s5, s5, s74')
        a('s_lshl_b32 s5, s5, 10')
        a(f's_add_u32 s76, s5, {HH}')
        for lt in range(1, 4):
            a(f's_add_u32 s{76+lt}, s76, {lt*54*1024}')
        a('s_lshl_b32 s80, s75, 10')

    def p4_h_load(self, kk):
        a = self.a
        slot = kk % 9
        for lt in range(4):
            reg = vr(self.P4H + slot * 16 + lt * 4, 4)
            if kk < 13:
                if kk < 4:
                    a(f'buffer_load_dwordx4 {reg}, v3, {sr(SRD_WS)}, s{76+lt} offen offset:{kk*1024}{self.sc}')
                else:
                    a(f's_add_u32 s5, s{76+lt}, {kk*1024}')
                    a(f'buffer_load_dwordx4 {reg}, v3, {sr(SRD_WS)}, s5 offen{self.sc}')
            else:
                a(f's_add_u32 s5, s{76+lt}, s80')
                a(f'buffer_load_dwordx4 {reg}, v3, {sr(SRD_WS)}, s5 offen{self.sc}')
        return 4

    def p4_main(self):
        a = self.a
        ACC = 8
        for kk in range(14):
            issued_to = min(8 + kk, 13)
            a(f's_waitcnt vmcnt({(issued_to - kk) * 4})')
            Lsk = None
            if kk == 13:
                Lsk = a.label('Lp4s')
                a(f's_cmp_ge_u32 s{sWAVE}, 2')
                a(f's_cbranch_scc1 {Lsk}')
            slot = kk % 9
            for t in range(5):
                for lt in range(4):
                    acc = ACC + (t * 4 + lt) * 4
                    c = '0' if kk == 0 else vr(acc, 4)
                    a(f'v_mfma_f32_16x16x32_bf16 {vr(acc,4)}, {self.w2reg(kk*5+t)}, {vr(self.P4H+slot*16+lt*4,4)}, {c}')
            if Lsk: a(f'{Lsk}:')
            if kk + 9 <= 13: self.p4_h_load(kk + 9)

    def p4_epilogue(self):
        a = self.a
        ACC = 8
        self.srd(SRD_B, P_B2, 640 * 2)
        a('v_and_b32 v4, 15, v2')
        a('v_lshrrev_b32 v5, 4, v2')
        a('s_mul_i32 s5, s73, 20')
        a('s_lshl_b32 s6, s72, 2')
        a(f's_add_u32 s6, s6, s{sWAVE}')
        a('s_mul_i32 s7, s6, 20480')
        a(f's_add_u32 s7, s7, {HF}')
        for t in range(5):
            a(f'v_add_u32 v6, s5, v5')
            a(f'v_add_u32 v6, {4*t}, v6')
            a('v_lshrrev_b32 v7, 3, v6')
            a('v_lshlrev_b32 v7, 10, v7')
            a('v_bfe_u32 v88, v6, 1, 2')
            a('v_lshl_add_u32 v7, v88, 8, v7')
            a('v_and_b32 v88, 1, v6')
            a('v_lshl_add_u32 v7, v88, 3, v7')
            a('v_lshl_add_u32 v7, v4, 4, v7')
            a(f'buffer_load_dwordx2 {vr(112+2*t,2)}, v7, {sr(SRD_WS)}, s7 offen{self.sc}')
            a('v_lshlrev_b32 v6, 3, v6')
            a(f'buffer_load_dwordx2 {vr(132+2*t,2)}, v6, {sr(SRD_B)}, 0 offen')
        a('v_lshlrev_b32 v3, 4, v2')
        a(f's_mul_i32 s5, s{sWAVE}, 20480')
        a('v_add_u32 v6, s5, v3')
        for tl in range(20):
            a(f'ds_write_b128 v6, {vr(ACC+4*tl,4)} offset:{1024*tl}')
        a('s_waitcnt lgkmcnt(0)')
        a('s_barrier')
        a(f's_lshl_b32 s5, s{sWAVE}, 10')
        a('v_add_u32 v6, s5, v3')
        a('v_add_u32 v7, 40960, v6')
        for t in range(5):
            for w in range(4):
                reg = 'v6' if w < 2 else 'v7'
                a(f'ds_read_b128 {vr(144+(t*4+w)*4,4)}, {reg} offset:{(w&1)*20480 + t*4096}')
        self.srd(SRD_A, P_OUT, 2048 * 1280)
        a('s_lshl_b32 s5, s72, 6')
        a(f's_lshl_b32 s6, s{sWAVE}, 4')
        a('s_add_u32 s5, s5, s6')
        a('s_mul_i32 s5, s5, 1280')
        a('s_mul_i32 s6, s73, 160')
        a('s_add_u32 s5, s5, s6')
        a('v_mul_u32_u24 v4, 1280, v4')
        a('v_lshl_add_u32 v4, v5, 3, v4')
        a('s_mov_b32 s70, 0x00003f80')
        a('s_mov_b32 s71, 0x3f800000')
        a('s_waitcnt vmcnt(0)')
        for t in range(5):
            a(f's_waitcnt lgkmcnt({min(15, 4*(4-t))})')
            R = 144 + t * 16
            for h in range(2):
                x = R + 2 * h
                a(f'v_pk_add_f32 {vr(x,2)}, {vr(x,2)}, {vr(x+4,2)}')
                a(f'v_pk_add_f32 {vr(x+8,2)}, {vr(x+8,2)}, {vr(x+12,2)}')
                a(f'v_pk_add_f32 {vr(x,2)}, {vr(x,2)}, {vr(x+8,2)}')
                a(f'v_cvt_pk_bf16_f32 v88, v{x}, v{x+1}')
                b = 132 + 2 * t + h; hh = 112 + 2 * t + h
                a(f'v_lshlrev_b32 v90, 16, v{b}')
                a(f'v_and_b32 v91, 0xffff0000, v{b}')
                a(f'v_dot2_f32_bf16 v{x}, v88, s70, v90')
                a(f'v_dot2_f32_bf16 v{x+1}, v88, s71, v91')
                a(f'v_cvt_pk_bf16_f32 v88, v{x}, v{x+1}')
                a(f'v_lshlrev_b32 v90, 16, v{hh}')
                a(f'v_and_b32 v91, 0xffff0000, v{hh}')
                a(f'v_dot2_f32_bf16 v{x}, v88, s70, v90')
                a(f'v_dot2_f32_bf16 v{x+1}, v88, s71, v91')
                a(f'v_cvt_pk_bf16_f32 v{R+4+h}, v{x}, v{x+1}')
            a(f'buffer_store_dwordx2 {vr(R+4,2)}, v4, {sr(SRD_A)}, s5 offen offset:{32*t}')

def kernel_header(name):
    return f""".globl {name}
.p2align 8
.type {name},@function
{name}:
"""

def kernel_desc(name, vgpr=512, sgpr=102):
    acc = 256 if vgpr > 256 else (vgpr + 3) // 4 * 4
    return f""".p2align 6
.amdhsa_kernel {name}
  .amdhsa_next_free_vgpr {vgpr}
  .amdhsa_next_free_sgpr {sgpr}
  .amdhsa_accum_offset {acc}
  .amdhsa_group_segment_fixed_size 0
  .amdhsa_kernarg_size 120
  .amdhsa_user_sgpr_count 2
  .amdhsa_user_sgpr_kernarg_segment_ptr 1
  .amdhsa_system_sgpr_workgroup_id_x 1
.end_amdhsa_kernel
"""

LDS_SIZE = 163840

def build_multi(debug=False):
    out = []
    names = [f'k{i}_kernel' for i in range(1, 5)]
    for n in names:
        out.append(f'; @launch kernel={n} grid=(256,1,1) block=(256,1,1) lds={LDS_SIZE}')
    out.append('.amdgcn_target "amdgcn-amd-amdhsa--gfx950"')
    out.append('.text')
    g = Gen(False, debug); g.kname = 'k1'; a = g.a
    g.stamp('start')
    g.prologue()
    g.stamp('prol')
    g.ln1_issue()
    Lc = a.label('Lk1c')
    a('s_mov_b32 s60, 0')
    a('s_cmp_lt_u32 s2, 160'); a(f's_cbranch_scc1 {Lc}')
    g.prep_issue()
    a(f'{Lc}:')
    g.ln1_compute_multi()
    g.stamp('ln1')
    g.prep_compute()
    g.stamp_flush(0)
    g.end()
    out.append(kernel_header(names[0])); out += a.finalize()
    g = Gen(False, debug); g.kname = 'k2'; a = g.a
    g.stamp('start')
    g.prologue()
    a('s_cmp_ge_u32 s2, 160'); a('s_cbranch_scc1 L_end_k2')
    n = g.kgen_issue()
    g.p2_consts()
    g.stamp('consts')
    g.kgen(0)
    g.stamp('kgen')
    if debug:
        g.dump_kc()
    g.conv_load_ux()
    g.stamp('ux')
    g.conv_main()
    g.stamp('main')
    g.conv_epilogue()
    g.stamp_flush(1)
    g.end()
    out.append(kernel_header(names[1])); out += a.finalize()
    g = Gen(False, debug); g.kname = 'k3'; a = g.a
    g.stamp('start')
    g.prologue()
    g.p3_ids()
    g.p3_w1_dma()
    a('s_waitcnt vmcnt(10)')
    g.p3_h_loads()
    g.p3_s_load()
    g.stamp('issued')
    a('s_waitcnt vmcnt(47)')
    a('s_barrier')
    g.stamp('w1')
    state = {'later': 7}
    def hook(kap):
        if kap == 2:
            state['later'] += g.p3_b1_load()
    g.p3_hook = hook
    g.p3_main(lambda kap: (40 - 2 * (kap + 1)) + state['later'])
    g.stamp('main')
    g.p3_epilogue()
    g.stamp_flush(2)
    g.end()
    out.append(kernel_header(names[2])); out += a.finalize()
    g = Gen(False, debug); g.kname = 'k4'; a = g.a
    g.stamp('start')
    g.prologue()
    g.p4_ids()
    g.p4_w2_loads(0, 50)
    a('s_waitcnt vmcnt(0)')
    g.p4_w2_loads(50, 70)
    g.p4_h_setup()
    for kk in range(9): g.p4_h_load(kk)
    g.stamp('issued')
    g.p4_main()
    g.stamp('main')
    g.p4_epilogue()
    g.stamp_flush(3)
    g.end()
    out.append(kernel_header(names[3])); out += a.finalize()
    out.append('.section .rodata,"a"')
    for n in names: out.append(kernel_desc(n))
    return '\n'.join(out) + '\n'

def build_fused(debug=False):
    out = []
    kn = NAME + '_kernel'
    out.append(f'; @launch grid=(256,1,1) block=(256,1,1) lds={LDS_SIZE}')
    out.append('.amdgcn_target "amdgcn-amd-amdhsa--gfx950"')
    out.append('.text')
    g = Gen(True, debug); g.kname = 'f'; a = g.a
    if g.timing:
        for i in range(16): a(f's_mov_b32 s{86+i}, 0')
    g.stamp('start')
    g.prologue()
    g.sync_setup()
    g.ln1_issue()
    Laux = a.label('Laux'); Lp3 = a.label('Lp3')
    a('s_mov_b32 s60, 0')
    a('s_cmp_lt_u32 s2, 160'); a(f's_cbranch_scc0 {Laux}')
    g.kgen_issue()
    g.p2_consts()
    g.ln1_compute(6)
    g.stamp('lnst')
    g.signal(1)
    g.stamp('ln1')
    g.kgen(0)
    g.stamp('kgen')
    g.wait_flags(1, 'all')
    g.stamp('B1')
    g.conv_load_ux()
    g.stamp('ux')
    g.conv_main()
    g.stamp('conv')
    g.conv_epilogue()
    g.stamp('cep2')
    g.signal(2)
    a(f's_branch {Lp3}')
    a(f'{Laux}:')
    g.prep_issue()
    g.ln1_compute(0)
    g.signal(1)
    g.prep_compute()
    g.signal(2)
    a(f'{Lp3}:')
    g.stamp('P2end')
    g.p3_ids()
    g.wait_flags(2, 'all')
    g.stamp('B2')
    g.p3_w1_dma()
    a('s_waitcnt vmcnt(10)')
    g.p3_h_loads()
    g.p3_s_load()
    g.stamp('p3iss')
    a('s_waitcnt vmcnt(47)')
    a('s_barrier')
    g.stamp('p3w1')
    state = {'later': 7}
    def hook(kap):
        if kap == 2:
            state['later'] += g.p3_b1_load()
    g.p3_hook = hook
    g.p3_main(lambda kap: (40 - 2 * (kap + 1)) + state['later'])
    g.stamp('p3main')
    g.p3_epilogue()
    g.stamp('p3ep')
    g.signal(3)
    g.stamp('P3end')
    g.p4_ids()
    a('s_lshr_b32 s82, s72, 1')
    g.p4_w2_loads(0, 50)
    a('s_waitcnt vmcnt(0)')
    g.p4_w2_loads(50, 70)
    g.stamp('p4w2')
    g.wait_flags(3, 'row')
    g.stamp('B3')
    g.p4_h_setup()
    for kk in range(9): g.p4_h_load(kk)
    g.p4_main()
    g.stamp('p4main')
    g.p4_epilogue()
    g.stamp_flush(0)
    g.end()
    out.append(kernel_header(kn)); out += a.finalize()
    out.append('.section .rodata,"a"')
    out.append(kernel_desc(kn))
    return '\n'.join(out) + '\n'

if __name__ == '__main__':
    mode = sys.argv[1]; dst = sys.argv[2]
    debug = 'debug' in sys.argv[3:]
    TIMING = 'timing' in sys.argv[3:]
    for x in sys.argv[3:]:
        if x.startswith('set='): STAMPSET = set(x[4:].split(','))
    if mode == 'multi': s = build_multi(debug)
    if mode == 'fused': s = build_fused(debug)
    open(dst, 'w').write(s)
    print('wrote', dst, len(s), 'bytes')
```

```python
import sys
sys.path.insert(0, 'work')
import gen, gen2
from gen import sr, vr, ar, f2u, sWAVE, SRD_A, SRD_WS, SRD_B, SRD_C, SRD_D
from gen import P_X, P_LA, P_AI, P_CR, P_CI, P_LDT, P_DSK, P_W1, P_B1, P_W2, P_B2, P_OUT, P_DBG, P_WS
from gen import kernel_header, kernel_desc, NAME
from gen2 import G2, BLK, HF, W1F, W2F, SP, HH, EPX, LDS_SIZE, NK2

BFL1 = 0x2001000
BFL2 = 0x2003000
PFL  = 0x2005000
RFL  = 0x2008000
UFL  = 0x200A000

class G3(G2):
    S2 = False
    def code_prefetch(self):
        a = self.a
        L = a.label('Lcp')
        a('s_getpc_b64 s[46:47]')
        a(f'{L}_pc:')
        a(f's_sub_u32 s46, s46, {L}_pc-{NAME}_kernel')
        a('s_subb_u32 s47, s47, 0')
        a('s_lshr_b32 s5, s2, 3')
        a('s_lshl_b32 s5, s5, 2')
        a(f's_add_u32 s5, s5, s{sWAVE}')
        a('s_min_u32 s5, s5, (L_end_f-%s_kernel)/1024-1' % NAME)
        a('s_lshl_b32 s5, s5, 10')
        a('v_lshlrev_b32 v97, 4, v2')
        a('v_add_u32 v97, s5, v97')
        a('global_load_dwordx4 v[232:235], v97, s[46:47]')

    def flag_signal(self, base, drain=True):
        a = self.a
        L = a.label('Lsig')
        if drain: a('s_waitcnt vmcnt(0) lgkmcnt(0)')
        else: a('s_waitcnt lgkmcnt(0)')
        a('s_barrier')
        a(f's_cmp_eq_u32 s{sWAVE}, 0')
        a(f's_cbranch_scc0 {L}')
        a('v_lshlrev_b32 v5, 10, v2')
        a('s_lshl_b32 s5, s2, 2')
        a(f's_add_u32 s5, s5, {base}')
        a('v_mov_b32 v4, s83')
        a('s_mov_b64 exec, 0xff')
        a(f'buffer_store_dword v4, v5, {sr(SRD_WS)}, s5 offen sc1')
        a('s_mov_b64 exec, -1')
        a(f'{L}:')

    def flag_poll(self, base, lanes=None, publish_epoch=False):
        a = self.a
        Lp = a.label('Lpoll'); Ld = a.label('Lpolld'); Lx = a.label('Lpollx')
        a('v_lshlrev_b32 v4, 4, v2')
        a('s_and_b32 s5, s2, 7')
        a('s_lshl_b32 s5, s5, 10')
        a(f's_add_u32 s5, s5, {base}')
        a('s_mov_b32 s6, 0')
        if lanes:
            lo, hi = lanes
            m = ((1 << hi) - 1) ^ ((1 << lo) - 1)
            a(f's_mov_b32 s62, {m & 0xffffffff:#x}'); a(f's_mov_b32 s63, {m >> 32:#x}')
        a(f'{Lp}:')
        a(f'buffer_load_dwordx4 v[8:11], v4, {sr(SRD_WS)}, s5 offen sc1')
        a('s_waitcnt vmcnt(0)')
        a('v_xor_b32 v8, s83, v8'); a('v_xor_b32 v9, s83, v9'); a('v_xor_b32 v10, s83, v10'); a('v_xor_b32 v11, s83, v11')
        a('v_or_b32 v8, v8, v9')
        a('v_or3_b32 v8, v8, v10, v11')
        a('v_cmp_ne_u32 vcc, 0, v8')
        if lanes:
            a('s_and_b64 vcc, vcc, s[62:63]')
        a(f's_cbranch_vccz {Ld}')
        a('s_sleep 1')
        a('s_add_u32 s6, s6, 1')
        a('s_cmp_lt_u32 s6, 0x40000')
        a(f's_cbranch_scc1 {Lp}')
        a(f'{Ld}:')
        if publish_epoch:
            a('s_cmp_eq_u32 s2, 0')
            a(f's_cbranch_scc0 {Lx}')
            a('s_mov_b64 exec, 1')
            a('v_mov_b32 v4, s83')
            a(f'v_mov_b32 v5, {EPX}')
            a(f'buffer_store_dword v4, v5, {sr(SRD_WS)}, 0 offen sc1')
            a('s_mov_b64 exec, -1')
            a(f'{Lx}:')

    def flag_wait(self, base, lanes=None, publish_epoch=False, drain=False, mid=None):
        a = self.a
        Lo = a.label('Lpollo')
        if mid:
            a('s_waitcnt vmcnt(0)')
            mid()
        a(f's_cmp_eq_u32 s{sWAVE}, 0')
        a(f's_cbranch_scc0 {Lo}')
        self.flag_poll(base, lanes, publish_epoch)
        a(f'{Lo}:')
        if drain: a('s_waitcnt vmcnt(0)')
        a('s_barrier')

    def row_flag_store(self):
        a = self.a
        a('s_lshl_b32 s5, s66, 7')
        a('s_lshl_b32 s6, s67, 2')
        a('s_add_u32 s5, s5, s6')
        a(f's_add_u32 s5, s5, {RFL}')
        a('s_mov_b64 exec, 1')
        a('v_mov_b32 v4, s83')
        a('v_mov_b32 v5, 0')
        a(f'buffer_store_dword v4, v5, {sr(SRD_WS)}, s5 offen sc1')
        a('s_mov_b64 exec, -1')

    def row_poll(self):
        a = self.a
        Lp = a.label('Lpoll'); Ld = a.label('Lpolld')
        a('v_and_b32 v4, 15, v2')
        a('v_lshlrev_b32 v4, 2, v4')
        a('s_lshr_b32 s5, s72, 1')
        a('s_lshl_b32 s5, s5, 7')
        a(f's_add_u32 s5, s5, {RFL}')
        a('s_mov_b32 s6, 0')
        a(f'{Lp}:')
        a(f'buffer_load_dword v5, v4, {sr(SRD_WS)}, s5 offen sc1')
        a('s_waitcnt vmcnt(0)')
        a('v_cmp_ne_u32 vcc, s83, v5')
        a(f's_cbranch_vccz {Ld}')
        a('s_sleep 1')
        a('s_add_u32 s6, s6, 1')
        a('s_cmp_lt_u32 s6, 0x40000')
        a(f's_cbranch_scc1 {Lp}')
        a(f'{Ld}:')


    TILE = 20992
    def ln1x_issue(self):
        a = self.a
        self.srd(SRD_A, P_X, 2048 * 1280)
        a('v_lshrrev_b32 v3, 5, v0')
        a('v_and_b32 v4, 31, v0')
        a('v_mul_u32_u24 v5, 0x500, v3')
        a('v_lshl_add_u32 v5, v4, 3, v5')
        a('s_mov_b32 s82, s2')
        a('s_mov_b32 s81, 1')
        a('s_mul_i32 s3, s82, 10240')
        for k, R in enumerate((8,)):
            L = None
            if k == 2:
                L = a.label('Lln'); a('s_cmp_lt_u32 s81, 3'); a(f's_cbranch_scc1 {L}')
            for q in range(5):
                a(f'buffer_load_dwordx2 {vr(R+2*q,2)}, v5, {sr(SRD_A)}, s3 offen offset:{256*q}')
            if k < 2: a(f's_add_u32 s3, s3, {96*10240}')
            if L: a(f'{L}:')

    def ln1x_compute(self, nlater, after_arrival=None):
        a = self.a
        F = 20
        a('v_mul_u32_u24 v6, 2624, v3')
        a('v_lshl_add_u32 v6, v4, 4, v6')
        a('s_mov_b32 s80, 0')
        a(f's_waitcnt vmcnt({nlater})')
        self.stamp('xarr')
        if after_arrival: after_arrival()
        Lp = a.label('Llnl')
        a(f'{Lp}:')
        for k in range(10):
            a(f'v_lshlrev_b32 v{F+2*k}, 16, v{8+k}')
            a(f'v_and_b32 v{F+2*k+1}, 0xffff0000, v{8+k}')
        a(f'v_pk_add_f32 v[40:41], {vr(F,2)}, {vr(F+2,2)}')
        a(f'v_pk_add_f32 v[42:43], {vr(F+4,2)}, {vr(F+6,2)}')
        for k in range(4, 10, 2):
            a(f'v_pk_add_f32 v[40:41], v[40:41], {vr(F+2*k,2)}')
            a(f'v_pk_add_f32 v[42:43], v[42:43], {vr(F+2*k+2,2)}')
        a('v_pk_add_f32 v[40:41], v[40:41], v[42:43]')
        a('v_add_f32 v40, v40, v41')
        self.rowsum32(40, 41)
        a(f'v_mul_f32 v40, {f2u(1.0/640):#x}, v40')
        a('v_mov_b32 v41, v40')
        D = 48
        for k in range(10):
            a(f'v_pk_add_f32 {vr(D+2*k,2)}, {vr(F+2*k,2)}, v[40:41] neg_lo:[0,1] neg_hi:[0,1]')
        a(f'v_pk_mul_f32 v[42:43], {vr(D,2)}, {vr(D,2)}')
        a(f'v_pk_mul_f32 v[44:45], {vr(D+2,2)}, {vr(D+2,2)}')
        for k in range(2, 10, 2):
            a(f'v_pk_fma_f32 v[42:43], {vr(D+2*k,2)}, {vr(D+2*k,2)}, v[42:43]')
            a(f'v_pk_fma_f32 v[44:45], {vr(D+2*k+2,2)}, {vr(D+2*k+2,2)}, v[44:45]')
        a('v_pk_add_f32 v[42:43], v[42:43], v[44:45]')
        a('v_add_f32 v42, v42, v43')
        self.rowsum32(42, 43)
        a(f'v_mul_f32 v42, {f2u(1.0/640):#x}, v42')
        a('v_cvt_pk_bf16_f32 v42, v42, v40')
        a('v_and_b32 v40, 0xffff0000, v42')
        a('v_lshlrev_b32 v42, 16, v42')
        a('v_mov_b32 v41, v40')
        a(f'v_add_f32 v42, {f2u(1e-5):#x}, v42')
        self.bf16r(42, 42)
        a('v_sqrt_f32 v42, v42')
        self.bf16r(42, 42)
        a('v_rcp_f32 v42, v42')
        a('v_mov_b32 v43, v42')
        U = 48
        for k in range(10):
            a(f'v_pk_add_f32 {vr(U+2*k,2)}, {vr(F+2*k,2)}, v[40:41] neg_lo:[0,1] neg_hi:[0,1]')
        for k in range(10):
            a(f'v_cvt_pk_bf16_f32 v{68+k}, v{U+2*k}, v{U+2*k+1}')
        for k in range(10):
            a(f'v_lshlrev_b32 v{U+2*k}, 16, v{68+k}')
            a(f'v_and_b32 v{U+2*k+1}, 0xffff0000, v{68+k}')
        for k in range(10):
            a(f'v_pk_mul_f32 {vr(U+2*k,2)}, {vr(U+2*k,2)}, v[42:43]')
        for k in range(20):
            a(f'v_cvt_pk_bf16_f32 v{U+k}, v{U+k}, v{F+k}')
        for q in range(5):
            a(f'ds_write_b128 v6, {vr(U+4*q,4)} offset:{512*q}')
        a('v_bfe_u32 v7, v2, 2, 2')
        a('v_mul_u32_u24 v7, 2624, v7')
        a('v_lshrrev_b32 v6, 4, v2')
        a('v_lshl_add_u32 v7, v6, 5, v7')
        a('v_and_b32 v6, 3, v2')
        a('v_lshl_add_u32 v7, v6, 3, v7')
        a(f's_lshl_b32 s3, s{sWAVE}, 7')
        a('v_add_u32 v7, s3, v7')
        a('v_lshlrev_b32 v6, 4, v2')
        a(f's_lshl_b32 s3, s{sWAVE}, 10')
        a('v_add_u32 v6, s3, v6')
        a('s_mul_i32 s3, s82, 20480')
        a('s_mov_b32 s80, 0')
        a('s_waitcnt lgkmcnt(0)')
        self.stamp('lncomp')
        a('s_barrier')
        T = 68
        Lq = a.label('Llns')
        a(f'{Lq}:')
        for k in range(5):
            a(f'ds_read_b64_tr_b16 {vr(T+4*k,2)}, v7 offset:{512*k}')
            a(f'ds_read_b64_tr_b16 {vr(T+4*k+2,2)}, v7 offset:{512*k+4*2624}')
        a('s_mov_b32 s5, s3')
        for k in range(5):
            a(f's_waitcnt lgkmcnt({2*(4-k)})')
            a(f'buffer_store_dwordx4 {vr(T+4*k,4)}, v6, {sr(SRD_WS)}, s5 offen sc1')
            if k < 4: a('s_add_u32 s5, s5, 4096')

    def flags_overlap(self, loads, B, base, lanes=None, publish_epoch=False):
        a = self.a
        loads = list(loads)
        head, tail = loads[:len(loads) - B], loads[len(loads) - B:]
        for f in head: f()
        L1 = a.label('Lfo'); Lp = a.label('Lfp'); Lc = a.label('Lfc'); Ld = a.label('Lfd'); Lo = a.label('Lfe'); Lx = a.label('Lfx')
        def issue():
            a('v_lshlrev_b32 v4, 4, v2')
            a('s_and_b32 s6, s2, 7')
            a('s_lshl_b32 s6, s6, 10')
            a(f's_add_u32 s6, s6, {base}')
            a(f'buffer_load_dwordx4 v[8:11], v4, {sr(SRD_WS)}, s6 offen sc1')
        a(f's_cmp_eq_u32 s{sWAVE}, 0'); a(f's_cbranch_scc0 {L1}')
        issue()
        a(f'{L1}:')
        for f in tail: f()
        a(f's_cmp_eq_u32 s{sWAVE}, 0'); a(f's_cbranch_scc0 {Lo}')
        a('s_mov_b32 s7, 0')
        if lanes:
            lo, hi = lanes
            m = ((1 << hi) - 1) ^ ((1 << lo) - 1)
            a(f's_mov_b32 s62, {m & 0xffffffff:#x}'); a(f's_mov_b32 s63, {m >> 32:#x}')
        a(f's_waitcnt vmcnt({min(63, len(tail))})')
        a(f's_branch {Lc}')
        a(f'{Lp}:')
        a('s_sleep 1')
        issue()
        a('s_waitcnt vmcnt(0)')
        a(f'{Lc}:')
        a('v_xor_b32 v8, s83, v8'); a('v_xor_b32 v9, s83, v9'); a('v_xor_b32 v10, s83, v10'); a('v_xor_b32 v11, s83, v11')
        a('v_or_b32 v8, v8, v9')
        a('v_or3_b32 v8, v8, v10, v11')
        a('v_cmp_ne_u32 vcc, 0, v8')
        if lanes: a('s_and_b64 vcc, vcc, s[62:63]')
        a(f's_cbranch_vccz {Ld}')
        a('s_add_u32 s7, s7, 1')
        a('s_cmp_lt_u32 s7, 0x40000')
        a(f's_cbranch_scc1 {Lp}')
        a(f'{Ld}:')
        if publish_epoch:
            a('s_cmp_eq_u32 s2, 0')
            a(f's_cbranch_scc0 {Lx}')
            a('s_mov_b64 exec, 1')
            a('v_mov_b32 v4, s83')
            a(f'v_mov_b32 v5, {EPX}')
            a(f'buffer_store_dword v4, v5, {sr(SRD_WS)}, 0 offen sc1')
            a('s_mov_b64 exec, -1')
            a(f'{Lx}:')
        a(f'{Lo}:')
        a('s_waitcnt vmcnt(0) lgkmcnt(0)')
        a('s_barrier')

    def row_overlap(self, loads, B):
        a = self.a
        loads = list(loads)
        head, tail = loads[:len(loads) - B], loads[len(loads) - B:]
        for f in head: f()
        L1 = a.label('Lro'); Lp = a.label('Lrp'); Lc = a.label('Lrc'); Ld = a.label('Lrd'); Lo = a.label('Lre')
        def issue():
            a('v_and_b32 v4, 15, v2')
            a('v_lshlrev_b32 v4, 2, v4')
            a('s_lshr_b32 s6, s72, 1')
            a('s_lshl_b32 s6, s6, 7')
            a(f's_add_u32 s6, s6, {RFL}')
            a(f'buffer_load_dword v5, v4, {sr(SRD_WS)}, s6 offen sc1')
        a(f's_cmp_eq_u32 s{sWAVE}, 0'); a(f's_cbranch_scc0 {L1}')
        issue()
        a(f'{L1}:')
        for f in tail: f()
        a(f's_cmp_eq_u32 s{sWAVE}, 0'); a(f's_cbranch_scc0 {Lo}')
        a('s_mov_b32 s7, 0')
        a(f's_waitcnt vmcnt({min(63, len(tail))})')
        a(f's_branch {Lc}')
        a(f'{Lp}:')
        a('s_sleep 1')
        issue()
        a('s_waitcnt vmcnt(0)')
        a(f'{Lc}:')
        a('v_cmp_ne_u32 vcc, s83, v5')
        a(f's_cbranch_vccz {Ld}')
        a('s_add_u32 s7, s7, 1')
        a('s_cmp_lt_u32 s7, 0x40000')
        a(f's_cbranch_scc1 {Lp}')
        a(f'{Ld}:')
        a(f'{Lo}:')
        a('s_barrier')

    LDSP = 24576
    def prep_issue3(self):
        a = self.a
        Lw2 = a.label('Lpw2'); Ldone = a.label('Lpdone')
        a('s_sub_u32 s60, s2, 160')
        a('s_cmp_lt_u32 s60, 48')
        a(f's_cbranch_scc0 {Lw2}')
        self.srd(SRD_B, P_W1, 640 * 3456)
        a('v_mul_u32_u24 v94, 4682, v2')
        a('v_lshrrev_b32 v94, 16, v94')
        a('v_mul_u32_u24 v95, 14, v94')
        a('v_sub_u32 v95, v2, v95')
        a('v_mul_u32_u24 v94, 3456, v94')
        a('v_lshl_add_u32 v94, v95, 4, v94')
        a('s_mul_i32 s64, s60, 21846')
        a('s_lshr_b32 s64, s64, 16')
        a('s_mul_i32 s65, s64, 3')
        a('s_sub_u32 s65, s60, s65')
        a('s_mul_i32 s62, s65, 7')
        a(f's_lshl_b32 s61, s{sWAVE}, 1')
        a('s_add_u32 s62, s62, s61')
        a('s_mul_i32 s63, s65, 7'); a('s_add_u32 s63, s63, 7'); a('s_min_u32 s63, s63, 20')
        a('s_sub_u32 s63, s63, s62'); a('s_min_i32 s63, s63, 2')
        a(f's_mul_i32 s6, s62, {32*3456}')
        a('s_mul_i32 s7, s64, 216')
        a('s_add_u32 s6, s6, s7')
        a(f's_mul_i32 s61, s61, {32*224}')
        a(f's_add_u32 s61, s61, {self.LDSP}')
        a('s_mov_b32 m0, s61')
        a('s_mov_b32 exec_hi, 0x00ffffff')
        Lsk = a.label('Lpk')
        a('s_cmp_lt_i32 s63, 1'); a(f's_cbranch_scc1 {Lsk}')
        for i in range(16):
            if i == 8:
                a('s_cmp_lt_i32 s63, 2'); a(f's_cbranch_scc1 {Lsk}')
            a(f'buffer_load_dwordx4 v94, {sr(SRD_B)}, s6 offen lds')
            if i < 15:
                a('s_add_u32 m0, m0, 896')
                a(f's_add_u32 s6, s6, {4*3456}')
        a(f'{Lsk}:')
        a('s_mov_b64 exec, -1')
        a(f's_branch {Ldone}')
        a(f'{Lw2}:')
        a('s_cmp_lt_u32 s60, 83')
        a(f's_cbranch_scc0 {Ldone}')
        a('s_sub_u32 s5, s60, 48')
        a('s_lshl_b32 s5, s5, 2')
        a(f's_add_u32 s5, s5, s{sWAVE}')
        a('s_mul_i32 s61, s5, 4682')
        a('s_lshr_b32 s61, s61, 16')
        a('s_mul_i32 s6, s61, 14')
        a('s_sub_u32 s62, s5, s6')
        self.srd(SRD_B, P_W2, 1728 * 1280)
        a('v_lshrrev_b32 v94, 3, v2')
        a('v_mul_u32_u24 v94, 1280, v94')
        a('v_and_b32 v95, 7, v2')
        a('v_lshl_add_u32 v94, v95, 4, v94')
        a(f's_lshl_b32 s63, s{sWAVE}, 14')
        a(f's_add_u32 s63, s63, {self.LDSP}')
        a('s_mov_b32 m0, s63')
        for kk in range(4):
            a('s_lshl_b32 s64, s62, 2')
            a(f's_add_u32 s64, s64, {kk}')
            a('s_mul_i32 s65, s64, 9363')
            a('s_lshr_b32 s65, s65, 16')
            a('s_mul_i32 s66, s65, 7')
            a('s_sub_u32 s66, s64, s66')
            for half in range(2):
                a('s_lshl_b32 s67, s65, 1')
                a('s_lshl_b32 s68, s66, 1')
                a(f's_add_u32 s68, s68, {half}')
                a('s_sub_u32 s69, s68, 8')
                a('s_add_u32 s70, s67, 1')
                a('s_cmp_gt_u32 s66, 3')
                a('s_cselect_b32 s67, s70, s67')
                a('s_cselect_b32 s68, s69, s68')
                a('s_lshl_b32 s69, s65, 1')
                a(f's_add_u32 s69, s69, {half}')
                a('s_cmp_eq_u32 s66, 3')
                a('s_cselect_b32 s67, s69, s67')
                a('s_cselect_b32 s68, 6, s68')
                a('s_mul_i32 s67, s67, 108')
                a('s_lshl_b32 s68, s68, 4')
                a('s_add_u32 s67, s67, s68')
                a('s_mul_i32 s67, s67, 1280')
                a('s_lshl_b32 s68, s61, 7')
                a('s_add_u32 s67, s67, s68')
                for i in range(2):
                    a(f'buffer_load_dwordx4 v94, {sr(SRD_B)}, s67 offen lds')
                    a('s_add_u32 m0, m0, 1024')
                    if i == 0: a(f's_add_u32 s67, s67, {8*1280}')
        a(f'{Ldone}:')

    def prep_compute3(self):
        a = self.a
        Lw2 = a.label('Lqw2'); Ldone = a.label('Lqdone')
        a('v_lshrrev_b32 v90, 4, v2')
        a('v_bfe_u32 v91, v2, 2, 2')
        a('v_and_b32 v92, 3, v2')
        a('v_lshlrev_b32 v93, 4, v2')
        a('s_cmp_lt_u32 s60, 48')
        a(f's_cbranch_scc0 {Lw2}')
        a('v_lshl_add_u32 v94, v90, 3, v91')
        a('v_mul_u32_u24 v94, 224, v94')
        a('v_lshl_add_u32 v94, v92, 3, v94')
        a('v_add_u32 v94, s61, v94')
        a('s_mov_b32 s70, 0x3f803f80')
        a('v_and_b32 v95, 15, v2')
        a('v_cmp_lt_u32 s[68:69], 11, v95')
        a('v_cmp_eq_u32 vcc, 12, v95')
        a('v_mov_b32 v96, 0'); a('v_mov_b32 v97, s70')
        a('v_cndmask_b32 v96, v96, v97, vcc')
        a('s_mul_i32 s66, s64, 143360')
        a('s_mul_i32 s67, s62, 7168')
        a('s_add_u32 s66, s66, s67')
        a(f's_add_u32 s66, s66, {W1F}')
        for t in range(7): a(f'v_mov_b32 v{120+t}, 0')
        Lk3 = a.label('Lk3')
        for kk in range(2):
            a(f's_cmp_lt_i32 s63, {kk+1}'); a(f's_cbranch_scc1 {Lk3}')
            for t in range(7):
                R = 128 + 4 * t
                a(f'ds_read_b64_tr_b16 {vr(R,2)}, v94 offset:{kk*32*224+t*32}')
                a(f'ds_read_b64_tr_b16 {vr(R+2,2)}, v94 offset:{kk*32*224+t*32+4*224}')
            a(f's_add_u32 s67, s66, {kk*7168}')
            for t in range(7):
                R = 128 + 4 * t
                a(f's_waitcnt lgkmcnt({2*(6-t)})')
                if t == 6:
                    for j in range(4):
                        a(f'v_cndmask_b32 v{R+j}, v{R+j}, v96, s[68:69]')
                if t == 4: a('s_add_u32 s67, s67, 4096')
                a(f'buffer_store_dwordx4 {vr(R,4)}, v93, {sr(SRD_WS)}, s67 offen offset:{(t%4)*1024} sc1')
                for j in range(4):
                    a(f'v_dot2_f32_bf16 v{120+t}, v{R+j}, s70, v{120+t}')
        a(f'{Lk3}:')
        for t in range(7):
            S = 120 + t
            a(f'v_mov_b32 v98, v{S}')
            a(f'v_permlane16_swap_b32 v{S}, v98')
            a(f'v_add_f32 v{S}, v{S}, v98')
            a(f'v_mov_b32 v98, v{S}')
            a(f'v_permlane32_swap_b32 v{S}, v98')
            a(f'v_add_f32 v{S}, v{S}, v98')
        SB = self.LDSP + 8 * 32 * 224
        a('v_lshlrev_b32 v98, 2, v95')
        a(f's_mul_i32 s66, s{sWAVE}, 448')
        a(f's_add_u32 s66, s66, {SB}')
        a('v_add_u32 v97, s66, v98')
        for t in range(7):
            a(f'ds_write_b32 v97, v{120+t} offset:{64*t}')
        a('s_waitcnt lgkmcnt(0)')
        a('s_barrier')
        a('v_lshlrev_b32 v97, 2, v0')
        a(f'v_add_u32 v98, {SB}, v97')
        for w in range(4):
            a(f'ds_read_b32 v{120+w}, v98 offset:{448*w}')
        a('s_mul_i32 s66, s64, 448')
        a('s_mul_i32 s67, s65, 7168')
        a('s_add_u32 s66, s66, s67')
        a(f's_add_u32 s66, s66, {SP}')
        a('s_waitcnt lgkmcnt(0)')
        a('v_add_f32 v120, v120, v121'); a('v_add_f32 v122, v122, v123'); a('v_add_f32 v120, v120, v122')
        a('v_cmp_gt_u32 vcc, 112, v0')
        Ls = a.label('Lsp')
        a('s_and_saveexec_b64 s[68:69], vcc')
        a(f's_cbranch_execz {Ls}')
        a(f'buffer_store_dword v120, v97, {sr(SRD_WS)}, s66 offen sc1')
        a(f'{Ls}:')
        a('s_mov_b64 exec, s[68:69]')
        a(f's_branch {Ldone}')
        a(f'{Lw2}:')
        a('s_cmp_lt_u32 s60, 83')
        a(f's_cbranch_scc0 {Ldone}')
        a('v_lshl_add_u32 v94, v90, 2, v91')
        a('v_lshlrev_b32 v94, 7, v94')
        a('v_lshl_add_u32 v94, v92, 3, v94')
        a('v_add_u32 v94, s63, v94')
        a('v_cmp_eq_u32 s[68:69], 3, v90')
        for kk in range(4):
            a('s_lshl_b32 s64, s62, 2')
            a(f's_add_u32 s64, s64, {kk}')
            a('s_mul_i32 s65, s64, 9363')
            a('s_lshr_b32 s65, s65, 16')
            a('s_mul_i32 s66, s65, 7')
            a('s_sub_u32 s66, s64, s66')
            RB = 100 + 16 * (kk & 1)
            for tt in range(4):
                R = RB + 4 * tt
                a(f'ds_read_b64_tr_b16 {vr(R,2)}, v94 offset:{kk*4096+tt*32}')
                a(f'ds_read_b64_tr_b16 {vr(R+2,2)}, v94 offset:{kk*4096+tt*32+2048}')
            Lnz = a.label('Lnz')
            a('s_waitcnt lgkmcnt(0)')
            a('s_cmp_eq_u32 s66, 3')
            a(f's_cbranch_scc0 {Lnz}')
            for tt in range(4):
                for j in range(4):
                    a(f'v_cndmask_b32 v{RB+4*tt+j}, v{RB+4*tt+j}, 0, s[68:69]')
            a(f'{Lnz}:')
            for tt in range(4):
                a('s_lshl_b32 s65, s61, 2')
                a(f's_add_u32 s65, s65, {tt}')
                a('s_mul_i32 s67, s65, 13108')
                a('s_lshr_b32 s67, s67, 16')
                a('s_mul_i32 s70, s67, 5')
                a('s_sub_u32 s70, s65, s70')
                a(f's_mul_i32 s67, s67, {NK2}')
                a('s_add_u32 s67, s67, s64')
                a('s_mul_i32 s67, s67, 5')
                a('s_add_u32 s67, s67, s70')
                a('s_lshl_b32 s67, s67, 10')
                a(f's_add_u32 s67, s67, {W2F}')
                a(f'buffer_store_dwordx4 {vr(RB+4*tt,4)}, v93, {sr(SRD_WS)}, s67 offen sc1')
        a(f'{Ldone}:')

    def w1_lds(self, idx):
        WS = self.WSTRIDE
        if idx < 44:
            return (idx // 11) * WS + 18176 + (idx % 11) * 1024
        if idx < 49:
            return 157952 + (idx - 44) * 1024
        j = idx - 49
        if j < 68:
            return (j // 17) * WS + (j % 17) * 1024
        return self.UXB + (j - 68) * 1024

    def pref_setup(self):
        a = self.a
        a('s_mul_i32 s76, s67, 143360')
        a(f's_add_u32 s76, s76, {W1F}')
        a(f's_mul_i32 s75, s{sWAVE}, {self.WSTRIDE}')
        a('v_lshlrev_b32 v3, 4, v2')
        a(f's_mul_i32 s77, s{sWAVE}, {11*1024}')
        a('s_add_u32 s77, s77, s76')
        a(f's_mul_i32 s78, s{sWAVE}, {17*1024}')
        a('s_add_u32 s78, s78, s76')
        a(f's_add_u32 s78, s78, {49*1024}')
        a(f's_lshl_b32 s82, s{sWAVE}, 10')

    def dma(self, m0expr, soff):
        a = self.a
        for l in m0expr: a(l)
        for l in soff: a(l)
        a(f'buffer_load_dwordx4 v3, {sr(SRD_WS)}, s5 offen sc1 lds')

    def w1A(self, j):
        self.dma([f's_add_u32 m0, s75, {18176 + 1024*j}'], [f's_add_u32 s5, s77, {1024*j}'])
    def w1T(self):
        self.dma([f's_add_u32 m0, s82, 157952'], [f's_add_u32 s5, s76, s82', f's_add_u32 s5, s5, {44*1024}'])
    def w1T2(self):
        self.dma([f's_mov_b32 m0, {157952 + 4096}'], [f's_add_u32 s5, s76, {48*1024}'])
    def w1B(self, i):
        self.dma([f's_add_u32 m0, s75, {1024*i}'], [f's_add_u32 s5, s78, {1024*i}'])
    def w1C(self, i):
        a = self.a
        if i < 5:
            self.dma([f's_add_u32 m0, s82, {self.UXB + 4096*i}'], [f's_add_u32 s5, s76, s82', f's_add_u32 s5, s5, {(117+4*i)*1024}'])
        else:
            L = a.label('Lw1c')
            a(f's_cmp_eq_u32 s{sWAVE}, 3'); a(f's_cbranch_scc1 {L}')
            self.dma([f's_add_u32 m0, s82, {self.UXB + 4096*i}'], [f's_add_u32 s5, s76, s82', f's_add_u32 s5, s5, {(117+4*i)*1024}'])
            a(f'{L}:')

    def list_conv(self):
        L = [lambda j=j: self.w1A(j) for j in range(11)] + [self.w1T, self.w1T2]
        W = [lambda i=i: self.w2_load(i) for i in range(self.NW2_CONV)]
        out = []
        while L or W:
            if L: out.append(L.pop(0))
            for _ in range(3):
                if W: out.append(W.pop(0))
        return out

    def list_e2(self):
        return [lambda i=i: self.w1B(i) for i in range(17)] + [lambda i=i: self.w1C(i) for i in range(6)]

    def l2_warm(self):
        a = self.a
        a('s_sub_u32 s5, s2, 160'); a('s_lshr_b32 s5, s5, 3'); a('s_lshl_b32 s5, s5, 2'); a(f's_add_u32 s5, s5, s{sWAVE}')
        a('s_mul_i32 s6, s5, %d' % (24 * 1024))
        a('s_and_b32 s7, s2, 1'); a(f's_mul_i32 s7, s7, {8*143360}')
        a('s_add_u32 s6, s6, s7'); a(f's_add_u32 s6, s6, {W1F}')
        a(f's_add_u32 s7, s7, {W1F + 8*143360 - 1024}')
        for i in range(24):
            a('s_min_u32 s62, s6, s7')
            a(f'buffer_load_dwordx4 {vr(112+4*(i%16),4)}, v3, {sr(SRD_WS)}, s62 offen sc1')
            a('s_add_u32 s6, s6, 1024')

    def flag_store_only(self, base):
        a = self.a
        L = a.label('Lsig')
        a(f's_cmp_eq_u32 s{sWAVE}, 0')
        a(f's_cbranch_scc0 {L}')
        a('v_lshlrev_b32 v5, 10, v2')
        a('s_lshl_b32 s5, s2, 2')
        a(f's_add_u32 s5, s5, {base}')
        a('v_mov_b32 v4, s83')
        a('s_mov_b64 exec, 0xff')
        a(f'buffer_store_dword v4, v5, {sr(SRD_WS)}, s5 offen sc1')
        a('s_mov_b64 exec, -1')
        a(f'{L}:')

    SBL = 121088 + 24576
    def sb_stage(self):
        a = self.a
        L = a.label('Lsb')
        a(f's_cmp_eq_u32 s{sWAVE}, 1'); a(f's_cbranch_scc0 {L}')
        a('s_mov_b32 exec_hi, 0x00ffffff')
        a('v_lshlrev_b32 v94, 3, v2')
        a('s_mul_i32 s80, s67, 448')
        a(f's_add_u32 s80, s80, {SP}')
        for part in range(3):
            a(f'buffer_load_dwordx2 {vr(64+2*part,2)}, v94, {sr(SRD_WS)}, s80 offen sc1')
            if part < 2: a('s_add_u32 s80, s80, 7168')
        self.srd(SRD_B, P_B1, 1728 * 2)
        a('s_mul_i32 s81, s67, 216')
        a('v_lshlrev_b32 v95, 2, v2')
        a(f'buffer_load_dword v70, v95, {sr(SRD_B)}, s81 offen')
        a(f'v_add_u32 v94, {self.SBL}, v94')
        a('s_waitcnt vmcnt(0)')
        a('v_pk_add_f32 v[64:65], v[64:65], v[66:67]')
        a('v_pk_add_f32 v[64:65], v[64:65], v[68:69]')
        a('v_lshlrev_b32 v72, 16, v70')
        a('v_and_b32 v73, 0xffff0000, v70')
        a('ds_write_b64 v94, v[64:65]')
        a('ds_write_b64 v94, v[72:73] offset:448')
        a('s_waitcnt lgkmcnt(0)')
        a('s_mov_b64 exec, -1')
        a(f'{L}:')

    def pfl_issue(self):
        a = self.a
        a('v_lshlrev_b32 v7, 4, v2')
        a('s_and_b32 s5, s2, 7')
        a('s_lshl_b32 s5, s5, 10')
        a(f's_add_u32 s5, s5, {PFL}')
        a(f'buffer_load_dwordx4 v[8:11], v7, {sr(SRD_WS)}, s5 offen sc1')

    def pfl_check(self):
        a = self.a
        Lp = a.label('Lpf'); Lc = a.label('Lpfc'); Ld = a.label('Lpfd')
        m = ((1 << 61) - 1) ^ ((1 << 40) - 1)
        a(f's_mov_b32 s62, {m & 0xffffffff:#x}'); a(f's_mov_b32 s63, {m >> 32:#x}')
        a('s_mov_b32 s6, 0')
        a(f's_branch {Lc}')
        a(f'{Lp}:')
        a('s_sleep 2')
        self.pfl_issue()
        a(f'{Lc}:')
        a('s_waitcnt vmcnt(0)')
        a('v_xor_b32 v8, s83, v8'); a('v_xor_b32 v9, s83, v9'); a('v_xor_b32 v10, s83, v10'); a('v_xor_b32 v11, s83, v11')
        a('v_or_b32 v8, v8, v9')
        a('v_or3_b32 v8, v8, v10, v11')
        a('v_cmp_ne_u32 vcc, 0, v8')
        a('s_and_b64 vcc, vcc, s[62:63]')
        a(f's_cbranch_vccz {Ld}')
        a('s_add_u32 s6, s6, 1')
        a('s_cmp_lt_u32 s6, 0x40000')
        a(f's_cbranch_scc1 {Lp}')
        a(f'{Ld}:')

    CONV_RATE = 4
    WARM = 1
    CONV_FROM = 1
    UD = 108
    def xreg(self, i):
        return 228 + i if i < 28 else 140 + (i - 28)

    def conv_main(self, pref=None, pref_from=8):
        a = self.a
        P = self.PL
        ACC = 12
        bufA = [44, 164]; bufB = [76, 196]
        pref = list(pref or [])
        def reads(b):
            sel = b & 1
            lst = []
            for aa in range(8):
                off = 512 * (7 - aa) + 64 * (7 - b)
                lst.append(f'ds_read_b64 {vr(bufA[sel]+4*aa,2)}, v{self.VA} offset:{off}')
                lst.append(f'ds_read_b64 {vr(bufA[sel]+4*aa+2,2)}, v{self.VA} offset:{off+8}')
            for e in range(8):
                lst.append(f'ds_read_b128 {vr(bufB[sel]+4*e,4)}, v{self.VB+b} offset:{4096*e}')
            order = []
            for k in range(8):
                order += [lst[2*k], lst[2*k+1], lst[16+k]]
            return order
        for r in reads(0): a(r)
        a(f'v_xor_b32 v4, 16, v{self.VEU}')
        a(f'v_lshlrev_b32 v6, 16, v{P+5}')
        side_rd = []
        for t in range(8):
            side_rd.append(f'ds_read_b64 {vr(self.UD+4*t+2,2)}, v{self.VEU} offset:{4096*t}')
            side_rd.append(f'ds_read_b64 {vr(self.xreg(4*t+2),2)}, v4 offset:{4096*t}')
        side = []
        for t in range(8):
            U = self.UD + 4 * t
            X = [self.xreg(4 * t + j) for j in range(4)]
            side += [f'v_lshlrev_b32 v{U}, 16, v{U+2}', f'v_and_b32 v{U+1}, 0xffff0000, v{U+2}',
                     f'v_lshlrev_b32 v{U+2}, 16, v{U+3}', f'v_and_b32 v{U+3}, 0xffff0000, v{U+3}']
            side += [f'v_mul_f32 v{U+j}, v{U+j}, v6' for j in range(4)]
            side += [f'v_cvt_pk_bf16_f32 v{U+1}, v{U}, v{U+1}', f'v_cvt_pk_bf16_f32 v{U+3}, v{U+2}, v{U+3}',
                     f'v_lshlrev_b32 v{U}, 16, v{U+1}', f'v_and_b32 v{U+1}, 0xffff0000, v{U+1}',
                     f'v_lshlrev_b32 v{U+2}, 16, v{U+3}', f'v_and_b32 v{U+3}, 0xffff0000, v{U+3}']
            side += [f'v_lshlrev_b32 v{X[0]}, 16, v{X[2]}', f'v_and_b32 v{X[1]}, 0xffff0000, v{X[2]}',
                     f'v_lshlrev_b32 v{X[2]}, 16, v{X[3]}', f'v_and_b32 v{X[3]}, 0xffff0000, v{X[3]}']
        cnt = 0
        for b in range(8):
            sel = b & 1
            nxt = reads(b + 1) if b < 7 else []
            if b == 0: nxt = nxt + side_rd[:12]
            if b == 1: nxt = nxt + side_rd[12:]
            if b == pref_from and pref: self.pfl_check()
            a('s_waitcnt lgkmcnt(0)')
            n = 0
            for aa in range(8):
                for e in range(8 - aa):
                    t = aa + e
                    c = '0' if (b == 0 and aa == 0) else vr(ACC + 4 * t, 4)
                    a(f'v_mfma_f32_16x16x32_bf16 {vr(ACC+4*t,4)}, {vr(bufA[sel]+4*aa,4)}, {vr(bufB[sel]+4*e,4)}, {c}')
                    if n < len(nxt): a(nxt[n])
                    n += 1
                    if b >= 2 and side: a(side.pop(0))
                    if b >= pref_from:
                        cnt += 1
                        if cnt % self.CONV_RATE == 0 and pref: pref.pop(0)()
        assert not pref and not side

    def conv_epilogue(self, pref=None):
        a = self.a
        ACC = 12
        pref = list(pref or [])
        a('s_mov_b32 s70, 0x00003f80')
        a('s_mov_b32 s71, 0x3f800000')
        a('v_bfe_u32 v4, v2, 2, 2')
        a(f'v_mul_u32_u24 v4, {self.WSTRIDE}, v4')
        a('v_lshrrev_b32 v5, 4, v2')
        a('v_lshl_add_u32 v4, v5, 5, v4')
        a('v_and_b32 v6, 3, v2')
        a('v_lshl_add_u32 v4, v6, 3, v4')
        a(f's_lshl_b32 s5, s{sWAVE}, 10')
        a('v_add_u32 v4, s5, v4')
        a('v_mul_u32_u24 v5, 20480, v5')
        a('v_and_b32 v6, 15, v2')
        a('v_lshl_add_u32 v5, v6, 4, v5')
        a(f's_mul_i32 s62, s{sWAVE}, {8*81920}')
        a('s_lshr_b32 s6, s2, 3')
        a('s_lshl_b32 s6, s6, 10')
        a('s_add_u32 s62, s62, s6')
        a('s_bfe_u32 s6, s2, 0x20001')
        a('s_lshl_b32 s6, s6, 8')
        a('s_add_u32 s62, s62, s6')
        a('s_and_b32 s6, s2, 1')
        a('s_lshl_b32 s6, s6, 3')
        a('s_add_u32 s62, s62, s6')
        a(f's_add_u32 s62, s62, {HF}')
        for tp in range(4):
            P = [(2 * tp + tt, h) for tt in range(2) for h in range(2)]
            Y = {p: ACC + 4 * p[0] + 2 * p[1] for p in P}
            T = {p: 44 + i for i, p in enumerate(P)}
            U = {p: self.UD + 4 * p[0] + 2 * p[1] for p in P}
            X = {p: self.xreg(4 * p[0] + 2 * p[1]) for p in P}
            O = {p: 80 + 2 * p[0] + p[1] for p in P}
            def step(f):
                for p in P: a(f(p))
            step(lambda p: f'v_cvt_pk_bf16_f32 v{T[p]}, v{Y[p]}, v{Y[p]+1}')
            step(lambda p: f'v_dot2_f32_bf16 v{Y[p]}, v{T[p]}, s70, v{U[p]}')
            step(lambda p: f'v_dot2_f32_bf16 v{Y[p]+1}, v{T[p]}, s71, v{U[p]+1}')
            step(lambda p: f'v_cvt_pk_bf16_f32 v{T[p]}, v{Y[p]}, v{Y[p]+1}')
            step(lambda p: f'v_dot2_f32_bf16 v{Y[p]}, v{T[p]}, s70, v{X[p]}')
            step(lambda p: f'v_dot2_f32_bf16 v{Y[p]+1}, v{T[p]}, s71, v{X[p]+1}')
            step(lambda p: f'v_cvt_pk_bf16_f32 v{O[p]}, v{Y[p]}, v{Y[p]+1}')
            for tt in range(2):
                tq = 2 * tp + tt
                a(f'ds_write_b64 v{self.VHW}, {vr(80+2*tq,2)} offset:{512*tq}')
            for _ in range(self.CEP_PER):
                if pref: pref.pop(0)()
        self.stamp('cep1')
        a('s_waitcnt lgkmcnt(0)')
        a('s_barrier')
        for m in range(8):
            a(f'ds_read_b64_tr_b16 {vr(44+2*m,2)}, v4 offset:{128*m}')
        for m in range(8):
            a(f's_waitcnt lgkmcnt({7-m})')
            a(f'buffer_store_dwordx2 {vr(44+2*m,2)}, v5, {sr(SRD_WS)}, s62 offen sc1')
            if m < 7: a('s_add_u32 s62, s62, 81920')
    CEP_PER = 0

    def w1_dma_all(self):
        a = self.a
        a('v_lshlrev_b32 v3, 4, v2')
        a('s_mul_i32 s76, s67, 143360')
        a(f's_lshl_b32 s6, s{sWAVE}, 10')
        a('s_add_u32 s76, s76, s6')
        a(f's_add_u32 s76, s76, {W1F}')
        a('s_mov_b32 m0, s6')
        for i in range(35):
            a(f'buffer_load_dwordx4 v3, {sr(SRD_WS)}, s76 offen sc1 lds')
            if i < 34:
                a('s_add_u32 m0, m0, 4096')
                a('s_add_u32 s76, s76, 4096')
        a('v_lshrrev_b32 v94, 4, v2')
        a('v_lshlrev_b32 v94, 4, v94')
        a('s_mul_i32 s80, s67, 448')
        a(f's_add_u32 s80, s80, {SP}')
        for t in range(7):
            a(f'buffer_load_dwordx4 {vr(64+4*t,4)}, v94, {sr(SRD_WS)}, s80 offen offset:{64*t} sc1')

    def w2_load(self, idx):
        a = self.a
        off = idx * 1024
        a(f's_add_u32 s5, s79, {(off // 4096) * 4096}')
        a(f'buffer_load_dwordx4 {self.w2reg(idx)}, v3, {sr(SRD_WS)}, s5 offen offset:{off % 4096} sc1')


    def p3_epilogue(self):
        a = self.a
        ACC = 8
        a('v_lshrrev_b32 v5, 4, v2')
        a('v_lshlrev_b32 v6, 4, v5')
        a(f'v_add_u32 v6, {self.SBL}, v6')
        for t in range(7):
            a(f'ds_read_b128 {vr(64+4*t,4)}, v6 offset:{64*t}')
            a(f'ds_read_b128 {vr(124+4*t,4)}, v6 offset:{448+64*t}')
        a('v_and_b32 v4, 15, v2')
        a('v_cmp_eq_u32 s[62:63], 3, v5')
        a('v_lshrrev_b32 v6, 2, v4')
        a('v_cmp_eq_u32 s[64:65], v6, v5')
        a('v_and_b32 v6, 3, v4')
        a('v_cmp_eq_u32 s[68:69], 1, v6')
        a('v_cmp_eq_u32 s[70:71], 2, v6')
        a('v_cmp_eq_u32 vcc, 3, v6')
        for lt in range(2):
            S_ = 112 + 2 * lt; Q_ = 113 + 2 * lt
            acc = ACC + (6 * 2 + lt) * 4
            B = 96 + 4 * lt
            for j in range(4):
                a(f'v_accvgpr_read_b32 v{B+j}, a{self.GRAM+4*lt+j}')
            a(f'v_cndmask_b32 v{S_}, 0, v{acc}, s[62:63]')
            a(f'v_cndmask_b32 v{B}, v{B}, v{B+1}, s[68:69]')
            a(f'v_cndmask_b32 v{B}, v{B}, v{B+2}, s[70:71]')
            a(f'v_cndmask_b32 v{B}, v{B}, v{B+3}, vcc')
            a(f'v_cndmask_b32 v{Q_}, 0, v{B}, s[64:65]')
        for rnd in ('16', '32'):
            for k, v in enumerate((112, 113, 114, 115)):
                a(f'v_mov_b32 v{104+k}, v{v}')
            for k, v in enumerate((112, 113, 114, 115)):
                a(f'v_permlane{rnd}_swap_b32 v{v}, v{104+k}')
            for k, v in enumerate((112, 113, 114, 115)):
                a(f'v_add_f32 v{v}, v{v}, v{104+k}')
        def both(f):
            for lt in range(2): f(112 + 2 * lt, 113 + 2 * lt, lt)
        both(lambda s_, q_, lt: a(f'v_mul_f32 v{s_}, {f2u(1.0/640):#x}, v{s_}'))
        both(lambda s_, q_, lt: a(f'v_mul_f32 v{q_}, {f2u(1.0/640):#x}, v{q_}'))
        both(lambda s_, q_, lt: a(f'v_fma_f32 v{q_}, -v{s_}, v{s_}, v{q_}'))
        both(lambda s_, q_, lt: a(f'v_max_f32 v{q_}, 0, v{q_}'))
        both(lambda s_, q_, lt: a(f'v_cvt_pk_bf16_f32 v{q_}, v{q_}, v{s_}'))
        both(lambda s_, q_, lt: a(f'v_and_b32 v{s_}, 0xffff0000, v{q_}'))
        both(lambda s_, q_, lt: a(f'v_lshlrev_b32 v{q_}, 16, v{q_}'))
        both(lambda s_, q_, lt: a(f'v_add_f32 v{q_}, {f2u(1e-5):#x}, v{q_}'))
        both(lambda s_, q_, lt: self.bf16r(q_, q_))
        both(lambda s_, q_, lt: a(f'v_sqrt_f32 v{q_}, v{q_}'))
        both(lambda s_, q_, lt: self.bf16r(q_, q_))
        both(lambda s_, q_, lt: a(f'v_rcp_f32 v{116+4*lt}, v{q_}'))
        both(lambda s_, q_, lt: a(f'v_mov_b32 v{116+4*lt+2}, v{s_}'))
        both(lambda s_, q_, lt: a(f'v_mov_b32 v{116+4*lt+3}, v{s_}'))
        both(lambda s_, q_, lt: a(f'v_mov_b32 v{116+4*lt+1}, v{116+4*lt}'))
        OUT = 152
        def outreg(t, lt):
            if t < 6: return OUT + ((t >> 1) * 2 + lt) * 4 + (t & 1) * 2
            return OUT + 24 + lt * 2
        a('v_lshlrev_b32 v3, 4, v2')
        a('s_lshl_b32 s5, s66, 3')
        a(f's_lshl_b32 s6, s{sWAVE}, 1')
        a('s_add_u32 s5, s5, s6')
        a(f's_mul_i32 s5, s5, {NK2*1024}')
        a(f's_add_u32 s5, s5, {HH}')
        a('s_lshr_b32 s6, s67, 1'); a('s_mul_i32 s6, s6, 7')
        a('s_and_b32 s7, s67, 1')
        a('s_lshl_b32 s62, s7, 2'); a('s_add_u32 s62, s62, s6'); a('s_lshl_b32 s62, s62, 10'); a('s_add_u32 s62, s62, s5')
        a(f's_add_u32 s63, s62, {NK2*1024}')
        a('s_add_u32 s64, s6, 3'); a('s_lshl_b32 s64, s64, 10'); a('s_lshl_b32 s7, s7, 3'); a('s_add_u32 s64, s64, s7'); a('s_add_u32 s64, s64, s5')
        a(f's_add_u32 s65, s64, {NK2*1024}')
        a('s_mov_b32 s70, 0x00003f80')
        a('s_mov_b32 s71, 0x3f800000')
        a('s_waitcnt lgkmcnt(0)')
        for t in range(7):
            P = [(lt, h) for lt in range(2) for h in range(2)]
            X = {p: ACC + (t * 2 + p[0]) * 4 + 2 * p[1] for p in P}
            T = {p: 100 + i for i, p in enumerate(P)}
            def step(f):
                for p in P: a(f(p))
            S = lambda p: 64 + 4 * t + 2 * p[1]
            Bq = lambda p: 124 + 4 * t + 2 * p[1]
            R = lambda p: 116 + 4 * p[0]
            step(lambda p: f'v_pk_fma_f32 {vr(X[p],2)}, {vr(S(p),2)}, {vr(R(p)+2,2)}, {vr(X[p],2)} neg_lo:[1,0,0] neg_hi:[1,0,0]')
            step(lambda p: f'v_pk_mul_f32 {vr(X[p],2)}, {vr(X[p],2)}, {vr(R(p),2)}')
            step(lambda p: f'v_cvt_pk_bf16_f32 v{T[p]}, v{X[p]}, v{X[p]+1}')
            step(lambda p: f'v_dot2_f32_bf16 v{X[p]}, v{T[p]}, s70, v{Bq(p)}')
            step(lambda p: f'v_dot2_f32_bf16 v{X[p]+1}, v{T[p]}, s71, v{Bq(p)+1}')
            step(lambda p: f'v_cvt_pk_bf16_f32 v{T[p]}, v{X[p]}, v{X[p]+1}')
            step(lambda p: f'v_pk_max_i16 v{T[p]}, v{T[p]}, 0')
            step(lambda p: f'v_lshlrev_b32 v{X[p]}, 16, v{T[p]}')
            step(lambda p: f'v_and_b32 v{X[p]+1}, 0xffff0000, v{T[p]}')
            step(lambda p: f'v_pk_mul_f32 {vr(X[p],2)}, {vr(X[p],2)}, {vr(X[p],2)}')
            step(lambda p: f'v_cvt_pk_bf16_f32 v{outreg(t,p[0])+p[1]}, v{X[p]}, v{X[p]+1}')
            if t == 0:
                pass
            if t in (1, 3, 5):
                p_ = t >> 1
                for lt, sb in ((0, 's62'), (1, 's63')):
                    a(f'buffer_store_dwordx4 {vr(OUT+(p_*2+lt)*4,4)}, v3, {sr(SRD_WS)}, {sb} offen offset:{1024*p_} sc1')
        for lt, sb in ((0, 's64'), (1, 's65')):
            a(f'buffer_store_dwordx2 {vr(OUT+24+lt*2,2)}, v3, {sr(SRD_WS)}, {sb} offen sc1')


    P4_SLOTS = 7
    RES = 224
    def p4_pre_loads(self):
        a = self.a
        L = []
        def setup():
            self.srd(SRD_B, P_B2, 640 * 2)
            a('v_and_b32 v244, 15, v2')
            a('v_lshrrev_b32 v245, 4, v2')
            a('s_mul_i32 s62, s73, 20')
            a('s_lshl_b32 s63, s72, 2')
            a(f's_add_u32 s63, s63, s{sWAVE}')
            a('s_mul_i32 s63, s63, 20480')
            a(f's_add_u32 s63, s63, {HF}')
        def one(t):
            def f():
                if t == 0: setup()
                a(f'v_add_u32 v246, s62, v245')
                a(f'v_add_u32 v246, {4*t}, v246')
                a('v_lshrrev_b32 v247, 3, v246')
                a('v_lshlrev_b32 v247, 10, v247')
                a('v_bfe_u32 v248, v246, 1, 2')
                a('v_lshl_add_u32 v247, v248, 8, v247')
                a('v_and_b32 v248, 1, v246')
                a('v_lshl_add_u32 v247, v248, 3, v247')
                a('v_lshl_add_u32 v247, v244, 4, v247')
                a(f'buffer_load_dwordx2 {vr(self.RES+2*t,2)}, v247, {sr(SRD_WS)}, s63 offen sc1')
            return f
        def two(t):
            def f():
                a(f'v_add_u32 v246, s62, v245')
                a(f'v_add_u32 v246, {4*t}, v246')
                a('v_lshlrev_b32 v246, 3, v246')
                a(f'buffer_load_dwordx2 {vr(self.RES+10+2*t,2)}, v246, {sr(SRD_B)}, 0 offen')
            return f
        for t in range(5): L += [one(t), two(t)]
        return L

    def p4_epilogue(self):
        a = self.a
        ACC = 8
        a('v_lshlrev_b32 v3, 4, v2')
        a(f's_mul_i32 s5, s{sWAVE}, 20480')
        a('v_add_u32 v6, s5, v3')
        for lt in range(4):
            L = a.label('Lp4w')
            a(f's_cmp_eq_u32 s{sWAVE}, {lt}'); a(f's_cbranch_scc1 {L}')
            for t in range(5):
                a(f'ds_write_b128 v6, {vr(ACC+(t*4+lt)*4,4)} offset:{lt*5120+t*1024}')
            a(f'{L}:')
        Lend = a.label('Lp4o')
        for lt in range(4):
            L = a.label('Lp4c')
            a(f's_cmp_eq_u32 s{sWAVE}, {lt}'); a(f's_cbranch_scc0 {L}')
            for t in range(5):
                for h in range(2):
                    a(f'v_pk_mov_b32 {vr(112+4*t+2*h,2)}, {vr(ACC+(t*4+lt)*4+2*h,2)}, {vr(ACC+(t*4+lt)*4+2*h,2)} op_sel:[0,1]')
            a(f's_branch {Lend}')
            a(f'{L}:')
        a(f'{Lend}:')
        a('s_waitcnt lgkmcnt(0)')
        a('s_barrier')
        for k in range(1, 4):
            a(f's_add_u32 s5, s{sWAVE}, {k}'); a('s_and_b32 s5, s5, 3'); a('s_mul_i32 s5, s5, 20480')
            a(f's_mul_i32 s6, s{sWAVE}, 5120'); a('s_add_u32 s5, s5, s6')
            a(f'v_add_u32 v{4+k}, s5, v3')
        for t in range(5):
            for k in range(1, 4):
                a(f'ds_read_b128 {vr(132+(t*3+k-1)*4,4)}, v{4+k} offset:{t*1024}')
        for t in range(5):
            for h in range(2):
                b = self.RES + 10 + 2 * t + h; hh = self.RES + 2 * t + h
                a(f'v_lshlrev_b32 v{8+4*t+2*h}, 16, v{b}'); a(f'v_and_b32 v{8+4*t+2*h+1}, 0xffff0000, v{b}')
                a(f'v_lshlrev_b32 v{28+4*t+2*h}, 16, v{hh}'); a(f'v_and_b32 v{28+4*t+2*h+1}, 0xffff0000, v{hh}')
        self.srd(SRD_A, P_OUT, 2048 * 1280)
        a('s_lshl_b32 s5, s72, 6')
        a(f's_lshl_b32 s6, s{sWAVE}, 4')
        a('s_add_u32 s5, s5, s6')
        a('s_mul_i32 s5, s5, 1280')
        a('s_mul_i32 s6, s73, 160')
        a('s_add_u32 s5, s5, s6')
        a('v_mul_u32_u24 v4, 1280, v244')
        a('v_lshl_add_u32 v4, v245, 3, v4')
        a('s_mov_b32 s70, 0x00003f80')
        a('s_mov_b32 s71, 0x3f800000')
        a('s_waitcnt lgkmcnt(0)')
        P = [(t, h) for t in range(5) for h in range(2)]
        X = {p: 112 + 4 * p[0] + 2 * p[1] for p in P}
        def step(f):
            for p in P: a(f(p))
        for k in range(3):
            step(lambda p: f'v_pk_add_f32 {vr(X[p],2)}, {vr(X[p],2)}, {vr(132+(p[0]*3+k)*4+2*p[1],2)}')
        T = {p: 48 + i for i, p in enumerate(P)}
        step(lambda p: f'v_cvt_pk_bf16_f32 v{T[p]}, v{X[p]}, v{X[p]+1}')
        step(lambda p: f'v_dot2_f32_bf16 v{X[p]}, v{T[p]}, s70, v{8+4*p[0]+2*p[1]}')
        step(lambda p: f'v_dot2_f32_bf16 v{X[p]+1}, v{T[p]}, s71, v{8+4*p[0]+2*p[1]+1}')
        step(lambda p: f'v_cvt_pk_bf16_f32 v{T[p]}, v{X[p]}, v{X[p]+1}')
        step(lambda p: f'v_dot2_f32_bf16 v{X[p]}, v{T[p]}, s70, v{28+4*p[0]+2*p[1]}')
        step(lambda p: f'v_dot2_f32_bf16 v{X[p]+1}, v{T[p]}, s71, v{28+4*p[0]+2*p[1]+1}')
        step(lambda p: f'v_cvt_pk_bf16_f32 v{60+2*p[0]+p[1]}, v{X[p]}, v{X[p]+1}')
        for t in range(5):
            a(f'buffer_store_dwordx2 {vr(60+2*t,2)}, v4, {sr(SRD_A)}, s5 offen offset:{32*t}')

    def p4_h_load1(self, kk, lt):
        a = self.a
        slot = kk % self.P4_SLOTS
        reg = vr(self.P4H + slot * 16 + lt * 4, 4)
        if kk < 4:
            a(f'buffer_load_dwordx4 {reg}, v3, {sr(SRD_WS)}, s{76+lt} offen offset:{kk*1024} sc1')
        else:
            a(f's_add_u32 s5, s{76+lt}, {(kk//4)*4096}')
            a(f'buffer_load_dwordx4 {reg}, v3, {sr(SRD_WS)}, s5 offen offset:{(kk%4)*1024} sc1')

    def p4_main(self):
        a = self.a
        ACC = 8
        AH = self.P4_SLOTS - 1
        for kk in range(AH):
            for lt in range(4): self.p4_h_load1(kk, lt)
        for kk in range(14):
            issued_to = min(AH - 1 + kk, 13)
            a(f's_waitcnt vmcnt({(issued_to - kk) * 4})')
            if kk in (0, 3, 7, 11): self.stamp(f'q{kk}')
            slot = kk % self.P4_SLOTS
            n = 0
            for t in range(5):
                for lt in range(4):
                    acc = ACC + (t * 4 + lt) * 4
                    c = '0' if kk == 0 else vr(acc, 4)
                    a(f'v_mfma_f32_16x16x32_bf16 {vr(acc,4)}, {self.w2reg(kk*5+t)}, {vr(self.P4H+slot*16+lt*4,4)}, {c}')
                    if n % 5 == 2 and kk + AH <= 13: self.p4_h_load1(kk + AH, n // 5)
                    n += 1


    P3_AHEAD = 5
    P3_NSLOT = 3
    @property
    def P3_SLOTPOS(self):
        return {2: (4, 10), 3: (3, 8, 12), 4: (2, 6, 9, 12)}[self.P3_NSLOT]
    NW2_P3 = 12
    NW2_CONV = 36
    NW2_MAIN = 48
    NW2_EPI = 0
    def p3_main3(self):
        a = self.a
        ACC = 8
        WB = [200, 228]
        a('v_lshlrev_b32 v3, 4, v2')
        a('v_add_u32 v92, 0x10000, v3')
        a('v_add_u32 v93, 0x20000, v3')
        a('s_lshl_b32 s77, s66, 3')
        a(f's_lshl_b32 s6, s{sWAVE}, 1')
        a('s_add_u32 s77, s77, s6')
        a('s_mul_i32 s77, s77, 20480')
        a(f's_add_u32 s77, s77, {HF}')
        a('s_add_u32 s78, s77, 20480')
        def rd(kap, t):
            off = self.w1_lds(kap * 7 + t)
            reg = ['v3', 'v92', 'v93'][off >> 16]
            return f'ds_read_b128 {ar(WB[kap&1]+4*t,4)}, {reg} offset:{off & 0xffff}'
        issued = []
        def hload(kap, lt):
            blk = kap // 4
            if blk == 0:
                a(f'buffer_load_dwordx4 {vr(self.P3H+(2*kap+lt)*4,4)}, v3, {sr(SRD_WS)}, s{77+lt} offen offset:{(kap%4)*1024} sc1')
            else:
                a(f's_add_u32 s5, s{77+lt}, {blk*4096}')
                a(f'buffer_load_dwordx4 {vr(self.P3H+(2*kap+lt)*4,4)}, v3, {sr(SRD_WS)}, s5 offen offset:{(kap%4)*1024} sc1')
            issued.append(('h', kap))
        AH = self.P3_AHEAD
        hq = [(kap, lt) for kap in range(20) for lt in range(2)]
        for _ in range(2 * AH):
            hload(*hq.pop(0))
        for t in range(7): a(rd(0, t))
        self.stamp('p3iss')
        misc = [('w', lambda idx=idx: self.w2_load(idx)) for idx in range(self.NW2_CONV, self.NW2_CONV + self.NW2_P3)]
        for kap in range(20):
            last = max(i for i, tg in enumerate(issued) if tg == ('h', kap))
            a(f's_waitcnt vmcnt({min(63, len(issued) - 1 - last)}) lgkmcnt(0)')
            if kap in (0, 4, 8, 12, 16): self.stamp(f'k{kap}')
            h0 = self.P3H + (2 * kap) * 4; h1 = h0 + 4
            extra = [rd(kap + 1, t) for t in range(7)] if kap < 19 else []
            n = 0
            def slot():
                if hq: hload(*hq.pop(0))
                elif misc:
                    tg, f = misc.pop(0); f(); issued.append((tg, 0))
            for t in range(7):
                for lt, h in ((0, h0), (1, h1)):
                    acc = ACC + (t * 2 + lt) * 4
                    c = '0' if kap == 0 else vr(acc, 4)
                    a(f'v_mfma_f32_16x16x32_bf16 {vr(acc,4)}, {ar(WB[kap&1]+4*t,4)}, {vr(h,4)}, {c}')
                    if extra and n >= 1: a(extra.pop(0))
                    if n in self.P3_SLOTPOS: slot()
                    n += 1
            for lt, h in ((0, h0), (1, h1)):
                g = self.GRAM + 4 * lt
                c = '0' if kap == 0 else ar(g, 4)
                a(f'v_mfma_f32_16x16x32_bf16 {ar(g,4)}, {vr(h,4)}, {vr(h,4)}, {c}')
                if lt == 0 and not hq: slot()
        while misc:
            tg, f = misc.pop(0); f(); issued.append((tg, 0))
        self.p3_w2_inflight = 63

def build():
    out = []
    kn = NAME + '_kernel'
    out.append(f'; @launch grid=(256,1,1) block=(256,1,1) lds={LDS_SIZE}')
    out.append('.amdgcn_target "amdgcn-amd-amdhsa--gfx950"')
    out.append('.text')
    g = G3(True); g.kname = 'f'; a = g.a
    if g.timing:
        for i in range(16): a(f's_mov_b32 s{86+i}, 0')
    g.stamp('start')
    g.prologue()
    g.ln1x_issue()
    g.epoch_issue()
    Laux = a.label('Laux'); Lp3 = a.label('Lp3')
    a('s_cmp_lt_u32 s2, 160'); a(f's_cbranch_scc0 {Laux}')
    g.kgen_issue()
    g.code_prefetch()
    g.p2_consts()
    g.ln1x_compute(8)
    a('s_waitcnt vmcnt(12)')
    g.epoch_get()
    g.flag_signal(BFL1)
    g.stamp('ln1')
    g.ux_zero_pad()
    g.kgen(0)
    g.p34_ids()
    g.w2_setup()
    g.pref_setup()
    g.stamp('kgen')
    g.flag_wait(BFL1)
    g.stamp('B1')
    g.conv_load_ux()
    g.flag_store_only(UFL)
    g.pfl_issue()
    g.stamp('ux')
    g.conv_main(g.list_conv(), pref_from=g.CONV_FROM)
    g.stamp('conv')
    g.conv_epilogue()
    g.stamp('cep2')
    g.flag_signal(BFL2)
    g.stamp('P2end')
    a(f's_branch {Lp3}')
    a(f'{Laux}:')
    g.code_prefetch()
    g.ln1x_compute(2, g.prep_issue3)
    a('s_waitcnt vmcnt(0)')
    g.epoch_get()
    g.flag_signal(BFL1)
    g.stamp('ln1')
    g.prep_compute3()
    g.flag_signal(PFL)
    g.flag_signal(BFL2, drain=False)
    g.stamp('P2end')
    g.p34_ids()
    g.w2_setup()
    g.pref_setup()
    g.flag_wait(UFL, lanes=(0, 40))
    g.pfl_issue()
    g.pfl_check()
    if g.WARM: g.l2_warm()
    for f in g.list_conv(): f()
    a(f'{Lp3}:')
    g.sb_stage()
    g.flags_overlap(g.list_e2(), 16, BFL2, publish_epoch=True)
    g.stamp('B2')
    g.p3_main3()
    g.stamp('p3main')
    g.p3_epilogue()
    g.stamp('p3ep')
    rest = [i for i in range(g.NW2_CONV + g.NW2_P3, 70)]
    Lw0 = a.label('Lw0')
    g.row_signal_pre(a)
    a(f's_cmp_eq_u32 s{sWAVE}, 0'); a(f's_cbranch_scc0 {Lw0}')
    g.row_flag_store()
    a(f'{Lw0}:')
    g.row_overlap([lambda idx=idx: g.w2_load(idx) for idx in rest] + g.p4_pre_loads(), 16)
    g.stamp('B3')
    g.p4_h_setup()
    g.p4_main()
    g.stamp('p4main')
    g.p4_epilogue()
    g.stamp_flush(0)
    g.end()
    out.append(kernel_header(kn)); out += a.finalize()
    out.append('.section .rodata,"a"')
    out.append(kernel_desc(kn))
    return '\n'.join(out) + '\n'

def prep3(self):
    n0 = len(self.a.lines)
    self.prep()
    for i in range(n0, len(self.a.lines)):
        l = self.a.lines[i]
        if l.startswith('buffer_store') and 'sc1' not in l:
            self.a.lines[i] = l + ' sc1'
G3.prep3 = prep3

if __name__ == '__main__':
    dst = sys.argv[1]
    gen.TIMING = 'timing' in sys.argv[2:]
    for x in sys.argv[2:]:
        if x.startswith('set='): gen.STAMPSET = set(x[4:].split(','))
        if x.startswith('dbg='): gen.DBGSTAMP = int(x[4:])
    for x in sys.argv[2:]:
        if '=' in x and x.split('=')[0].isupper() or (x.split('=')[0].replace('_','').isalnum() and x.split('=')[0].upper() == x.split('=')[0] and '=' in x):
            k, v = x.split('='); setattr(G3, k, int(v))
    gen.HF = HF; gen.BLK = BLK; gen.HH = HH; gen.W1F = W1F; gen.W2F = W2F; gen.SP = SP
    s = build()
    open(dst, 'w').write(s)
    print('wrote', dst, len(s), 'bytes')
```

```python
import sys
sys.path.insert(0, 'work')
import gen
from gen import Gen, sr, vr, ar, f2u, sWAVE, SRD_A, SRD_WS, SRD_B, SRD_C, SRD_D
from gen import P_X, P_LA, P_AI, P_CR, P_CI, P_LDT, P_DSK, P_W1, P_B1, P_W2, P_B2, P_OUT, P_DBG, P_WS
from gen import kernel_header, kernel_desc

BLK = 0x0000000
HF  = 0x0500000
W1F = 0x0800000
W2F = 0x0B00000
SP  = 0x0E00000
HH  = 0x1000000
EPX = 0x2000000
BFL = 0x2001000
RFL = 0x2004000
LDS_SIZE = 163840
NK2 = 56

class G2(Gen):
    CSPLIT = 1
    GA = 100; VB = 144; VA = 152; VEU = 153; VHW = 154; VDSK = 155; PL = 156

    def epoch_issue(self):
        a = self.a
        a(f'v_mov_b32 v97, {EPX}')
        a(f'buffer_load_dword v96, v97, {sr(SRD_WS)}, 0 offen sc1')
        return 1

    def epoch_get(self):
        a = self.a
        a('v_readfirstlane_b32 s83, v96')
        a('s_add_u32 s83, s83, 1')

    def bar_signal(self):
        a = self.a
        L = a.label('Lsig')
        a('s_waitcnt vmcnt(0) lgkmcnt(0)')
        a('s_barrier')
        a(f's_cmp_eq_u32 s{sWAVE}, 0')
        a(f's_cbranch_scc0 {L}')
        a('v_lshlrev_b32 v5, 10, v2')
        a('s_lshl_b32 s5, s2, 2')
        a(f's_add_u32 s5, s5, {BFL}')
        a('v_mov_b32 v4, s83')
        a('s_mov_b64 exec, 0xff')
        a(f'buffer_store_dword v4, v5, {sr(SRD_WS)}, s5 offen sc1')
        a('s_mov_b64 exec, -1')
        a(f'{L}:')

    def bar_wait(self):
        a = self.a
        Lp = a.label('Lpoll'); Ld = a.label('Lpolld'); Lo = a.label('Lpollo'); Lx = a.label('Lpollx')
        a(f's_cmp_eq_u32 s{sWAVE}, 0')
        a(f's_cbranch_scc0 {Lo}')
        a('v_lshlrev_b32 v4, 4, v2')
        a('s_and_b32 s5, s2, 7')
        a('s_lshl_b32 s5, s5, 10')
        a(f's_add_u32 s5, s5, {BFL}')
        a('s_mov_b32 s6, 0')
        a(f'{Lp}:')
        a(f'buffer_load_dwordx4 v[8:11], v4, {sr(SRD_WS)}, s5 offen sc1')
        a('s_waitcnt vmcnt(0)')
        a('v_xor_b32 v8, s83, v8'); a('v_xor_b32 v9, s83, v9'); a('v_xor_b32 v10, s83, v10'); a('v_xor_b32 v11, s83, v11')
        a('v_or_b32 v8, v8, v9')
        a('v_or3_b32 v8, v8, v10, v11')
        a('v_cmp_ne_u32 vcc, 0, v8')
        a(f's_cbranch_vccz {Ld}')
        a('s_sleep 1')
        a('s_add_u32 s6, s6, 1')
        a('s_cmp_lt_u32 s6, 0x40000')
        a(f's_cbranch_scc1 {Lp}')
        a(f'{Ld}:')
        a('s_cmp_eq_u32 s2, 0')
        a(f's_cbranch_scc0 {Lx}')
        a('s_mov_b64 exec, 1')
        a('v_mov_b32 v4, s83')
        a(f'v_mov_b32 v5, {EPX}')
        a(f'buffer_store_dword v4, v5, {sr(SRD_WS)}, 0 offen sc1')
        a('s_mov_b64 exec, -1')
        a(f'{Lx}:')
        a(f'{Lo}:')
        a('s_barrier')

    def row_zero(self):
        a = self.a
        L = a.label('Lrz')
        a('s_cmp_eq_u32 s2, 255')
        a(f's_cbranch_scc0 {L}')
        a('v_lshlrev_b32 v4, 3, v0')
        a('v_mov_b32 v6, 0'); a('v_mov_b32 v7, 0')
        a(f's_mov_b32 s5, {RFL}')
        a(f'buffer_store_dwordx2 v[6:7], v4, {sr(SRD_WS)}, s5 offen')
        a(f'{L}:')

    def row_signal(self, nlater):
        a = self.a
        L = a.label('Lrs')
        a(f's_waitcnt vmcnt({nlater})')
        a('s_barrier')
        a(f's_cmp_eq_u32 s{sWAVE}, 0')
        a(f's_cbranch_scc0 {L}')
        a('s_lshl_b32 s5, s66, 7')
        a('s_lshl_b32 s6, s67, 2')
        a('s_add_u32 s5, s5, s6')
        a(f's_add_u32 s5, s5, {RFL}')
        a('s_mov_b64 exec, 1')
        a('v_mov_b32 v4, 1')
        a('v_mov_b32 v5, 0')
        a(f'buffer_store_dword v4, v5, {sr(SRD_WS)}, s5 offen sc1')
        a('s_mov_b64 exec, -1')
        a(f'{L}:')

    def row_wait(self):
        a = self.a
        Lp = a.label('Lpoll'); Ld = a.label('Lpolld'); Lo = a.label('Lpollo')
        a(f's_cmp_eq_u32 s{sWAVE}, 0')
        a(f's_cbranch_scc0 {Lo}')
        a('v_and_b32 v4, 15, v2')
        a('v_lshlrev_b32 v4, 2, v4')
        a('s_lshr_b32 s5, s72, 1')
        a('s_lshl_b32 s5, s5, 7')
        a(f's_add_u32 s5, s5, {RFL}')
        a('s_mov_b32 s6, 0')
        a(f'{Lp}:')
        a(f'buffer_load_dword v5, v4, {sr(SRD_WS)}, s5 offen sc1')
        a('s_waitcnt vmcnt(0)')
        a('v_cmp_ne_u32 vcc, 1, v5')
        a(f's_cbranch_vccz {Ld}')
        a('s_sleep 1')
        a('s_add_u32 s6, s6, 1')
        a('s_cmp_lt_u32 s6, 0x40000')
        a(f's_cbranch_scc1 {Lp}')
        a(f'{Ld}:')
        a(f'{Lo}:')
        a('s_barrier')

    def row_signal_pre(self, a):
        a('s_waitcnt vmcnt(0)')
        a('s_barrier')
        self.stamp('p3sig')

    def row_flag_store(self):
        a = self.a
        a('s_lshl_b32 s5, s66, 7')
        a('s_lshl_b32 s6, s67, 2')
        a('s_add_u32 s5, s5, s6')
        a(f's_add_u32 s5, s5, {RFL}')
        a('s_mov_b64 exec, 1')
        a('v_mov_b32 v4, 1')
        a('v_mov_b32 v5, 0')
        a(f'buffer_store_dword v4, v5, {sr(SRD_WS)}, s5 offen sc1')
        a('s_mov_b64 exec, -1')

    def row_poll(self):
        a = self.a
        Lp = a.label('Lpoll'); Ld = a.label('Lpolld')
        a('v_and_b32 v4, 15, v2')
        a('v_lshlrev_b32 v4, 2, v4')
        a('s_lshr_b32 s5, s72, 1')
        a('s_lshl_b32 s5, s5, 7')
        a(f's_add_u32 s5, s5, {RFL}')
        a('s_mov_b32 s6, 0')
        a(f'{Lp}:')
        a(f'buffer_load_dword v5, v4, {sr(SRD_WS)}, s5 offen sc1')
        a('s_waitcnt vmcnt(0)')
        a('v_cmp_ne_u32 vcc, 1, v5')
        a(f's_cbranch_vccz {Ld}')
        a('s_sleep 1')
        a('s_add_u32 s6, s6, 1')
        a('s_cmp_lt_u32 s6, 0x40000')
        a(f's_cbranch_scc1 {Lp}')
        a(f'{Ld}:')

    def prep(self):
        a = self.a
        Lw2 = a.label('Lpw2'); Ldone = a.label('Lpdone')
        a('s_sub_u32 s5, s2, 160')
        a('v_lshrrev_b32 v90, 4, v2')
        a('v_bfe_u32 v91, v2, 2, 2')
        a('v_and_b32 v92, 3, v2')
        a('v_lshlrev_b32 v93, 4, v2')
        a('s_cmp_lt_u32 s5, 16')
        a(f's_cbranch_scc0 {Lw2}')
        self.srd(SRD_B, P_W1, 640 * 3456)
        a('v_mul_u32_u24 v94, 4682, v2')
        a('v_lshrrev_b32 v94, 16, v94')
        a('v_mul_u32_u24 v95, 14, v94')
        a('v_sub_u32 v95, v2, v95')
        a('v_mul_u32_u24 v94, 3456, v94')
        a('v_lshl_add_u32 v94, v95, 4, v94')
        a(f's_mul_i32 s6, s{sWAVE}, {160*3456}')
        a('s_mul_i32 s7, s5, 216')
        a('s_add_u32 s6, s6, s7')
        WB = 35840
        a(f's_mul_i32 s61, s{sWAVE}, {WB}')
        a('s_mov_b32 m0, s61')
        a('s_mov_b32 exec_hi, 0x00ffffff')
        for i in range(40):
            a(f'buffer_load_dwordx4 v94, {sr(SRD_B)}, s6 offen lds')
            if i < 39:
                a('s_add_u32 m0, m0, 896')
                a(f's_add_u32 s6, s6, {4*3456}')
        a('s_mov_b64 exec, -1')
        a('v_lshl_add_u32 v94, v90, 3, v91')
        a('v_mul_u32_u24 v94, 224, v94')
        a('v_lshl_add_u32 v94, v92, 3, v94')
        a('v_add_u32 v94, s61, v94')
        a('s_mov_b32 s70, 0x3f803f80')
        a('v_and_b32 v95, 15, v2')
        a('v_cmp_lt_u32 s[62:63], 11, v95')
        a('v_cmp_eq_u32 vcc, 12, v95')
        a('v_mov_b32 v96, 0'); a('v_mov_b32 v97, s70')
        a('v_cndmask_b32 v96, v96, v97, vcc')
        a('s_mul_i32 s64, s5, 143360')
        a(f's_mul_i32 s65, s{sWAVE}, {5*7168}')
        a('s_add_u32 s64, s64, s65')
        a(f's_add_u32 s64, s64, {W1F}')
        a('s_waitcnt vmcnt(0)')
        for t in range(7):
            for kk in range(5):
                R = 100 + 4 * kk
                a(f'ds_read_b64_tr_b16 {vr(R,2)}, v94 offset:{kk*32*224+t*32}')
                a(f'ds_read_b64_tr_b16 {vr(R+2,2)}, v94 offset:{kk*32*224+t*32+4*224}')
            S = 120 + t
            a(f's_add_u32 s65, s64, {t*1024}')
            for kk in range(5):
                R = 100 + 4 * kk
                a(f's_waitcnt lgkmcnt({2*(4-kk)})')
                if t == 6:
                    for j in range(4):
                        a(f'v_cndmask_b32 v{R+j}, v{R+j}, v96, s[62:63]')
                a(f'buffer_store_dwordx4 {vr(R,4)}, v93, {sr(SRD_WS)}, s65 offen')
                for j in range(4):
                    c = '0' if (kk == 0 and j == 0) else f'v{S}'
                    a(f'v_dot2_f32_bf16 v{S}, v{R+j}, s70, {c}')
                if kk < 4: a('s_add_u32 s65, s65, 7168')
            a(f'v_mov_b32 v98, v{S}')
            a(f'v_permlane16_swap_b32 v{S}, v98')
            a(f'v_add_f32 v{S}, v{S}, v98')
            a(f'v_mov_b32 v98, v{S}')
            a(f'v_permlane32_swap_b32 v{S}, v98')
            a(f'v_add_f32 v{S}, v{S}, v98')
        SB = 4 * WB
        a('v_lshlrev_b32 v98, 2, v95')
        a(f's_mul_i32 s64, s{sWAVE}, 448')
        a(f's_add_u32 s64, s64, {SB}')
        a('v_add_u32 v97, s64, v98')
        for t in range(7):
            a(f'ds_write_b32 v97, v{120+t} offset:{64*t}')
        a('s_waitcnt lgkmcnt(0)')
        a('s_barrier')
        a('v_lshlrev_b32 v97, 2, v0')
        a(f'v_add_u32 v98, {SB}, v97')
        for w in range(4):
            a(f'ds_read_b32 v{120+w}, v98 offset:{448*w}')
        a('s_mul_i32 s64, s5, 448')
        a(f's_add_u32 s64, s64, {SP}')
        a('s_waitcnt lgkmcnt(0)')
        a('v_add_f32 v120, v120, v121'); a('v_add_f32 v122, v122, v123'); a('v_add_f32 v120, v120, v122')
        a('v_cmp_gt_u32 vcc, 112, v0')
        Ls = a.label('Lsp')
        a('s_and_saveexec_b64 s[62:63], vcc')
        a(f's_cbranch_execz {Ls}')
        a(f'buffer_store_dword v120, v97, {sr(SRD_WS)}, s64 offen')
        a(f'{Ls}:')
        a('s_mov_b64 exec, s[62:63]')
        a(f's_branch {Ldone}')
        a(f'{Lw2}:')
        a('s_cmp_lt_u32 s5, 51')
        a(f's_cbranch_scc0 {Ldone}')
        a('s_sub_u32 s5, s5, 16')
        a('s_lshl_b32 s5, s5, 2')
        a(f's_add_u32 s5, s5, s{sWAVE}')
        a('s_mul_i32 s61, s5, 4682')
        a('s_lshr_b32 s61, s61, 16')
        a('s_mul_i32 s6, s61, 14')
        a('s_sub_u32 s62, s5, s6')
        self.srd(SRD_B, P_W2, 1728 * 1280)
        a('v_lshrrev_b32 v94, 3, v2')
        a('v_mul_u32_u24 v94, 1280, v94')
        a('v_and_b32 v95, 7, v2')
        a('v_lshl_add_u32 v94, v95, 4, v94')
        a(f's_lshl_b32 s63, s{sWAVE}, 14')
        a('s_mov_b32 m0, s63')
        for kk in range(4):
            a('s_lshl_b32 s64, s62, 2')
            a(f's_add_u32 s64, s64, {kk}')
            a('s_mul_i32 s65, s64, 9363')
            a('s_lshr_b32 s65, s65, 16')
            a('s_mul_i32 s66, s65, 7')
            a('s_sub_u32 s66, s64, s66')
            for half in range(2):
                a('s_lshl_b32 s67, s65, 1')
                a('s_lshl_b32 s68, s66, 1')
                a(f's_add_u32 s68, s68, {half}')
                a('s_sub_u32 s69, s68, 8')
                a('s_add_u32 s70, s67, 1')
                a('s_cmp_gt_u32 s66, 3')
                a('s_cselect_b32 s67, s70, s67')
                a('s_cselect_b32 s68, s69, s68')
                a('s_lshl_b32 s69, s65, 1')
                a(f's_add_u32 s69, s69, {half}')
                a('s_cmp_eq_u32 s66, 3')
                a('s_cselect_b32 s67, s69, s67')
                a('s_cselect_b32 s68, 6, s68')
                a('s_mul_i32 s67, s67, 108')
                a('s_lshl_b32 s68, s68, 4')
                a('s_add_u32 s67, s67, s68')
                a('s_mul_i32 s67, s67, 1280')
                a('s_lshl_b32 s68, s61, 7')
                a('s_add_u32 s67, s67, s68')
                for i in range(2):
                    a(f'buffer_load_dwordx4 v94, {sr(SRD_B)}, s67 offen lds')
                    a('s_add_u32 m0, m0, 1024')
                    if i == 0: a(f's_add_u32 s67, s67, {8*1280}')
        a('v_lshl_add_u32 v94, v90, 2, v91')
        a('v_lshlrev_b32 v94, 7, v94')
        a('v_lshl_add_u32 v94, v92, 3, v94')
        a('v_add_u32 v94, s63, v94')
        a('v_cmp_eq_u32 s[68:69], 3, v90')
        a('s_waitcnt vmcnt(0)')
        for kk in range(4):
            a('s_lshl_b32 s64, s62, 2')
            a(f's_add_u32 s64, s64, {kk}')
            a('s_mul_i32 s65, s64, 9363')
            a('s_lshr_b32 s65, s65, 16')
            a('s_mul_i32 s66, s65, 7')
            a('s_sub_u32 s66, s64, s66')
            for tt in range(4):
                R = 100 + 4 * tt
                a(f'ds_read_b64_tr_b16 {vr(R,2)}, v94 offset:{kk*4096+tt*32}')
                a(f'ds_read_b64_tr_b16 {vr(R+2,2)}, v94 offset:{kk*4096+tt*32+2048}')
            Lnz = a.label('Lnz')
            a('s_waitcnt lgkmcnt(0)')
            a('s_cmp_eq_u32 s66, 3')
            a(f's_cbranch_scc0 {Lnz}')
            for tt in range(4):
                for j in range(4):
                    a(f'v_cndmask_b32 v{100+4*tt+j}, v{100+4*tt+j}, 0, s[68:69]')
            a(f'{Lnz}:')
            for tt in range(4):
                a('s_lshl_b32 s65, s61, 2')
                a(f's_add_u32 s65, s65, {tt}')
                a('s_mul_i32 s67, s65, 13108')
                a('s_lshr_b32 s67, s67, 16')
                a('s_mul_i32 s70, s67, 5')
                a('s_sub_u32 s70, s65, s70')
                a(f's_mul_i32 s67, s67, {NK2}')
                a('s_add_u32 s67, s67, s64')
                a('s_mul_i32 s67, s67, 5')
                a('s_add_u32 s67, s67, s70')
                a('s_lshl_b32 s67, s67, 10')
                a(f's_add_u32 s67, s67, {W2F}')
                a(f'buffer_store_dwordx4 {vr(100+4*tt,4)}, v93, {sr(SRD_WS)}, s67 offen')
        a(f'{Ldone}:')

    def p2_consts(self, part=None):
        a = self.a
        GA, VB, VA = self.GA, self.VB, self.VA
        t0, t1, t2, t3, t4 = 90, 91, 92, 93, 94
        a(f's_mul_i32 s61, s{sWAVE}, {self.WSTRIDE}')
        a(f'v_lshlrev_b32 v{t0}, 3, v2')
        a(f'v_sub_u32 v{t0}, 2047, v{t0}')
        a(f's_add_u32 s6, s61, {self.TBL}')
        a('s_movk_i32 s7, 0x80')
        ks = range(4) if part is None else (range(0, self.CSPLIT) if part == 0 else range(self.CSPLIT, 4))
        for k in ks:
            for e in range(0, 11, 2):
                n = 2 if e + 1 < 11 else 1
                a(f'v_subrev_u32 v{t1}, {512*k+e}, v{t0}')
                a(f'v_cvt_f32_i32 v{t3}, v{t1}')
                if n == 2:
                    a(f'v_subrev_u32 v{t2}, {512*k+e+1}, v{t0}')
                    a(f'v_cvt_f32_i32 v{t4}, v{t2}')
                    a(f'v_cvt_pk_bf16_f32 v{t3}, v{t3}, v{t4}')
                    a(f'v_lshrrev_b32 v{t4}, 16, v{t3}')
                else:
                    a(f'v_cvt_pk_bf16_f32 v{t3}, v{t3}, v{t3}')
                a(f'v_and_b32 v{t3}, 0xffff, v{t3}')
                a(f'v_subrev_u32 v{t3}, 0x4280, v{t3}')
                a(f'v_med3_i32 v{t3}, v{t3}, v{t1}, s7')
                a(f'v_lshl_add_u32 v{GA+11*k+e}, v{t3}, 1, s6')
                if n == 2:
                    a(f'v_subrev_u32 v{t4}, 0x4280, v{t4}')
                    a(f'v_med3_i32 v{t4}, v{t4}, v{t2}, s7')
                    a(f'v_lshl_add_u32 v{GA+11*k+e+1}, v{t4}, 1, s6')
        if part == 0: return
        i_, g_ = t0, t1
        a(f'v_and_b32 v{i_}, 15, v2')
        a(f'v_lshrrev_b32 v{g_}, 4, v2')
        a(f'v_and_b32 v{t2}, 3, v{i_}')
        a(f'v_sub_u32 v{t2}, 3, v{t2}')
        a(f'v_mul_u32_u24 v{t2}, {self.CPY}, v{t2}')
        a(f'v_lshrrev_b32 v{t3}, 2, v{i_}')
        a(f'v_lshlrev_b32 v{t3}, 3, v{t3}')
        a(f'v_sub_u32 v{t2}, v{t2}, v{t3}')
        a(f'v_lshl_add_u32 v{t2}, v{g_}, 4, v{t2}')
        a(f's_add_u32 s6, s61, {2*(2044-16) - (512*7+64*7)}')
        a(f'v_add_u32 v{VA}, s6, v{t2}')
        a(f'v_lshlrev_b32 v{t2}, 1, v{i_}')
        a(f'v_add_u32 v{t2}, v{t2}, v{g_}')
        a(f'v_lshlrev_b32 v{t2}, 7, v{t2}')
        a(f'v_lshrrev_b32 v{t3}, 1, v{g_}')
        a(f'v_add_u32 v{t3}, v{t3}, v{i_}')
        a(f's_lshl_b32 s7, s{sWAVE}, 1')
        for b in range(8):
            a(f'v_subrev_u32 v{t4}, {2*b+1}, v{t3}')
            a(f'v_and_b32 v{t4}, 7, v{t4}')
            a(f'v_xor_b32 v{t4}, s7, v{t4}')
            a(f'v_lshl_add_u32 v{t4}, v{t4}, 4, v{t2}')
            a(f'v_add_u32 v{VB+b}, {self.UXB + (30-4*b)*128}, v{t4}')
        a(f'v_lshlrev_b32 v{t2}, 1, v{i_}')
        a(f'v_lshrrev_b32 v{t3}, 1, v{g_}')
        a(f'v_add_u32 v{t2}, v{t2}, v{t3}')
        a(f'v_lshlrev_b32 v{t2}, 7, v{t2}')
        a(f'v_and_b32 v{t3}, 7, v{i_}')
        a(f'v_xor_b32 v{t3}, s7, v{t3}')
        a(f'v_lshl_add_u32 v{t2}, v{t3}, 4, v{t2}')
        a(f'v_and_b32 v{t3}, 1, v{g_}')
        a(f'v_lshl_add_u32 v{t2}, v{t3}, 3, v{t2}')
        a(f'v_add_u32 v{self.VEU}, {self.UXB + 32*128}, v{t2}')
        a(f'v_lshlrev_b32 v{t2}, 5, v{i_}')
        a(f'v_lshl_add_u32 v{t2}, v{g_}, 3, v{t2}')
        a(f'v_add_u32 v{self.VHW}, s61, v{t2}')

    def kgen_tail(self):
        a = self.a
        GA = self.GA
        a('v_lshlrev_b32 v7, 4, v2')
        a('v_add_u32 v7, s61, v7')
        a('v_and_b32 v10, 15, v2')
        a('v_lshlrev_b32 v10, 2, v10')
        a('v_add_u32 v10, s61, v10')
        a('v_mov_b32 v11, 0')
        for k in range(4):
            L = 12 + 12 * k
            for e in range(11):
                dst = L + (e >> 1) if e % 2 == 0 else L + 6 + (e >> 1)
                a(f'ds_read_u16 v{dst}, v{GA+11*k+e}')
        for c in range(4):
            a(f'ds_write_b32 v10, v11 offset:{c*self.CPY+4096}')
        for k in range(4):
            L = 12 + 12 * k
            if k == 0: a('s_waitcnt lgkmcnt(0)')
            D = 64 + 0
            for w in range(5):
                a(f'v_lshl_or_b32 v{D+w}, v{L+6+w}, 16, v{L+w}')
            a(f'v_mov_b32 v{D+5}, v{L+5}')
            if k == 3:
                a(f'v_writelane_b32 v{D+4}, 0, 63')
                a(f'v_writelane_b32 v{D+5}, 0, 63')
            for w in range(5):
                a(f'v_alignbit_b32 v{72+w}, v{D+w+1}, v{D+w}, 16')
            a(f'ds_write_b128 v7, {vr(D,4)} offset:{k*1024}')
            a(f'ds_write_b128 v7, {vr(72,4)} offset:{self.CPY+k*1024}')
            a(f'v_pk_mov_b32 v[80:81], {vr(D,2)}, {vr(D+2,2)} op_sel:[1,0]')
            a(f'v_pk_mov_b32 v[82:83], {vr(D+2,2)}, {vr(D+4,2)} op_sel:[1,0]')
            a('v_pk_mov_b32 v[84:85], v[72:73], v[74:75] op_sel:[1,0]')
            a('v_pk_mov_b32 v[86:87], v[74:75], v[76:77] op_sel:[1,0]')
            a(f'ds_write_b128 v7, v[80:83] offset:{2*self.CPY+k*1024}')
            a(f'ds_write_b128 v7, v[84:87] offset:{3*self.CPY+k*1024}')

    def conv_load_ux(self):
        a = self.a
        R = 164
        a('v_lshrrev_b32 v4, 3, v2')
        a('v_mul_u32_u24 v5, 20480, v4')
        a('v_and_b32 v6, 7, v2')
        a('v_lshl_add_u32 v5, v6, 4, v5')
        a(f's_mul_i32 s5, s{sWAVE}, {64*20480}')
        a('s_lshl_b32 s6, s2, 7')
        a('s_add_u32 s5, s5, s6')
        for k in range(8):
            a(f'buffer_load_dwordx4 {vr(R+4*k,4)}, v5, {sr(SRD_WS)}, s5 offen sc1')
            if k < 7: a(f's_add_u32 s5, s5, {8*20480}')
        a('v_lshrrev_b32 v7, 4, v2')
        a('v_xor_b32 v8, v6, v7')
        a('v_xor_b32 v9, 4, v8')
        a('v_lshlrev_b32 v4, 7, v4')
        a(f's_lshl_b32 s6, s{sWAVE}, 13')
        a(f's_add_u32 s6, s6, {self.UXB + 4096}')
        a('v_add_u32 v4, s6, v4')
        a('v_lshl_add_u32 v8, v8, 4, v4')
        a('v_lshl_add_u32 v9, v9, 4, v4')
        for k in range(8):
            a(f's_waitcnt vmcnt({7-k})')
            a(f'ds_write_b128 v{8 + (k&1)}, {vr(R+4*k,4)} offset:{k*1024}')
        a('s_waitcnt lgkmcnt(0)')
        a('s_barrier')

    def ux_zero_pad(self):
        a = self.a
        a('v_mov_b32 v12, 0'); a('v_mov_b32 v13, 0'); a('v_mov_b32 v14, 0'); a('v_mov_b32 v15, 0')
        a('v_lshlrev_b32 v10, 4, v0')
        a(f'v_add_u32 v10, {self.UXB}, v10')
        a('ds_write_b128 v10, v[12:15]')

    def conv_main(self, hook=None):
        a = self.a
        ACC = 12
        bufA = [44, 164]; bufB = [76, 196]
        def reads(b):
            sel = b & 1
            lst = []
            for aa in range(8):
                off = 512 * (7 - aa) + 64 * (7 - b)
                lst.append(f'ds_read_b64 {vr(bufA[sel]+4*aa,2)}, v{self.VA} offset:{off}')
                lst.append(f'ds_read_b64 {vr(bufA[sel]+4*aa+2,2)}, v{self.VA} offset:{off+8}')
            for e in range(8):
                lst.append(f'ds_read_b128 {vr(bufB[sel]+4*e,4)}, v{self.VB+b} offset:{4096*e}')
            order = []
            for k in range(8):
                order += [lst[2*k], lst[2*k+1], lst[16+k]]
            return order
        for r in reads(0): a(r)
        for b in range(8):
            sel = b & 1
            nxt = reads(b + 1) if b < 7 else []
            a('s_waitcnt lgkmcnt(0)')
            n = 0
            for aa in range(8):
                for e in range(8 - aa):
                    t = aa + e
                    c = '0' if (b == 0 and aa == 0) else vr(ACC + 4 * t, 4)
                    a(f'v_mfma_f32_16x16x32_bf16 {vr(ACC+4*t,4)}, {vr(bufA[sel]+4*aa,4)}, {vr(bufB[sel]+4*e,4)}, {c}')
                    if n < len(nxt): a(nxt[n])
                    n += 1

    def p34_ids(self):
        a = self.a
        a('s_and_b32 s5, s2, 7')
        a('s_lshr_b32 s6, s2, 3')
        a('s_lshr_b32 s66, s5, 1'); a('s_lshl_b32 s66, s66, 2')
        a('s_and_b32 s7, s6, 3'); a('s_add_u32 s66, s66, s7')
        a('s_and_b32 s67, s5, 1'); a('s_lshl_b32 s67, s67, 3')
        a('s_lshr_b32 s7, s6, 2'); a('s_add_u32 s67, s67, s7')
        a('s_lshl_b32 s72, s5, 2'); a('s_and_b32 s7, s6, 3'); a('s_add_u32 s72, s72, s7')
        a('s_lshr_b32 s73, s6, 2')
        a(f's_mul_i32 s74, s{sWAVE}, 14')

    P3H = 96
    def p3_setup(self):
        a = self.a
        a('v_lshlrev_b32 v3, 4, v2')
        a('s_mul_i32 s76, s67, 143360')
        a(f's_lshl_b32 s6, s{sWAVE}, 10')
        a('s_add_u32 s76, s76, s6')
        a(f's_add_u32 s76, s76, {W1F}')
        a('s_mov_b32 m0, s6')
        a('s_lshl_b32 s77, s66, 3')
        a(f's_lshl_b32 s6, s{sWAVE}, 1')
        a('s_add_u32 s77, s77, s6')
        a('s_mul_i32 s77, s77, 20480')
        a(f's_add_u32 s77, s77, {HF}')
        a('s_add_u32 s78, s77, 20480')
        a('v_lshrrev_b32 v94, 4, v2')
        a('v_lshlrev_b32 v94, 4, v94')
        a('s_mul_i32 s80, s67, 448')
        a(f's_add_u32 s80, s80, {SP}')
        self.srd(SRD_B, P_B1, 1728 * 2)
        a('s_mul_i32 s81, s67, 216')
        def dma():
            a(f'buffer_load_dwordx4 v3, {sr(SRD_WS)}, s76 offen lds')
            a('s_add_u32 m0, m0, 4096')
            a('s_add_u32 s76, s76, 4096')
        def hload(kap, lt):
            def f():
                a(f'buffer_load_dwordx4 {vr(self.P3H+(2*kap+lt)*4,4)}, v3, {sr(SRD_WS)}, s{77+lt} offen offset:{(kap%4)*1024}')
                if kap % 4 == 3 and kap < 19: a(f's_add_u32 s{77+lt}, s{77+lt}, 4096')
            return f
        chunks = []
        for q in range(5):
            L = []
            hs = [hload(4 * q + kk, lt) for kk in range(4) for lt in range(2)]
            for i in range(7):
                L.append(dma); L.append(hs[i])
            L.append(hs[7])
            chunks.append(L)
        def sload(t):
            return lambda: a(f'buffer_load_dwordx4 {vr(64+4*t,4)}, v94, {sr(SRD_WS)}, s80 offen offset:{64*t}')
        def bload(t):
            return lambda: a(f'buffer_load_dwordx2 {vr(96+2*t,2)}, v4, {sr(SRD_B)}, s81 offen offset:{32*t}')
        a('v_lshrrev_b32 v4, 4, v2')
        a('v_lshlrev_b32 v4, 3, v4')
        self.p3_chunks = chunks
        self.p3_s = [sload(t) for t in range(7)]
        self.p3_b = [bload(t) for t in range(7)]

    def w2reg(self, idx):
        if idx < 64: return ar(4 * idx, 4)
        return vr(88 + 4 * (idx - 64), 4)

    def w2_setup(self):
        a = self.a
        a(f's_mul_i32 s79, s73, {NK2}')
        a('s_add_u32 s79, s79, s74')
        a('s_mul_i32 s79, s79, 5120')
        a(f's_add_u32 s79, s79, {W2F}')

    def w2_load(self, idx):
        a = self.a
        off = idx * 1024
        a(f's_add_u32 s5, s79, {(off // 4096) * 4096}')
        a(f'buffer_load_dwordx4 {self.w2reg(idx)}, v3, {sr(SRD_WS)}, s5 offen offset:{off % 4096}')

    def p3_main(self):
        a = self.a
        ACC = 8
        WB = [200, 228]
        a('v_add_u32 v92, 0x10000, v3')
        a('v_add_u32 v93, 0x20000, v3')
        def rd(kap, t):
            off = (kap * 7 + t) * 1024
            reg = ['v3', 'v92', 'v93'][off >> 16]
            return f'ds_read_b128 {ar(WB[kap&1]+4*t,4)}, {reg} offset:{off & 0xffff}'
        issued = []
        def issue(tag, f):
            f(); issued.append(tag)
        def wait_chunk(q):
            last = max(i for i, tg in enumerate(issued) if tg == q)
            n = len(issued) - 1 - last
            a(f's_waitcnt vmcnt({min(63, n)})')
            a('s_barrier')
            self.stamp(f'ch{q}')
        for f in self.p3_chunks[0]: issue(0, f)
        for f in self.p3_chunks[1]: issue(1, f)
        self.stamp('p3iss')
        S = list(self.p3_s); B = list(self.p3_b)
        w2q = list(range(self.NW2_MAIN))
        pend = {0: [(2, f) for f in self.p3_chunks[2]],
                1: [(3, f) for f in self.p3_chunks[3]],
                2: [(4, f) for f in self.p3_chunks[4]],
                3: [('s', f) for f in S] + [('s', f) for f in B],
                4: []}
        def w2f(idx): return lambda: self.w2_load(idx)
        while len(pend[4]) < 16 and w2q: pend[4].append(('w', w2f(w2q.pop(0))))
        assert not w2q
        wait_chunk(0)
        for t in range(7): a(rd(0, t))
        for kap in range(20):
            q = kap // 4
            if kap % 4 == 3 and kap < 19:
                wait_chunk(q + 1)
            a('s_waitcnt lgkmcnt(0)')
            h0 = self.P3H + (2 * kap) * 4; h1 = h0 + 4
            extra = [rd(kap + 1, t) for t in range(7)] if kap < 19 else []
            n = 0
            def slot():
                if pend[q]:
                    tg, f = pend[q].pop(0); issue(tg, f)
            for t in range(7):
                for lt, h in ((0, h0), (1, h1)):
                    acc = ACC + (t * 2 + lt) * 4
                    c = '0' if kap == 0 else vr(acc, 4)
                    a(f'v_mfma_f32_16x16x32_bf16 {vr(acc,4)}, {ar(WB[kap&1]+4*t,4)}, {vr(h,4)}, {c}')
                    if extra and n >= 1: a(extra.pop(0))
                    if n in (8, 10, 12): slot()
                    n += 1
            for lt, h in ((0, h0), (1, h1)):
                g = self.GRAM + 4 * lt
                c = '0' if kap == 0 else ar(g, 4)
                a(f'v_mfma_f32_16x16x32_bf16 {ar(g,4)}, {vr(h,4)}, {vr(h,4)}, {c}')
                if lt == 0: slot()
        for q in range(5): assert not pend[q], (q, len(pend[q]))
        last = max(i for i, tg in enumerate(issued) if tg == 's')
        self.p3_w2_inflight = len(issued) - 1 - last

    NW2_MAIN = 16
    NW2_EPI = 28
    GRAM = 192

    def p3_epilogue(self):
        a = self.a
        ACC = 8
        a('v_and_b32 v4, 15, v2')
        a('v_lshrrev_b32 v5, 4, v2')
        a('v_cmp_eq_u32 s[62:63], 3, v5')
        a('v_lshrrev_b32 v6, 2, v4')
        a('v_cmp_eq_u32 s[64:65], v6, v5')
        a('v_and_b32 v6, 3, v4')
        for lt in range(2):
            S_ = 112 + 2 * lt; Q_ = 113 + 2 * lt
            acc = ACC + (6 * 2 + lt) * 4
            a(f'v_cndmask_b32 v{S_}, 0, v{acc}, s[62:63]')
            for j in range(4):
                a(f'v_accvgpr_read_b32 v{116+j}, a{self.GRAM+4*lt+j}')
            a('v_cmp_eq_u32 vcc, 1, v6'); a('v_cndmask_b32 v116, v116, v117, vcc')
            a('v_cmp_eq_u32 vcc, 2, v6'); a('v_cndmask_b32 v116, v116, v118, vcc')
            a('v_cmp_eq_u32 vcc, 3, v6'); a('v_cndmask_b32 v116, v116, v119, vcc')
            a(f'v_cndmask_b32 v{Q_}, 0, v116, s[64:65]')
        for v in (112, 113, 114, 115):
            a(f'v_mov_b32 v94, v{v}')
            a(f'v_permlane16_swap_b32 v{v}, v94')
            a(f'v_add_f32 v{v}, v{v}, v94')
            a(f'v_mov_b32 v94, v{v}')
            a(f'v_permlane32_swap_b32 v{v}, v94')
            a(f'v_add_f32 v{v}, v{v}, v94')
        for lt in range(2):
            s_, q_ = 112 + 2 * lt, 113 + 2 * lt
            a(f'v_mul_f32 v{s_}, {f2u(1.0/640):#x}, v{s_}')
            a(f'v_mul_f32 v{q_}, {f2u(1.0/640):#x}, v{q_}')
            a(f'v_fma_f32 v{q_}, -v{s_}, v{s_}, v{q_}')
            a(f'v_max_f32 v{q_}, 0, v{q_}')
            self.bf16r(s_, s_)
            self.bf16r(q_, q_)
            a(f'v_add_f32 v{q_}, {f2u(1e-5):#x}, v{q_}')
            self.bf16r(q_, q_)
            a(f'v_sqrt_f32 v{q_}, v{q_}')
            self.bf16r(q_, q_)
            R = 116 + 4 * lt
            a(f'v_rcp_f32 v{R}, v{q_}')
            a(f'v_mov_b32 v{R+2}, v{s_}')
            a(f'v_mov_b32 v{R+1}, v{R}')
            a(f'v_mov_b32 v{R+3}, v{s_}')
        a('s_mov_b32 s70, 0x00003f80')
        a('s_mov_b32 s71, 0x3f800000')
        a(f's_waitcnt vmcnt({self.p3_w2_inflight})')
        if getattr(self, 'S2', False):
            for j in range(14):
                a(f'v_pk_add_f32 {vr(64+2*j,2)}, {vr(64+2*j,2)}, {vr(180+2*j,2)}')
        for t in range(7):
            for h in range(2):
                a(f'v_lshlrev_b32 v{124+4*t+2*h}, 16, v{96+2*t+h}')
                a(f'v_and_b32 v{124+4*t+2*h+1}, 0xffff0000, v{96+2*t+h}')
        OUT = 152
        def outreg(t, lt):
            if t < 6: return OUT + ((t >> 1) * 2 + lt) * 4 + (t & 1) * 2
            return OUT + 24 + lt * 2
        a('v_lshlrev_b32 v3, 4, v2')
        a('s_lshl_b32 s5, s66, 3')
        a(f's_lshl_b32 s6, s{sWAVE}, 1')
        a('s_add_u32 s5, s5, s6')
        a(f's_mul_i32 s5, s5, {NK2*1024}')
        a(f's_add_u32 s5, s5, {HH}')
        a('s_lshr_b32 s6, s67, 1'); a('s_mul_i32 s6, s6, 7')
        a('s_and_b32 s7, s67, 1')
        a('s_lshl_b32 s62, s7, 2'); a('s_add_u32 s62, s62, s6'); a('s_lshl_b32 s62, s62, 10'); a('s_add_u32 s62, s62, s5')
        a(f's_add_u32 s63, s62, {NK2*1024}')
        a('s_add_u32 s64, s6, 3'); a('s_lshl_b32 s64, s64, 10'); a('s_lshl_b32 s7, s7, 3'); a('s_add_u32 s64, s64, s7'); a('s_add_u32 s64, s64, s5')
        a(f's_add_u32 s65, s64, {NK2*1024}')
        tmp = [94, 111]
        w2e = list(range(self.NW2_MAIN, self.NW2_MAIN + self.NW2_EPI))
        assert not w2e or max(w2e) < 48
        for t in range(7):
            for lt in range(2):
                acc = ACC + (t * 2 + lt) * 4
                R = 116 + 4 * lt
                for h in range(2):
                    x = acc + 2 * h; S = 64 + 4 * t + 2 * h; B = 124 + 4 * t + 2 * h
                    T = tmp[h]
                    a(f'v_pk_fma_f32 {vr(x,2)}, {vr(S,2)}, {vr(R+2,2)}, {vr(x,2)} neg_lo:[1,0,0] neg_hi:[1,0,0]')
                    a(f'v_pk_mul_f32 {vr(x,2)}, {vr(x,2)}, {vr(R,2)}')
                    a(f'v_cvt_pk_bf16_f32 v{T}, v{x}, v{x+1}')
                    a(f'v_lshlrev_b32 v{x}, 16, v{T}')
                    a(f'v_and_b32 v{x+1}, 0xffff0000, v{T}')
                    a(f'v_pk_add_f32 {vr(x,2)}, {vr(x,2)}, {vr(B,2)}')
                    a(f'v_cvt_pk_bf16_f32 v{T}, v{x}, v{x+1}')
                    a(f'v_pk_max_i16 v{T}, v{T}, 0')
                    a(f'v_lshlrev_b32 v{x}, 16, v{T}')
                    a(f'v_and_b32 v{x+1}, 0xffff0000, v{T}')
                    a(f'v_pk_mul_f32 {vr(x,2)}, {vr(x,2)}, {vr(x,2)}')
                    a(f'v_cvt_pk_bf16_f32 v{outreg(t,lt)+h}, v{x}, v{x+1}')
                    if w2e: self.w2_load(w2e.pop(0))
            if t in (1, 3, 5):
                p = t >> 1
                for lt, sb in ((0, 's62'), (1, 's63')):
                    a(f'buffer_store_dwordx4 {vr(OUT+(p*2+lt)*4,4)}, v3, {sr(SRD_WS)}, {sb} offen offset:{1024*p} sc1')
        for lt, sb in ((0, 's64'), (1, 's65')):
            a(f'buffer_store_dwordx2 {vr(OUT+24+lt*2,2)}, v3, {sr(SRD_WS)}, {sb} offen sc1')

    P4H = 112
    def p4_h_setup(self):
        a = self.a
        a('v_lshlrev_b32 v3, 4, v2')
        a('s_lshl_b32 s5, s72, 2')
        a(f's_mul_i32 s5, s5, {NK2}')
        a('s_add_u32 s5, s5, s74')
        a('s_lshl_b32 s5, s5, 10')
        a(f's_add_u32 s76, s5, {HH}')
        for lt in range(1, 4):
            a(f's_add_u32 s{76+lt}, s76, {lt*NK2*1024}')

    def p4_h_load(self, kk):
        a = self.a
        slot = kk % 9
        for lt in range(4):
            reg = vr(self.P4H + slot * 16 + lt * 4, 4)
            if kk < 4:
                a(f'buffer_load_dwordx4 {reg}, v3, {sr(SRD_WS)}, s{76+lt} offen offset:{kk*1024} sc1')
            else:
                a(f's_add_u32 s5, s{76+lt}, {(kk//4)*4096}')
                a(f'buffer_load_dwordx4 {reg}, v3, {sr(SRD_WS)}, s5 offen offset:{(kk%4)*1024} sc1')

    def p4_h_load1(self, kk, lt):
        a = self.a
        slot = kk % 9
        reg = vr(self.P4H + slot * 16 + lt * 4, 4)
        if kk < 4:
            a(f'buffer_load_dwordx4 {reg}, v3, {sr(SRD_WS)}, s{76+lt} offen offset:{kk*1024} sc1')
        else:
            a(f's_add_u32 s5, s{76+lt}, {(kk//4)*4096}')
            a(f'buffer_load_dwordx4 {reg}, v3, {sr(SRD_WS)}, s5 offen offset:{(kk%4)*1024} sc1')

    P4_AHEAD = 4
    def p4_main(self):
        a = self.a
        ACC = 8
        AH = self.P4_AHEAD
        for kk in range(AH):
            for lt in range(4): self.p4_h_load1(kk, lt)
        for kk in range(14):
            issued_to = min(AH - 1 + kk, 13)
            a(f's_waitcnt vmcnt({(issued_to - kk) * 4})')
            if kk in (0, 4, 9): self.stamp(f'p4k{kk}')
            slot = kk % 9
            n = 0
            for t in range(5):
                for lt in range(4):
                    acc = ACC + (t * 4 + lt) * 4
                    c = '0' if kk == 0 else vr(acc, 4)
                    a(f'v_mfma_f32_16x16x32_bf16 {vr(acc,4)}, {self.w2reg(kk*5+t)}, {vr(self.P4H+slot*16+lt*4,4)}, {c}')
                    if n % 5 == 2 and kk + AH <= 13: self.p4_h_load1(kk + AH, n // 5)
                    n += 1

def build(timing=False):
    out = []
    out.append(f'; @launch kernel=k12_kernel grid=(256,1,1) block=(256,1,1) lds={LDS_SIZE}')
    out.append(f'; @launch kernel=k34_kernel grid=(256,1,1) block=(256,1,1) lds={LDS_SIZE}')
    out.append('.amdgcn_target "amdgcn-amd-amdhsa--gfx950"')
    out.append('.text')
    g = G2(True); g.kname = 'k12'; a = g.a
    if g.timing:
        for i in range(16): a(f's_mov_b32 s{86+i}, 0')
    g.stamp('start')
    g.prologue()
    g.ln1_issue()
    g.epoch_issue()
    Laux = a.label('Laux')
    a('s_cmp_lt_u32 s2, 160'); a(f's_cbranch_scc0 {Laux}')
    g.kgen_issue()
    g.p2_consts()
    g.ln1_compute(7)
    a('s_waitcnt vmcnt(11)')
    g.epoch_get()
    g.bar_signal()
    g.stamp('ln1')
    g.ux_zero_pad()
    g.kgen(0)
    g.stamp('kgen')
    g.bar_wait()
    g.stamp('B1')
    g.conv_load_ux()
    g.stamp('ux')
    g.conv_main()
    g.stamp('conv')
    g.sc = ''
    g.conv_epilogue()
    g.stamp('cep2')
    a('s_branch L_flush_k12')
    a(f'{Laux}:')
    g.sc = ' sc1'
    g.ln1_compute(1)
    a('s_waitcnt vmcnt(5)')
    g.epoch_get()
    g.bar_signal()
    g.row_zero()
    g.prep()
    g.stamp('prep')
    a('L_flush_k12:')
    g.stamp_flush(0)
    g.end()
    out.append(kernel_header('k12_kernel')); out += a.finalize()
    g = G2(True); g.kname = 'k34'; a = g.a
    if g.timing:
        for i in range(16): a(f's_mov_b32 s{86+i}, 0')
    g.stamp('start')
    g.prologue()
    g.p34_ids()
    g.p3_setup()
    g.w2_setup()
    g.p3_main()
    g.stamp('p3main')
    g.p3_epilogue()
    g.stamp('p3ep')
    rest = [i for i in range(g.NW2_MAIN + g.NW2_EPI, 70)]
    Lw0 = a.label('Lw0'); Lj = a.label('Lj')
    g.row_signal_pre(a)
    a(f's_cmp_eq_u32 s{sWAVE}, 0'); a(f's_cbranch_scc0 {Lw0}')
    g.row_flag_store()
    a(f'{Lw0}:')
    for idx in rest: g.w2_load(idx)
    a(f's_cmp_eq_u32 s{sWAVE}, 0'); a(f's_cbranch_scc0 {Lj}')
    g.row_poll()
    a(f'{Lj}:')
    a('s_barrier')
    g.stamp('B3')
    g.p4_h_setup()
    g.p4_main()
    g.stamp('p4main')
    g.p4_epilogue()
    g.stamp_flush(1)
    g.end()
    out.append(kernel_header('k34_kernel')); out += a.finalize()
    out.append('.section .rodata,"a"')
    for n in ('k12_kernel', 'k34_kernel'): out.append(kernel_desc(n))
    return '\n'.join(out) + '\n'

if __name__ == '__main__':
    dst = sys.argv[1]
    gen.TIMING = 'timing' in sys.argv[2:]
    for x in sys.argv[2:]:
        if x.startswith('set='): gen.STAMPSET = set(x[4:].split(','))
    gen.HF = HF; gen.BLK = BLK; gen.HH = HH; gen.W1F = W1F; gen.W2F = W2F; gen.SP = SP
    s = build()
    open(dst, 'w').write(s)
    print('wrote', dst, len(s), 'bytes')
```

```python
import sys
sys.path.insert(0, 'work')
import gen, gen2
from gen import sr, vr, ar, f2u, sWAVE, SRD_A, SRD_WS, SRD_B, SRD_C, SRD_D
from gen import P_X, P_LA, P_AI, P_CR, P_CI, P_LDT, P_DSK, P_W1, P_B1, P_W2, P_B2, P_OUT, P_DBG, P_WS
from gen import kernel_header, kernel_desc, NAME
from gen2 import G2, BLK, HF, W1F, W2F, SP, HH, EPX, LDS_SIZE, NK2

BFL1 = 0x2001000
BFL2 = 0x2003000
PFL  = 0x2005000
RFL  = 0x2008000
UFL  = 0x200A000

class G3(G2):
    S2 = False
    def code_prefetch(self):
        a = self.a
        L = a.label('Lcp')
        a('s_getpc_b64 s[46:47]')
        a(f'{L}_pc:')
        a(f's_sub_u32 s46, s46, {L}_pc-{NAME}_kernel')
        a('s_subb_u32 s47, s47, 0')
        a('s_lshr_b32 s5, s2, 3')
        a('s_lshl_b32 s5, s5, 2')
        a(f's_add_u32 s5, s5, s{sWAVE}')
        a('s_min_u32 s5, s5, (L_end_f-%s_kernel)/1024-1' % NAME)
        a('s_lshl_b32 s5, s5, 10')
        a('v_lshlrev_b32 v97, 4, v2')
        a('v_add_u32 v97, s5, v97')
        a('global_load_dwordx4 v[232:235], v97, s[46:47]')

    def flag_signal(self, base, drain=True):
        a = self.a
        L = a.label('Lsig')
        if drain: a('s_waitcnt vmcnt(0) lgkmcnt(0)')
        else: a('s_waitcnt lgkmcnt(0)')
        a('s_barrier')
        a(f's_cmp_eq_u32 s{sWAVE}, 0')
        a(f's_cbranch_scc0 {L}')
        a('v_lshlrev_b32 v5, 10, v2')
        a('s_lshl_b32 s5, s2, 2')
        a(f's_add_u32 s5, s5, {base}')
        a('v_mov_b32 v4, s83')
        a('s_mov_b64 exec, 0xff')
        a(f'buffer_store_dword v4, v5, {sr(SRD_WS)}, s5 offen sc1')
        a('s_mov_b64 exec, -1')
        a(f'{L}:')

    def flag_poll(self, base, lanes=None, publish_epoch=False):
        a = self.a
        Lp = a.label('Lpoll'); Ld = a.label('Lpolld'); Lx = a.label('Lpollx')
        a('v_lshlrev_b32 v4, 4, v2')
        a('s_and_b32 s5, s2, 7')
        a('s_lshl_b32 s5, s5, 10')
        a(f's_add_u32 s5, s5, {base}')
        a('s_mov_b32 s6, 0')
        if lanes:
            lo, hi = lanes
            m = ((1 << hi) - 1) ^ ((1 << lo) - 1)
            a(f's_mov_b32 s62, {m & 0xffffffff:#x}'); a(f's_mov_b32 s63, {m >> 32:#x}')
        a(f'{Lp}:')
        a(f'buffer_load_dwordx4 v[8:11], v4, {sr(SRD_WS)}, s5 offen sc1')
        a('s_waitcnt vmcnt(0)')
        a('v_xor_b32 v8, s83, v8'); a('v_xor_b32 v9, s83, v9'); a('v_xor_b32 v10, s83, v10'); a('v_xor_b32 v11, s83, v11')
        a('v_or_b32 v8, v8, v9')
        a('v_or3_b32 v8, v8, v10, v11')
        a('v_cmp_ne_u32 vcc, 0, v8')
        if lanes:
            a('s_and_b64 vcc, vcc, s[62:63]')
        a(f's_cbranch_vccz {Ld}')
        a('s_sleep 1')
        a('s_add_u32 s6, s6, 1')
        a('s_cmp_lt_u32 s6, 0x40000')
        a(f's_cbranch_scc1 {Lp}')
        a(f'{Ld}:')
        if publish_epoch:
            a('s_cmp_eq_u32 s2, 0')
            a(f's_cbranch_scc0 {Lx}')
            a('s_mov_b64 exec, 1')
            a('v_mov_b32 v4, s83')
            a(f'v_mov_b32 v5, {EPX}')
            a(f'buffer_store_dword v4, v5, {sr(SRD_WS)}, 0 offen sc1')
            a('s_mov_b64 exec, -1')
            a(f'{Lx}:')

    def flag_wait(self, base, lanes=None, publish_epoch=False, drain=False, mid=None):
        a = self.a
        Lo = a.label('Lpollo')
        if mid:
            a('s_waitcnt vmcnt(0)')
            mid()
        a(f's_cmp_eq_u32 s{sWAVE}, 0')
        a(f's_cbranch_scc0 {Lo}')
        self.flag_poll(base, lanes, publish_epoch)
        a(f'{Lo}:')
        if drain: a('s_waitcnt vmcnt(0)')
        a('s_barrier')

    def row_flag_store(self):
        a = self.a
        a('s_lshl_b32 s5, s66, 7')
        a('s_lshl_b32 s6, s67, 2')
        a('s_add_u32 s5, s5, s6')
        a(f's_add_u32 s5, s5, {RFL}')
        a('s_mov_b64 exec, 1')
        a('v_mov_b32 v4, s83')
        a('v_mov_b32 v5, 0')
        a(f'buffer_store_dword v4, v5, {sr(SRD_WS)}, s5 offen sc1')
        a('s_mov_b64 exec, -1')

    def row_poll(self):
        a = self.a
        Lp = a.label('Lpoll'); Ld = a.label('Lpolld')
        a('v_and_b32 v4, 15, v2')
        a('v_lshlrev_b32 v4, 2, v4')
        a('s_lshr_b32 s5, s72, 1')
        a('s_lshl_b32 s5, s5, 7')
        a(f's_add_u32 s5, s5, {RFL}')
        a('s_mov_b32 s6, 0')
        a(f'{Lp}:')
        a(f'buffer_load_dword v5, v4, {sr(SRD_WS)}, s5 offen sc1')
        a('s_waitcnt vmcnt(0)')
        a('v_cmp_ne_u32 vcc, s83, v5')
        a(f's_cbranch_vccz {Ld}')
        a('s_sleep 1')
        a('s_add_u32 s6, s6, 1')
        a('s_cmp_lt_u32 s6, 0x40000')
        a(f's_cbranch_scc1 {Lp}')
        a(f'{Ld}:')


    TILE = 20992
    def ln1x_issue(self):
        a = self.a
        self.srd(SRD_A, P_X, 2048 * 1280)
        a('v_lshrrev_b32 v3, 5, v0')
        a('v_and_b32 v4, 31, v0')
        a('v_mul_u32_u24 v5, 0x500, v3')
        a('v_lshl_add_u32 v5, v4, 3, v5')
        a('s_mov_b32 s82, s2')
        a('s_mov_b32 s81, 1')
        a('s_mul_i32 s3, s82, 10240')
        for k, R in enumerate((8,)):
            L = None
            if k == 2:
                L = a.label('Lln'); a('s_cmp_lt_u32 s81, 3'); a(f's_cbranch_scc1 {L}')
            for q in range(5):
                a(f'buffer_load_dwordx2 {vr(R+2*q,2)}, v5, {sr(SRD_A)}, s3 offen offset:{256*q}')
            if k < 2: a(f's_add_u32 s3, s3, {96*10240}')
            if L: a(f'{L}:')

    def ln1x_compute(self, nlater, after_arrival=None):
        a = self.a
        F = 20
        a('v_mul_u32_u24 v6, 2624, v3')
        a('v_lshl_add_u32 v6, v4, 4, v6')
        a('s_mov_b32 s80, 0')
        a(f's_waitcnt vmcnt({nlater})')
        self.stamp('xarr')
        if after_arrival: after_arrival()
        Lp = a.label('Llnl')
        a(f'{Lp}:')
        for k in range(10):
            a(f'v_lshlrev_b32 v{F+2*k}, 16, v{8+k}')
            a(f'v_and_b32 v{F+2*k+1}, 0xffff0000, v{8+k}')
        a(f'v_pk_add_f32 v[40:41], {vr(F,2)}, {vr(F+2,2)}')
        a(f'v_pk_add_f32 v[42:43], {vr(F+4,2)}, {vr(F+6,2)}')
        for k in range(4, 10, 2):
            a(f'v_pk_add_f32 v[40:41], v[40:41], {vr(F+2*k,2)}')
            a(f'v_pk_add_f32 v[42:43], v[42:43], {vr(F+2*k+2,2)}')
        a('v_pk_add_f32 v[40:41], v[40:41], v[42:43]')
        a('v_add_f32 v40, v40, v41')
        self.rowsum32(40, 41)
        a(f'v_mul_f32 v40, {f2u(1.0/640):#x}, v40')
        a('v_mov_b32 v41, v40')
        D = 48
        for k in range(10):
            a(f'v_pk_add_f32 {vr(D+2*k,2)}, {vr(F+2*k,2)}, v[40:41] neg_lo:[0,1] neg_hi:[0,1]')
        a(f'v_pk_mul_f32 v[42:43], {vr(D,2)}, {vr(D,2)}')
        a(f'v_pk_mul_f32 v[44:45], {vr(D+2,2)}, {vr(D+2,2)}')
        for k in range(2, 10, 2):
            a(f'v_pk_fma_f32 v[42:43], {vr(D+2*k,2)}, {vr(D+2*k,2)}, v[42:43]')
            a(f'v_pk_fma_f32 v[44:45], {vr(D+2*k+2,2)}, {vr(D+2*k+2,2)}, v[44:45]')
        a('v_pk_add_f32 v[42:43], v[42:43], v[44:45]')
        a('v_add_f32 v42, v42, v43')
        self.rowsum32(42, 43)
        a(f'v_mul_f32 v42, {f2u(1.0/640):#x}, v42')
        a('v_cvt_pk_bf16_f32 v42, v42, v40')
        a('v_and_b32 v40, 0xffff0000, v42')
        a('v_lshlrev_b32 v42, 16, v42')
        a('v_mov_b32 v41, v40')
        a(f'v_add_f32 v42, {f2u(1e-5):#x}, v42')
        self.bf16r(42, 42)
        a('v_sqrt_f32 v42, v42')
        self.bf16r(42, 42)
        a('v_rcp_f32 v42, v42')
        a('v_mov_b32 v43, v42')
        U = 48
        for k in range(10):
            a(f'v_pk_add_f32 {vr(U+2*k,2)}, {vr(F+2*k,2)}, v[40:41] neg_lo:[0,1] neg_hi:[0,1]')
        for k in range(10):
            a(f'v_cvt_pk_bf16_f32 v{68+k}, v{U+2*k}, v{U+2*k+1}')
        for k in range(10):
            a(f'v_lshlrev_b32 v{U+2*k}, 16, v{68+k}')
            a(f'v_and_b32 v{U+2*k+1}, 0xffff0000, v{68+k}')
        for k in range(10):
            a(f'v_pk_mul_f32 {vr(U+2*k,2)}, {vr(U+2*k,2)}, v[42:43]')
        for k in range(20):
            a(f'v_cvt_pk_bf16_f32 v{U+k}, v{U+k}, v{F+k}')
        for q in range(5):
            a(f'ds_write_b128 v6, {vr(U+4*q,4)} offset:{512*q}')
        a('v_bfe_u32 v7, v2, 2, 2')
        a('v_mul_u32_u24 v7, 2624, v7')
        a('v_lshrrev_b32 v6, 4, v2')
        a('v_lshl_add_u32 v7, v6, 5, v7')
        a('v_and_b32 v6, 3, v2')
        a('v_lshl_add_u32 v7, v6, 3, v7')
        a(f's_lshl_b32 s3, s{sWAVE}, 7')
        a('v_add_u32 v7, s3, v7')
        a('v_lshlrev_b32 v6, 4, v2')
        a(f's_lshl_b32 s3, s{sWAVE}, 10')
        a('v_add_u32 v6, s3, v6')
        a('s_mul_i32 s3, s82, 20480')
        a('s_mov_b32 s80, 0')
        a('s_waitcnt lgkmcnt(0)')
        self.stamp('lncomp')
        a('s_barrier')
        T = 68
        Lq = a.label('Llns')
        a(f'{Lq}:')
        for k in range(5):
            a(f'ds_read_b64_tr_b16 {vr(T+4*k,2)}, v7 offset:{512*k}')
            a(f'ds_read_b64_tr_b16 {vr(T+4*k+2,2)}, v7 offset:{512*k+4*2624}')
        a('s_mov_b32 s5, s3')
        for k in range(5):
            a(f's_waitcnt lgkmcnt({2*(4-k)})')
            a(f'buffer_store_dwordx4 {vr(T+4*k,4)}, v6, {sr(SRD_WS)}, s5 offen sc1')
            if k < 4: a('s_add_u32 s5, s5, 4096')

    def flags_overlap(self, loads, B, base, lanes=None, publish_epoch=False):
        a = self.a
        loads = list(loads)
        head, tail = loads[:len(loads) - B], loads[len(loads) - B:]
        for f in head: f()
        L1 = a.label('Lfo'); Lp = a.label('Lfp'); Lc = a.label('Lfc'); Ld = a.label('Lfd'); Lo = a.label('Lfe'); Lx = a.label('Lfx')
        def issue():
            a('v_lshlrev_b32 v4, 4, v2')
            a('s_and_b32 s6, s2, 7')
            a('s_lshl_b32 s6, s6, 10')
            a(f's_add_u32 s6, s6, {base}')
            a(f'buffer_load_dwordx4 v[8:11], v4, {sr(SRD_WS)}, s6 offen sc1')
        a(f's_cmp_eq_u32 s{sWAVE}, 0'); a(f's_cbranch_scc0 {L1}')
        issue()
        a(f'{L1}:')
        for f in tail: f()
        a(f's_cmp_eq_u32 s{sWAVE}, 0'); a(f's_cbranch_scc0 {Lo}')
        a('s_mov_b32 s7, 0')
        if lanes:
            lo, hi = lanes
            m = ((1 << hi) - 1) ^ ((1 << lo) - 1)
            a(f's_mov_b32 s62, {m & 0xffffffff:#x}'); a(f's_mov_b32 s63, {m >> 32:#x}')
        a(f's_waitcnt vmcnt({min(63, len(tail))})')
        a(f's_branch {Lc}')
        a(f'{Lp}:')
        a('s_sleep 1')
        issue()
        a('s_waitcnt vmcnt(0)')
        a(f'{Lc}:')
        a('v_xor_b32 v8, s83, v8'); a('v_xor_b32 v9, s83, v9'); a('v_xor_b32 v10, s83, v10'); a('v_xor_b32 v11, s83, v11')
        a('v_or_b32 v8, v8, v9')
        a('v_or3_b32 v8, v8, v10, v11')
        a('v_cmp_ne_u32 vcc, 0, v8')
        if lanes: a('s_and_b64 vcc, vcc, s[62:63]')
        a(f's_cbranch_vccz {Ld}')
        a('s_add_u32 s7, s7, 1')
        a('s_cmp_lt_u32 s7, 0x40000')
        a(f's_cbranch_scc1 {Lp}')
        a(f'{Ld}:')
        if publish_epoch:
            a('s_cmp_eq_u32 s2, 0')
            a(f's_cbranch_scc0 {Lx}')
            a('s_mov_b64 exec, 1')
            a('v_mov_b32 v4, s83')
            a(f'v_mov_b32 v5, {EPX}')
            a(f'buffer_store_dword v4, v5, {sr(SRD_WS)}, 0 offen sc1')
            a('s_mov_b64 exec, -1')
            a(f'{Lx}:')
        a(f'{Lo}:')
        a('s_waitcnt vmcnt(0) lgkmcnt(0)')
        a('s_barrier')

    def row_overlap(self, loads, B):
        a = self.a
        loads = list(loads)
        head, tail = loads[:len(loads) - B], loads[len(loads) - B:]
        for f in head: f()
        L1 = a.label('Lro'); Lp = a.label('Lrp'); Lc = a.label('Lrc'); Ld = a.label('Lrd'); Lo = a.label('Lre')
        def issue():
            a('v_and_b32 v4, 15, v2')
            a('v_lshlrev_b32 v4, 2, v4')
            a('s_lshr_b32 s6, s72, 1')
            a('s_lshl_b32 s6, s6, 7')
            a(f's_add_u32 s6, s6, {RFL}')
            a(f'buffer_load_dword v5, v4, {sr(SRD_WS)}, s6 offen sc1')
        a(f's_cmp_eq_u32 s{sWAVE}, 0'); a(f's_cbranch_scc0 {L1}')
        issue()
        a(f'{L1}:')
        for f in tail: f()
        a(f's_cmp_eq_u32 s{sWAVE}, 0'); a(f's_cbranch_scc0 {Lo}')
        a('s_mov_b32 s7, 0')
        a(f's_waitcnt vmcnt({min(63, len(tail))})')
        a(f's_branch {Lc}')
        a(f'{Lp}:')
        a('s_sleep 1')
        issue()
        a('s_waitcnt vmcnt(0)')
        a(f'{Lc}:')
        a('v_cmp_ne_u32 vcc, s83, v5')
        a(f's_cbranch_vccz {Ld}')
        a('s_add_u32 s7, s7, 1')
        a('s_cmp_lt_u32 s7, 0x40000')
        a(f's_cbranch_scc1 {Lp}')
        a(f'{Ld}:')
        a(f'{Lo}:')
        a('s_barrier')

    LDSP = 24576
    def prep_issue3(self):
        a = self.a
        Lw2 = a.label('Lpw2'); Ldone = a.label('Lpdone'); Lnone = a.label('Lpnone')
        a('s_sub_u32 s60, s2, 160')
        a('s_cmp_lt_u32 s60, 48')
        a(f's_cbranch_scc0 {Lw2}')
        self.srd(SRD_B, P_W1, 640 * 3456)
        a('v_mul_u32_u24 v94, 4682, v2')
        a('v_lshrrev_b32 v94, 16, v94')
        a('v_mul_u32_u24 v95, 14, v94')
        a('v_sub_u32 v95, v2, v95')
        a('v_mul_u32_u24 v94, 3456, v94')
        a('v_lshl_add_u32 v94, v95, 4, v94')
        a('s_mul_i32 s64, s60, 21846')
        a('s_lshr_b32 s64, s64, 16')
        a('s_mul_i32 s65, s64, 3')
        a('s_sub_u32 s65, s60, s65')
        a('s_mul_i32 s62, s65, 7')
        a(f's_lshl_b32 s61, s{sWAVE}, 1')
        a('s_add_u32 s62, s62, s61')
        a('s_mul_i32 s63, s65, 7'); a('s_add_u32 s63, s63, 7'); a('s_min_u32 s63, s63, 20')
        a('s_sub_u32 s63, s63, s62'); a('s_min_i32 s63, s63, 2')
        a(f's_mul_i32 s6, s62, {32*3456}')
        a('s_mul_i32 s7, s64, 216')
        a('s_add_u32 s6, s6, s7')
        a(f's_mul_i32 s61, s61, {32*224}')
        a(f's_add_u32 s61, s61, {self.LDSP}')
        a('s_mov_b32 m0, s61')
        a('s_mov_b32 exec_hi, 0x00ffffff')
        L0 = a.label('Lpk0'); L8 = a.label('Lpk8'); Lsk = a.label('Lpk')
        a('s_cmp_lt_i32 s63, 1'); a(f's_cbranch_scc1 {L0}')
        for i in range(16):
            if i == 8:
                a('s_cmp_lt_i32 s63, 2'); a(f's_cbranch_scc1 {L8}')
            a(f'buffer_load_dwordx4 v94, {sr(SRD_B)}, s6 offen lds')
            if i < 15:
                a('s_add_u32 m0, m0, 896')
                a(f's_add_u32 s6, s6, {4*3456}')
        a('s_waitcnt vmcnt(16)'); a(f's_branch {Lsk}')
        a(f'{L8}:'); a('s_waitcnt vmcnt(8)'); a(f's_branch {Lsk}')
        a(f'{L0}:'); a('s_waitcnt vmcnt(0)')
        a(f'{Lsk}:')
        a('s_mov_b64 exec, -1')
        a(f's_branch {Ldone}')
        a(f'{Lw2}:')
        a('s_cmp_lt_u32 s60, 83')
        a(f's_cbranch_scc0 {Lnone}')
        a('s_sub_u32 s5, s60, 48')
        a('s_lshl_b32 s5, s5, 2')
        a(f's_add_u32 s5, s5, s{sWAVE}')
        a('s_mul_i32 s61, s5, 4682')
        a('s_lshr_b32 s61, s61, 16')
        a('s_mul_i32 s6, s61, 14')
        a('s_sub_u32 s62, s5, s6')
        self.srd(SRD_B, P_W2, 1728 * 1280)
        a('v_lshrrev_b32 v94, 3, v2')
        a('v_mul_u32_u24 v94, 1280, v94')
        a('v_and_b32 v95, 7, v2')
        a('v_lshl_add_u32 v94, v95, 4, v94')
        a(f's_lshl_b32 s63, s{sWAVE}, 14')
        a(f's_add_u32 s63, s63, {self.LDSP}')
        a('s_mov_b32 m0, s63')
        for kk in range(4):
            a('s_lshl_b32 s64, s62, 2')
            a(f's_add_u32 s64, s64, {kk}')
            a('s_mul_i32 s65, s64, 9363')
            a('s_lshr_b32 s65, s65, 16')
            a('s_mul_i32 s66, s65, 7')
            a('s_sub_u32 s66, s64, s66')
            for half in range(2):
                a('s_lshl_b32 s67, s65, 1')
                a('s_lshl_b32 s68, s66, 1')
                a(f's_add_u32 s68, s68, {half}')
                a('s_sub_u32 s69, s68, 8')
                a('s_add_u32 s70, s67, 1')
                a('s_cmp_gt_u32 s66, 3')
                a('s_cselect_b32 s67, s70, s67')
                a('s_cselect_b32 s68, s69, s68')
                a('s_lshl_b32 s69, s65, 1')
                a(f's_add_u32 s69, s69, {half}')
                a('s_cmp_eq_u32 s66, 3')
                a('s_cselect_b32 s67, s69, s67')
                a('s_cselect_b32 s68, 6, s68')
                a('s_mul_i32 s67, s67, 108')
                a('s_lshl_b32 s68, s68, 4')
                a('s_add_u32 s67, s67, s68')
                a('s_mul_i32 s67, s67, 1280')
                a('s_lshl_b32 s68, s61, 7')
                a('s_add_u32 s67, s67, s68')
                for i in range(2):
                    a(f'buffer_load_dwordx4 v94, {sr(SRD_B)}, s67 offen lds')
                    a('s_add_u32 m0, m0, 1024')
                    if i == 0: a(f's_add_u32 s67, s67, {8*1280}')
        a('s_waitcnt vmcnt(16)')
        a(f's_branch {Ldone}')
        a(f'{Lnone}:')
        a('s_waitcnt vmcnt(0)')
        a(f'{Ldone}:')

    def prep_compute3(self):
        a = self.a
        Lw2 = a.label('Lqw2'); Ldone = a.label('Lqdone')
        a('s_waitcnt vmcnt(0)')
        a('v_lshrrev_b32 v90, 4, v2')
        a('v_bfe_u32 v91, v2, 2, 2')
        a('v_and_b32 v92, 3, v2')
        a('v_lshlrev_b32 v93, 4, v2')
        a('s_cmp_lt_u32 s60, 48')
        a(f's_cbranch_scc0 {Lw2}')
        a('v_lshl_add_u32 v94, v90, 3, v91')
        a('v_mul_u32_u24 v94, 224, v94')
        a('v_lshl_add_u32 v94, v92, 3, v94')
        a('v_add_u32 v94, s61, v94')
        a('s_mov_b32 s70, 0x3f803f80')
        a('v_and_b32 v95, 15, v2')
        a('v_cmp_lt_u32 s[68:69], 11, v95')
        a('v_cmp_eq_u32 vcc, 12, v95')
        a('v_mov_b32 v96, 0'); a('v_mov_b32 v97, s70')
        a('v_cndmask_b32 v96, v96, v97, vcc')
        a('s_mul_i32 s66, s64, 143360')
        a('s_mul_i32 s67, s62, 7168')
        a('s_add_u32 s66, s66, s67')
        a(f's_add_u32 s66, s66, {W1F}')
        for t in range(7): a(f'v_mov_b32 v{120+t}, 0')
        Lk3 = a.label('Lk3')
        for kk in range(2):
            a(f's_cmp_lt_i32 s63, {kk+1}'); a(f's_cbranch_scc1 {Lk3}')
            for t in range(7):
                R = 128 + 4 * t
                a(f'ds_read_b64_tr_b16 {vr(R,2)}, v94 offset:{kk*32*224+t*32}')
                a(f'ds_read_b64_tr_b16 {vr(R+2,2)}, v94 offset:{kk*32*224+t*32+4*224}')
            a(f's_add_u32 s67, s66, {kk*7168}')
            for t in range(7):
                R = 128 + 4 * t
                a(f's_waitcnt lgkmcnt({2*(6-t)})')
                if t == 6:
                    for j in range(4):
                        a(f'v_cndmask_b32 v{R+j}, v{R+j}, v96, s[68:69]')
                if t == 4: a('s_add_u32 s67, s67, 4096')
                a(f'buffer_store_dwordx4 {vr(R,4)}, v93, {sr(SRD_WS)}, s67 offen offset:{(t%4)*1024} sc1')
                for j in range(4):
                    a(f'v_dot2_f32_bf16 v{120+t}, v{R+j}, s70, v{120+t}')
        a(f'{Lk3}:')
        for t in range(7):
            S = 120 + t
            a(f'v_mov_b32 v98, v{S}')
            a(f'v_permlane16_swap_b32 v{S}, v98')
            a(f'v_add_f32 v{S}, v{S}, v98')
            a(f'v_mov_b32 v98, v{S}')
            a(f'v_permlane32_swap_b32 v{S}, v98')
            a(f'v_add_f32 v{S}, v{S}, v98')
        SB = self.LDSP + 8 * 32 * 224
        a('v_lshlrev_b32 v98, 2, v95')
        a(f's_mul_i32 s66, s{sWAVE}, 448')
        a(f's_add_u32 s66, s66, {SB}')
        a('v_add_u32 v97, s66, v98')
        for t in range(7):
            a(f'ds_write_b32 v97, v{120+t} offset:{64*t}')
        a('s_waitcnt lgkmcnt(0)')
        a('s_barrier')
        a('v_lshlrev_b32 v97, 2, v0')
        a(f'v_add_u32 v98, {SB}, v97')
        for w in range(4):
            a(f'ds_read_b32 v{120+w}, v98 offset:{448*w}')
        a('s_mul_i32 s66, s64, 448')
        a('s_mul_i32 s67, s65, 7168')
        a('s_add_u32 s66, s66, s67')
        a(f's_add_u32 s66, s66, {SP}')
        a('s_waitcnt lgkmcnt(0)')
        a('v_add_f32 v120, v120, v121'); a('v_add_f32 v122, v122, v123'); a('v_add_f32 v120, v120, v122')
        a('v_cmp_gt_u32 vcc, 112, v0')
        Ls = a.label('Lsp')
        a('s_and_saveexec_b64 s[68:69], vcc')
        a(f's_cbranch_execz {Ls}')
        a(f'buffer_store_dword v120, v97, {sr(SRD_WS)}, s66 offen sc1')
        a(f'{Ls}:')
        a('s_mov_b64 exec, s[68:69]')
        a(f's_branch {Ldone}')
        a(f'{Lw2}:')
        a('s_cmp_lt_u32 s60, 83')
        a(f's_cbranch_scc0 {Ldone}')
        a('v_lshl_add_u32 v94, v90, 2, v91')
        a('v_lshlrev_b32 v94, 7, v94')
        a('v_lshl_add_u32 v94, v92, 3, v94')
        a('v_add_u32 v94, s63, v94')
        a('v_cmp_eq_u32 s[68:69], 3, v90')
        for kk in range(4):
            a('s_lshl_b32 s64, s62, 2')
            a(f's_add_u32 s64, s64, {kk}')
            a('s_mul_i32 s65, s64, 9363')
            a('s_lshr_b32 s65, s65, 16')
            a('s_mul_i32 s66, s65, 7')
            a('s_sub_u32 s66, s64, s66')
            RB = 100 + 16 * (kk & 1)
            for tt in range(4):
                R = RB + 4 * tt
                a(f'ds_read_b64_tr_b16 {vr(R,2)}, v94 offset:{kk*4096+tt*32}')
                a(f'ds_read_b64_tr_b16 {vr(R+2,2)}, v94 offset:{kk*4096+tt*32+2048}')
            Lnz = a.label('Lnz')
            a('s_waitcnt lgkmcnt(0)')
            a('s_cmp_eq_u32 s66, 3')
            a(f's_cbranch_scc0 {Lnz}')
            for tt in range(4):
                for j in range(4):
                    a(f'v_cndmask_b32 v{RB+4*tt+j}, v{RB+4*tt+j}, 0, s[68:69]')
            a(f'{Lnz}:')
            for tt in range(4):
                a('s_lshl_b32 s65, s61, 2')
                a(f's_add_u32 s65, s65, {tt}')
                a('s_mul_i32 s67, s65, 13108')
                a('s_lshr_b32 s67, s67, 16')
                a('s_mul_i32 s70, s67, 5')
                a('s_sub_u32 s70, s65, s70')
                a(f's_mul_i32 s67, s67, {NK2}')
                a('s_add_u32 s67, s67, s64')
                a('s_mul_i32 s67, s67, 5')
                a('s_add_u32 s67, s67, s70')
                a('s_lshl_b32 s67, s67, 10')
                a(f's_add_u32 s67, s67, {W2F}')
                a(f'buffer_store_dwordx4 {vr(RB+4*tt,4)}, v93, {sr(SRD_WS)}, s67 offen sc1')
        a(f'{Ldone}:')

    def w1_lds(self, idx):
        WS = self.WSTRIDE
        if idx < 44:
            return (idx // 11) * WS + 18176 + (idx % 11) * 1024
        if idx < 49:
            return 157952 + (idx - 44) * 1024
        j = idx - 49
        if j < 68:
            return (j // 17) * WS + (j % 17) * 1024
        return self.UXB + (j - 68) * 1024

    def pref_setup(self):
        a = self.a
        a('s_mul_i32 s76, s67, 143360')
        a(f's_add_u32 s76, s76, {W1F}')
        a(f's_mul_i32 s75, s{sWAVE}, {self.WSTRIDE}')
        a('v_lshlrev_b32 v3, 4, v2')
        a(f's_mul_i32 s77, s{sWAVE}, {11*1024}')
        a('s_add_u32 s77, s77, s76')
        a(f's_mul_i32 s78, s{sWAVE}, {17*1024}')
        a('s_add_u32 s78, s78, s76')
        a(f's_add_u32 s78, s78, {49*1024}')
        a(f's_lshl_b32 s82, s{sWAVE}, 10')

    def dma(self, m0expr, soff):
        a = self.a
        for l in m0expr: a(l)
        for l in soff: a(l)
        a(f'buffer_load_dwordx4 v3, {sr(SRD_WS)}, s5 offen sc1 lds')

    def w1A(self, j):
        self.dma([f's_add_u32 m0, s75, {18176 + 1024*j}'], [f's_add_u32 s5, s77, {1024*j}'])
    def w1T(self):
        self.dma([f's_add_u32 m0, s82, 157952'], [f's_add_u32 s5, s76, s82', f's_add_u32 s5, s5, {44*1024}'])
    def w1T2(self):
        self.dma([f's_mov_b32 m0, {157952 + 4096}'], [f's_add_u32 s5, s76, {48*1024}'])
    def w1B(self, i):
        self.dma([f's_add_u32 m0, s75, {1024*i}'], [f's_add_u32 s5, s78, {1024*i}'])
    def w1C(self, i):
        a = self.a
        if i < 5:
            self.dma([f's_add_u32 m0, s82, {self.UXB + 4096*i}'], [f's_add_u32 s5, s76, s82', f's_add_u32 s5, s5, {(117+4*i)*1024}'])
        else:
            L = a.label('Lw1c')
            a(f's_cmp_eq_u32 s{sWAVE}, 3'); a(f's_cbranch_scc1 {L}')
            self.dma([f's_add_u32 m0, s82, {self.UXB + 4096*i}'], [f's_add_u32 s5, s76, s82', f's_add_u32 s5, s5, {(117+4*i)*1024}'])
            a(f'{L}:')

    def list_conv(self):
        L = [lambda j=j: self.w1A(j) for j in range(11)] + [self.w1T, self.w1T2]
        W = [lambda i=i: self.w2_load(i) for i in range(self.NW2_CONV)]
        out = []
        while L or W:
            if L: out.append(L.pop(0))
            for _ in range(3):
                if W: out.append(W.pop(0))
        return out

    def list_e2(self):
        return [lambda i=i: self.w1B(i) for i in range(17)] + [lambda i=i: self.w1C(i) for i in range(6)]

    def l2_warm(self):
        a = self.a
        a('s_sub_u32 s5, s2, 160'); a('s_lshr_b32 s5, s5, 3'); a('s_lshl_b32 s5, s5, 2'); a(f's_add_u32 s5, s5, s{sWAVE}')
        a('s_mul_i32 s6, s5, %d' % (24 * 1024))
        a('s_and_b32 s7, s2, 1'); a(f's_mul_i32 s7, s7, {8*143360}')
        a('s_add_u32 s6, s6, s7'); a(f's_add_u32 s6, s6, {W1F}')
        a(f's_add_u32 s7, s7, {W1F + 8*143360 - 1024}')
        for i in range(24):
            a('s_min_u32 s62, s6, s7')
            a(f'buffer_load_dwordx4 {vr(112+4*(i%16),4)}, v3, {sr(SRD_WS)}, s62 offen sc1')
            a('s_add_u32 s6, s6, 1024')

    def flag_store_only(self, base):
        a = self.a
        L = a.label('Lsig')
        a(f's_cmp_eq_u32 s{sWAVE}, 0')
        a(f's_cbranch_scc0 {L}')
        a('v_lshlrev_b32 v5, 10, v2')
        a('s_lshl_b32 s5, s2, 2')
        a(f's_add_u32 s5, s5, {base}')
        a('v_mov_b32 v4, s83')
        a('s_mov_b64 exec, 0xff')
        a(f'buffer_store_dword v4, v5, {sr(SRD_WS)}, s5 offen sc1')
        a('s_mov_b64 exec, -1')
        a(f'{L}:')

    SBL = 121088 + 24576
    def sb_stage(self):
        a = self.a
        L = a.label('Lsb')
        a(f's_cmp_eq_u32 s{sWAVE}, 1'); a(f's_cbranch_scc0 {L}')
        a('s_mov_b32 exec_hi, 0x00ffffff')
        a('v_lshlrev_b32 v94, 3, v2')
        a('s_mul_i32 s80, s67, 448')
        a(f's_add_u32 s80, s80, {SP}')
        for part in range(3):
            a(f'buffer_load_dwordx2 {vr(64+2*part,2)}, v94, {sr(SRD_WS)}, s80 offen sc1')
            if part < 2: a('s_add_u32 s80, s80, 7168')
        self.srd(SRD_B, P_B1, 1728 * 2)
        a('s_mul_i32 s81, s67, 216')
        a('v_lshlrev_b32 v95, 2, v2')
        a(f'buffer_load_dword v70, v95, {sr(SRD_B)}, s81 offen')
        a(f'v_add_u32 v94, {self.SBL}, v94')
        a('s_waitcnt vmcnt(0)')
        a('v_pk_add_f32 v[64:65], v[64:65], v[66:67]')
        a('v_pk_add_f32 v[64:65], v[64:65], v[68:69]')
        a('v_lshlrev_b32 v72, 16, v70')
        a('v_and_b32 v73, 0xffff0000, v70')
        a('ds_write_b64 v94, v[64:65]')
        a('ds_write_b64 v94, v[72:73] offset:448')
        a('s_waitcnt lgkmcnt(0)')
        a('s_mov_b64 exec, -1')
        a(f'{L}:')

    def pfl_issue(self):
        a = self.a
        a('v_lshlrev_b32 v7, 4, v2')
        a('s_and_b32 s5, s2, 7')
        a('s_lshl_b32 s5, s5, 10')
        a(f's_add_u32 s5, s5, {PFL}')
        a(f'buffer_load_dwordx4 v[8:11], v7, {sr(SRD_WS)}, s5 offen sc1')

    def pfl_check(self):
        a = self.a
        Lp = a.label('Lpf'); Lc = a.label('Lpfc'); Ld = a.label('Lpfd')
        m = ((1 << 61) - 1) ^ ((1 << 40) - 1)
        a(f's_mov_b32 s62, {m & 0xffffffff:#x}'); a(f's_mov_b32 s63, {m >> 32:#x}')
        a('s_mov_b32 s6, 0')
        a(f's_branch {Lc}')
        a(f'{Lp}:')
        a('s_sleep 2')
        self.pfl_issue()
        a(f'{Lc}:')
        a('s_waitcnt vmcnt(0)')
        a('v_xor_b32 v8, s83, v8'); a('v_xor_b32 v9, s83, v9'); a('v_xor_b32 v10, s83, v10'); a('v_xor_b32 v11, s83, v11')
        a('v_or_b32 v8, v8, v9')
        a('v_or3_b32 v8, v8, v10, v11')
        a('v_cmp_ne_u32 vcc, 0, v8')
        a('s_and_b64 vcc, vcc, s[62:63]')
        a(f's_cbranch_vccz {Ld}')
        a('s_add_u32 s6, s6, 1')
        a('s_cmp_lt_u32 s6, 0x40000')
        a(f's_cbranch_scc1 {Lp}')
        a(f'{Ld}:')

    CONV_RATE = 4
    UGATE = 1
    SPLITC = 1
    PREPLATE = 0
    EARLYUX = 1
    WARM = 0
    CONV_FROM = 1
    UD = 108
    def xreg(self, i):
        return 228 + i if i < 28 else 140 + (i - 28)

    def conv_main(self, pref=None, pref_from=8):
        a = self.a
        P = self.PL
        ACC = 12
        bufA = [44, 164]; bufB = [76, 196]
        pref = list(pref or [])
        def reads(b):
            sel = b & 1
            lst = []
            for aa in range(8):
                off = 512 * (7 - aa) + 64 * (7 - b)
                lst.append(f'ds_read_b64 {vr(bufA[sel]+4*aa,2)}, v{self.VA} offset:{off}')
                lst.append(f'ds_read_b64 {vr(bufA[sel]+4*aa+2,2)}, v{self.VA} offset:{off+8}')
            for e in range(8):
                lst.append(f'ds_read_b128 {vr(bufB[sel]+4*e,4)}, v{self.VB+b} offset:{4096*e}')
            order = []
            for k in range(8):
                order += [lst[2*k], lst[2*k+1], lst[16+k]]
            return order
        for r in reads(0): a(r)
        a(f'v_xor_b32 v4, 16, v{self.VEU}')
        a(f'v_lshlrev_b32 v6, 16, v{P+5}')
        side_rd = []
        for t in range(8):
            side_rd.append(f'ds_read_b64 {vr(self.UD+4*t+2,2)}, v{self.VEU} offset:{4096*t}')
            side_rd.append(f'ds_read_b64 {vr(self.xreg(4*t+2),2)}, v4 offset:{4096*t}')
        side = []
        for t in range(8):
            U = self.UD + 4 * t
            X = [self.xreg(4 * t + j) for j in range(4)]
            side += [f'v_lshlrev_b32 v{U}, 16, v{U+2}', f'v_and_b32 v{U+1}, 0xffff0000, v{U+2}',
                     f'v_lshlrev_b32 v{U+2}, 16, v{U+3}', f'v_and_b32 v{U+3}, 0xffff0000, v{U+3}']
            side += [f'v_mul_f32 v{U+j}, v{U+j}, v6' for j in range(4)]
            side += [f'v_cvt_pk_bf16_f32 v{U+1}, v{U}, v{U+1}', f'v_cvt_pk_bf16_f32 v{U+3}, v{U+2}, v{U+3}',
                     f'v_lshlrev_b32 v{U}, 16, v{U+1}', f'v_and_b32 v{U+1}, 0xffff0000, v{U+1}',
                     f'v_lshlrev_b32 v{U+2}, 16, v{U+3}', f'v_and_b32 v{U+3}, 0xffff0000, v{U+3}']
            side += [f'v_lshlrev_b32 v{X[0]}, 16, v{X[2]}', f'v_and_b32 v{X[1]}, 0xffff0000, v{X[2]}',
                     f'v_lshlrev_b32 v{X[2]}, 16, v{X[3]}', f'v_and_b32 v{X[3]}, 0xffff0000, v{X[3]}']
        cnt = 0
        for b in range(8):
            sel = b & 1
            nxt = reads(b + 1) if b < 7 else []
            if b == 0: nxt = nxt + side_rd[:12]
            if b == 1: nxt = nxt + side_rd[12:]
            if b == pref_from and pref: self.pfl_check()
            a('s_waitcnt lgkmcnt(0)')
            n = 0
            for aa in range(8):
                for e in range(8 - aa):
                    t = aa + e
                    c = '0' if (b == 0 and aa == 0) else vr(ACC + 4 * t, 4)
                    a(f'v_mfma_f32_16x16x32_bf16 {vr(ACC+4*t,4)}, {vr(bufA[sel]+4*aa,4)}, {vr(bufB[sel]+4*e,4)}, {c}')
                    if n < len(nxt): a(nxt[n])
                    n += 1
                    if b >= 2 and side: a(side.pop(0))
                    if b >= pref_from:
                        cnt += 1
                        if cnt % self.CONV_RATE == 0 and pref: pref.pop(0)()
        assert not pref and not side

    def conv_epilogue(self, pref=None):
        a = self.a
        ACC = 12
        pref = list(pref or [])
        a('s_mov_b32 s70, 0x00003f80')
        a('s_mov_b32 s71, 0x3f800000')
        a('v_bfe_u32 v4, v2, 2, 2')
        a(f'v_mul_u32_u24 v4, {self.WSTRIDE}, v4')
        a('v_lshrrev_b32 v5, 4, v2')
        a('v_lshl_add_u32 v4, v5, 5, v4')
        a('v_and_b32 v6, 3, v2')
        a('v_lshl_add_u32 v4, v6, 3, v4')
        a(f's_lshl_b32 s5, s{sWAVE}, 10')
        a('v_add_u32 v4, s5, v4')
        a('v_mul_u32_u24 v5, 20480, v5')
        a('v_and_b32 v6, 15, v2')
        a('v_lshl_add_u32 v5, v6, 4, v5')
        a(f's_mul_i32 s62, s{sWAVE}, {8*81920}')
        a('s_lshr_b32 s6, s2, 3')
        a('s_lshl_b32 s6, s6, 10')
        a('s_add_u32 s62, s62, s6')
        a('s_bfe_u32 s6, s2, 0x20001')
        a('s_lshl_b32 s6, s6, 8')
        a('s_add_u32 s62, s62, s6')
        a('s_and_b32 s6, s2, 1')
        a('s_lshl_b32 s6, s6, 3')
        a('s_add_u32 s62, s62, s6')
        a(f's_add_u32 s62, s62, {HF}')
        for tp in range(4):
            P = [(2 * tp + tt, h) for tt in range(2) for h in range(2)]
            Y = {p: ACC + 4 * p[0] + 2 * p[1] for p in P}
            T = {p: 44 + i for i, p in enumerate(P)}
            U = {p: self.UD + 4 * p[0] + 2 * p[1] for p in P}
            X = {p: self.xreg(4 * p[0] + 2 * p[1]) for p in P}
            O = {p: 80 + 2 * p[0] + p[1] for p in P}
            def step(f):
                for p in P: a(f(p))
            step(lambda p: f'v_cvt_pk_bf16_f32 v{T[p]}, v{Y[p]}, v{Y[p]+1}')
            step(lambda p: f'v_dot2_f32_bf16 v{Y[p]}, v{T[p]}, s70, v{U[p]}')
            step(lambda p: f'v_dot2_f32_bf16 v{Y[p]+1}, v{T[p]}, s71, v{U[p]+1}')
            step(lambda p: f'v_cvt_pk_bf16_f32 v{T[p]}, v{Y[p]}, v{Y[p]+1}')
            step(lambda p: f'v_dot2_f32_bf16 v{Y[p]}, v{T[p]}, s70, v{X[p]}')
            step(lambda p: f'v_dot2_f32_bf16 v{Y[p]+1}, v{T[p]}, s71, v{X[p]+1}')
            step(lambda p: f'v_cvt_pk_bf16_f32 v{O[p]}, v{Y[p]}, v{Y[p]+1}')
            for tt in range(2):
                tq = 2 * tp + tt
                a(f'ds_write_b64 v{self.VHW}, {vr(80+2*tq,2)} offset:{512*tq}')
            for _ in range(self.CEP_PER):
                if pref: pref.pop(0)()
        self.stamp('cep1')
        a('s_waitcnt lgkmcnt(0)')
        a('s_barrier')
        for m in range(8):
            a(f'ds_read_b64_tr_b16 {vr(44+2*m,2)}, v4 offset:{128*m}')
        for m in range(8):
            a(f's_waitcnt lgkmcnt({7-m})')
            a(f'buffer_store_dwordx2 {vr(44+2*m,2)}, v5, {sr(SRD_WS)}, s62 offen sc1')
            if m < 7: a('s_add_u32 s62, s62, 81920')
    CEP_PER = 0


    def b1_issue(self):
        a = self.a
        a('v_lshlrev_b32 v99, 4, v2')
        a('s_and_b32 s5, s2, 7')
        a('s_lshl_b32 s5, s5, 10')
        a(f's_add_u32 s5, s5, {BFL1}')
        a(f'buffer_load_dwordx4 v[228:231], v99, {sr(SRD_WS)}, s5 offen sc1')
    def b1_check_ux_issue(self):
        a = self.a
        Lp = a.label('Lb1p'); Lc = a.label('Lb1c'); Ld = a.label('Lb1d')
        a('s_mov_b32 s7, 0')
        a('s_waitcnt vmcnt(0)')
        a(f's_branch {Lc}')
        a(f'{Lp}:')
        a('s_sleep 1')
        self.b1_issue()
        a('s_waitcnt vmcnt(0)')
        a(f'{Lc}:')
        for j in range(4): a(f'v_xor_b32 v{228+j}, s83, v{228+j}')
        a('v_or_b32 v228, v228, v229')
        a('v_or3_b32 v228, v228, v230, v231')
        a('v_cmp_ne_u32 vcc, 0, v228')
        a(f's_cbranch_vccz {Ld}')
        a('s_add_u32 s7, s7, 1')
        a('s_cmp_lt_u32 s7, 0x40000')
        a(f's_cbranch_scc1 {Lp}')
        a(f'{Ld}:')
        R = 164
        a('v_lshrrev_b32 v232, 3, v2')
        a('v_mul_u32_u24 v233, 20480, v232')
        a('v_and_b32 v234, 7, v2')
        a('v_lshl_add_u32 v233, v234, 4, v233')
        a(f's_mul_i32 s5, s{sWAVE}, {64*20480}')
        a('s_lshl_b32 s7, s2, 7')
        a('s_add_u32 s5, s5, s7')
        for k in range(8):
            a(f'buffer_load_dwordx4 {vr(R+4*k,4)}, v233, {sr(SRD_WS)}, s5 offen sc1')
            if k < 7: a(f's_add_u32 s5, s5, {8*20480}')
    def ux_write(self):
        a = self.a
        R = 164
        a('v_lshrrev_b32 v4, 3, v2')
        a('v_and_b32 v6, 7, v2')
        a('v_lshrrev_b32 v7, 4, v2')
        a('v_xor_b32 v8, v6, v7')
        a('v_xor_b32 v9, 4, v8')
        a('v_lshlrev_b32 v4, 7, v4')
        a(f's_lshl_b32 s6, s{sWAVE}, 13')
        a(f's_add_u32 s6, s6, {self.UXB + 4096}')
        a('v_add_u32 v4, s6, v4')
        a('v_lshl_add_u32 v8, v8, 4, v4')
        a('v_lshl_add_u32 v9, v9, 4, v4')
        for k in range(8):
            a(f's_waitcnt vmcnt({7-k})')
            a(f'ds_write_b128 v{8 + (k&1)}, {vr(R+4*k,4)} offset:{k*1024}')
        a('s_waitcnt lgkmcnt(0)')
        a('s_barrier')

    def w1_dma_all(self):
        a = self.a
        a('v_lshlrev_b32 v3, 4, v2')
        a('s_mul_i32 s76, s67, 143360')
        a(f's_lshl_b32 s6, s{sWAVE}, 10')
        a('s_add_u32 s76, s76, s6')
        a(f's_add_u32 s76, s76, {W1F}')
        a('s_mov_b32 m0, s6')
        for i in range(35):
            a(f'buffer_load_dwordx4 v3, {sr(SRD_WS)}, s76 offen sc1 lds')
            if i < 34:
                a('s_add_u32 m0, m0, 4096')
                a('s_add_u32 s76, s76, 4096')
        a('v_lshrrev_b32 v94, 4, v2')
        a('v_lshlrev_b32 v94, 4, v94')
        a('s_mul_i32 s80, s67, 448')
        a(f's_add_u32 s80, s80, {SP}')
        for t in range(7):
            a(f'buffer_load_dwordx4 {vr(64+4*t,4)}, v94, {sr(SRD_WS)}, s80 offen offset:{64*t} sc1')

    def w2_load(self, idx):
        a = self.a
        off = idx * 1024
        a(f's_add_u32 s5, s79, {(off // 4096) * 4096}')
        a(f'buffer_load_dwordx4 {self.w2reg(idx)}, v3, {sr(SRD_WS)}, s5 offen offset:{off % 4096} sc1')


    def p3_epilogue(self):
        a = self.a
        ACC = 8
        a('v_lshrrev_b32 v5, 4, v2')
        a('v_lshlrev_b32 v6, 4, v5')
        a(f'v_add_u32 v6, {self.SBL}, v6')
        for t in range(7):
            a(f'ds_read_b128 {vr(64+4*t,4)}, v6 offset:{64*t}')
            a(f'ds_read_b128 {vr(124+4*t,4)}, v6 offset:{448+64*t}')
        a('v_and_b32 v4, 15, v2')
        a('v_cmp_eq_u32 s[62:63], 3, v5')
        a('v_lshrrev_b32 v6, 2, v4')
        a('v_cmp_eq_u32 s[64:65], v6, v5')
        a('v_and_b32 v6, 3, v4')
        a('v_cmp_eq_u32 s[68:69], 1, v6')
        a('v_cmp_eq_u32 s[70:71], 2, v6')
        a('v_cmp_eq_u32 vcc, 3, v6')
        for lt in range(2):
            S_ = 112 + 2 * lt; Q_ = 113 + 2 * lt
            acc = ACC + (6 * 2 + lt) * 4
            B = 96 + 4 * lt
            for j in range(4):
                a(f'v_accvgpr_read_b32 v{B+j}, a{self.GRAM+4*lt+j}')
            a(f'v_cndmask_b32 v{S_}, 0, v{acc}, s[62:63]')
            a(f'v_cndmask_b32 v{B}, v{B}, v{B+1}, s[68:69]')
            a(f'v_cndmask_b32 v{B}, v{B}, v{B+2}, s[70:71]')
            a(f'v_cndmask_b32 v{B}, v{B}, v{B+3}, vcc')
            a(f'v_cndmask_b32 v{Q_}, 0, v{B}, s[64:65]')
        for rnd in ('16', '32'):
            for k, v in enumerate((112, 113, 114, 115)):
                a(f'v_mov_b32 v{104+k}, v{v}')
            for k, v in enumerate((112, 113, 114, 115)):
                a(f'v_permlane{rnd}_swap_b32 v{v}, v{104+k}')
            for k, v in enumerate((112, 113, 114, 115)):
                a(f'v_add_f32 v{v}, v{v}, v{104+k}')
        def both(f):
            for lt in range(2): f(112 + 2 * lt, 113 + 2 * lt, lt)
        both(lambda s_, q_, lt: a(f'v_mul_f32 v{s_}, {f2u(1.0/640):#x}, v{s_}'))
        both(lambda s_, q_, lt: a(f'v_mul_f32 v{q_}, {f2u(1.0/640):#x}, v{q_}'))
        both(lambda s_, q_, lt: a(f'v_fma_f32 v{q_}, -v{s_}, v{s_}, v{q_}'))
        both(lambda s_, q_, lt: a(f'v_max_f32 v{q_}, 0, v{q_}'))
        both(lambda s_, q_, lt: a(f'v_cvt_pk_bf16_f32 v{q_}, v{q_}, v{s_}'))
        both(lambda s_, q_, lt: a(f'v_and_b32 v{s_}, 0xffff0000, v{q_}'))
        both(lambda s_, q_, lt: a(f'v_lshlrev_b32 v{q_}, 16, v{q_}'))
        both(lambda s_, q_, lt: a(f'v_add_f32 v{q_}, {f2u(1e-5):#x}, v{q_}'))
        both(lambda s_, q_, lt: self.bf16r(q_, q_))
        both(lambda s_, q_, lt: a(f'v_sqrt_f32 v{q_}, v{q_}'))
        both(lambda s_, q_, lt: self.bf16r(q_, q_))
        both(lambda s_, q_, lt: a(f'v_rcp_f32 v{116+4*lt}, v{q_}'))
        both(lambda s_, q_, lt: a(f'v_mov_b32 v{116+4*lt+2}, v{s_}'))
        both(lambda s_, q_, lt: a(f'v_mov_b32 v{116+4*lt+3}, v{s_}'))
        both(lambda s_, q_, lt: a(f'v_mov_b32 v{116+4*lt+1}, v{116+4*lt}'))
        OUT = 152
        def outreg(t, lt):
            if t < 6: return OUT + ((t >> 1) * 2 + lt) * 4 + (t & 1) * 2
            return OUT + 24 + lt * 2
        a('v_lshlrev_b32 v3, 4, v2')
        a('s_lshl_b32 s5, s66, 3')
        a(f's_lshl_b32 s6, s{sWAVE}, 1')
        a('s_add_u32 s5, s5, s6')
        a(f's_mul_i32 s5, s5, {NK2*1024}')
        a(f's_add_u32 s5, s5, {HH}')
        a('s_lshr_b32 s6, s67, 1'); a('s_mul_i32 s6, s6, 7')
        a('s_and_b32 s7, s67, 1')
        a('s_lshl_b32 s62, s7, 2'); a('s_add_u32 s62, s62, s6'); a('s_lshl_b32 s62, s62, 10'); a('s_add_u32 s62, s62, s5')
        a(f's_add_u32 s63, s62, {NK2*1024}')
        a('s_add_u32 s64, s6, 3'); a('s_lshl_b32 s64, s64, 10'); a('s_lshl_b32 s7, s7, 3'); a('s_add_u32 s64, s64, s7'); a('s_add_u32 s64, s64, s5')
        a(f's_add_u32 s65, s64, {NK2*1024}')
        a('s_mov_b32 s70, 0x00003f80')
        a('s_mov_b32 s71, 0x3f800000')
        a('s_waitcnt lgkmcnt(0)')
        for t in range(7):
            P = [(lt, h) for lt in range(2) for h in range(2)]
            X = {p: ACC + (t * 2 + p[0]) * 4 + 2 * p[1] for p in P}
            T = {p: 100 + i for i, p in enumerate(P)}
            def step(f):
                for p in P: a(f(p))
            S = lambda p: 64 + 4 * t + 2 * p[1]
            Bq = lambda p: 124 + 4 * t + 2 * p[1]
            R = lambda p: 116 + 4 * p[0]
            step(lambda p: f'v_pk_fma_f32 {vr(X[p],2)}, {vr(S(p),2)}, {vr(R(p)+2,2)}, {vr(X[p],2)} neg_lo:[1,0,0] neg_hi:[1,0,0]')
            step(lambda p: f'v_pk_mul_f32 {vr(X[p],2)}, {vr(X[p],2)}, {vr(R(p),2)}')
            step(lambda p: f'v_cvt_pk_bf16_f32 v{T[p]}, v{X[p]}, v{X[p]+1}')
            step(lambda p: f'v_dot2_f32_bf16 v{X[p]}, v{T[p]}, s70, v{Bq(p)}')
            step(lambda p: f'v_dot2_f32_bf16 v{X[p]+1}, v{T[p]}, s71, v{Bq(p)+1}')
            step(lambda p: f'v_cvt_pk_bf16_f32 v{T[p]}, v{X[p]}, v{X[p]+1}')
            step(lambda p: f'v_pk_max_i16 v{T[p]}, v{T[p]}, 0')
            step(lambda p: f'v_lshlrev_b32 v{X[p]}, 16, v{T[p]}')
            step(lambda p: f'v_and_b32 v{X[p]+1}, 0xffff0000, v{T[p]}')
            step(lambda p: f'v_pk_mul_f32 {vr(X[p],2)}, {vr(X[p],2)}, {vr(X[p],2)}')
            step(lambda p: f'v_cvt_pk_bf16_f32 v{outreg(t,p[0])+p[1]}, v{X[p]}, v{X[p]+1}')
            if t == 0:
                pass
            if t in (1, 3, 5):
                p_ = t >> 1
                for lt, sb in ((0, 's62'), (1, 's63')):
                    a(f'buffer_store_dwordx4 {vr(OUT+(p_*2+lt)*4,4)}, v3, {sr(SRD_WS)}, {sb} offen offset:{1024*p_} sc1')
        for lt, sb in ((0, 's64'), (1, 's65')):
            a(f'buffer_store_dwordx2 {vr(OUT+24+lt*2,2)}, v3, {sr(SRD_WS)}, {sb} offen sc1')


    P4_SLOTS = 7
    RES = 224
    def p4_pre_loads(self):
        a = self.a
        L = []
        def setup():
            self.srd(SRD_B, P_B2, 640 * 2)
            a('v_and_b32 v244, 15, v2')
            a('v_lshrrev_b32 v245, 4, v2')
            a('s_mul_i32 s62, s73, 20')
            a('s_lshl_b32 s63, s72, 2')
            a(f's_add_u32 s63, s63, s{sWAVE}')
            a('s_mul_i32 s63, s63, 20480')
            a(f's_add_u32 s63, s63, {HF}')
        def one(t):
            def f():
                if t == 0: setup()
                a(f'v_add_u32 v246, s62, v245')
                a(f'v_add_u32 v246, {4*t}, v246')
                a('v_lshrrev_b32 v247, 3, v246')
                a('v_lshlrev_b32 v247, 10, v247')
                a('v_bfe_u32 v248, v246, 1, 2')
                a('v_lshl_add_u32 v247, v248, 8, v247')
                a('v_and_b32 v248, 1, v246')
                a('v_lshl_add_u32 v247, v248, 3, v247')
                a('v_lshl_add_u32 v247, v244, 4, v247')
                a(f'buffer_load_dwordx2 {vr(self.RES+2*t,2)}, v247, {sr(SRD_WS)}, s63 offen sc1')
            return f
        def two(t):
            def f():
                a(f'v_add_u32 v246, s62, v245')
                a(f'v_add_u32 v246, {4*t}, v246')
                a('v_lshlrev_b32 v246, 3, v246')
                a(f'buffer_load_dwordx2 {vr(self.RES+10+2*t,2)}, v246, {sr(SRD_B)}, 0 offen')
            return f
        for t in range(5): L += [one(t), two(t)]
        return L

    def p4_epilogue(self):
        a = self.a
        ACC = 8
        a('v_lshlrev_b32 v3, 4, v2')
        a(f's_mul_i32 s5, s{sWAVE}, 20480')
        a('v_add_u32 v6, s5, v3')
        for lt in range(4):
            L = a.label('Lp4w')
            a(f's_cmp_eq_u32 s{sWAVE}, {lt}'); a(f's_cbranch_scc1 {L}')
            for t in range(5):
                a(f'ds_write_b128 v6, {vr(ACC+(t*4+lt)*4,4)} offset:{lt*5120+t*1024}')
            a(f'{L}:')
        Lend = a.label('Lp4o')
        for lt in range(4):
            L = a.label('Lp4c')
            a(f's_cmp_eq_u32 s{sWAVE}, {lt}'); a(f's_cbranch_scc0 {L}')
            for t in range(5):
                for h in range(2):
                    a(f'v_pk_mov_b32 {vr(112+4*t+2*h,2)}, {vr(ACC+(t*4+lt)*4+2*h,2)}, {vr(ACC+(t*4+lt)*4+2*h,2)} op_sel:[0,1]')
            a(f's_branch {Lend}')
            a(f'{L}:')
        a(f'{Lend}:')
        a('s_waitcnt lgkmcnt(0)')
        a('s_barrier')
        for k in range(1, 4):
            a(f's_add_u32 s5, s{sWAVE}, {k}'); a('s_and_b32 s5, s5, 3'); a('s_mul_i32 s5, s5, 20480')
            a(f's_mul_i32 s6, s{sWAVE}, 5120'); a('s_add_u32 s5, s5, s6')
            a(f'v_add_u32 v{4+k}, s5, v3')
        for t in range(5):
            for k in range(1, 4):
                a(f'ds_read_b128 {vr(132+(t*3+k-1)*4,4)}, v{4+k} offset:{t*1024}')
        for t in range(5):
            for h in range(2):
                b = self.RES + 10 + 2 * t + h; hh = self.RES + 2 * t + h
                a(f'v_lshlrev_b32 v{8+4*t+2*h}, 16, v{b}'); a(f'v_and_b32 v{8+4*t+2*h+1}, 0xffff0000, v{b}')
                a(f'v_lshlrev_b32 v{28+4*t+2*h}, 16, v{hh}'); a(f'v_and_b32 v{28+4*t+2*h+1}, 0xffff0000, v{hh}')
        self.srd(SRD_A, P_OUT, 2048 * 1280)
        a('s_lshl_b32 s5, s72, 6')
        a(f's_lshl_b32 s6, s{sWAVE}, 4')
        a('s_add_u32 s5, s5, s6')
        a('s_mul_i32 s5, s5, 1280')
        a('s_mul_i32 s6, s73, 160')
        a('s_add_u32 s5, s5, s6')
        a('v_mul_u32_u24 v4, 1280, v244')
        a('v_lshl_add_u32 v4, v245, 3, v4')
        a('s_mov_b32 s70, 0x00003f80')
        a('s_mov_b32 s71, 0x3f800000')
        a('s_waitcnt lgkmcnt(0)')
        P = [(t, h) for t in range(5) for h in range(2)]
        X = {p: 112 + 4 * p[0] + 2 * p[1] for p in P}
        def step(f):
            for p in P: a(f(p))
        for k in range(3):
            step(lambda p: f'v_pk_add_f32 {vr(X[p],2)}, {vr(X[p],2)}, {vr(132+(p[0]*3+k)*4+2*p[1],2)}')
        T = {p: 48 + i for i, p in enumerate(P)}
        step(lambda p: f'v_cvt_pk_bf16_f32 v{T[p]}, v{X[p]}, v{X[p]+1}')
        step(lambda p: f'v_dot2_f32_bf16 v{X[p]}, v{T[p]}, s70, v{8+4*p[0]+2*p[1]}')
        step(lambda p: f'v_dot2_f32_bf16 v{X[p]+1}, v{T[p]}, s71, v{8+4*p[0]+2*p[1]+1}')
        step(lambda p: f'v_cvt_pk_bf16_f32 v{T[p]}, v{X[p]}, v{X[p]+1}')
        step(lambda p: f'v_dot2_f32_bf16 v{X[p]}, v{T[p]}, s70, v{28+4*p[0]+2*p[1]}')
        step(lambda p: f'v_dot2_f32_bf16 v{X[p]+1}, v{T[p]}, s71, v{28+4*p[0]+2*p[1]+1}')
        step(lambda p: f'v_cvt_pk_bf16_f32 v{60+2*p[0]+p[1]}, v{X[p]}, v{X[p]+1}')
        for t in range(5):
            a(f'buffer_store_dwordx2 {vr(60+2*t,2)}, v4, {sr(SRD_A)}, s5 offen offset:{32*t}')

    def p4_h_load1(self, kk, lt):
        a = self.a
        slot = kk % self.P4_SLOTS
        reg = vr(self.P4H + slot * 16 + lt * 4, 4)
        if kk < 4:
            a(f'buffer_load_dwordx4 {reg}, v3, {sr(SRD_WS)}, s{76+lt} offen offset:{kk*1024} sc1')
        else:
            a(f's_add_u32 s5, s{76+lt}, {(kk//4)*4096}')
            a(f'buffer_load_dwordx4 {reg}, v3, {sr(SRD_WS)}, s5 offen offset:{(kk%4)*1024} sc1')

    def p4_main(self):
        a = self.a
        ACC = 8
        AH = self.P4_SLOTS - 1
        for kk in range(AH):
            for lt in range(4): self.p4_h_load1(kk, lt)
        for kk in range(14):
            issued_to = min(AH - 1 + kk, 13)
            a(f's_waitcnt vmcnt({(issued_to - kk) * 4})')
            if kk in (0, 3, 7, 11): self.stamp(f'q{kk}')
            slot = kk % self.P4_SLOTS
            n = 0
            for t in range(5):
                for lt in range(4):
                    acc = ACC + (t * 4 + lt) * 4
                    c = '0' if kk == 0 else vr(acc, 4)
                    a(f'v_mfma_f32_16x16x32_bf16 {vr(acc,4)}, {self.w2reg(kk*5+t)}, {vr(self.P4H+slot*16+lt*4,4)}, {c}')
                    if n % 5 == 2 and kk + AH <= 13: self.p4_h_load1(kk + AH, n // 5)
                    n += 1


    P3_AHEAD = 5
    P3_NSLOT = 3
    @property
    def P3_SLOTPOS(self):
        return {2: (4, 10), 3: (3, 8, 12), 4: (2, 6, 9, 12)}[self.P3_NSLOT]
    NW2_P3 = 12
    NW2_CONV = 36
    NW2_MAIN = 48
    NW2_EPI = 0
    def p3_main3(self):
        a = self.a
        ACC = 8
        WB = [200, 228]
        a('v_lshlrev_b32 v3, 4, v2')
        a('v_add_u32 v92, 0x10000, v3')
        a('v_add_u32 v93, 0x20000, v3')
        a('s_lshl_b32 s77, s66, 3')
        a(f's_lshl_b32 s6, s{sWAVE}, 1')
        a('s_add_u32 s77, s77, s6')
        a('s_mul_i32 s77, s77, 20480')
        a(f's_add_u32 s77, s77, {HF}')
        a('s_add_u32 s78, s77, 20480')
        def rd(kap, t):
            off = self.w1_lds(kap * 7 + t)
            reg = ['v3', 'v92', 'v93'][off >> 16]
            return f'ds_read_b128 {ar(WB[kap&1]+4*t,4)}, {reg} offset:{off & 0xffff}'
        issued = []
        def hload(kap, lt):
            blk = kap // 4
            if blk == 0:
                a(f'buffer_load_dwordx4 {vr(self.P3H+(2*kap+lt)*4,4)}, v3, {sr(SRD_WS)}, s{77+lt} offen offset:{(kap%4)*1024} sc1')
            else:
                a(f's_add_u32 s5, s{77+lt}, {blk*4096}')
                a(f'buffer_load_dwordx4 {vr(self.P3H+(2*kap+lt)*4,4)}, v3, {sr(SRD_WS)}, s5 offen offset:{(kap%4)*1024} sc1')
            issued.append(('h', kap))
        AH = self.P3_AHEAD
        hq = [(kap, lt) for kap in range(20) for lt in range(2)]
        for _ in range(2 * AH):
            hload(*hq.pop(0))
        for t in range(7): a(rd(0, t))
        self.stamp('p3iss')
        misc = [('w', lambda idx=idx: self.w2_load(idx)) for idx in range(self.NW2_CONV, self.NW2_CONV + self.NW2_P3)]
        for kap in range(20):
            last = max(i for i, tg in enumerate(issued) if tg == ('h', kap))
            a(f's_waitcnt vmcnt({min(63, len(issued) - 1 - last)}) lgkmcnt(0)')
            if kap in (0, 4, 8, 12, 16): self.stamp(f'k{kap}')
            h0 = self.P3H + (2 * kap) * 4; h1 = h0 + 4
            extra = [rd(kap + 1, t) for t in range(7)] if kap < 19 else []
            n = 0
            def slot():
                if hq: hload(*hq.pop(0))
                elif misc:
                    tg, f = misc.pop(0); f(); issued.append((tg, 0))
            for t in range(7):
                for lt, h in ((0, h0), (1, h1)):
                    acc = ACC + (t * 2 + lt) * 4
                    c = '0' if kap == 0 else vr(acc, 4)
                    a(f'v_mfma_f32_16x16x32_bf16 {vr(acc,4)}, {ar(WB[kap&1]+4*t,4)}, {vr(h,4)}, {c}')
                    if extra and n >= 1: a(extra.pop(0))
                    if n in self.P3_SLOTPOS: slot()
                    n += 1
            for lt, h in ((0, h0), (1, h1)):
                g = self.GRAM + 4 * lt
                c = '0' if kap == 0 else ar(g, 4)
                a(f'v_mfma_f32_16x16x32_bf16 {ar(g,4)}, {vr(h,4)}, {vr(h,4)}, {c}')
                if lt == 0 and not hq: slot()
        while misc:
            tg, f = misc.pop(0); f(); issued.append((tg, 0))
        self.p3_w2_inflight = 63

def build():
    out = []
    kn = NAME + '_kernel'
    out.append(f'; @launch grid=(256,1,1) block=(256,1,1) lds={LDS_SIZE}')
    out.append('.amdgcn_target "amdgcn-amd-amdhsa--gfx950"')
    out.append('.text')
    g = G3(True); g.kname = 'f'; a = g.a
    if g.timing:
        for i in range(16): a(f's_mov_b32 s{86+i}, 0')
    g.stamp('start')
    g.prologue()
    g.ln1x_issue()
    g.epoch_issue()
    Laux = a.label('Laux'); Lp3 = a.label('Lp3')
    a('s_cmp_lt_u32 s2, 160'); a(f's_cbranch_scc0 {Laux}')
    g.kgen_issue()
    g.code_prefetch()
    if g.SPLITC:
        g.p2_consts(0)
        g.ln1x_compute(8)
        g.p2_consts(1)
    else:
        g.p2_consts()
        g.ln1x_compute(8)
    a('s_waitcnt vmcnt(12)')
    g.epoch_get()
    g.flag_signal(BFL1)
    g.stamp('ln1')
    g.ux_zero_pad()
    if g.EARLYUX:
        g.kg_hook1 = g.b1_issue
        g.kg_hook2 = g.b1_check_ux_issue
    g.kgen(0)
    g.p34_ids()
    g.w2_setup()
    g.pref_setup()
    g.stamp('kgen')
    if g.EARLYUX:
        g.ux_write()
    else:
        g.flag_wait(BFL1)
        g.stamp('B1')
        g.conv_load_ux()
    g.flag_store_only(UFL)
    g.pfl_issue()
    g.stamp('ux')
    if g.CONV_FROM >= 8:
        g.conv_main()
        g.stamp('conv')
        g.pfl_check()
        g.conv_epilogue()
        g.stamp('cep2')
        e1 = g.list_conv()
        for f in e1: f()
        a(f's_waitcnt vmcnt({len(e1)})')
        g.flag_signal(BFL2, drain=False)
    else:
        g.conv_main(g.list_conv(), pref_from=g.CONV_FROM)
        g.stamp('conv')
        g.conv_epilogue()
        g.stamp('cep2')
        g.flag_signal(BFL2)
    g.stamp('P2end')
    a(f's_branch {Lp3}')
    a(f'{Laux}:')
    g.code_prefetch()
    if g.PREPLATE == 2:
        g.ln1x_compute(0)
        g.epoch_get()
        g.flag_signal(BFL1)
        g.prep_issue3()
    elif g.PREPLATE:
        g.ln1x_compute(0)
        g.epoch_get()
        g.prep_issue3()
        g.flag_signal(BFL1, drain=False)
    else:
        g.ln1x_compute(2, g.prep_issue3)
        a('s_waitcnt vmcnt(0)')
        g.epoch_get()
        g.flag_signal(BFL1)
    g.stamp('ln1')
    g.prep_compute3()
    g.flag_signal(PFL)
    g.flag_signal(BFL2, drain=False)
    g.stamp('P2end')
    g.p34_ids()
    g.w2_setup()
    g.pref_setup()
    if g.UGATE: g.flag_wait(UFL, lanes=(0, 40))
    g.pfl_issue()
    g.pfl_check()
    if g.WARM: g.l2_warm()
    for f in g.list_conv(): f()
    a(f'{Lp3}:')
    g.sb_stage()
    g.flags_overlap(g.list_e2(), 16, BFL2, publish_epoch=True)
    g.stamp('B2')
    g.p3_main3()
    g.stamp('p3main')
    g.p3_epilogue()
    g.stamp('p3ep')
    rest = [i for i in range(g.NW2_CONV + g.NW2_P3, 70)]
    Lw0 = a.label('Lw0')
    g.row_signal_pre(a)
    a(f's_cmp_eq_u32 s{sWAVE}, 0'); a(f's_cbranch_scc0 {Lw0}')
    g.row_flag_store()
    a(f'{Lw0}:')
    g.row_overlap([lambda idx=idx: g.w2_load(idx) for idx in rest] + g.p4_pre_loads(), 16)
    g.stamp('B3')
    g.p4_h_setup()
    g.p4_main()
    g.stamp('p4main')
    g.p4_epilogue()
    g.stamp_flush(0)
    g.end()
    out.append(kernel_header(kn)); out += a.finalize()
    out.append('.section .rodata,"a"')
    out.append(kernel_desc(kn))
    return '\n'.join(out) + '\n'

def prep3(self):
    n0 = len(self.a.lines)
    self.prep()
    for i in range(n0, len(self.a.lines)):
        l = self.a.lines[i]
        if l.startswith('buffer_store') and 'sc1' not in l:
            self.a.lines[i] = l + ' sc1'
G3.prep3 = prep3

if __name__ == '__main__':
    dst = sys.argv[1]
    gen.TIMING = 'timing' in sys.argv[2:]
    for x in sys.argv[2:]:
        if x.startswith('set='): gen.STAMPSET = set(x[4:].split(','))
        if x.startswith('dbg='): gen.DBGSTAMP = int(x[4:])
    for x in sys.argv[2:]:
        if '=' in x and x.split('=')[0].isupper() or (x.split('=')[0].replace('_','').isalnum() and x.split('=')[0].upper() == x.split('=')[0] and '=' in x):
            k, v = x.split('='); setattr(G3, k, int(v))
    gen.HF = HF; gen.BLK = BLK; gen.HH = HH; gen.W1F = W1F; gen.W2F = W2F; gen.SP = SP
    s = build()
    open(dst, 'w').write(s)
    import shutil, os
    if gen.TIMING: shutil.copy('stamps_k0.txt', dst + '.tags')
    print('wrote', dst, len(s), 'bytes')
```

```python
import sys
sys.path.insert(0, 'work')
import gen, gen2
from gen import sr, vr, ar, f2u, sWAVE, SRD_A, SRD_WS, SRD_B, SRD_C, SRD_D
from gen import P_X, P_LA, P_AI, P_CR, P_CI, P_LDT, P_DSK, P_W1, P_B1, P_W2, P_B2, P_OUT, P_DBG, P_WS
from gen import kernel_header, kernel_desc, NAME
from gen2 import G2, BLK, HF, W1F, W2F, SP, HH, EPX, LDS_SIZE, NK2

BFL1 = 0x2001000
BFL2 = 0x2003000
PFL  = 0x2005000
RFL  = 0x2008000
UFL  = 0x200A000

class G3(G2):
    S2 = False
    def code_prefetch(self):
        a = self.a
        L = a.label('Lcp')
        a('s_getpc_b64 s[46:47]')
        a(f'{L}_pc:')
        a(f's_sub_u32 s46, s46, {L}_pc-{NAME}_kernel')
        a('s_subb_u32 s47, s47, 0')
        a('s_lshr_b32 s5, s2, 3')
        a('s_lshl_b32 s5, s5, 2')
        a(f's_add_u32 s5, s5, s{sWAVE}')
        a('s_min_u32 s5, s5, (L_end_f-%s_kernel)/1024-1' % NAME)
        a('s_lshl_b32 s5, s5, 10')
        a('v_lshlrev_b32 v97, 4, v2')
        a('v_add_u32 v97, s5, v97')
        a('global_load_dwordx4 v[232:235], v97, s[46:47]')

    def flag_signal(self, base, drain=True):
        a = self.a
        L = a.label('Lsig')
        if drain: a('s_waitcnt vmcnt(0) lgkmcnt(0)')
        else: a('s_waitcnt lgkmcnt(0)')
        a('s_barrier')
        a(f's_cmp_eq_u32 s{sWAVE}, 0')
        a(f's_cbranch_scc0 {L}')
        a('v_lshlrev_b32 v5, 10, v2')
        a('s_lshl_b32 s5, s2, 2')
        a(f's_add_u32 s5, s5, {base}')
        a('v_mov_b32 v4, s83')
        a('s_mov_b64 exec, 0xff')
        a(f'buffer_store_dword v4, v5, {sr(SRD_WS)}, s5 offen sc1')
        a('s_mov_b64 exec, -1')
        a(f'{L}:')

    def flag_poll(self, base, lanes=None, publish_epoch=False):
        a = self.a
        Lp = a.label('Lpoll'); Ld = a.label('Lpolld'); Lx = a.label('Lpollx')
        a('v_lshlrev_b32 v4, 4, v2')
        a('s_and_b32 s5, s2, 7')
        a('s_lshl_b32 s5, s5, 10')
        a(f's_add_u32 s5, s5, {base}')
        a('s_mov_b32 s6, 0')
        if lanes:
            lo, hi = lanes
            m = ((1 << hi) - 1) ^ ((1 << lo) - 1)
            a(f's_mov_b32 s62, {m & 0xffffffff:#x}'); a(f's_mov_b32 s63, {m >> 32:#x}')
        a(f'{Lp}:')
        a(f'buffer_load_dwordx4 v[8:11], v4, {sr(SRD_WS)}, s5 offen sc1')
        a('s_waitcnt vmcnt(0)')
        a('v_xor_b32 v8, s83, v8'); a('v_xor_b32 v9, s83, v9'); a('v_xor_b32 v10, s83, v10'); a('v_xor_b32 v11, s83, v11')
        a('v_or_b32 v8, v8, v9')
        a('v_or3_b32 v8, v8, v10, v11')
        a('v_cmp_ne_u32 vcc, 0, v8')
        if lanes:
            a('s_and_b64 vcc, vcc, s[62:63]')
        a(f's_cbranch_vccz {Ld}')
        a('s_sleep 1')
        a('s_add_u32 s6, s6, 1')
        a('s_cmp_lt_u32 s6, 0x40000')
        a(f's_cbranch_scc1 {Lp}')
        a(f'{Ld}:')
        if publish_epoch:
            a('s_cmp_eq_u32 s2, 0')
            a(f's_cbranch_scc0 {Lx}')
            a('s_mov_b64 exec, 1')
            a('v_mov_b32 v4, s83')
            a(f'v_mov_b32 v5, {EPX}')
            a(f'buffer_store_dword v4, v5, {sr(SRD_WS)}, 0 offen sc1')
            a('s_mov_b64 exec, -1')
            a(f'{Lx}:')

    def flag_wait(self, base, lanes=None, publish_epoch=False, drain=False, mid=None):
        a = self.a
        Lo = a.label('Lpollo')
        if mid:
            a('s_waitcnt vmcnt(0)')
            mid()
        a(f's_cmp_eq_u32 s{sWAVE}, 0')
        a(f's_cbranch_scc0 {Lo}')
        self.flag_poll(base, lanes, publish_epoch)
        a(f'{Lo}:')
        if drain: a('s_waitcnt vmcnt(0)')
        a('s_barrier')

    def row_flag_store(self):
        a = self.a
        a('s_lshl_b32 s5, s66, 7')
        a('s_lshl_b32 s6, s67, 2')
        a('s_add_u32 s5, s5, s6')
        a(f's_add_u32 s5, s5, {RFL}')
        a('s_mov_b64 exec, 1')
        a('v_mov_b32 v4, s83')
        a('v_mov_b32 v5, 0')
        a(f'buffer_store_dword v4, v5, {sr(SRD_WS)}, s5 offen sc1')
        a('s_mov_b64 exec, -1')

    def row_poll(self):
        a = self.a
        Lp = a.label('Lpoll'); Ld = a.label('Lpolld')
        a('v_and_b32 v4, 15, v2')
        a('v_lshlrev_b32 v4, 2, v4')
        a('s_lshr_b32 s5, s72, 1')
        a('s_lshl_b32 s5, s5, 7')
        a(f's_add_u32 s5, s5, {RFL}')
        a('s_mov_b32 s6, 0')
        a(f'{Lp}:')
        a(f'buffer_load_dword v5, v4, {sr(SRD_WS)}, s5 offen sc1')
        a('s_waitcnt vmcnt(0)')
        a('v_cmp_ne_u32 vcc, s83, v5')
        a(f's_cbranch_vccz {Ld}')
        a('s_sleep 1')
        a('s_add_u32 s6, s6, 1')
        a('s_cmp_lt_u32 s6, 0x40000')
        a(f's_cbranch_scc1 {Lp}')
        a(f'{Ld}:')


    TILE = 20992
    def ln1x_issue(self):
        a = self.a
        self.srd(SRD_A, P_X, 2048 * 1280)
        a('v_lshrrev_b32 v3, 5, v0')
        a('v_and_b32 v4, 31, v0')
        a('v_mul_u32_u24 v5, 0x500, v3')
        a('v_lshl_add_u32 v5, v4, 3, v5')
        a('s_mov_b32 s82, s2')
        a('s_mov_b32 s81, 1')
        a('s_mul_i32 s3, s82, 10240')
        for k, R in enumerate((8,)):
            L = None
            if k == 2:
                L = a.label('Lln'); a('s_cmp_lt_u32 s81, 3'); a(f's_cbranch_scc1 {L}')
            for q in range(5):
                a(f'buffer_load_dwordx2 {vr(R+2*q,2)}, v5, {sr(SRD_A)}, s3 offen offset:{256*q}')
            if k < 2: a(f's_add_u32 s3, s3, {96*10240}')
            if L: a(f'{L}:')

    def ln1x_compute(self, nlater, after_arrival=None):
        a = self.a
        F = 20
        a('v_mul_u32_u24 v6, 2624, v3')
        a('v_lshl_add_u32 v6, v4, 4, v6')
        a('s_mov_b32 s80, 0')
        a(f's_waitcnt vmcnt({nlater})')
        self.stamp('xarr')
        if after_arrival: after_arrival()
        Lp = a.label('Llnl')
        a(f'{Lp}:')
        for k in range(10):
            a(f'v_lshlrev_b32 v{F+2*k}, 16, v{8+k}')
            a(f'v_and_b32 v{F+2*k+1}, 0xffff0000, v{8+k}')
        a(f'v_pk_add_f32 v[40:41], {vr(F,2)}, {vr(F+2,2)}')
        a(f'v_pk_add_f32 v[42:43], {vr(F+4,2)}, {vr(F+6,2)}')
        for k in range(4, 10, 2):
            a(f'v_pk_add_f32 v[40:41], v[40:41], {vr(F+2*k,2)}')
            a(f'v_pk_add_f32 v[42:43], v[42:43], {vr(F+2*k+2,2)}')
        a('v_pk_add_f32 v[40:41], v[40:41], v[42:43]')
        a('v_add_f32 v40, v40, v41')
        self.rowsum32(40, 41)
        a(f'v_mul_f32 v40, {f2u(1.0/640):#x}, v40')
        a('v_mov_b32 v41, v40')
        D = 48
        for k in range(10):
            a(f'v_pk_add_f32 {vr(D+2*k,2)}, {vr(F+2*k,2)}, v[40:41] neg_lo:[0,1] neg_hi:[0,1]')
        a(f'v_pk_mul_f32 v[42:43], {vr(D,2)}, {vr(D,2)}')
        a(f'v_pk_mul_f32 v[44:45], {vr(D+2,2)}, {vr(D+2,2)}')
        for k in range(2, 10, 2):
            a(f'v_pk_fma_f32 v[42:43], {vr(D+2*k,2)}, {vr(D+2*k,2)}, v[42:43]')
            a(f'v_pk_fma_f32 v[44:45], {vr(D+2*k+2,2)}, {vr(D+2*k+2,2)}, v[44:45]')
        a('v_pk_add_f32 v[42:43], v[42:43], v[44:45]')
        a('v_add_f32 v42, v42, v43')
        self.rowsum32(42, 43)
        a(f'v_mul_f32 v42, {f2u(1.0/640):#x}, v42')
        a('v_cvt_pk_bf16_f32 v42, v42, v40')
        a('v_and_b32 v40, 0xffff0000, v42')
        a('v_lshlrev_b32 v42, 16, v42')
        a('v_mov_b32 v41, v40')
        a(f'v_add_f32 v42, {f2u(1e-5):#x}, v42')
        self.bf16r(42, 42)
        a('v_sqrt_f32 v42, v42')
        self.bf16r(42, 42)
        a('v_rcp_f32 v42, v42')
        a('v_mov_b32 v43, v42')
        U = 48
        for k in range(10):
            a(f'v_pk_add_f32 {vr(U+2*k,2)}, {vr(F+2*k,2)}, v[40:41] neg_lo:[0,1] neg_hi:[0,1]')
        if self.EXACT or self.EXACT_LN:
            for k in range(10):
                a(f'v_cvt_pk_bf16_f32 v{68+k}, v{U+2*k}, v{U+2*k+1}')
            for k in range(10):
                a(f'v_lshlrev_b32 v{U+2*k}, 16, v{68+k}')
                a(f'v_and_b32 v{U+2*k+1}, 0xffff0000, v{68+k}')
        for k in range(10):
            a(f'v_pk_mul_f32 {vr(U+2*k,2)}, {vr(U+2*k,2)}, v[42:43]')
        for k in range(20):
            a(f'v_cvt_pk_bf16_f32 v{U+k}, v{U+k}, v{F+k}')
        for q in range(5):
            a(f'ds_write_b128 v6, {vr(U+4*q,4)} offset:{512*q}')
        a('v_bfe_u32 v7, v2, 2, 2')
        a('v_mul_u32_u24 v7, 2624, v7')
        a('v_lshrrev_b32 v6, 4, v2')
        a('v_lshl_add_u32 v7, v6, 5, v7')
        a('v_and_b32 v6, 3, v2')
        a('v_lshl_add_u32 v7, v6, 3, v7')
        a(f's_lshl_b32 s3, s{sWAVE}, 7')
        a('v_add_u32 v7, s3, v7')
        a('v_lshlrev_b32 v6, 4, v2')
        a(f's_lshl_b32 s3, s{sWAVE}, 10')
        a('v_add_u32 v6, s3, v6')
        a('s_mul_i32 s3, s82, 20480')
        a('s_mov_b32 s80, 0')
        a('s_waitcnt lgkmcnt(0)')
        self.stamp('lncomp')
        a('s_barrier')
        T = 68
        Lq = a.label('Llns')
        a(f'{Lq}:')
        for k in range(5):
            a(f'ds_read_b64_tr_b16 {vr(T+4*k,2)}, v7 offset:{512*k}')
            a(f'ds_read_b64_tr_b16 {vr(T+4*k+2,2)}, v7 offset:{512*k+4*2624}')
        a('s_mov_b32 s5, s3')
        for k in range(5):
            a(f's_waitcnt lgkmcnt({2*(4-k)})')
            a(f'buffer_store_dwordx4 {vr(T+4*k,4)}, v6, {sr(SRD_WS)}, s5 offen sc1')
            if k < 4: a('s_add_u32 s5, s5, 4096')

    def flags_overlap(self, loads, B, base, lanes=None, publish_epoch=False):
        a = self.a
        loads = list(loads)
        head, tail = loads[:len(loads) - B], loads[len(loads) - B:]
        for f in head: f()
        L1 = a.label('Lfo'); Lp = a.label('Lfp'); Lc = a.label('Lfc'); Ld = a.label('Lfd'); Lo = a.label('Lfe'); Lx = a.label('Lfx')
        def issue():
            a('v_lshlrev_b32 v4, 4, v2')
            a('s_and_b32 s6, s2, 7')
            a('s_lshl_b32 s6, s6, 10')
            a(f's_add_u32 s6, s6, {base}')
            a(f'buffer_load_dwordx4 v[8:11], v4, {sr(SRD_WS)}, s6 offen sc1')
        a(f's_cmp_eq_u32 s{sWAVE}, 0'); a(f's_cbranch_scc0 {L1}')
        issue()
        a(f'{L1}:')
        for f in tail: f()
        a(f's_cmp_eq_u32 s{sWAVE}, 0'); a(f's_cbranch_scc0 {Lo}')
        a('s_mov_b32 s7, 0')
        if lanes:
            lo, hi = lanes
            m = ((1 << hi) - 1) ^ ((1 << lo) - 1)
            a(f's_mov_b32 s62, {m & 0xffffffff:#x}'); a(f's_mov_b32 s63, {m >> 32:#x}')
        a(f's_waitcnt vmcnt({min(63, len(tail))})')
        a(f's_branch {Lc}')
        a(f'{Lp}:')
        a('s_sleep 1')
        issue()
        a('s_waitcnt vmcnt(0)')
        a(f'{Lc}:')
        a('v_xor_b32 v8, s83, v8'); a('v_xor_b32 v9, s83, v9'); a('v_xor_b32 v10, s83, v10'); a('v_xor_b32 v11, s83, v11')
        a('v_or_b32 v8, v8, v9')
        a('v_or3_b32 v8, v8, v10, v11')
        a('v_cmp_ne_u32 vcc, 0, v8')
        if lanes: a('s_and_b64 vcc, vcc, s[62:63]')
        a(f's_cbranch_vccz {Ld}')
        a('s_add_u32 s7, s7, 1')
        a('s_cmp_lt_u32 s7, 0x40000')
        a(f's_cbranch_scc1 {Lp}')
        a(f'{Ld}:')
        if publish_epoch:
            a('s_cmp_eq_u32 s2, 0')
            a(f's_cbranch_scc0 {Lx}')
            a('s_mov_b64 exec, 1')
            a('v_mov_b32 v4, s83')
            a(f'v_mov_b32 v5, {EPX}')
            a(f'buffer_store_dword v4, v5, {sr(SRD_WS)}, 0 offen sc1')
            a('s_mov_b64 exec, -1')
            a(f'{Lx}:')
        a(f'{Lo}:')
        a('s_waitcnt vmcnt(0) lgkmcnt(0)')
        a('s_barrier')

    def row_overlap(self, loads, B):
        a = self.a
        loads = list(loads)
        head, tail = loads[:len(loads) - B], loads[len(loads) - B:]
        for f in head: f()
        L1 = a.label('Lro'); Lp = a.label('Lrp'); Lc = a.label('Lrc'); Ld = a.label('Lrd'); Lo = a.label('Lre')
        def issue():
            a('v_and_b32 v4, 15, v2')
            a('v_lshlrev_b32 v4, 2, v4')
            a('s_lshr_b32 s6, s72, 1')
            a('s_lshl_b32 s6, s6, 7')
            a(f's_add_u32 s6, s6, {RFL}')
            a(f'buffer_load_dword v5, v4, {sr(SRD_WS)}, s6 offen sc1')
        a(f's_cmp_eq_u32 s{sWAVE}, 0'); a(f's_cbranch_scc0 {L1}')
        issue()
        a(f'{L1}:')
        for f in tail: f()
        a(f's_cmp_eq_u32 s{sWAVE}, 0'); a(f's_cbranch_scc0 {Lo}')
        a('s_mov_b32 s7, 0')
        a(f's_waitcnt vmcnt({min(63, len(tail))})')
        a(f's_branch {Lc}')
        a(f'{Lp}:')
        a('s_sleep 1')
        issue()
        a('s_waitcnt vmcnt(0)')
        a(f'{Lc}:')
        a('v_cmp_ne_u32 vcc, s83, v5')
        a(f's_cbranch_vccz {Ld}')
        a('s_add_u32 s7, s7, 1')
        a('s_cmp_lt_u32 s7, 0x40000')
        a(f's_cbranch_scc1 {Lp}')
        a(f'{Ld}:')
        a(f'{Lo}:')
        a('s_barrier')

    LDSP = 24576
    def prep_issue3(self):
        a = self.a
        Lw2 = a.label('Lpw2'); Ldone = a.label('Lpdone'); Lnone = a.label('Lpnone')
        a('s_sub_u32 s60, s2, 160')
        a('s_cmp_lt_u32 s60, 48')
        a(f's_cbranch_scc0 {Lw2}')
        self.srd(SRD_B, P_W1, 640 * 3456)
        a('v_mul_u32_u24 v94, 4682, v2')
        a('v_lshrrev_b32 v94, 16, v94')
        a('v_mul_u32_u24 v95, 14, v94')
        a('v_sub_u32 v95, v2, v95')
        a('v_mul_u32_u24 v94, 3456, v94')
        a('v_lshl_add_u32 v94, v95, 4, v94')
        a('s_mul_i32 s64, s60, 21846')
        a('s_lshr_b32 s64, s64, 16')
        a('s_mul_i32 s65, s64, 3')
        a('s_sub_u32 s65, s60, s65')
        a('s_mul_i32 s62, s65, 7')
        a(f's_lshl_b32 s61, s{sWAVE}, 1')
        a('s_add_u32 s62, s62, s61')
        a('s_mul_i32 s63, s65, 7'); a('s_add_u32 s63, s63, 7'); a('s_min_u32 s63, s63, 20')
        a('s_sub_u32 s63, s63, s62'); a('s_min_i32 s63, s63, 2')
        a(f's_mul_i32 s6, s62, {32*3456}')
        a('s_mul_i32 s7, s64, 216')
        a('s_add_u32 s6, s6, s7')
        a(f's_mul_i32 s61, s61, {32*224}')
        a(f's_add_u32 s61, s61, {self.LDSP}')
        a('s_mov_b32 m0, s61')
        a('s_mov_b32 exec_hi, 0x00ffffff')
        L0 = a.label('Lpk0'); L8 = a.label('Lpk8'); Lsk = a.label('Lpk')
        a('s_cmp_lt_i32 s63, 1'); a(f's_cbranch_scc1 {L0}')
        for i in range(16):
            if i == 8:
                a('s_cmp_lt_i32 s63, 2'); a(f's_cbranch_scc1 {L8}')
            a(f'buffer_load_dwordx4 v94, {sr(SRD_B)}, s6 offen lds')
            if i < 15:
                a('s_add_u32 m0, m0, 896')
                a(f's_add_u32 s6, s6, {4*3456}')
        a('s_waitcnt vmcnt(16)'); a(f's_branch {Lsk}')
        a(f'{L8}:'); a('s_waitcnt vmcnt(8)'); a(f's_branch {Lsk}')
        a(f'{L0}:'); a('s_waitcnt vmcnt(0)')
        a(f'{Lsk}:')
        a('s_mov_b64 exec, -1')
        a(f's_branch {Ldone}')
        a(f'{Lw2}:')
        a('s_cmp_lt_u32 s60, 83')
        a(f's_cbranch_scc0 {Lnone}')
        a('s_sub_u32 s5, s60, 48')
        a('s_lshl_b32 s5, s5, 2')
        a(f's_add_u32 s5, s5, s{sWAVE}')
        a('s_mul_i32 s61, s5, 4682')
        a('s_lshr_b32 s61, s61, 16')
        a('s_mul_i32 s6, s61, 14')
        a('s_sub_u32 s62, s5, s6')
        self.srd(SRD_B, P_W2, 1728 * 1280)
        a('v_lshrrev_b32 v94, 3, v2')
        a('v_mul_u32_u24 v94, 1280, v94')
        a('v_and_b32 v95, 7, v2')
        a('v_lshl_add_u32 v94, v95, 4, v94')
        a(f's_lshl_b32 s63, s{sWAVE}, 14')
        a(f's_add_u32 s63, s63, {self.LDSP}')
        a('s_mov_b32 m0, s63')
        for kk in range(4):
            a('s_lshl_b32 s64, s62, 2')
            a(f's_add_u32 s64, s64, {kk}')
            a('s_mul_i32 s65, s64, 9363')
            a('s_lshr_b32 s65, s65, 16')
            a('s_mul_i32 s66, s65, 7')
            a('s_sub_u32 s66, s64, s66')
            for half in range(2):
                a('s_lshl_b32 s67, s65, 1')
                a('s_lshl_b32 s68, s66, 1')
                a(f's_add_u32 s68, s68, {half}')
                a('s_sub_u32 s69, s68, 8')
                a('s_add_u32 s70, s67, 1')
                a('s_cmp_gt_u32 s66, 3')
                a('s_cselect_b32 s67, s70, s67')
                a('s_cselect_b32 s68, s69, s68')
                a('s_lshl_b32 s69, s65, 1')
                a(f's_add_u32 s69, s69, {half}')
                a('s_cmp_eq_u32 s66, 3')
                a('s_cselect_b32 s67, s69, s67')
                a('s_cselect_b32 s68, 6, s68')
                a('s_mul_i32 s67, s67, 108')
                a('s_lshl_b32 s68, s68, 4')
                a('s_add_u32 s67, s67, s68')
                a('s_mul_i32 s67, s67, 1280')
                a('s_lshl_b32 s68, s61, 7')
                a('s_add_u32 s67, s67, s68')
                for i in range(2):
                    a(f'buffer_load_dwordx4 v94, {sr(SRD_B)}, s67 offen lds')
                    a('s_add_u32 m0, m0, 1024')
                    if i == 0: a(f's_add_u32 s67, s67, {8*1280}')
        a('s_waitcnt vmcnt(16)')
        a(f's_branch {Ldone}')
        a(f'{Lnone}:')
        a('s_waitcnt vmcnt(0)')
        a(f'{Ldone}:')

    def prep_compute3(self):
        a = self.a
        Lw2 = a.label('Lqw2'); Ldone = a.label('Lqdone')
        a('s_waitcnt vmcnt(0)')
        a('v_lshrrev_b32 v90, 4, v2')
        a('v_bfe_u32 v91, v2, 2, 2')
        a('v_and_b32 v92, 3, v2')
        a('v_lshlrev_b32 v93, 4, v2')
        a('s_cmp_lt_u32 s60, 48')
        a(f's_cbranch_scc0 {Lw2}')
        a('v_lshl_add_u32 v94, v90, 3, v91')
        a('v_mul_u32_u24 v94, 224, v94')
        a('v_lshl_add_u32 v94, v92, 3, v94')
        a('v_add_u32 v94, s61, v94')
        a('s_mov_b32 s70, 0x3f803f80')
        a('v_and_b32 v95, 15, v2')
        a('v_cmp_lt_u32 s[68:69], 11, v95')
        a('v_cmp_eq_u32 vcc, 12, v95')
        a('v_mov_b32 v96, 0'); a('v_mov_b32 v97, s70')
        a('v_cndmask_b32 v96, v96, v97, vcc')
        a('s_mul_i32 s66, s64, 143360')
        a('s_mul_i32 s67, s62, 7168')
        a('s_add_u32 s66, s66, s67')
        a(f's_add_u32 s66, s66, {W1F}')
        for t in range(7): a(f'v_mov_b32 v{120+t}, 0')
        Lk3 = a.label('Lk3')
        for kk in range(2):
            a(f's_cmp_lt_i32 s63, {kk+1}'); a(f's_cbranch_scc1 {Lk3}')
            for t in range(7):
                R = 128 + 4 * t
                a(f'ds_read_b64_tr_b16 {vr(R,2)}, v94 offset:{kk*32*224+t*32}')
                a(f'ds_read_b64_tr_b16 {vr(R+2,2)}, v94 offset:{kk*32*224+t*32+4*224}')
            a(f's_add_u32 s67, s66, {kk*7168}')
            for t in range(7):
                R = 128 + 4 * t
                a(f's_waitcnt lgkmcnt({2*(6-t)})')
                if t == 6:
                    for j in range(4):
                        a(f'v_cndmask_b32 v{R+j}, v{R+j}, v96, s[68:69]')
                if t == 4: a('s_add_u32 s67, s67, 4096')
                a(f'buffer_store_dwordx4 {vr(R,4)}, v93, {sr(SRD_WS)}, s67 offen offset:{(t%4)*1024} sc1')
                for j in range(4):
                    a(f'v_dot2_f32_bf16 v{120+t}, v{R+j}, s70, v{120+t}')
        a(f'{Lk3}:')
        for t in range(7):
            S = 120 + t
            a(f'v_mov_b32 v98, v{S}')
            a(f'v_permlane16_swap_b32 v{S}, v98')
            a(f'v_add_f32 v{S}, v{S}, v98')
            a(f'v_mov_b32 v98, v{S}')
            a(f'v_permlane32_swap_b32 v{S}, v98')
            a(f'v_add_f32 v{S}, v{S}, v98')
        SB = self.LDSP + 8 * 32 * 224
        a('v_lshlrev_b32 v98, 2, v95')
        a(f's_mul_i32 s66, s{sWAVE}, 448')
        a(f's_add_u32 s66, s66, {SB}')
        a('v_add_u32 v97, s66, v98')
        for t in range(7):
            a(f'ds_write_b32 v97, v{120+t} offset:{64*t}')
        a('s_waitcnt lgkmcnt(0)')
        a('s_barrier')
        a('v_lshlrev_b32 v97, 2, v0')
        a(f'v_add_u32 v98, {SB}, v97')
        for w in range(4):
            a(f'ds_read_b32 v{120+w}, v98 offset:{448*w}')
        a('s_mul_i32 s66, s64, 448')
        a('s_mul_i32 s67, s65, 7168')
        a('s_add_u32 s66, s66, s67')
        a(f's_add_u32 s66, s66, {SP}')
        a('s_waitcnt lgkmcnt(0)')
        a('v_add_f32 v120, v120, v121'); a('v_add_f32 v122, v122, v123'); a('v_add_f32 v120, v120, v122')
        a('v_cmp_gt_u32 vcc, 112, v0')
        Ls = a.label('Lsp')
        a('s_and_saveexec_b64 s[68:69], vcc')
        a(f's_cbranch_execz {Ls}')
        a(f'buffer_store_dword v120, v97, {sr(SRD_WS)}, s66 offen sc1')
        a(f'{Ls}:')
        a('s_mov_b64 exec, s[68:69]')
        a(f's_branch {Ldone}')
        a(f'{Lw2}:')
        a('s_cmp_lt_u32 s60, 83')
        a(f's_cbranch_scc0 {Ldone}')
        a('v_lshl_add_u32 v94, v90, 2, v91')
        a('v_lshlrev_b32 v94, 7, v94')
        a('v_lshl_add_u32 v94, v92, 3, v94')
        a('v_add_u32 v94, s63, v94')
        a('v_cmp_eq_u32 s[68:69], 3, v90')
        for kk in range(4):
            a('s_lshl_b32 s64, s62, 2')
            a(f's_add_u32 s64, s64, {kk}')
            a('s_mul_i32 s65, s64, 9363')
            a('s_lshr_b32 s65, s65, 16')
            a('s_mul_i32 s66, s65, 7')
            a('s_sub_u32 s66, s64, s66')
            RB = 100 + 16 * (kk & 1)
            for tt in range(4):
                R = RB + 4 * tt
                a(f'ds_read_b64_tr_b16 {vr(R,2)}, v94 offset:{kk*4096+tt*32}')
                a(f'ds_read_b64_tr_b16 {vr(R+2,2)}, v94 offset:{kk*4096+tt*32+2048}')
            Lnz = a.label('Lnz')
            a('s_waitcnt lgkmcnt(0)')
            a('s_cmp_eq_u32 s66, 3')
            a(f's_cbranch_scc0 {Lnz}')
            for tt in range(4):
                for j in range(4):
                    a(f'v_cndmask_b32 v{RB+4*tt+j}, v{RB+4*tt+j}, 0, s[68:69]')
            a(f'{Lnz}:')
            for tt in range(4):
                a('s_lshl_b32 s65, s61, 2')
                a(f's_add_u32 s65, s65, {tt}')
                a('s_mul_i32 s67, s65, 13108')
                a('s_lshr_b32 s67, s67, 16')
                a('s_mul_i32 s70, s67, 5')
                a('s_sub_u32 s70, s65, s70')
                a(f's_mul_i32 s67, s67, {NK2}')
                a('s_add_u32 s67, s67, s64')
                a('s_mul_i32 s67, s67, 5')
                a('s_add_u32 s67, s67, s70')
                a('s_lshl_b32 s67, s67, 10')
                a(f's_add_u32 s67, s67, {W2F}')
                a(f'buffer_store_dwordx4 {vr(RB+4*tt,4)}, v93, {sr(SRD_WS)}, s67 offen sc1')
        a(f'{Ldone}:')

    def w1_lds(self, idx):
        WS = self.WSTRIDE
        if idx < 44:
            return (idx // 11) * WS + 18176 + (idx % 11) * 1024
        if idx < 49:
            return 157952 + (idx - 44) * 1024
        j = idx - 49
        if j < 68:
            return (j // 17) * WS + (j % 17) * 1024
        return self.UXB + (j - 68) * 1024

    def pref_setup(self):
        a = self.a
        a('s_mul_i32 s76, s67, 143360')
        a(f's_add_u32 s76, s76, {W1F}')
        a(f's_mul_i32 s75, s{sWAVE}, {self.WSTRIDE}')
        a('v_lshlrev_b32 v3, 4, v2')
        a(f's_mul_i32 s77, s{sWAVE}, {11*1024}')
        a('s_add_u32 s77, s77, s76')
        a(f's_mul_i32 s78, s{sWAVE}, {17*1024}')
        a('s_add_u32 s78, s78, s76')
        a(f's_add_u32 s78, s78, {49*1024}')
        a(f's_lshl_b32 s82, s{sWAVE}, 10')

    def dma(self, m0expr, soff):
        a = self.a
        for l in m0expr: a(l)
        for l in soff: a(l)
        a(f'buffer_load_dwordx4 v3, {sr(SRD_WS)}, s5 offen sc1 lds')

    def w1A(self, j):
        self.dma([f's_add_u32 m0, s75, {18176 + 1024*j}'], [f's_add_u32 s5, s77, {1024*j}'])
    def w1T(self):
        self.dma([f's_add_u32 m0, s82, 157952'], [f's_add_u32 s5, s76, s82', f's_add_u32 s5, s5, {44*1024}'])
    def w1T2(self):
        self.dma([f's_mov_b32 m0, {157952 + 4096}'], [f's_add_u32 s5, s76, {48*1024}'])
    def w1B(self, i):
        self.dma([f's_add_u32 m0, s75, {1024*i}'], [f's_add_u32 s5, s78, {1024*i}'])
    def w1C(self, i):
        a = self.a
        if i < 5:
            self.dma([f's_add_u32 m0, s82, {self.UXB + 4096*i}'], [f's_add_u32 s5, s76, s82', f's_add_u32 s5, s5, {(117+4*i)*1024}'])
        else:
            L = a.label('Lw1c')
            a(f's_cmp_eq_u32 s{sWAVE}, 3'); a(f's_cbranch_scc1 {L}')
            self.dma([f's_add_u32 m0, s82, {self.UXB + 4096*i}'], [f's_add_u32 s5, s76, s82', f's_add_u32 s5, s5, {(117+4*i)*1024}'])
            a(f'{L}:')

    def list_conv(self):
        L = [lambda j=j: self.w1A(j) for j in range(11)] + [self.w1T, self.w1T2]
        W = [lambda i=i: self.w2_load(i) for i in range(self.NW2_CONV)]
        out = []
        while L or W:
            if L: out.append(L.pop(0))
            for _ in range(3):
                if W: out.append(W.pop(0))
        return out

    def list_e2(self):
        return [lambda i=i: self.w1B(i) for i in range(17)] + [lambda i=i: self.w1C(i) for i in range(6)]

    def l2_warm(self):
        a = self.a
        a('s_sub_u32 s5, s2, 160'); a('s_lshr_b32 s5, s5, 3'); a('s_lshl_b32 s5, s5, 2'); a(f's_add_u32 s5, s5, s{sWAVE}')
        a('s_mul_i32 s6, s5, %d' % (24 * 1024))
        a('s_and_b32 s7, s2, 1'); a(f's_mul_i32 s7, s7, {8*143360}')
        a('s_add_u32 s6, s6, s7'); a(f's_add_u32 s6, s6, {W1F}')
        a(f's_add_u32 s7, s7, {W1F + 8*143360 - 1024}')
        for i in range(24):
            a('s_min_u32 s62, s6, s7')
            a(f'buffer_load_dwordx4 {vr(112+4*(i%16),4)}, v3, {sr(SRD_WS)}, s62 offen sc1')
            a('s_add_u32 s6, s6, 1024')

    def flag_store_only(self, base):
        a = self.a
        L = a.label('Lsig')
        a(f's_cmp_eq_u32 s{sWAVE}, 0')
        a(f's_cbranch_scc0 {L}')
        a('v_lshlrev_b32 v5, 10, v2')
        a('s_lshl_b32 s5, s2, 2')
        a(f's_add_u32 s5, s5, {base}')
        a('v_mov_b32 v4, s83')
        a('s_mov_b64 exec, 0xff')
        a(f'buffer_store_dword v4, v5, {sr(SRD_WS)}, s5 offen sc1')
        a('s_mov_b64 exec, -1')
        a(f'{L}:')

    SBL = 121088 + 24576
    def sb_stage(self):
        a = self.a
        L = a.label('Lsb')
        a(f's_cmp_eq_u32 s{sWAVE}, 1'); a(f's_cbranch_scc0 {L}')
        a('s_mov_b32 exec_hi, 0x00ffffff')
        a('v_lshlrev_b32 v94, 3, v2')
        a('s_mul_i32 s80, s67, 448')
        a(f's_add_u32 s80, s80, {SP}')
        for part in range(3):
            a(f'buffer_load_dwordx2 {vr(64+2*part,2)}, v94, {sr(SRD_WS)}, s80 offen sc1')
            if part < 2: a('s_add_u32 s80, s80, 7168')
        self.srd(SRD_B, P_B1, 1728 * 2)
        a('s_mul_i32 s81, s67, 216')
        a('v_lshlrev_b32 v95, 2, v2')
        a(f'buffer_load_dword v70, v95, {sr(SRD_B)}, s81 offen')
        a(f'v_add_u32 v94, {self.SBL}, v94')
        a('s_waitcnt vmcnt(0)')
        a('v_pk_add_f32 v[64:65], v[64:65], v[66:67]')
        a('v_pk_add_f32 v[64:65], v[64:65], v[68:69]')
        a('v_lshlrev_b32 v72, 16, v70')
        a('v_and_b32 v73, 0xffff0000, v70')
        a('ds_write_b64 v94, v[64:65]')
        a('ds_write_b64 v94, v[72:73] offset:448')
        a('s_waitcnt lgkmcnt(0)')
        a('s_mov_b64 exec, -1')
        a(f'{L}:')

    def pfl_issue(self):
        a = self.a
        a('v_lshlrev_b32 v7, 4, v2')
        a('s_and_b32 s5, s2, 7')
        a('s_lshl_b32 s5, s5, 10')
        a(f's_add_u32 s5, s5, {PFL}')
        a(f'buffer_load_dwordx4 v[8:11], v7, {sr(SRD_WS)}, s5 offen sc1')

    def pfl_check(self):
        a = self.a
        Lp = a.label('Lpf'); Lc = a.label('Lpfc'); Ld = a.label('Lpfd')
        m = ((1 << 61) - 1) ^ ((1 << 40) - 1)
        a(f's_mov_b32 s62, {m & 0xffffffff:#x}'); a(f's_mov_b32 s63, {m >> 32:#x}')
        a('s_mov_b32 s6, 0')
        a(f's_branch {Lc}')
        a(f'{Lp}:')
        a('s_sleep 2')
        self.pfl_issue()
        a(f'{Lc}:')
        a('s_waitcnt vmcnt(0)')
        a('v_xor_b32 v8, s83, v8'); a('v_xor_b32 v9, s83, v9'); a('v_xor_b32 v10, s83, v10'); a('v_xor_b32 v11, s83, v11')
        a('v_or_b32 v8, v8, v9')
        a('v_or3_b32 v8, v8, v10, v11')
        a('v_cmp_ne_u32 vcc, 0, v8')
        a('s_and_b64 vcc, vcc, s[62:63]')
        a(f's_cbranch_vccz {Ld}')
        a('s_add_u32 s6, s6, 1')
        a('s_cmp_lt_u32 s6, 0x40000')
        a(f's_cbranch_scc1 {Lp}')
        a(f'{Ld}:')

    CONV_RATE = 4
    EXACT = 0
    EXACT_LN = 1
    UGATE = 1
    SPLITC = 1
    PREPLATE = 0
    EARLYUX = 1
    WARM = 0
    CONV_FROM = 1
    UD = 108
    def xreg(self, i):
        return 228 + i if i < 28 else 140 + (i - 28)

    def conv_main(self, pref=None, pref_from=8):
        a = self.a
        P = self.PL
        ACC = 12
        bufA = [44, 164]; bufB = [76, 196]
        pref = list(pref or [])
        def reads(b):
            sel = b & 1
            lst = []
            for aa in range(8):
                off = 512 * (7 - aa) + 64 * (7 - b)
                lst.append(f'ds_read_b64 {vr(bufA[sel]+4*aa,2)}, v{self.VA} offset:{off}')
                lst.append(f'ds_read_b64 {vr(bufA[sel]+4*aa+2,2)}, v{self.VA} offset:{off+8}')
            for e in range(8):
                lst.append(f'ds_read_b128 {vr(bufB[sel]+4*e,4)}, v{self.VB+b} offset:{4096*e}')
            order = []
            for k in range(8):
                order += [lst[2*k], lst[2*k+1], lst[16+k]]
            return order
        for r in reads(0): a(r)
        a(f'v_xor_b32 v4, 16, v{self.VEU}')
        a(f'v_lshlrev_b32 v6, 16, v{P+5}')
        side_rd = []
        for t in range(8):
            side_rd.append(f'ds_read_b64 {vr(self.UD+4*t+2,2)}, v{self.VEU} offset:{4096*t}')
            side_rd.append(f'ds_read_b64 {vr(self.xreg(4*t+2),2)}, v4 offset:{4096*t}')
        side = []
        for t in range(8):
            U = self.UD + 4 * t
            X = [self.xreg(4 * t + j) for j in range(4)]
            side += [f'v_lshlrev_b32 v{U}, 16, v{U+2}', f'v_and_b32 v{U+1}, 0xffff0000, v{U+2}',
                     f'v_lshlrev_b32 v{U+2}, 16, v{U+3}', f'v_and_b32 v{U+3}, 0xffff0000, v{U+3}']
            side += [f'v_lshlrev_b32 v{X[0]}, 16, v{X[2]}', f'v_and_b32 v{X[1]}, 0xffff0000, v{X[2]}',
                     f'v_lshlrev_b32 v{X[2]}, 16, v{X[3]}', f'v_and_b32 v{X[3]}, 0xffff0000, v{X[3]}']
            if self.EXACT:
                side += [f'v_mul_f32 v{U+j}, v{U+j}, v6' for j in range(4)]
                side += [f'v_cvt_pk_bf16_f32 v{U+1}, v{U}, v{U+1}', f'v_cvt_pk_bf16_f32 v{U+3}, v{U+2}, v{U+3}',
                         f'v_lshlrev_b32 v{U}, 16, v{U+1}', f'v_and_b32 v{U+1}, 0xffff0000, v{U+1}',
                         f'v_lshlrev_b32 v{U+2}, 16, v{U+3}', f'v_and_b32 v{U+3}, 0xffff0000, v{U+3}']
            else:
                side += [f'v_fma_f32 v{U+j}, v{U+j}, v6, v{X[j]}' for j in range(4)]
        cnt = 0
        for b in range(8):
            sel = b & 1
            nxt = reads(b + 1) if b < 7 else []
            if b == 0: nxt = nxt + side_rd[:12]
            if b == 1: nxt = nxt + side_rd[12:]
            if b == pref_from and pref: self.pfl_check()
            a('s_waitcnt lgkmcnt(0)')
            n = 0
            for aa in range(8):
                for e in range(8 - aa):
                    t = aa + e
                    c = '0' if (b == 0 and aa == 0) else vr(ACC + 4 * t, 4)
                    a(f'v_mfma_f32_16x16x32_bf16 {vr(ACC+4*t,4)}, {vr(bufA[sel]+4*aa,4)}, {vr(bufB[sel]+4*e,4)}, {c}')
                    if n < len(nxt): a(nxt[n])
                    n += 1
                    if b >= 2 and side: a(side.pop(0))
                    if b >= pref_from:
                        cnt += 1
                        if cnt % self.CONV_RATE == 0 and pref: pref.pop(0)()
        assert not pref and not side

    def conv_epilogue(self, pref=None):
        a = self.a
        ACC = 12
        pref = list(pref or [])
        a('s_mov_b32 s70, 0x00003f80')
        a('s_mov_b32 s71, 0x3f800000')
        a('v_bfe_u32 v4, v2, 2, 2')
        a(f'v_mul_u32_u24 v4, {self.WSTRIDE}, v4')
        a('v_lshrrev_b32 v5, 4, v2')
        a('v_lshl_add_u32 v4, v5, 5, v4')
        a('v_and_b32 v6, 3, v2')
        a('v_lshl_add_u32 v4, v6, 3, v4')
        a(f's_lshl_b32 s5, s{sWAVE}, 10')
        a('v_add_u32 v4, s5, v4')
        a('v_mul_u32_u24 v5, 20480, v5')
        a('v_and_b32 v6, 15, v2')
        a('v_lshl_add_u32 v5, v6, 4, v5')
        a(f's_mul_i32 s62, s{sWAVE}, {8*81920}')
        a('s_lshr_b32 s6, s2, 3')
        a('s_lshl_b32 s6, s6, 10')
        a('s_add_u32 s62, s62, s6')
        a('s_bfe_u32 s6, s2, 0x20001')
        a('s_lshl_b32 s6, s6, 8')
        a('s_add_u32 s62, s62, s6')
        a('s_and_b32 s6, s2, 1')
        a('s_lshl_b32 s6, s6, 3')
        a('s_add_u32 s62, s62, s6')
        a(f's_add_u32 s62, s62, {HF}')
        for tp in range(4):
            P = [(2 * tp + tt, h) for tt in range(2) for h in range(2)]
            Y = {p: ACC + 4 * p[0] + 2 * p[1] for p in P}
            T = {p: 44 + i for i, p in enumerate(P)}
            U = {p: self.UD + 4 * p[0] + 2 * p[1] for p in P}
            X = {p: self.xreg(4 * p[0] + 2 * p[1]) for p in P}
            O = {p: 80 + 2 * p[0] + p[1] for p in P}
            def step(f):
                for p in P: a(f(p))
            if self.EXACT:
                step(lambda p: f'v_cvt_pk_bf16_f32 v{T[p]}, v{Y[p]}, v{Y[p]+1}')
                step(lambda p: f'v_dot2_f32_bf16 v{Y[p]}, v{T[p]}, s70, v{U[p]}')
                step(lambda p: f'v_dot2_f32_bf16 v{Y[p]+1}, v{T[p]}, s71, v{U[p]+1}')
                step(lambda p: f'v_cvt_pk_bf16_f32 v{T[p]}, v{Y[p]}, v{Y[p]+1}')
                step(lambda p: f'v_dot2_f32_bf16 v{Y[p]}, v{T[p]}, s70, v{X[p]}')
                step(lambda p: f'v_dot2_f32_bf16 v{Y[p]+1}, v{T[p]}, s71, v{X[p]+1}')
            else:
                step(lambda p: f'v_pk_add_f32 {vr(Y[p],2)}, {vr(Y[p],2)}, {vr(U[p],2)}')
            step(lambda p: f'v_cvt_pk_bf16_f32 v{O[p]}, v{Y[p]}, v{Y[p]+1}')
            for tt in range(2):
                tq = 2 * tp + tt
                a(f'ds_write_b64 v{self.VHW}, {vr(80+2*tq,2)} offset:{512*tq}')
            for _ in range(self.CEP_PER):
                if pref: pref.pop(0)()
        self.stamp('cep1')
        a('s_waitcnt lgkmcnt(0)')
        a('s_barrier')
        for m in range(8):
            a(f'ds_read_b64_tr_b16 {vr(44+2*m,2)}, v4 offset:{128*m}')
        for m in range(8):
            a(f's_waitcnt lgkmcnt({7-m})')
            a(f'buffer_store_dwordx2 {vr(44+2*m,2)}, v5, {sr(SRD_WS)}, s62 offen sc1')
            if m < 7: a('s_add_u32 s62, s62, 81920')
    CEP_PER = 0


    def b1_issue(self):
        a = self.a
        a('v_lshlrev_b32 v99, 4, v2')
        a('s_and_b32 s5, s2, 7')
        a('s_lshl_b32 s5, s5, 10')
        a(f's_add_u32 s5, s5, {BFL1}')
        a(f'buffer_load_dwordx4 v[228:231], v99, {sr(SRD_WS)}, s5 offen sc1')
    def b1_check_ux_issue(self):
        a = self.a
        Lp = a.label('Lb1p'); Lc = a.label('Lb1c'); Ld = a.label('Lb1d')
        a('s_mov_b32 s7, 0')
        a('s_waitcnt vmcnt(0)')
        a(f's_branch {Lc}')
        a(f'{Lp}:')
        a('s_sleep 1')
        self.b1_issue()
        a('s_waitcnt vmcnt(0)')
        a(f'{Lc}:')
        for j in range(4): a(f'v_xor_b32 v{228+j}, s83, v{228+j}')
        a('v_or_b32 v228, v228, v229')
        a('v_or3_b32 v228, v228, v230, v231')
        a('v_cmp_ne_u32 vcc, 0, v228')
        a(f's_cbranch_vccz {Ld}')
        a('s_add_u32 s7, s7, 1')
        a('s_cmp_lt_u32 s7, 0x40000')
        a(f's_cbranch_scc1 {Lp}')
        a(f'{Ld}:')
        R = 164
        a('v_lshrrev_b32 v232, 3, v2')
        a('v_mul_u32_u24 v233, 20480, v232')
        a('v_and_b32 v234, 7, v2')
        a('v_lshl_add_u32 v233, v234, 4, v233')
        a(f's_mul_i32 s5, s{sWAVE}, {64*20480}')
        a('s_lshl_b32 s7, s2, 7')
        a('s_add_u32 s5, s5, s7')
        for k in range(8):
            a(f'buffer_load_dwordx4 {vr(R+4*k,4)}, v233, {sr(SRD_WS)}, s5 offen sc1')
            if k < 7: a(f's_add_u32 s5, s5, {8*20480}')
    def ux_write(self):
        a = self.a
        R = 164
        a('v_lshrrev_b32 v4, 3, v2')
        a('v_and_b32 v6, 7, v2')
        a('v_lshrrev_b32 v7, 4, v2')
        a('v_xor_b32 v8, v6, v7')
        a('v_xor_b32 v9, 4, v8')
        a('v_lshlrev_b32 v4, 7, v4')
        a(f's_lshl_b32 s6, s{sWAVE}, 13')
        a(f's_add_u32 s6, s6, {self.UXB + 4096}')
        a('v_add_u32 v4, s6, v4')
        a('v_lshl_add_u32 v8, v8, 4, v4')
        a('v_lshl_add_u32 v9, v9, 4, v4')
        for k in range(8):
            a(f's_waitcnt vmcnt({7-k})')
            a(f'ds_write_b128 v{8 + (k&1)}, {vr(R+4*k,4)} offset:{k*1024}')
        a('s_waitcnt lgkmcnt(0)')
        a('s_barrier')

    def w1_dma_all(self):
        a = self.a
        a('v_lshlrev_b32 v3, 4, v2')
        a('s_mul_i32 s76, s67, 143360')
        a(f's_lshl_b32 s6, s{sWAVE}, 10')
        a('s_add_u32 s76, s76, s6')
        a(f's_add_u32 s76, s76, {W1F}')
        a('s_mov_b32 m0, s6')
        for i in range(35):
            a(f'buffer_load_dwordx4 v3, {sr(SRD_WS)}, s76 offen sc1 lds')
            if i < 34:
                a('s_add_u32 m0, m0, 4096')
                a('s_add_u32 s76, s76, 4096')
        a('v_lshrrev_b32 v94, 4, v2')
        a('v_lshlrev_b32 v94, 4, v94')
        a('s_mul_i32 s80, s67, 448')
        a(f's_add_u32 s80, s80, {SP}')
        for t in range(7):
            a(f'buffer_load_dwordx4 {vr(64+4*t,4)}, v94, {sr(SRD_WS)}, s80 offen offset:{64*t} sc1')

    def w2_load(self, idx):
        a = self.a
        off = idx * 1024
        a(f's_add_u32 s5, s79, {(off // 4096) * 4096}')
        a(f'buffer_load_dwordx4 {self.w2reg(idx)}, v3, {sr(SRD_WS)}, s5 offen offset:{off % 4096} sc1')


    def p3_epilogue(self):
        a = self.a
        ACC = 8
        a('v_lshrrev_b32 v5, 4, v2')
        a('v_lshlrev_b32 v6, 4, v5')
        a(f'v_add_u32 v6, {self.SBL}, v6')
        for t in range(7):
            a(f'ds_read_b128 {vr(64+4*t,4)}, v6 offset:{64*t}')
            a(f'ds_read_b128 {vr(124+4*t,4)}, v6 offset:{448+64*t}')
        a('v_and_b32 v4, 15, v2')
        a('v_cmp_eq_u32 s[62:63], 3, v5')
        a('v_lshrrev_b32 v6, 2, v4')
        a('v_cmp_eq_u32 s[64:65], v6, v5')
        a('v_and_b32 v6, 3, v4')
        a('v_cmp_eq_u32 s[68:69], 1, v6')
        a('v_cmp_eq_u32 s[70:71], 2, v6')
        a('v_cmp_eq_u32 vcc, 3, v6')
        for lt in range(2):
            S_ = 112 + 2 * lt; Q_ = 113 + 2 * lt
            acc = ACC + (6 * 2 + lt) * 4
            B = 96 + 4 * lt
            for j in range(4):
                a(f'v_accvgpr_read_b32 v{B+j}, a{self.GRAM+4*lt+j}')
            a(f'v_cndmask_b32 v{S_}, 0, v{acc}, s[62:63]')
            a(f'v_cndmask_b32 v{B}, v{B}, v{B+1}, s[68:69]')
            a(f'v_cndmask_b32 v{B}, v{B}, v{B+2}, s[70:71]')
            a(f'v_cndmask_b32 v{B}, v{B}, v{B+3}, vcc')
            a(f'v_cndmask_b32 v{Q_}, 0, v{B}, s[64:65]')
        for rnd in ('16', '32'):
            for k, v in enumerate((112, 113, 114, 115)):
                a(f'v_mov_b32 v{104+k}, v{v}')
            for k, v in enumerate((112, 113, 114, 115)):
                a(f'v_permlane{rnd}_swap_b32 v{v}, v{104+k}')
            for k, v in enumerate((112, 113, 114, 115)):
                a(f'v_add_f32 v{v}, v{v}, v{104+k}')
        def both(f):
            for lt in range(2): f(112 + 2 * lt, 113 + 2 * lt, lt)
        both(lambda s_, q_, lt: a(f'v_mul_f32 v{s_}, {f2u(1.0/640):#x}, v{s_}'))
        both(lambda s_, q_, lt: a(f'v_mul_f32 v{q_}, {f2u(1.0/640):#x}, v{q_}'))
        both(lambda s_, q_, lt: a(f'v_fma_f32 v{q_}, -v{s_}, v{s_}, v{q_}'))
        both(lambda s_, q_, lt: a(f'v_max_f32 v{q_}, 0, v{q_}'))
        both(lambda s_, q_, lt: a(f'v_cvt_pk_bf16_f32 v{q_}, v{q_}, v{s_}'))
        both(lambda s_, q_, lt: a(f'v_and_b32 v{s_}, 0xffff0000, v{q_}'))
        both(lambda s_, q_, lt: a(f'v_lshlrev_b32 v{q_}, 16, v{q_}'))
        both(lambda s_, q_, lt: a(f'v_add_f32 v{q_}, {f2u(1e-5):#x}, v{q_}'))
        both(lambda s_, q_, lt: self.bf16r(q_, q_))
        both(lambda s_, q_, lt: a(f'v_sqrt_f32 v{q_}, v{q_}'))
        both(lambda s_, q_, lt: self.bf16r(q_, q_))
        both(lambda s_, q_, lt: a(f'v_rcp_f32 v{116+4*lt}, v{q_}'))
        both(lambda s_, q_, lt: a(f'v_mov_b32 v{116+4*lt+2}, v{s_}'))
        both(lambda s_, q_, lt: a(f'v_mov_b32 v{116+4*lt+3}, v{s_}'))
        both(lambda s_, q_, lt: a(f'v_mov_b32 v{116+4*lt+1}, v{116+4*lt}'))
        OUT = 152
        def outreg(t, lt):
            if t < 6: return OUT + ((t >> 1) * 2 + lt) * 4 + (t & 1) * 2
            return OUT + 24 + lt * 2
        a('v_lshlrev_b32 v3, 4, v2')
        a('s_lshl_b32 s5, s66, 3')
        a(f's_lshl_b32 s6, s{sWAVE}, 1')
        a('s_add_u32 s5, s5, s6')
        a(f's_mul_i32 s5, s5, {NK2*1024}')
        a(f's_add_u32 s5, s5, {HH}')
        a('s_lshr_b32 s6, s67, 1'); a('s_mul_i32 s6, s6, 7')
        a('s_and_b32 s7, s67, 1')
        a('s_lshl_b32 s62, s7, 2'); a('s_add_u32 s62, s62, s6'); a('s_lshl_b32 s62, s62, 10'); a('s_add_u32 s62, s62, s5')
        a(f's_add_u32 s63, s62, {NK2*1024}')
        a('s_add_u32 s64, s6, 3'); a('s_lshl_b32 s64, s64, 10'); a('s_lshl_b32 s7, s7, 3'); a('s_add_u32 s64, s64, s7'); a('s_add_u32 s64, s64, s5')
        a(f's_add_u32 s65, s64, {NK2*1024}')
        a('s_mov_b32 s70, 0x00003f80')
        a('s_mov_b32 s71, 0x3f800000')
        a('s_waitcnt lgkmcnt(0)')
        for t in range(7):
            P = [(lt, h) for lt in range(2) for h in range(2)]
            X = {p: ACC + (t * 2 + p[0]) * 4 + 2 * p[1] for p in P}
            T = {p: 100 + i for i, p in enumerate(P)}
            def step(f):
                for p in P: a(f(p))
            S = lambda p: 64 + 4 * t + 2 * p[1]
            Bq = lambda p: 124 + 4 * t + 2 * p[1]
            R = lambda p: 116 + 4 * p[0]
            step(lambda p: f'v_pk_fma_f32 {vr(X[p],2)}, {vr(S(p),2)}, {vr(R(p)+2,2)}, {vr(X[p],2)} neg_lo:[1,0,0] neg_hi:[1,0,0]')
            if self.EXACT:
                step(lambda p: f'v_pk_mul_f32 {vr(X[p],2)}, {vr(X[p],2)}, {vr(R(p),2)}')
                step(lambda p: f'v_cvt_pk_bf16_f32 v{T[p]}, v{X[p]}, v{X[p]+1}')
                step(lambda p: f'v_dot2_f32_bf16 v{X[p]}, v{T[p]}, s70, v{Bq(p)}')
                step(lambda p: f'v_dot2_f32_bf16 v{X[p]+1}, v{T[p]}, s71, v{Bq(p)+1}')
                step(lambda p: f'v_cvt_pk_bf16_f32 v{T[p]}, v{X[p]}, v{X[p]+1}')
                step(lambda p: f'v_pk_max_i16 v{T[p]}, v{T[p]}, 0')
                step(lambda p: f'v_lshlrev_b32 v{X[p]}, 16, v{T[p]}')
                step(lambda p: f'v_and_b32 v{X[p]+1}, 0xffff0000, v{T[p]}')
            else:
                step(lambda p: f'v_pk_fma_f32 {vr(X[p],2)}, {vr(X[p],2)}, {vr(R(p),2)}, {vr(Bq(p),2)}')
                step(lambda p: f'v_max_f32 v{X[p]}, 0, v{X[p]}')
                step(lambda p: f'v_max_f32 v{X[p]+1}, 0, v{X[p]+1}')
            step(lambda p: f'v_pk_mul_f32 {vr(X[p],2)}, {vr(X[p],2)}, {vr(X[p],2)}')
            step(lambda p: f'v_cvt_pk_bf16_f32 v{outreg(t,p[0])+p[1]}, v{X[p]}, v{X[p]+1}')
            if t == 0:
                pass
            if t in (1, 3, 5):
                p_ = t >> 1
                for lt, sb in ((0, 's62'), (1, 's63')):
                    a(f'buffer_store_dwordx4 {vr(OUT+(p_*2+lt)*4,4)}, v3, {sr(SRD_WS)}, {sb} offen offset:{1024*p_} sc1')
        for lt, sb in ((0, 's64'), (1, 's65')):
            a(f'buffer_store_dwordx2 {vr(OUT+24+lt*2,2)}, v3, {sr(SRD_WS)}, {sb} offen sc1')


    P4_SLOTS = 7
    RES = 224
    def p4_pre_loads(self):
        a = self.a
        L = []
        def setup():
            self.srd(SRD_B, P_B2, 640 * 2)
            a('v_and_b32 v244, 15, v2')
            a('v_lshrrev_b32 v245, 4, v2')
            a('s_mul_i32 s62, s73, 20')
            a('s_lshl_b32 s63, s72, 2')
            a(f's_add_u32 s63, s63, s{sWAVE}')
            a('s_mul_i32 s63, s63, 20480')
            a(f's_add_u32 s63, s63, {HF}')
        def one(t):
            def f():
                if t == 0: setup()
                a(f'v_add_u32 v246, s62, v245')
                a(f'v_add_u32 v246, {4*t}, v246')
                a('v_lshrrev_b32 v247, 3, v246')
                a('v_lshlrev_b32 v247, 10, v247')
                a('v_bfe_u32 v248, v246, 1, 2')
                a('v_lshl_add_u32 v247, v248, 8, v247')
                a('v_and_b32 v248, 1, v246')
                a('v_lshl_add_u32 v247, v248, 3, v247')
                a('v_lshl_add_u32 v247, v244, 4, v247')
                a(f'buffer_load_dwordx2 {vr(self.RES+2*t,2)}, v247, {sr(SRD_WS)}, s63 offen sc1')
            return f
        def two(t):
            def f():
                a(f'v_add_u32 v246, s62, v245')
                a(f'v_add_u32 v246, {4*t}, v246')
                a('v_lshlrev_b32 v246, 3, v246')
                a(f'buffer_load_dwordx2 {vr(self.RES+10+2*t,2)}, v246, {sr(SRD_B)}, 0 offen')
            return f
        for t in range(5): L += [one(t), two(t)]
        return L

    def p4_epilogue(self):
        a = self.a
        ACC = 8
        a('v_lshlrev_b32 v3, 4, v2')
        a(f's_mul_i32 s5, s{sWAVE}, 20480')
        a('v_add_u32 v6, s5, v3')
        for lt in range(4):
            L = a.label('Lp4w')
            a(f's_cmp_eq_u32 s{sWAVE}, {lt}'); a(f's_cbranch_scc1 {L}')
            for t in range(5):
                a(f'ds_write_b128 v6, {vr(ACC+(t*4+lt)*4,4)} offset:{lt*5120+t*1024}')
            a(f'{L}:')
        Lend = a.label('Lp4o')
        for lt in range(4):
            L = a.label('Lp4c')
            a(f's_cmp_eq_u32 s{sWAVE}, {lt}'); a(f's_cbranch_scc0 {L}')
            for t in range(5):
                for h in range(2):
                    a(f'v_pk_mov_b32 {vr(112+4*t+2*h,2)}, {vr(ACC+(t*4+lt)*4+2*h,2)}, {vr(ACC+(t*4+lt)*4+2*h,2)} op_sel:[0,1]')
            a(f's_branch {Lend}')
            a(f'{L}:')
        a(f'{Lend}:')
        a('s_waitcnt lgkmcnt(0)')
        a('s_barrier')
        for k in range(1, 4):
            a(f's_add_u32 s5, s{sWAVE}, {k}'); a('s_and_b32 s5, s5, 3'); a('s_mul_i32 s5, s5, 20480')
            a(f's_mul_i32 s6, s{sWAVE}, 5120'); a('s_add_u32 s5, s5, s6')
            a(f'v_add_u32 v{4+k}, s5, v3')
        for t in range(5):
            for k in range(1, 4):
                a(f'ds_read_b128 {vr(132+(t*3+k-1)*4,4)}, v{4+k} offset:{t*1024}')
        for t in range(5):
            for h in range(2):
                b = self.RES + 10 + 2 * t + h; hh = self.RES + 2 * t + h
                a(f'v_lshlrev_b32 v{8+4*t+2*h}, 16, v{b}'); a(f'v_and_b32 v{8+4*t+2*h+1}, 0xffff0000, v{b}')
                a(f'v_lshlrev_b32 v{28+4*t+2*h}, 16, v{hh}'); a(f'v_and_b32 v{28+4*t+2*h+1}, 0xffff0000, v{hh}')
                if not self.EXACT:
                    a(f'v_pk_add_f32 {vr(112+4*t+2*h,2)}, {vr(112+4*t+2*h,2)}, {vr(8+4*t+2*h,2)}')
                    a(f'v_pk_add_f32 {vr(112+4*t+2*h,2)}, {vr(112+4*t+2*h,2)}, {vr(28+4*t+2*h,2)}')
        self.srd(SRD_A, P_OUT, 2048 * 1280)
        a('s_lshl_b32 s5, s72, 6')
        a(f's_lshl_b32 s6, s{sWAVE}, 4')
        a('s_add_u32 s5, s5, s6')
        a('s_mul_i32 s5, s5, 1280')
        a('s_mul_i32 s6, s73, 160')
        a('s_add_u32 s5, s5, s6')
        a('v_mul_u32_u24 v4, 1280, v244')
        a('v_lshl_add_u32 v4, v245, 3, v4')
        a('s_mov_b32 s70, 0x00003f80')
        a('s_mov_b32 s71, 0x3f800000')
        a('s_waitcnt lgkmcnt(0)')
        P = [(t, h) for t in range(5) for h in range(2)]
        X = {p: 112 + 4 * p[0] + 2 * p[1] for p in P}
        def step(f):
            for p in P: a(f(p))
        for k in range(3):
            step(lambda p: f'v_pk_add_f32 {vr(X[p],2)}, {vr(X[p],2)}, {vr(132+(p[0]*3+k)*4+2*p[1],2)}')
        T = {p: 48 + i for i, p in enumerate(P)}
        if self.EXACT:
            step(lambda p: f'v_cvt_pk_bf16_f32 v{T[p]}, v{X[p]}, v{X[p]+1}')
            step(lambda p: f'v_dot2_f32_bf16 v{X[p]}, v{T[p]}, s70, v{8+4*p[0]+2*p[1]}')
            step(lambda p: f'v_dot2_f32_bf16 v{X[p]+1}, v{T[p]}, s71, v{8+4*p[0]+2*p[1]+1}')
            step(lambda p: f'v_cvt_pk_bf16_f32 v{T[p]}, v{X[p]}, v{X[p]+1}')
            step(lambda p: f'v_dot2_f32_bf16 v{X[p]}, v{T[p]}, s70, v{28+4*p[0]+2*p[1]}')
            step(lambda p: f'v_dot2_f32_bf16 v{X[p]+1}, v{T[p]}, s71, v{28+4*p[0]+2*p[1]+1}')
        step(lambda p: f'v_cvt_pk_bf16_f32 v{60+2*p[0]+p[1]}, v{X[p]}, v{X[p]+1}')
        for t in range(5):
            a(f'buffer_store_dwordx2 {vr(60+2*t,2)}, v4, {sr(SRD_A)}, s5 offen offset:{32*t}')

    def p4_h_load1(self, kk, lt):
        a = self.a
        slot = kk % self.P4_SLOTS
        reg = vr(self.P4H + slot * 16 + lt * 4, 4)
        if kk < 4:
            a(f'buffer_load_dwordx4 {reg}, v3, {sr(SRD_WS)}, s{76+lt} offen offset:{kk*1024} sc1')
        else:
            a(f's_add_u32 s5, s{76+lt}, {(kk//4)*4096}')
            a(f'buffer_load_dwordx4 {reg}, v3, {sr(SRD_WS)}, s5 offen offset:{(kk%4)*1024} sc1')

    def p4_main(self):
        a = self.a
        ACC = 8
        AH = self.P4_SLOTS - 1
        for kk in range(AH):
            for lt in range(4): self.p4_h_load1(kk, lt)
        for kk in range(14):
            issued_to = min(AH - 1 + kk, 13)
            a(f's_waitcnt vmcnt({(issued_to - kk) * 4})')
            if kk in (0, 3, 7, 11): self.stamp(f'q{kk}')
            slot = kk % self.P4_SLOTS
            n = 0
            for t in range(5):
                for lt in range(4):
                    acc = ACC + (t * 4 + lt) * 4
                    c = '0' if kk == 0 else vr(acc, 4)
                    a(f'v_mfma_f32_16x16x32_bf16 {vr(acc,4)}, {self.w2reg(kk*5+t)}, {vr(self.P4H+slot*16+lt*4,4)}, {c}')
                    if n % 5 == 2 and kk + AH <= 13: self.p4_h_load1(kk + AH, n // 5)
                    n += 1


    P3_AHEAD = 5
    P3_NSLOT = 3
    @property
    def P3_SLOTPOS(self):
        return {2: (4, 10), 3: (3, 8, 12), 4: (2, 6, 9, 12)}[self.P3_NSLOT]
    NW2_P3 = 12
    NW2_CONV = 36
    NW2_MAIN = 48
    NW2_EPI = 0
    def p3_main3(self):
        a = self.a
        ACC = 8
        WB = [200, 228]
        a('v_lshlrev_b32 v3, 4, v2')
        a('v_add_u32 v92, 0x10000, v3')
        a('v_add_u32 v93, 0x20000, v3')
        a('s_lshl_b32 s77, s66, 3')
        a(f's_lshl_b32 s6, s{sWAVE}, 1')
        a('s_add_u32 s77, s77, s6')
        a('s_mul_i32 s77, s77, 20480')
        a(f's_add_u32 s77, s77, {HF}')
        a('s_add_u32 s78, s77, 20480')
        def rd(kap, t):
            off = self.w1_lds(kap * 7 + t)
            reg = ['v3', 'v92', 'v93'][off >> 16]
            return f'ds_read_b128 {ar(WB[kap&1]+4*t,4)}, {reg} offset:{off & 0xffff}'
        issued = []
        def hload(kap, lt):
            blk = kap // 4
            if blk == 0:
                a(f'buffer_load_dwordx4 {vr(self.P3H+(2*kap+lt)*4,4)}, v3, {sr(SRD_WS)}, s{77+lt} offen offset:{(kap%4)*1024} sc1')
            else:
                a(f's_add_u32 s5, s{77+lt}, {blk*4096}')
                a(f'buffer_load_dwordx4 {vr(self.P3H+(2*kap+lt)*4,4)}, v3, {sr(SRD_WS)}, s5 offen offset:{(kap%4)*1024} sc1')
            issued.append(('h', kap))
        AH = self.P3_AHEAD
        hq = [(kap, lt) for kap in range(20) for lt in range(2)]
        for _ in range(2 * AH):
            hload(*hq.pop(0))
        for t in range(7): a(rd(0, t))
        self.stamp('p3iss')
        misc = [('w', lambda idx=idx: self.w2_load(idx)) for idx in range(self.NW2_CONV, self.NW2_CONV + self.NW2_P3)]
        for kap in range(20):
            last = max(i for i, tg in enumerate(issued) if tg == ('h', kap))
            a(f's_waitcnt vmcnt({min(63, len(issued) - 1 - last)}) lgkmcnt(0)')
            if kap in (0, 4, 8, 12, 16): self.stamp(f'k{kap}')
            h0 = self.P3H + (2 * kap) * 4; h1 = h0 + 4
            extra = [rd(kap + 1, t) for t in range(7)] if kap < 19 else []
            n = 0
            def slot():
                if hq: hload(*hq.pop(0))
                elif misc:
                    tg, f = misc.pop(0); f(); issued.append((tg, 0))
            for t in range(7):
                for lt, h in ((0, h0), (1, h1)):
                    acc = ACC + (t * 2 + lt) * 4
                    c = '0' if kap == 0 else vr(acc, 4)
                    a(f'v_mfma_f32_16x16x32_bf16 {vr(acc,4)}, {ar(WB[kap&1]+4*t,4)}, {vr(h,4)}, {c}')
                    if extra and n >= 1: a(extra.pop(0))
                    if n in self.P3_SLOTPOS: slot()
                    n += 1
            for lt, h in ((0, h0), (1, h1)):
                g = self.GRAM + 4 * lt
                c = '0' if kap == 0 else ar(g, 4)
                a(f'v_mfma_f32_16x16x32_bf16 {ar(g,4)}, {vr(h,4)}, {vr(h,4)}, {c}')
                if lt == 0 and not hq: slot()
        while misc:
            tg, f = misc.pop(0); f(); issued.append((tg, 0))
        self.p3_w2_inflight = 63

def build():
    out = []
    kn = NAME + '_kernel'
    out.append(f'; @launch grid=(256,1,1) block=(256,1,1) lds={LDS_SIZE}')
    out.append('.amdgcn_target "amdgcn-amd-amdhsa--gfx950"')
    out.append('.text')
    g = G3(True); g.kname = 'f'; a = g.a
    if g.timing:
        for i in range(16): a(f's_mov_b32 s{86+i}, 0')
    g.stamp('start')
    g.prologue()
    g.ln1x_issue()
    g.epoch_issue()
    Laux = a.label('Laux'); Lp3 = a.label('Lp3')
    a('s_cmp_lt_u32 s2, 160'); a(f's_cbranch_scc0 {Laux}')
    g.kgen_issue()
    g.code_prefetch()
    if g.SPLITC:
        g.p2_consts(0)
        g.ln1x_compute(8)
        g.p2_consts(1)
    else:
        g.p2_consts()
        g.ln1x_compute(8)
    a('s_waitcnt vmcnt(12)')
    g.epoch_get()
    g.flag_signal(BFL1)
    g.stamp('ln1')
    g.ux_zero_pad()
    if g.EARLYUX:
        g.kg_hook1 = g.b1_issue
        g.kg_hook2 = g.b1_check_ux_issue
    g.kgen(0)
    g.p34_ids()
    g.w2_setup()
    g.pref_setup()
    g.stamp('kgen')
    if g.EARLYUX:
        g.ux_write()
    else:
        g.flag_wait(BFL1)
        g.stamp('B1')
        g.conv_load_ux()
    g.flag_store_only(UFL)
    g.pfl_issue()
    g.stamp('ux')
    if g.CONV_FROM >= 8:
        g.conv_main()
        g.stamp('conv')
        g.pfl_check()
        g.conv_epilogue()
        g.stamp('cep2')
        e1 = g.list_conv()
        for f in e1: f()
        a(f's_waitcnt vmcnt({len(e1)})')
        g.flag_signal(BFL2, drain=False)
    else:
        g.conv_main(g.list_conv(), pref_from=g.CONV_FROM)
        g.stamp('conv')
        g.conv_epilogue()
        g.stamp('cep2')
        g.flag_signal(BFL2)
    g.stamp('P2end')
    a(f's_branch {Lp3}')
    a(f'{Laux}:')
    g.code_prefetch()
    if g.PREPLATE == 2:
        g.ln1x_compute(0)
        g.epoch_get()
        g.flag_signal(BFL1)
        g.prep_issue3()
    elif g.PREPLATE:
        g.ln1x_compute(0)
        g.epoch_get()
        g.prep_issue3()
        g.flag_signal(BFL1, drain=False)
    else:
        g.ln1x_compute(2, g.prep_issue3)
        a('s_waitcnt vmcnt(0)')
        g.epoch_get()
        g.flag_signal(BFL1)
    g.stamp('ln1')
    g.prep_compute3()
    g.flag_signal(PFL)
    g.flag_signal(BFL2, drain=False)
    g.stamp('P2end')
    g.p34_ids()
    g.w2_setup()
    g.pref_setup()
    if g.UGATE: g.flag_wait(UFL, lanes=(0, 40))
    g.pfl_issue()
    g.pfl_check()
    if g.WARM: g.l2_warm()
    for f in g.list_conv(): f()
    a(f'{Lp3}:')
    g.sb_stage()
    g.flags_overlap(g.list_e2(), 16, BFL2, publish_epoch=True)
    g.stamp('B2')
    g.p3_main3()
    g.stamp('p3main')
    g.p3_epilogue()
    g.stamp('p3ep')
    rest = [i for i in range(g.NW2_CONV + g.NW2_P3, 70)]
    Lw0 = a.label('Lw0')
    g.row_signal_pre(a)
    a(f's_cmp_eq_u32 s{sWAVE}, 0'); a(f's_cbranch_scc0 {Lw0}')
    g.row_flag_store()
    a(f'{Lw0}:')
    g.row_overlap([lambda idx=idx: g.w2_load(idx) for idx in rest] + g.p4_pre_loads(), 16)
    g.stamp('B3')
    g.p4_h_setup()
    g.p4_main()
    g.stamp('p4main')
    g.p4_epilogue()
    g.stamp_flush(0)
    g.end()
    out.append(kernel_header(kn)); out += a.finalize()
    out.append('.section .rodata,"a"')
    out.append(kernel_desc(kn))
    return '\n'.join(out) + '\n'

def prep3(self):
    n0 = len(self.a.lines)
    self.prep()
    for i in range(n0, len(self.a.lines)):
        l = self.a.lines[i]
        if l.startswith('buffer_store') and 'sc1' not in l:
            self.a.lines[i] = l + ' sc1'
G3.prep3 = prep3

if __name__ == '__main__':
    dst = sys.argv[1]
    gen.TIMING = 'timing' in sys.argv[2:]
    for x in sys.argv[2:]:
        if x.startswith('set='): gen.STAMPSET = set(x[4:].split(','))
        if x.startswith('dbg='): gen.DBGSTAMP = int(x[4:])
    for x in sys.argv[2:]:
        if '=' in x and x.split('=')[0].isupper() or (x.split('=')[0].replace('_','').isalnum() and x.split('=')[0].upper() == x.split('=')[0] and '=' in x):
            k, v = x.split('='); setattr(G3, k, int(v))
    gen.HF = HF; gen.BLK = BLK; gen.HH = HH; gen.W1F = W1F; gen.W2F = W2F; gen.SP = SP
    s = build()
    open(dst, 'w').write(s)
    import shutil, os
    if gen.TIMING: shutil.copy('stamps_k0.txt', dst + '.tags')
    print('wrote', dst, len(s), 'bytes')
```

```python
import sys
sys.path.insert(0, 'work')
import gen, gen2
from gen import sr, vr, ar, f2u, sWAVE, SRD_A, SRD_WS, SRD_B, SRD_C, SRD_D
from gen import P_X, P_LA, P_AI, P_CR, P_CI, P_LDT, P_DSK, P_W1, P_B1, P_W2, P_B2, P_OUT, P_DBG, P_WS
from gen import kernel_header, kernel_desc, NAME
from gen2 import G2, BLK, HF, W1F, W2F, SP, HH, EPX, LDS_SIZE, NK2

BFL1 = 0x2001000
BFL2 = 0x2003000
PFL  = 0x2005000
RFL  = 0x2008000
UFL  = 0x200A000

class G3(G2):
    S2 = False
    def code_prefetch(self):
        a = self.a
        L = a.label('Lcp')
        a('s_getpc_b64 s[46:47]')
        a(f'{L}_pc:')
        a(f's_sub_u32 s46, s46, {L}_pc-{NAME}_kernel')
        a('s_subb_u32 s47, s47, 0')
        a('s_lshr_b32 s5, s2, 3')
        a('s_lshl_b32 s5, s5, 2')
        a(f's_add_u32 s5, s5, s{sWAVE}')
        a('s_min_u32 s5, s5, (L_end_f-%s_kernel)/1024-1' % NAME)
        a('s_lshl_b32 s5, s5, 10')
        a('v_lshlrev_b32 v97, 4, v2')
        a('v_add_u32 v97, s5, v97')
        a('global_load_dwordx4 v[232:235], v97, s[46:47]')

    def flag_signal(self, base, drain=True):
        a = self.a
        L = a.label('Lsig')
        if drain: a('s_waitcnt vmcnt(0) lgkmcnt(0)')
        else: a('s_waitcnt lgkmcnt(0)')
        a('s_barrier')
        a(f's_cmp_eq_u32 s{sWAVE}, 0')
        a(f's_cbranch_scc0 {L}')
        a('v_lshlrev_b32 v5, 10, v2')
        a('s_lshl_b32 s5, s2, 2')
        a(f's_add_u32 s5, s5, {base}')
        a('v_mov_b32 v4, s83')
        a('s_mov_b64 exec, 0xff')
        a(f'buffer_store_dword v4, v5, {sr(SRD_WS)}, s5 offen sc1')
        a('s_mov_b64 exec, -1')
        a(f'{L}:')

    def flag_poll(self, base, lanes=None, publish_epoch=False):
        a = self.a
        Lp = a.label('Lpoll'); Ld = a.label('Lpolld'); Lx = a.label('Lpollx')
        a('v_lshlrev_b32 v4, 4, v2')
        a('s_and_b32 s5, s2, 7')
        a('s_lshl_b32 s5, s5, 10')
        a(f's_add_u32 s5, s5, {base}')
        a('s_mov_b32 s6, 0')
        if lanes:
            lo, hi = lanes
            m = ((1 << hi) - 1) ^ ((1 << lo) - 1)
            a(f's_mov_b32 s62, {m & 0xffffffff:#x}'); a(f's_mov_b32 s63, {m >> 32:#x}')
        a(f'{Lp}:')
        a(f'buffer_load_dwordx4 v[8:11], v4, {sr(SRD_WS)}, s5 offen sc1')
        a('s_waitcnt vmcnt(0)')
        a('v_xor_b32 v8, s83, v8'); a('v_xor_b32 v9, s83, v9'); a('v_xor_b32 v10, s83, v10'); a('v_xor_b32 v11, s83, v11')
        a('v_or_b32 v8, v8, v9')
        a('v_or3_b32 v8, v8, v10, v11')
        a('v_cmp_ne_u32 vcc, 0, v8')
        if lanes:
            a('s_and_b64 vcc, vcc, s[62:63]')
        a(f's_cbranch_vccz {Ld}')
        a('s_sleep 1')
        a('s_add_u32 s6, s6, 1')
        a('s_cmp_lt_u32 s6, 0x40000')
        a(f's_cbranch_scc1 {Lp}')
        a(f'{Ld}:')
        if publish_epoch:
            a('s_cmp_eq_u32 s2, 0')
            a(f's_cbranch_scc0 {Lx}')
            a('s_mov_b64 exec, 1')
            a('v_mov_b32 v4, s83')
            a(f'v_mov_b32 v5, {EPX}')
            a(f'buffer_store_dword v4, v5, {sr(SRD_WS)}, 0 offen sc1')
            a('s_mov_b64 exec, -1')
            a(f'{Lx}:')

    def flag_wait(self, base, lanes=None, publish_epoch=False, drain=False, mid=None):
        a = self.a
        Lo = a.label('Lpollo')
        if mid:
            a('s_waitcnt vmcnt(0)')
            mid()
        a(f's_cmp_eq_u32 s{sWAVE}, 0')
        a(f's_cbranch_scc0 {Lo}')
        self.flag_poll(base, lanes, publish_epoch)
        a(f'{Lo}:')
        if drain: a('s_waitcnt vmcnt(0)')
        a('s_barrier')

    def row_flag_store(self):
        a = self.a
        a('s_lshl_b32 s5, s66, 7')
        a('s_lshl_b32 s6, s67, 2')
        a('s_add_u32 s5, s5, s6')
        a(f's_add_u32 s5, s5, {RFL}')
        a('s_mov_b64 exec, 1')
        a('v_mov_b32 v4, s83')
        a('v_mov_b32 v5, 0')
        a(f'buffer_store_dword v4, v5, {sr(SRD_WS)}, s5 offen sc1')
        a('s_mov_b64 exec, -1')

    def row_poll(self):
        a = self.a
        Lp = a.label('Lpoll'); Ld = a.label('Lpolld')
        a('v_and_b32 v4, 15, v2')
        a('v_lshlrev_b32 v4, 2, v4')
        a('s_lshr_b32 s5, s72, 1')
        a('s_lshl_b32 s5, s5, 7')
        a(f's_add_u32 s5, s5, {RFL}')
        a('s_mov_b32 s6, 0')
        a(f'{Lp}:')
        a(f'buffer_load_dword v5, v4, {sr(SRD_WS)}, s5 offen sc1')
        a('s_waitcnt vmcnt(0)')
        a('v_cmp_ne_u32 vcc, s83, v5')
        a(f's_cbranch_vccz {Ld}')
        a('s_sleep 1')
        a('s_add_u32 s6, s6, 1')
        a('s_cmp_lt_u32 s6, 0x40000')
        a(f's_cbranch_scc1 {Lp}')
        a(f'{Ld}:')


    TILE = 20992
    def ln1x_issue(self):
        a = self.a
        self.srd(SRD_A, P_X, 2048 * 1280)
        a('v_lshrrev_b32 v3, 5, v0')
        a('v_and_b32 v4, 31, v0')
        a('v_mul_u32_u24 v5, 0x500, v3')
        a('v_lshl_add_u32 v5, v4, 3, v5')
        a('s_mov_b32 s82, s2')
        a('s_mov_b32 s81, 1')
        a('s_mul_i32 s3, s82, 10240')
        for k, R in enumerate((8,)):
            L = None
            if k == 2:
                L = a.label('Lln'); a('s_cmp_lt_u32 s81, 3'); a(f's_cbranch_scc1 {L}')
            for q in range(5):
                a(f'buffer_load_dwordx2 {vr(R+2*q,2)}, v5, {sr(SRD_A)}, s3 offen offset:{256*q}')
            if k < 2: a(f's_add_u32 s3, s3, {96*10240}')
            if L: a(f'{L}:')

    def ln1x_compute(self, nlater, after_arrival=None):
        a = self.a
        F = 20
        a('v_mul_u32_u24 v6, 2624, v3')
        a('v_lshl_add_u32 v6, v4, 4, v6')
        a('s_mov_b32 s80, 0')
        a(f's_waitcnt vmcnt({nlater})')
        self.stamp('xarr')
        if after_arrival: after_arrival()
        Lp = a.label('Llnl')
        a(f'{Lp}:')
        for k in range(10):
            a(f'v_lshlrev_b32 v{F+2*k}, 16, v{8+k}')
            a(f'v_and_b32 v{F+2*k+1}, 0xffff0000, v{8+k}')
        a(f'v_pk_add_f32 v[40:41], {vr(F,2)}, {vr(F+2,2)}')
        a(f'v_pk_add_f32 v[42:43], {vr(F+4,2)}, {vr(F+6,2)}')
        for k in range(4, 10, 2):
            a(f'v_pk_add_f32 v[40:41], v[40:41], {vr(F+2*k,2)}')
            a(f'v_pk_add_f32 v[42:43], v[42:43], {vr(F+2*k+2,2)}')
        a('v_pk_add_f32 v[40:41], v[40:41], v[42:43]')
        a('v_add_f32 v40, v40, v41')
        self.rowsum32(40, 41)
        a(f'v_mul_f32 v40, {f2u(1.0/640):#x}, v40')
        a('v_mov_b32 v41, v40')
        D = 48
        for k in range(10):
            a(f'v_pk_add_f32 {vr(D+2*k,2)}, {vr(F+2*k,2)}, v[40:41] neg_lo:[0,1] neg_hi:[0,1]')
        a(f'v_pk_mul_f32 v[42:43], {vr(D,2)}, {vr(D,2)}')
        a(f'v_pk_mul_f32 v[44:45], {vr(D+2,2)}, {vr(D+2,2)}')
        for k in range(2, 10, 2):
            a(f'v_pk_fma_f32 v[42:43], {vr(D+2*k,2)}, {vr(D+2*k,2)}, v[42:43]')
            a(f'v_pk_fma_f32 v[44:45], {vr(D+2*k+2,2)}, {vr(D+2*k+2,2)}, v[44:45]')
        a('v_pk_add_f32 v[42:43], v[42:43], v[44:45]')
        a('v_add_f32 v42, v42, v43')
        self.rowsum32(42, 43)
        a(f'v_mul_f32 v42, {f2u(1.0/640):#x}, v42')
        a('v_cvt_pk_bf16_f32 v42, v42, v40')
        a('v_and_b32 v40, 0xffff0000, v42')
        a('v_lshlrev_b32 v42, 16, v42')
        a('v_mov_b32 v41, v40')
        a(f'v_add_f32 v42, {f2u(1e-5):#x}, v42')
        self.bf16r(42, 42)
        a('v_sqrt_f32 v42, v42')
        self.bf16r(42, 42)
        a('v_rcp_f32 v42, v42')
        a('v_mov_b32 v43, v42')
        U = 48
        for k in range(10):
            a(f'v_pk_add_f32 {vr(U+2*k,2)}, {vr(F+2*k,2)}, v[40:41] neg_lo:[0,1] neg_hi:[0,1]')
        if self.EXACT or self.EXACT_LN:
            for k in range(10):
                a(f'v_cvt_pk_bf16_f32 v{68+k}, v{U+2*k}, v{U+2*k+1}')
            for k in range(10):
                a(f'v_lshlrev_b32 v{U+2*k}, 16, v{68+k}')
                a(f'v_and_b32 v{U+2*k+1}, 0xffff0000, v{68+k}')
        for k in range(10):
            a(f'v_pk_mul_f32 {vr(U+2*k,2)}, {vr(U+2*k,2)}, v[42:43]')
        for k in range(20):
            a(f'v_cvt_pk_bf16_f32 v{U+k}, v{U+k}, v{F+k}')
        for q in range(5):
            a(f'ds_write_b128 v6, {vr(U+4*q,4)} offset:{512*q}')
        a('v_bfe_u32 v7, v2, 2, 2')
        a('v_mul_u32_u24 v7, 2624, v7')
        a('v_lshrrev_b32 v6, 4, v2')
        a('v_lshl_add_u32 v7, v6, 5, v7')
        a('v_and_b32 v6, 3, v2')
        a('v_lshl_add_u32 v7, v6, 3, v7')
        a(f's_lshl_b32 s3, s{sWAVE}, 7')
        a('v_add_u32 v7, s3, v7')
        a('v_lshlrev_b32 v6, 4, v2')
        a(f's_lshl_b32 s3, s{sWAVE}, 10')
        a('v_add_u32 v6, s3, v6')
        a('s_mul_i32 s3, s82, 20480')
        a('s_mov_b32 s80, 0')
        a('s_waitcnt lgkmcnt(0)')
        self.stamp('lncomp')
        a('s_barrier')
        T = 68
        Lq = a.label('Llns')
        a(f'{Lq}:')
        for k in range(5):
            a(f'ds_read_b64_tr_b16 {vr(T+4*k,2)}, v7 offset:{512*k}')
            a(f'ds_read_b64_tr_b16 {vr(T+4*k+2,2)}, v7 offset:{512*k+4*2624}')
        a('s_mov_b32 s5, s3')
        for k in range(5):
            a(f's_waitcnt lgkmcnt({2*(4-k)})')
            a(f'buffer_store_dwordx4 {vr(T+4*k,4)}, v6, {sr(SRD_WS)}, s5 offen sc1')
            if k < 4: a('s_add_u32 s5, s5, 4096')

    def flags_overlap(self, loads, B, base, lanes=None, publish_epoch=False):
        a = self.a
        loads = list(loads)
        head, tail = loads[:len(loads) - B], loads[len(loads) - B:]
        for f in head: f()
        L1 = a.label('Lfo'); Lp = a.label('Lfp'); Lc = a.label('Lfc'); Ld = a.label('Lfd'); Lo = a.label('Lfe'); Lx = a.label('Lfx')
        def issue():
            a('v_lshlrev_b32 v4, 4, v2')
            a('s_and_b32 s6, s2, 7')
            a('s_lshl_b32 s6, s6, 10')
            a(f's_add_u32 s6, s6, {base}')
            a(f'buffer_load_dwordx4 v[8:11], v4, {sr(SRD_WS)}, s6 offen sc1')
        a(f's_cmp_eq_u32 s{sWAVE}, 0'); a(f's_cbranch_scc0 {L1}')
        issue()
        a(f'{L1}:')
        for f in tail: f()
        a(f's_cmp_eq_u32 s{sWAVE}, 0'); a(f's_cbranch_scc0 {Lo}')
        a('s_mov_b32 s7, 0')
        if lanes:
            lo, hi = lanes
            m = ((1 << hi) - 1) ^ ((1 << lo) - 1)
            a(f's_mov_b32 s62, {m & 0xffffffff:#x}'); a(f's_mov_b32 s63, {m >> 32:#x}')
        a(f's_waitcnt vmcnt({min(63, len(tail))})')
        a(f's_branch {Lc}')
        a(f'{Lp}:')
        a('s_sleep 1')
        issue()
        a('s_waitcnt vmcnt(0)')
        a(f'{Lc}:')
        a('v_xor_b32 v8, s83, v8'); a('v_xor_b32 v9, s83, v9'); a('v_xor_b32 v10, s83, v10'); a('v_xor_b32 v11, s83, v11')
        a('v_or_b32 v8, v8, v9')
        a('v_or3_b32 v8, v8, v10, v11')
        a('v_cmp_ne_u32 vcc, 0, v8')
        if lanes: a('s_and_b64 vcc, vcc, s[62:63]')
        a(f's_cbranch_vccz {Ld}')
        a('s_add_u32 s7, s7, 1')
        a('s_cmp_lt_u32 s7, 0x40000')
        a(f's_cbranch_scc1 {Lp}')
        a(f'{Ld}:')
        if publish_epoch:
            a('s_cmp_eq_u32 s2, 0')
            a(f's_cbranch_scc0 {Lx}')
            a('s_mov_b64 exec, 1')
            a('v_mov_b32 v4, s83')
            a(f'v_mov_b32 v5, {EPX}')
            a(f'buffer_store_dword v4, v5, {sr(SRD_WS)}, 0 offen sc1')
            a('s_mov_b64 exec, -1')
            a(f'{Lx}:')
        a(f'{Lo}:')
        a('s_waitcnt vmcnt(0) lgkmcnt(0)')
        a('s_barrier')

    def row_overlap(self, loads, B):
        a = self.a
        loads = list(loads)
        head, tail = loads[:len(loads) - B], loads[len(loads) - B:]
        for f in head: f()
        L1 = a.label('Lro'); Lp = a.label('Lrp'); Lc = a.label('Lrc'); Ld = a.label('Lrd'); Lo = a.label('Lre')
        def issue():
            a('v_and_b32 v4, 15, v2')
            a('v_lshlrev_b32 v4, 2, v4')
            a('s_lshr_b32 s6, s72, 1')
            a('s_lshl_b32 s6, s6, 7')
            a(f's_add_u32 s6, s6, {RFL}')
            a(f'buffer_load_dword v5, v4, {sr(SRD_WS)}, s6 offen sc1')
        a(f's_cmp_eq_u32 s{sWAVE}, 0'); a(f's_cbranch_scc0 {L1}')
        issue()
        a(f'{L1}:')
        for f in tail: f()
        a(f's_cmp_eq_u32 s{sWAVE}, 0'); a(f's_cbranch_scc0 {Lo}')
        a('s_mov_b32 s7, 0')
        a(f's_waitcnt vmcnt({min(63, len(tail))})')
        a(f's_branch {Lc}')
        a(f'{Lp}:')
        a('s_sleep 1')
        issue()
        a('s_waitcnt vmcnt(0)')
        a(f'{Lc}:')
        a('v_cmp_ne_u32 vcc, s83, v5')
        a(f's_cbranch_vccz {Ld}')
        a('s_add_u32 s7, s7, 1')
        a('s_cmp_lt_u32 s7, 0x40000')
        a(f's_cbranch_scc1 {Lp}')
        a(f'{Ld}:')
        a(f'{Lo}:')
        a('s_barrier')

    LDSP = 24576
    def prep_issue3(self):
        a = self.a
        Lw2 = a.label('Lpw2'); Ldone = a.label('Lpdone'); Lnone = a.label('Lpnone')
        a('s_sub_u32 s60, s2, 160')
        a('s_cmp_lt_u32 s60, 48')
        a(f's_cbranch_scc0 {Lw2}')
        self.srd(SRD_B, P_W1, 640 * 3456)
        a('v_mul_u32_u24 v94, 4682, v2')
        a('v_lshrrev_b32 v94, 16, v94')
        a('v_mul_u32_u24 v95, 14, v94')
        a('v_sub_u32 v95, v2, v95')
        a('v_mul_u32_u24 v94, 3456, v94')
        a('v_lshl_add_u32 v94, v95, 4, v94')
        a('s_mul_i32 s64, s60, 21846')
        a('s_lshr_b32 s64, s64, 16')
        a('s_mul_i32 s65, s64, 3')
        a('s_sub_u32 s65, s60, s65')
        a('s_mul_i32 s62, s65, 7')
        a(f's_lshl_b32 s61, s{sWAVE}, 1')
        a('s_add_u32 s62, s62, s61')
        a('s_mul_i32 s63, s65, 7'); a('s_add_u32 s63, s63, 7'); a('s_min_u32 s63, s63, 20')
        a('s_sub_u32 s63, s63, s62'); a('s_min_i32 s63, s63, 2')
        a(f's_mul_i32 s6, s62, {32*3456}')
        a('s_mul_i32 s7, s64, 216')
        a('s_add_u32 s6, s6, s7')
        a(f's_mul_i32 s61, s61, {32*224}')
        a(f's_add_u32 s61, s61, {self.LDSP}')
        a('s_mov_b32 m0, s61')
        a('s_mov_b32 exec_hi, 0x00ffffff')
        L0 = a.label('Lpk0'); L8 = a.label('Lpk8'); Lsk = a.label('Lpk')
        a('s_cmp_lt_i32 s63, 1'); a(f's_cbranch_scc1 {L0}')
        for i in range(16):
            if i == 8:
                a('s_cmp_lt_i32 s63, 2'); a(f's_cbranch_scc1 {L8}')
            a(f'buffer_load_dwordx4 v94, {sr(SRD_B)}, s6 offen lds')
            if i < 15:
                a('s_add_u32 m0, m0, 896')
                a(f's_add_u32 s6, s6, {4*3456}')
        a('s_waitcnt vmcnt(16)'); a(f's_branch {Lsk}')
        a(f'{L8}:'); a('s_waitcnt vmcnt(8)'); a(f's_branch {Lsk}')
        a(f'{L0}:'); a('s_waitcnt vmcnt(0)')
        a(f'{Lsk}:')
        a('s_mov_b64 exec, -1')
        a(f's_branch {Ldone}')
        a(f'{Lw2}:')
        a('s_cmp_lt_u32 s60, 83')
        a(f's_cbranch_scc0 {Lnone}')
        a('s_sub_u32 s5, s60, 48')
        a('s_lshl_b32 s5, s5, 2')
        a(f's_add_u32 s5, s5, s{sWAVE}')
        a('s_mul_i32 s61, s5, 4682')
        a('s_lshr_b32 s61, s61, 16')
        a('s_mul_i32 s6, s61, 14')
        a('s_sub_u32 s62, s5, s6')
        self.srd(SRD_B, P_W2, 1728 * 1280)
        a('v_lshrrev_b32 v94, 3, v2')
        a('v_mul_u32_u24 v94, 1280, v94')
        a('v_and_b32 v95, 7, v2')
        a('v_lshl_add_u32 v94, v95, 4, v94')
        a(f's_lshl_b32 s63, s{sWAVE}, 14')
        a(f's_add_u32 s63, s63, {self.LDSP}')
        a('s_mov_b32 m0, s63')
        for kk in range(4):
            a('s_lshl_b32 s64, s62, 2')
            a(f's_add_u32 s64, s64, {kk}')
            a('s_mul_i32 s65, s64, 9363')
            a('s_lshr_b32 s65, s65, 16')
            a('s_mul_i32 s66, s65, 7')
            a('s_sub_u32 s66, s64, s66')
            for half in range(2):
                a('s_lshl_b32 s67, s65, 1')
                a('s_lshl_b32 s68, s66, 1')
                a(f's_add_u32 s68, s68, {half}')
                a('s_sub_u32 s69, s68, 8')
                a('s_add_u32 s70, s67, 1')
                a('s_cmp_gt_u32 s66, 3')
                a('s_cselect_b32 s67, s70, s67')
                a('s_cselect_b32 s68, s69, s68')
                a('s_lshl_b32 s69, s65, 1')
                a(f's_add_u32 s69, s69, {half}')
                a('s_cmp_eq_u32 s66, 3')
                a('s_cselect_b32 s67, s69, s67')
                a('s_cselect_b32 s68, 6, s68')
                a('s_mul_i32 s67, s67, 108')
                a('s_lshl_b32 s68, s68, 4')
                a('s_add_u32 s67, s67, s68')
                a('s_mul_i32 s67, s67, 1280')
                a('s_lshl_b32 s68, s61, 7')
                a('s_add_u32 s67, s67, s68')
                for i in range(2):
                    a(f'buffer_load_dwordx4 v94, {sr(SRD_B)}, s67 offen lds')
                    a('s_add_u32 m0, m0, 1024')
                    if i == 0: a(f's_add_u32 s67, s67, {8*1280}')
        a('s_waitcnt vmcnt(16)')
        a(f's_branch {Ldone}')
        a(f'{Lnone}:')
        a('s_waitcnt vmcnt(0)')
        a(f'{Ldone}:')

    def prep_compute3(self):
        a = self.a
        Lw2 = a.label('Lqw2'); Ldone = a.label('Lqdone')
        a('s_waitcnt vmcnt(0)')
        a('v_lshrrev_b32 v90, 4, v2')
        a('v_bfe_u32 v91, v2, 2, 2')
        a('v_and_b32 v92, 3, v2')
        a('v_lshlrev_b32 v93, 4, v2')
        a('s_cmp_lt_u32 s60, 48')
        a(f's_cbranch_scc0 {Lw2}')
        a('v_lshl_add_u32 v94, v90, 3, v91')
        a('v_mul_u32_u24 v94, 224, v94')
        a('v_lshl_add_u32 v94, v92, 3, v94')
        a('v_add_u32 v94, s61, v94')
        a('s_mov_b32 s70, 0x3f803f80')
        a('v_and_b32 v95, 15, v2')
        a('v_cmp_lt_u32 s[68:69], 11, v95')
        a('v_cmp_eq_u32 vcc, 12, v95')
        a('v_mov_b32 v96, 0'); a('v_mov_b32 v97, s70')
        a('v_cndmask_b32 v96, v96, v97, vcc')
        a('s_mul_i32 s66, s64, 143360')
        a('s_mul_i32 s67, s62, 7168')
        a('s_add_u32 s66, s66, s67')
        a(f's_add_u32 s66, s66, {W1F}')
        for t in range(7): a(f'v_mov_b32 v{120+t}, 0')
        Lk3 = a.label('Lk3')
        for kk in range(2):
            a(f's_cmp_lt_i32 s63, {kk+1}'); a(f's_cbranch_scc1 {Lk3}')
            for t in range(7):
                R = 128 + 4 * t
                a(f'ds_read_b64_tr_b16 {vr(R,2)}, v94 offset:{kk*32*224+t*32}')
                a(f'ds_read_b64_tr_b16 {vr(R+2,2)}, v94 offset:{kk*32*224+t*32+4*224}')
            a(f's_add_u32 s67, s66, {kk*7168}')
            for t in range(7):
                R = 128 + 4 * t
                a(f's_waitcnt lgkmcnt({2*(6-t)})')
                if t == 6:
                    for j in range(4):
                        a(f'v_cndmask_b32 v{R+j}, v{R+j}, v96, s[68:69]')
                if t == 4: a('s_add_u32 s67, s67, 4096')
                a(f'buffer_store_dwordx4 {vr(R,4)}, v93, {sr(SRD_WS)}, s67 offen offset:{(t%4)*1024} sc1')
                for j in range(4):
                    a(f'v_dot2_f32_bf16 v{120+t}, v{R+j}, s70, v{120+t}')
        a(f'{Lk3}:')
        for t in range(7):
            S = 120 + t
            a(f'v_mov_b32 v98, v{S}')
            a(f'v_permlane16_swap_b32 v{S}, v98')
            a(f'v_add_f32 v{S}, v{S}, v98')
            a(f'v_mov_b32 v98, v{S}')
            a(f'v_permlane32_swap_b32 v{S}, v98')
            a(f'v_add_f32 v{S}, v{S}, v98')
        SB = self.LDSP + 8 * 32 * 224
        a('v_lshlrev_b32 v98, 2, v95')
        a(f's_mul_i32 s66, s{sWAVE}, 448')
        a(f's_add_u32 s66, s66, {SB}')
        a('v_add_u32 v97, s66, v98')
        for t in range(7):
            a(f'ds_write_b32 v97, v{120+t} offset:{64*t}')
        a('s_waitcnt lgkmcnt(0)')
        a('s_barrier')
        a('v_lshlrev_b32 v97, 2, v0')
        a(f'v_add_u32 v98, {SB}, v97')
        for w in range(4):
            a(f'ds_read_b32 v{120+w}, v98 offset:{448*w}')
        a('s_mul_i32 s66, s64, 448')
        a('s_mul_i32 s67, s65, 7168')
        a('s_add_u32 s66, s66, s67')
        a(f's_add_u32 s66, s66, {SP}')
        a('s_waitcnt lgkmcnt(0)')
        a('v_add_f32 v120, v120, v121'); a('v_add_f32 v122, v122, v123'); a('v_add_f32 v120, v120, v122')
        a('v_cmp_gt_u32 vcc, 112, v0')
        Ls = a.label('Lsp')
        a('s_and_saveexec_b64 s[68:69], vcc')
        a(f's_cbranch_execz {Ls}')
        a(f'buffer_store_dword v120, v97, {sr(SRD_WS)}, s66 offen sc1')
        a(f'{Ls}:')
        a('s_mov_b64 exec, s[68:69]')
        a(f's_branch {Ldone}')
        a(f'{Lw2}:')
        a('s_cmp_lt_u32 s60, 83')
        a(f's_cbranch_scc0 {Ldone}')
        a('v_lshl_add_u32 v94, v90, 2, v91')
        a('v_lshlrev_b32 v94, 7, v94')
        a('v_lshl_add_u32 v94, v92, 3, v94')
        a('v_add_u32 v94, s63, v94')
        a('v_cmp_eq_u32 s[68:69], 3, v90')
        for kk in range(4):
            a('s_lshl_b32 s64, s62, 2')
            a(f's_add_u32 s64, s64, {kk}')
            a('s_mul_i32 s65, s64, 9363')
            a('s_lshr_b32 s65, s65, 16')
            a('s_mul_i32 s66, s65, 7')
            a('s_sub_u32 s66, s64, s66')
            RB = 100 + 16 * (kk & 1)
            for tt in range(4):
                R = RB + 4 * tt
                a(f'ds_read_b64_tr_b16 {vr(R,2)}, v94 offset:{kk*4096+tt*32}')
                a(f'ds_read_b64_tr_b16 {vr(R+2,2)}, v94 offset:{kk*4096+tt*32+2048}')
            Lnz = a.label('Lnz')
            a('s_waitcnt lgkmcnt(0)')
            a('s_cmp_eq_u32 s66, 3')
            a(f's_cbranch_scc0 {Lnz}')
            for tt in range(4):
                for j in range(4):
                    a(f'v_cndmask_b32 v{RB+4*tt+j}, v{RB+4*tt+j}, 0, s[68:69]')
            a(f'{Lnz}:')
            for tt in range(4):
                a('s_lshl_b32 s65, s61, 2')
                a(f's_add_u32 s65, s65, {tt}')
                a('s_mul_i32 s67, s65, 13108')
                a('s_lshr_b32 s67, s67, 16')
                a('s_mul_i32 s70, s67, 5')
                a('s_sub_u32 s70, s65, s70')
                a(f's_mul_i32 s67, s67, {NK2}')
                a('s_add_u32 s67, s67, s64')
                a('s_mul_i32 s67, s67, 5')
                a('s_add_u32 s67, s67, s70')
                a('s_lshl_b32 s67, s67, 10')
                a(f's_add_u32 s67, s67, {W2F}')
                a(f'buffer_store_dwordx4 {vr(RB+4*tt,4)}, v93, {sr(SRD_WS)}, s67 offen sc1')
        a(f'{Ldone}:')

    def w1_lds(self, idx):
        WS = self.WSTRIDE
        if idx < 44:
            return (idx // 11) * WS + 18176 + (idx % 11) * 1024
        if idx < 49:
            return 157952 + (idx - 44) * 1024
        j = idx - 49
        if j < 68:
            return (j // 17) * WS + (j % 17) * 1024
        return self.UXB + (j - 68) * 1024

    def pref_setup(self):
        a = self.a
        a('s_mul_i32 s76, s67, 143360')
        a(f's_add_u32 s76, s76, {W1F}')
        a(f's_mul_i32 s75, s{sWAVE}, {self.WSTRIDE}')
        a('v_lshlrev_b32 v3, 4, v2')
        a(f's_mul_i32 s77, s{sWAVE}, {11*1024}')
        a('s_add_u32 s77, s77, s76')
        a(f's_mul_i32 s78, s{sWAVE}, {17*1024}')
        a('s_add_u32 s78, s78, s76')
        a(f's_add_u32 s78, s78, {49*1024}')
        a(f's_lshl_b32 s82, s{sWAVE}, 10')

    def dma(self, m0expr, soff):
        a = self.a
        for l in m0expr: a(l)
        for l in soff: a(l)
        a(f'buffer_load_dwordx4 v3, {sr(SRD_WS)}, s5 offen sc1 lds')

    def w1A(self, j):
        self.dma([f's_add_u32 m0, s75, {18176 + 1024*j}'], [f's_add_u32 s5, s77, {1024*j}'])
    def w1T(self):
        self.dma([f's_add_u32 m0, s82, 157952'], [f's_add_u32 s5, s76, s82', f's_add_u32 s5, s5, {44*1024}'])
    def w1T2(self):
        self.dma([f's_mov_b32 m0, {157952 + 4096}'], [f's_add_u32 s5, s76, {48*1024}'])
    def w1B(self, i):
        self.dma([f's_add_u32 m0, s75, {1024*i}'], [f's_add_u32 s5, s78, {1024*i}'])
    def w1C(self, i):
        a = self.a
        if i < 5:
            self.dma([f's_add_u32 m0, s82, {self.UXB + 4096*i}'], [f's_add_u32 s5, s76, s82', f's_add_u32 s5, s5, {(117+4*i)*1024}'])
        else:
            L = a.label('Lw1c')
            a(f's_cmp_eq_u32 s{sWAVE}, 3'); a(f's_cbranch_scc1 {L}')
            self.dma([f's_add_u32 m0, s82, {self.UXB + 4096*i}'], [f's_add_u32 s5, s76, s82', f's_add_u32 s5, s5, {(117+4*i)*1024}'])
            a(f'{L}:')

    def list_conv(self):
        L = [lambda j=j: self.w1A(j) for j in range(11)] + [self.w1T, self.w1T2]
        W = [lambda i=i: self.w2_load(i) for i in range(self.NW2_CONV)]
        out = []
        while L or W:
            if L: out.append(L.pop(0))
            for _ in range(3):
                if W: out.append(W.pop(0))
        return out

    def list_e2(self):
        return [lambda i=i: self.w1B(i) for i in range(17)] + [lambda i=i: self.w1C(i) for i in range(6)]

    def l2_warm(self):
        a = self.a
        a('s_sub_u32 s5, s2, 160'); a('s_lshr_b32 s5, s5, 3'); a('s_lshl_b32 s5, s5, 2'); a(f's_add_u32 s5, s5, s{sWAVE}')
        a('s_mul_i32 s6, s5, %d' % (24 * 1024))
        a('s_and_b32 s7, s2, 1'); a(f's_mul_i32 s7, s7, {8*143360}')
        a('s_add_u32 s6, s6, s7'); a(f's_add_u32 s6, s6, {W1F}')
        a(f's_add_u32 s7, s7, {W1F + 8*143360 - 1024}')
        for i in range(24):
            a('s_min_u32 s62, s6, s7')
            a(f'buffer_load_dwordx4 {vr(112+4*(i%16),4)}, v3, {sr(SRD_WS)}, s62 offen sc1')
            a('s_add_u32 s6, s6, 1024')

    def flag_store_only(self, base):
        a = self.a
        L = a.label('Lsig')
        a(f's_cmp_eq_u32 s{sWAVE}, 0')
        a(f's_cbranch_scc0 {L}')
        a('v_lshlrev_b32 v5, 10, v2')
        a('s_lshl_b32 s5, s2, 2')
        a(f's_add_u32 s5, s5, {base}')
        a('v_mov_b32 v4, s83')
        a('s_mov_b64 exec, 0xff')
        a(f'buffer_store_dword v4, v5, {sr(SRD_WS)}, s5 offen sc1')
        a('s_mov_b64 exec, -1')
        a(f'{L}:')

    SBL = 121088 + 24576
    def sb_stage(self):
        a = self.a
        L = a.label('Lsb')
        a(f's_cmp_eq_u32 s{sWAVE}, 1'); a(f's_cbranch_scc0 {L}')
        a('s_mov_b32 exec_hi, 0x00ffffff')
        a('v_lshlrev_b32 v94, 3, v2')
        a('s_mul_i32 s80, s67, 448')
        a(f's_add_u32 s80, s80, {SP}')
        for part in range(3):
            a(f'buffer_load_dwordx2 {vr(64+2*part,2)}, v94, {sr(SRD_WS)}, s80 offen sc1')
            if part < 2: a('s_add_u32 s80, s80, 7168')
        self.srd(SRD_B, P_B1, 1728 * 2)
        a('s_mul_i32 s81, s67, 216')
        a('v_lshlrev_b32 v95, 2, v2')
        a(f'buffer_load_dword v70, v95, {sr(SRD_B)}, s81 offen')
        a(f'v_add_u32 v94, {self.SBL}, v94')
        a('s_waitcnt vmcnt(0)')
        a('v_pk_add_f32 v[64:65], v[64:65], v[66:67]')
        a('v_pk_add_f32 v[64:65], v[64:65], v[68:69]')
        a('v_lshlrev_b32 v72, 16, v70')
        a('v_and_b32 v73, 0xffff0000, v70')
        a('ds_write_b64 v94, v[64:65]')
        a('ds_write_b64 v94, v[72:73] offset:448')
        a('s_waitcnt lgkmcnt(0)')
        a('s_mov_b64 exec, -1')
        a(f'{L}:')

    def pfl_issue(self):
        a = self.a
        a('v_lshlrev_b32 v7, 4, v2')
        a('s_and_b32 s5, s2, 7')
        a('s_lshl_b32 s5, s5, 10')
        a(f's_add_u32 s5, s5, {PFL}')
        a(f'buffer_load_dwordx4 v[8:11], v7, {sr(SRD_WS)}, s5 offen sc1')

    def pfl_check(self, first=0):
        a = self.a
        Lp = a.label('Lpf'); Lc = a.label('Lpfc'); Ld = a.label('Lpfd')
        m = ((1 << 61) - 1) ^ ((1 << 40) - 1)
        a(f's_mov_b32 s62, {m & 0xffffffff:#x}'); a(f's_mov_b32 s63, {m >> 32:#x}')
        a('s_mov_b32 s6, 0')
        a(f's_waitcnt vmcnt({first})')
        a(f's_branch {Lc}')
        a(f'{Lp}:')
        a('s_sleep 2')
        self.pfl_issue()
        a('s_waitcnt vmcnt(0)')
        a(f'{Lc}:')
        a('v_xor_b32 v8, s83, v8'); a('v_xor_b32 v9, s83, v9'); a('v_xor_b32 v10, s83, v10'); a('v_xor_b32 v11, s83, v11')
        a('v_or_b32 v8, v8, v9')
        a('v_or3_b32 v8, v8, v10, v11')
        a('v_cmp_ne_u32 vcc, 0, v8')
        a('s_and_b64 vcc, vcc, s[62:63]')
        a(f's_cbranch_vccz {Ld}')
        a('s_add_u32 s6, s6, 1')
        a('s_cmp_lt_u32 s6, 0x40000')
        a(f's_cbranch_scc1 {Lp}')
        a(f'{Ld}:')

    CONV_RATE = 4
    EXACT = 0
    EXACT_LN = 1
    UGATE = 1
    SPLITC = 1
    PREPLATE = 0
    EARLYUX = 1
    WARM = 0
    CONV_FROM = 1
    UD = 108
    def xreg(self, i):
        return 228 + i if i < 28 else 140 + (i - 28)

    def conv_main(self, pref=None, pref_from=8):
        a = self.a
        P = self.PL
        ACC = 12
        bufA = [44, 164]; bufB = [76, 196]
        pref = list(pref or [])
        def reads(b):
            sel = b & 1
            lst = []
            for aa in range(8):
                off = 512 * (7 - aa) + 64 * (7 - b)
                lst.append(f'ds_read_b64 {vr(bufA[sel]+4*aa,2)}, v{self.VA} offset:{off}')
                lst.append(f'ds_read_b64 {vr(bufA[sel]+4*aa+2,2)}, v{self.VA} offset:{off+8}')
            for e in range(8):
                lst.append(f'ds_read_b128 {vr(bufB[sel]+4*e,4)}, v{self.VB+b} offset:{4096*e}')
            order = []
            for k in range(8):
                order += [lst[2*k], lst[2*k+1], lst[16+k]]
            return order
        for r in reads(0): a(r)
        a(f'v_xor_b32 v4, 16, v{self.VEU}')
        a(f'v_lshlrev_b32 v6, 16, v{P+5}')
        side_rd = []
        for t in range(8):
            side_rd.append(f'ds_read_b64 {vr(self.UD+4*t+2,2)}, v{self.VEU} offset:{4096*t}')
            side_rd.append(f'ds_read_b64 {vr(self.xreg(4*t+2),2)}, v4 offset:{4096*t}')
        side = []
        for t in range(8):
            U = self.UD + 4 * t
            X = [self.xreg(4 * t + j) for j in range(4)]
            side += [f'v_lshlrev_b32 v{U}, 16, v{U+2}', f'v_and_b32 v{U+1}, 0xffff0000, v{U+2}',
                     f'v_lshlrev_b32 v{U+2}, 16, v{U+3}', f'v_and_b32 v{U+3}, 0xffff0000, v{U+3}']
            side += [f'v_lshlrev_b32 v{X[0]}, 16, v{X[2]}', f'v_and_b32 v{X[1]}, 0xffff0000, v{X[2]}',
                     f'v_lshlrev_b32 v{X[2]}, 16, v{X[3]}', f'v_and_b32 v{X[3]}, 0xffff0000, v{X[3]}']
            if self.EXACT:
                side += [f'v_mul_f32 v{U+j}, v{U+j}, v6' for j in range(4)]
                side += [f'v_cvt_pk_bf16_f32 v{U+1}, v{U}, v{U+1}', f'v_cvt_pk_bf16_f32 v{U+3}, v{U+2}, v{U+3}',
                         f'v_lshlrev_b32 v{U}, 16, v{U+1}', f'v_and_b32 v{U+1}, 0xffff0000, v{U+1}',
                         f'v_lshlrev_b32 v{U+2}, 16, v{U+3}', f'v_and_b32 v{U+3}, 0xffff0000, v{U+3}']
            else:
                side += [f'v_fma_f32 v{U+j}, v{U+j}, v6, v{X[j]}' for j in range(4)]
        cnt = 0
        for b in range(8):
            sel = b & 1
            nxt = reads(b + 1) if b < 7 else []
            if b == 0: nxt = nxt + side_rd[:12]
            if b == 1: nxt = nxt + side_rd[12:]
            if b == pref_from and pref: self.pfl_check()
            a('s_waitcnt lgkmcnt(0)')
            n = 0
            for aa in range(8):
                for e in range(8 - aa):
                    t = aa + e
                    c = '0' if (b == 0 and aa == 0) else vr(ACC + 4 * t, 4)
                    a(f'v_mfma_f32_16x16x32_bf16 {vr(ACC+4*t,4)}, {vr(bufA[sel]+4*aa,4)}, {vr(bufB[sel]+4*e,4)}, {c}')
                    if n < len(nxt): a(nxt[n])
                    n += 1
                    if b >= 2 and side: a(side.pop(0))
                    if b >= pref_from:
                        cnt += 1
                        if cnt % self.CONV_RATE == 0 and pref: pref.pop(0)()
        assert not pref and not side

    def conv_epilogue(self, pref=None):
        a = self.a
        ACC = 12
        pref = list(pref or [])
        a('s_mov_b32 s70, 0x00003f80')
        a('s_mov_b32 s71, 0x3f800000')
        a('v_bfe_u32 v4, v2, 2, 2')
        a(f'v_mul_u32_u24 v4, {self.WSTRIDE}, v4')
        a('v_lshrrev_b32 v5, 4, v2')
        a('v_lshl_add_u32 v4, v5, 5, v4')
        a('v_and_b32 v6, 3, v2')
        a('v_lshl_add_u32 v4, v6, 3, v4')
        a(f's_lshl_b32 s5, s{sWAVE}, 10')
        a('v_add_u32 v4, s5, v4')
        a('v_mul_u32_u24 v5, 20480, v5')
        a('v_and_b32 v6, 15, v2')
        a('v_lshl_add_u32 v5, v6, 4, v5')
        a(f's_mul_i32 s62, s{sWAVE}, {8*81920}')
        a('s_lshr_b32 s6, s2, 3')
        a('s_lshl_b32 s6, s6, 10')
        a('s_add_u32 s62, s62, s6')
        a('s_bfe_u32 s6, s2, 0x20001')
        a('s_lshl_b32 s6, s6, 8')
        a('s_add_u32 s62, s62, s6')
        a('s_and_b32 s6, s2, 1')
        a('s_lshl_b32 s6, s6, 3')
        a('s_add_u32 s62, s62, s6')
        a(f's_add_u32 s62, s62, {HF}')
        for tp in range(4):
            P = [(2 * tp + tt, h) for tt in range(2) for h in range(2)]
            Y = {p: ACC + 4 * p[0] + 2 * p[1] for p in P}
            T = {p: 44 + i for i, p in enumerate(P)}
            U = {p: self.UD + 4 * p[0] + 2 * p[1] for p in P}
            X = {p: self.xreg(4 * p[0] + 2 * p[1]) for p in P}
            O = {p: 80 + 2 * p[0] + p[1] for p in P}
            def step(f):
                for p in P: a(f(p))
            if self.EXACT:
                step(lambda p: f'v_cvt_pk_bf16_f32 v{T[p]}, v{Y[p]}, v{Y[p]+1}')
                step(lambda p: f'v_dot2_f32_bf16 v{Y[p]}, v{T[p]}, s70, v{U[p]}')
                step(lambda p: f'v_dot2_f32_bf16 v{Y[p]+1}, v{T[p]}, s71, v{U[p]+1}')
                step(lambda p: f'v_cvt_pk_bf16_f32 v{T[p]}, v{Y[p]}, v{Y[p]+1}')
                step(lambda p: f'v_dot2_f32_bf16 v{Y[p]}, v{T[p]}, s70, v{X[p]}')
                step(lambda p: f'v_dot2_f32_bf16 v{Y[p]+1}, v{T[p]}, s71, v{X[p]+1}')
            else:
                step(lambda p: f'v_pk_add_f32 {vr(Y[p],2)}, {vr(Y[p],2)}, {vr(U[p],2)}')
            step(lambda p: f'v_cvt_pk_bf16_f32 v{O[p]}, v{Y[p]}, v{Y[p]+1}')
            for tt in range(2):
                tq = 2 * tp + tt
                a(f'ds_write_b64 v{self.VHW}, {vr(80+2*tq,2)} offset:{512*tq}')
            for _ in range(self.CEP_PER):
                if pref: pref.pop(0)()
        self.stamp('cep1')
        a('s_waitcnt lgkmcnt(0)')
        a('s_barrier')
        for m in range(8):
            a(f'ds_read_b64_tr_b16 {vr(44+2*m,2)}, v4 offset:{128*m}')
        for m in range(8):
            a(f's_waitcnt lgkmcnt({7-m})')
            a(f'buffer_store_dwordx2 {vr(44+2*m,2)}, v5, {sr(SRD_WS)}, s62 offen sc1')
            if m < 7: a('s_add_u32 s62, s62, 81920')
    CEP_PER = 0


    def b1_issue(self):
        a = self.a
        a('v_lshlrev_b32 v99, 4, v2')
        a('s_and_b32 s5, s2, 7')
        a('s_lshl_b32 s5, s5, 10')
        a(f's_add_u32 s5, s5, {BFL1}')
        a(f'buffer_load_dwordx4 v[228:231], v99, {sr(SRD_WS)}, s5 offen sc1')
    def b1_check_ux_issue(self):
        a = self.a
        Lp = a.label('Lb1p'); Lc = a.label('Lb1c'); Ld = a.label('Lb1d')
        a('s_mov_b32 s7, 0')
        a('s_waitcnt vmcnt(0)')
        a(f's_branch {Lc}')
        a(f'{Lp}:')
        a('s_sleep 1')
        self.b1_issue()
        a('s_waitcnt vmcnt(0)')
        a(f'{Lc}:')
        for j in range(4): a(f'v_xor_b32 v{228+j}, s83, v{228+j}')
        a('v_or_b32 v228, v228, v229')
        a('v_or3_b32 v228, v228, v230, v231')
        a('v_cmp_ne_u32 vcc, 0, v228')
        a(f's_cbranch_vccz {Ld}')
        a('s_add_u32 s7, s7, 1')
        a('s_cmp_lt_u32 s7, 0x40000')
        a(f's_cbranch_scc1 {Lp}')
        a(f'{Ld}:')
        R = 164
        a('v_lshrrev_b32 v232, 3, v2')
        a('v_mul_u32_u24 v233, 20480, v232')
        a('v_and_b32 v234, 7, v2')
        a('v_lshl_add_u32 v233, v234, 4, v233')
        a(f's_mul_i32 s5, s{sWAVE}, {64*20480}')
        a('s_lshl_b32 s7, s2, 7')
        a('s_add_u32 s5, s5, s7')
        for k in range(8):
            a(f'buffer_load_dwordx4 {vr(R+4*k,4)}, v233, {sr(SRD_WS)}, s5 offen sc1')
            if k < 7: a(f's_add_u32 s5, s5, {8*20480}')
    def ux_write(self):
        a = self.a
        R = 164
        a('v_lshrrev_b32 v4, 3, v2')
        a('v_and_b32 v6, 7, v2')
        a('v_lshrrev_b32 v7, 4, v2')
        a('v_xor_b32 v8, v6, v7')
        a('v_xor_b32 v9, 4, v8')
        a('v_lshlrev_b32 v4, 7, v4')
        a(f's_lshl_b32 s6, s{sWAVE}, 13')
        a(f's_add_u32 s6, s6, {self.UXB + 4096}')
        a('v_add_u32 v4, s6, v4')
        a('v_lshl_add_u32 v8, v8, 4, v4')
        a('v_lshl_add_u32 v9, v9, 4, v4')
        for k in range(8):
            a(f's_waitcnt vmcnt({7-k})')
            a(f'ds_write_b128 v{8 + (k&1)}, {vr(R+4*k,4)} offset:{k*1024}')
        a('s_waitcnt lgkmcnt(0)')
        a('s_barrier')

    def w1_dma_all(self):
        a = self.a
        a('v_lshlrev_b32 v3, 4, v2')
        a('s_mul_i32 s76, s67, 143360')
        a(f's_lshl_b32 s6, s{sWAVE}, 10')
        a('s_add_u32 s76, s76, s6')
        a(f's_add_u32 s76, s76, {W1F}')
        a('s_mov_b32 m0, s6')
        for i in range(35):
            a(f'buffer_load_dwordx4 v3, {sr(SRD_WS)}, s76 offen sc1 lds')
            if i < 34:
                a('s_add_u32 m0, m0, 4096')
                a('s_add_u32 s76, s76, 4096')
        a('v_lshrrev_b32 v94, 4, v2')
        a('v_lshlrev_b32 v94, 4, v94')
        a('s_mul_i32 s80, s67, 448')
        a(f's_add_u32 s80, s80, {SP}')
        for t in range(7):
            a(f'buffer_load_dwordx4 {vr(64+4*t,4)}, v94, {sr(SRD_WS)}, s80 offen offset:{64*t} sc1')

    def w2_load(self, idx):
        a = self.a
        off = idx * 1024
        a(f's_add_u32 s5, s79, {(off // 4096) * 4096}')
        a(f'buffer_load_dwordx4 {self.w2reg(idx)}, v3, {sr(SRD_WS)}, s5 offen offset:{off % 4096} sc1')


    def p3_epilogue(self):
        a = self.a
        ACC = 8
        a('v_lshrrev_b32 v5, 4, v2')
        a('v_lshlrev_b32 v6, 4, v5')
        a(f'v_add_u32 v6, {self.SBL}, v6')
        for t in range(7):
            a(f'ds_read_b128 {vr(64+4*t,4)}, v6 offset:{64*t}')
            a(f'ds_read_b128 {vr(124+4*t,4)}, v6 offset:{448+64*t}')
        a('v_and_b32 v4, 15, v2')
        a('v_cmp_eq_u32 s[62:63], 3, v5')
        a('v_lshrrev_b32 v6, 2, v4')
        a('v_cmp_eq_u32 s[64:65], v6, v5')
        a('v_and_b32 v6, 3, v4')
        a('v_cmp_eq_u32 s[68:69], 1, v6')
        a('v_cmp_eq_u32 s[70:71], 2, v6')
        a('v_cmp_eq_u32 vcc, 3, v6')
        for lt in range(2):
            S_ = 112 + 2 * lt; Q_ = 113 + 2 * lt
            acc = ACC + (6 * 2 + lt) * 4
            B = 96 + 4 * lt
            for j in range(4):
                a(f'v_accvgpr_read_b32 v{B+j}, a{self.GRAM+4*lt+j}')
            a(f'v_cndmask_b32 v{S_}, 0, v{acc}, s[62:63]')
            a(f'v_cndmask_b32 v{B}, v{B}, v{B+1}, s[68:69]')
            a(f'v_cndmask_b32 v{B}, v{B}, v{B+2}, s[70:71]')
            a(f'v_cndmask_b32 v{B}, v{B}, v{B+3}, vcc')
            a(f'v_cndmask_b32 v{Q_}, 0, v{B}, s[64:65]')
        for rnd in ('16', '32'):
            for k, v in enumerate((112, 113, 114, 115)):
                a(f'v_mov_b32 v{104+k}, v{v}')
            for k, v in enumerate((112, 113, 114, 115)):
                a(f'v_permlane{rnd}_swap_b32 v{v}, v{104+k}')
            for k, v in enumerate((112, 113, 114, 115)):
                a(f'v_add_f32 v{v}, v{v}, v{104+k}')
        def both(f):
            for lt in range(2): f(112 + 2 * lt, 113 + 2 * lt, lt)
        both(lambda s_, q_, lt: a(f'v_mul_f32 v{s_}, {f2u(1.0/640):#x}, v{s_}'))
        both(lambda s_, q_, lt: a(f'v_mul_f32 v{q_}, {f2u(1.0/640):#x}, v{q_}'))
        both(lambda s_, q_, lt: a(f'v_fma_f32 v{q_}, -v{s_}, v{s_}, v{q_}'))
        both(lambda s_, q_, lt: a(f'v_max_f32 v{q_}, 0, v{q_}'))
        both(lambda s_, q_, lt: a(f'v_cvt_pk_bf16_f32 v{q_}, v{q_}, v{s_}'))
        both(lambda s_, q_, lt: a(f'v_and_b32 v{s_}, 0xffff0000, v{q_}'))
        both(lambda s_, q_, lt: a(f'v_lshlrev_b32 v{q_}, 16, v{q_}'))
        both(lambda s_, q_, lt: a(f'v_add_f32 v{q_}, {f2u(1e-5):#x}, v{q_}'))
        both(lambda s_, q_, lt: self.bf16r(q_, q_))
        both(lambda s_, q_, lt: a(f'v_sqrt_f32 v{q_}, v{q_}'))
        both(lambda s_, q_, lt: self.bf16r(q_, q_))
        both(lambda s_, q_, lt: a(f'v_rcp_f32 v{116+4*lt}, v{q_}'))
        both(lambda s_, q_, lt: a(f'v_mov_b32 v{116+4*lt+2}, v{s_}'))
        both(lambda s_, q_, lt: a(f'v_mov_b32 v{116+4*lt+3}, v{s_}'))
        both(lambda s_, q_, lt: a(f'v_mov_b32 v{116+4*lt+1}, v{116+4*lt}'))
        OUT = 152
        def outreg(t, lt):
            if t < 6: return OUT + ((t >> 1) * 2 + lt) * 4 + (t & 1) * 2
            return OUT + 24 + lt * 2
        a('v_lshlrev_b32 v3, 4, v2')
        a('s_lshl_b32 s5, s66, 3')
        a(f's_lshl_b32 s6, s{sWAVE}, 1')
        a('s_add_u32 s5, s5, s6')
        a(f's_mul_i32 s5, s5, {NK2*1024}')
        a(f's_add_u32 s5, s5, {HH}')
        a('s_lshr_b32 s6, s67, 1'); a('s_mul_i32 s6, s6, 7')
        a('s_and_b32 s7, s67, 1')
        a('s_lshl_b32 s62, s7, 2'); a('s_add_u32 s62, s62, s6'); a('s_lshl_b32 s62, s62, 10'); a('s_add_u32 s62, s62, s5')
        a(f's_add_u32 s63, s62, {NK2*1024}')
        a('s_add_u32 s64, s6, 3'); a('s_lshl_b32 s64, s64, 10'); a('s_lshl_b32 s7, s7, 3'); a('s_add_u32 s64, s64, s7'); a('s_add_u32 s64, s64, s5')
        a(f's_add_u32 s65, s64, {NK2*1024}')
        a('s_mov_b32 s70, 0x00003f80')
        a('s_mov_b32 s71, 0x3f800000')
        a('s_waitcnt lgkmcnt(0)')
        for t in range(7):
            P = [(lt, h) for lt in range(2) for h in range(2)]
            X = {p: ACC + (t * 2 + p[0]) * 4 + 2 * p[1] for p in P}
            T = {p: 100 + i for i, p in enumerate(P)}
            def step(f):
                for p in P: a(f(p))
            S = lambda p: 64 + 4 * t + 2 * p[1]
            Bq = lambda p: 124 + 4 * t + 2 * p[1]
            R = lambda p: 116 + 4 * p[0]
            step(lambda p: f'v_pk_fma_f32 {vr(X[p],2)}, {vr(S(p),2)}, {vr(R(p)+2,2)}, {vr(X[p],2)} neg_lo:[1,0,0] neg_hi:[1,0,0]')
            if self.EXACT:
                step(lambda p: f'v_pk_mul_f32 {vr(X[p],2)}, {vr(X[p],2)}, {vr(R(p),2)}')
                step(lambda p: f'v_cvt_pk_bf16_f32 v{T[p]}, v{X[p]}, v{X[p]+1}')
                step(lambda p: f'v_dot2_f32_bf16 v{X[p]}, v{T[p]}, s70, v{Bq(p)}')
                step(lambda p: f'v_dot2_f32_bf16 v{X[p]+1}, v{T[p]}, s71, v{Bq(p)+1}')
                step(lambda p: f'v_cvt_pk_bf16_f32 v{T[p]}, v{X[p]}, v{X[p]+1}')
                step(lambda p: f'v_pk_max_i16 v{T[p]}, v{T[p]}, 0')
                step(lambda p: f'v_lshlrev_b32 v{X[p]}, 16, v{T[p]}')
                step(lambda p: f'v_and_b32 v{X[p]+1}, 0xffff0000, v{T[p]}')
            else:
                step(lambda p: f'v_pk_fma_f32 {vr(X[p],2)}, {vr(X[p],2)}, {vr(R(p),2)}, {vr(Bq(p),2)}')
                step(lambda p: f'v_max_f32 v{X[p]}, 0, v{X[p]}')
                step(lambda p: f'v_max_f32 v{X[p]+1}, 0, v{X[p]+1}')
            step(lambda p: f'v_pk_mul_f32 {vr(X[p],2)}, {vr(X[p],2)}, {vr(X[p],2)}')
            step(lambda p: f'v_cvt_pk_bf16_f32 v{outreg(t,p[0])+p[1]}, v{X[p]}, v{X[p]+1}')
            if t == 0:
                pass
            if t in (1, 3, 5):
                p_ = t >> 1
                for lt, sb in ((0, 's62'), (1, 's63')):
                    a(f'buffer_store_dwordx4 {vr(OUT+(p_*2+lt)*4,4)}, v3, {sr(SRD_WS)}, {sb} offen offset:{1024*p_} sc1')
        for lt, sb in ((0, 's64'), (1, 's65')):
            a(f'buffer_store_dwordx2 {vr(OUT+24+lt*2,2)}, v3, {sr(SRD_WS)}, {sb} offen sc1')


    P4_SLOTS = 7
    RES = 224
    def p4_pre_loads(self):
        a = self.a
        L = []
        def setup():
            self.srd(SRD_B, P_B2, 640 * 2)
            a('v_and_b32 v244, 15, v2')
            a('v_lshrrev_b32 v245, 4, v2')
            a('s_mul_i32 s62, s73, 20')
            a('s_lshl_b32 s63, s72, 2')
            a(f's_add_u32 s63, s63, s{sWAVE}')
            a('s_mul_i32 s63, s63, 20480')
            a(f's_add_u32 s63, s63, {HF}')
        def one(t):
            def f():
                if t == 0: setup()
                a(f'v_add_u32 v246, s62, v245')
                a(f'v_add_u32 v246, {4*t}, v246')
                a('v_lshrrev_b32 v247, 3, v246')
                a('v_lshlrev_b32 v247, 10, v247')
                a('v_bfe_u32 v248, v246, 1, 2')
                a('v_lshl_add_u32 v247, v248, 8, v247')
                a('v_and_b32 v248, 1, v246')
                a('v_lshl_add_u32 v247, v248, 3, v247')
                a('v_lshl_add_u32 v247, v244, 4, v247')
                a(f'buffer_load_dwordx2 {vr(self.RES+2*t,2)}, v247, {sr(SRD_WS)}, s63 offen sc1')
            return f
        def two(t):
            def f():
                a(f'v_add_u32 v246, s62, v245')
                a(f'v_add_u32 v246, {4*t}, v246')
                a('v_lshlrev_b32 v246, 3, v246')
                a(f'buffer_load_dwordx2 {vr(self.RES+10+2*t,2)}, v246, {sr(SRD_B)}, 0 offen')
            return f
        for t in range(5): L += [one(t), two(t)]
        return L

    def p4_epilogue(self):
        a = self.a
        ACC = 8
        a('v_lshlrev_b32 v3, 4, v2')
        a(f's_mul_i32 s5, s{sWAVE}, 20480')
        a('v_add_u32 v6, s5, v3')
        for lt in range(4):
            L = a.label('Lp4w')
            a(f's_cmp_eq_u32 s{sWAVE}, {lt}'); a(f's_cbranch_scc1 {L}')
            for t in range(5):
                a(f'ds_write_b128 v6, {vr(ACC+(t*4+lt)*4,4)} offset:{lt*5120+t*1024}')
            a(f'{L}:')
        Lend = a.label('Lp4o')
        for lt in range(4):
            L = a.label('Lp4c')
            a(f's_cmp_eq_u32 s{sWAVE}, {lt}'); a(f's_cbranch_scc0 {L}')
            for t in range(5):
                for h in range(2):
                    a(f'v_pk_mov_b32 {vr(112+4*t+2*h,2)}, {vr(ACC+(t*4+lt)*4+2*h,2)}, {vr(ACC+(t*4+lt)*4+2*h,2)} op_sel:[0,1]')
            a(f's_branch {Lend}')
            a(f'{L}:')
        a(f'{Lend}:')
        a('s_waitcnt lgkmcnt(0)')
        a('s_barrier')
        for k in range(1, 4):
            a(f's_add_u32 s5, s{sWAVE}, {k}'); a('s_and_b32 s5, s5, 3'); a('s_mul_i32 s5, s5, 20480')
            a(f's_mul_i32 s6, s{sWAVE}, 5120'); a('s_add_u32 s5, s5, s6')
            a(f'v_add_u32 v{4+k}, s5, v3')
        for t in range(5):
            for k in range(1, 4):
                a(f'ds_read_b128 {vr(132+(t*3+k-1)*4,4)}, v{4+k} offset:{t*1024}')
        for t in range(5):
            for h in range(2):
                b = self.RES + 10 + 2 * t + h; hh = self.RES + 2 * t + h
                a(f'v_lshlrev_b32 v{8+4*t+2*h}, 16, v{b}'); a(f'v_and_b32 v{8+4*t+2*h+1}, 0xffff0000, v{b}')
                a(f'v_lshlrev_b32 v{28+4*t+2*h}, 16, v{hh}'); a(f'v_and_b32 v{28+4*t+2*h+1}, 0xffff0000, v{hh}')
                if not self.EXACT:
                    a(f'v_pk_add_f32 {vr(112+4*t+2*h,2)}, {vr(112+4*t+2*h,2)}, {vr(8+4*t+2*h,2)}')
                    a(f'v_pk_add_f32 {vr(112+4*t+2*h,2)}, {vr(112+4*t+2*h,2)}, {vr(28+4*t+2*h,2)}')
        self.srd(SRD_A, P_OUT, 2048 * 1280)
        a('s_lshl_b32 s5, s72, 6')
        a(f's_lshl_b32 s6, s{sWAVE}, 4')
        a('s_add_u32 s5, s5, s6')
        a('s_mul_i32 s5, s5, 1280')
        a('s_mul_i32 s6, s73, 160')
        a('s_add_u32 s5, s5, s6')
        a('v_mul_u32_u24 v4, 1280, v244')
        a('v_lshl_add_u32 v4, v245, 3, v4')
        a('s_mov_b32 s70, 0x00003f80')
        a('s_mov_b32 s71, 0x3f800000')
        a('s_waitcnt lgkmcnt(0)')
        P = [(t, h) for t in range(5) for h in range(2)]
        X = {p: 112 + 4 * p[0] + 2 * p[1] for p in P}
        def step(f):
            for p in P: a(f(p))
        for k in range(3):
            step(lambda p: f'v_pk_add_f32 {vr(X[p],2)}, {vr(X[p],2)}, {vr(132+(p[0]*3+k)*4+2*p[1],2)}')
        T = {p: 48 + i for i, p in enumerate(P)}
        if self.EXACT:
            step(lambda p: f'v_cvt_pk_bf16_f32 v{T[p]}, v{X[p]}, v{X[p]+1}')
            step(lambda p: f'v_dot2_f32_bf16 v{X[p]}, v{T[p]}, s70, v{8+4*p[0]+2*p[1]}')
            step(lambda p: f'v_dot2_f32_bf16 v{X[p]+1}, v{T[p]}, s71, v{8+4*p[0]+2*p[1]+1}')
            step(lambda p: f'v_cvt_pk_bf16_f32 v{T[p]}, v{X[p]}, v{X[p]+1}')
            step(lambda p: f'v_dot2_f32_bf16 v{X[p]}, v{T[p]}, s70, v{28+4*p[0]+2*p[1]}')
            step(lambda p: f'v_dot2_f32_bf16 v{X[p]+1}, v{T[p]}, s71, v{28+4*p[0]+2*p[1]+1}')
        step(lambda p: f'v_cvt_pk_bf16_f32 v{60+2*p[0]+p[1]}, v{X[p]}, v{X[p]+1}')
        for t in range(5):
            a(f'buffer_store_dwordx2 {vr(60+2*t,2)}, v4, {sr(SRD_A)}, s5 offen offset:{32*t}')

    def p4_h_load1(self, kk, lt):
        a = self.a
        slot = kk % self.P4_SLOTS
        reg = vr(self.P4H + slot * 16 + lt * 4, 4)
        if kk < 4:
            a(f'buffer_load_dwordx4 {reg}, v3, {sr(SRD_WS)}, s{76+lt} offen offset:{kk*1024} sc1')
        else:
            a(f's_add_u32 s5, s{76+lt}, {(kk//4)*4096}')
            a(f'buffer_load_dwordx4 {reg}, v3, {sr(SRD_WS)}, s5 offen offset:{(kk%4)*1024} sc1')

    def p4_main(self):
        a = self.a
        ACC = 8
        AH = self.P4_SLOTS - 1
        for kk in range(AH):
            for lt in range(4): self.p4_h_load1(kk, lt)
        for kk in range(14):
            issued_to = min(AH - 1 + kk, 13)
            a(f's_waitcnt vmcnt({(issued_to - kk) * 4})')
            if kk in (0, 3, 7, 11): self.stamp(f'q{kk}')
            slot = kk % self.P4_SLOTS
            n = 0
            for t in range(5):
                for lt in range(4):
                    acc = ACC + (t * 4 + lt) * 4
                    c = '0' if kk == 0 else vr(acc, 4)
                    a(f'v_mfma_f32_16x16x32_bf16 {vr(acc,4)}, {self.w2reg(kk*5+t)}, {vr(self.P4H+slot*16+lt*4,4)}, {c}')
                    if n % 5 == 2 and kk + AH <= 13: self.p4_h_load1(kk + AH, n // 5)
                    n += 1


    P3_AHEAD = 5
    P3_NSLOT = 3
    @property
    def P3_SLOTPOS(self):
        return {2: (4, 10), 3: (3, 8, 12), 4: (2, 6, 9, 12)}[self.P3_NSLOT]
    NW2_P3 = 12
    NW2_CONV = 36
    NW2_MAIN = 48
    NW2_EPI = 0
    def p3_main3(self):
        a = self.a
        ACC = 8
        WB = [200, 228]
        a('v_lshlrev_b32 v3, 4, v2')
        a('v_add_u32 v92, 0x10000, v3')
        a('v_add_u32 v93, 0x20000, v3')
        a('s_lshl_b32 s77, s66, 3')
        a(f's_lshl_b32 s6, s{sWAVE}, 1')
        a('s_add_u32 s77, s77, s6')
        a('s_mul_i32 s77, s77, 20480')
        a(f's_add_u32 s77, s77, {HF}')
        a('s_add_u32 s78, s77, 20480')
        def rd(kap, t):
            off = self.w1_lds(kap * 7 + t)
            reg = ['v3', 'v92', 'v93'][off >> 16]
            return f'ds_read_b128 {ar(WB[kap&1]+4*t,4)}, {reg} offset:{off & 0xffff}'
        issued = []
        def hload(kap, lt):
            blk = kap // 4
            if blk == 0:
                a(f'buffer_load_dwordx4 {vr(self.P3H+(2*kap+lt)*4,4)}, v3, {sr(SRD_WS)}, s{77+lt} offen offset:{(kap%4)*1024} sc1')
            else:
                a(f's_add_u32 s5, s{77+lt}, {blk*4096}')
                a(f'buffer_load_dwordx4 {vr(self.P3H+(2*kap+lt)*4,4)}, v3, {sr(SRD_WS)}, s5 offen offset:{(kap%4)*1024} sc1')
            issued.append(('h', kap))
        AH = self.P3_AHEAD
        hq = [(kap, lt) for kap in range(20) for lt in range(2)]
        for _ in range(2 * AH):
            hload(*hq.pop(0))
        for t in range(7): a(rd(0, t))
        self.stamp('p3iss')
        misc = [('w', lambda idx=idx: self.w2_load(idx)) for idx in range(self.NW2_CONV, self.NW2_CONV + self.NW2_P3)]
        for kap in range(20):
            last = max(i for i, tg in enumerate(issued) if tg == ('h', kap))
            a(f's_waitcnt vmcnt({min(63, len(issued) - 1 - last)}) lgkmcnt(0)')
            if kap in (0, 4, 8, 12, 16): self.stamp(f'k{kap}')
            h0 = self.P3H + (2 * kap) * 4; h1 = h0 + 4
            extra = [rd(kap + 1, t) for t in range(7)] if kap < 19 else []
            n = 0
            def slot():
                if hq: hload(*hq.pop(0))
                elif misc:
                    tg, f = misc.pop(0); f(); issued.append((tg, 0))
            for t in range(7):
                for lt, h in ((0, h0), (1, h1)):
                    acc = ACC + (t * 2 + lt) * 4
                    c = '0' if kap == 0 else vr(acc, 4)
                    a(f'v_mfma_f32_16x16x32_bf16 {vr(acc,4)}, {ar(WB[kap&1]+4*t,4)}, {vr(h,4)}, {c}')
                    if extra and n >= 1: a(extra.pop(0))
                    if n in self.P3_SLOTPOS: slot()
                    n += 1
            for lt, h in ((0, h0), (1, h1)):
                g = self.GRAM + 4 * lt
                c = '0' if kap == 0 else ar(g, 4)
                a(f'v_mfma_f32_16x16x32_bf16 {ar(g,4)}, {vr(h,4)}, {vr(h,4)}, {c}')
                if lt == 0 and not hq: slot()
        while misc:
            tg, f = misc.pop(0); f(); issued.append((tg, 0))
        self.p3_w2_inflight = 63

def build():
    out = []
    kn = NAME + '_kernel'
    out.append(f'; @launch grid=(256,1,1) block=(256,1,1) lds={LDS_SIZE}')
    out.append('.amdgcn_target "amdgcn-amd-amdhsa--gfx950"')
    out.append('.text')
    g = G3(True); g.kname = 'f'; a = g.a
    if g.timing:
        for i in range(16): a(f's_mov_b32 s{86+i}, 0')
    g.stamp('start')
    g.prologue()
    g.ln1x_issue()
    g.epoch_issue()
    Laux = a.label('Laux'); Lp3 = a.label('Lp3')
    a('s_cmp_lt_u32 s2, 160'); a(f's_cbranch_scc0 {Laux}')
    g.kgen_issue()
    g.code_prefetch()
    if g.SPLITC:
        g.p2_consts(0)
        g.ln1x_compute(8)
        g.p2_consts(1)
    else:
        g.p2_consts()
        g.ln1x_compute(8)
    a('s_waitcnt vmcnt(12)')
    g.epoch_get()
    g.flag_signal(BFL1)
    g.stamp('ln1')
    g.ux_zero_pad()
    if g.EARLYUX:
        g.kg_hook1 = g.b1_issue
        g.kg_hook2 = g.b1_check_ux_issue
    g.kgen(0)
    g.p34_ids()
    g.w2_setup()
    g.pref_setup()
    g.stamp('kgen')
    if g.EARLYUX:
        g.ux_write()
    else:
        g.flag_wait(BFL1)
        g.stamp('B1')
        g.conv_load_ux()
    g.flag_store_only(UFL)
    g.pfl_issue()
    g.stamp('ux')
    if g.CONV_FROM >= 8:
        g.conv_main()
        g.stamp('conv')
        g.pfl_check()
        g.conv_epilogue()
        g.stamp('cep2')
        e1 = g.list_conv()
        for f in e1: f()
        a(f's_waitcnt vmcnt({len(e1)})')
        g.flag_signal(BFL2, drain=False)
    else:
        g.conv_main(g.list_conv(), pref_from=g.CONV_FROM)
        g.stamp('conv')
        g.conv_epilogue()
        g.stamp('cep2')
        g.flag_signal(BFL2)
    g.stamp('P2end')
    a(f's_branch {Lp3}')
    a(f'{Laux}:')
    g.code_prefetch()
    if g.PREPLATE == 2:
        g.ln1x_compute(0)
        g.epoch_get()
        g.flag_signal(BFL1)
        g.prep_issue3()
    elif g.PREPLATE:
        g.ln1x_compute(0)
        g.epoch_get()
        g.prep_issue3()
        g.flag_signal(BFL1, drain=False)
    else:
        g.ln1x_compute(2, g.prep_issue3)
        a('s_waitcnt vmcnt(0)')
        g.epoch_get()
        g.flag_signal(BFL1)
    g.stamp('ln1')
    g.prep_compute3()
    g.flag_signal(PFL)
    g.flag_signal(BFL2, drain=False)
    g.stamp('P2end')
    g.p34_ids()
    g.w2_setup()
    g.pref_setup()
    if g.UGATE: g.flag_wait(UFL, lanes=(0, 40))
    g.pfl_issue()
    g.pfl_check()
    if g.WARM: g.l2_warm()
    for f in g.list_conv(): f()
    a(f'{Lp3}:')
    g.sb_stage()
    g.flags_overlap(g.list_e2(), 16, BFL2, publish_epoch=True)
    g.stamp('B2')
    g.p3_main3()
    g.stamp('p3main')
    g.p3_epilogue()
    g.stamp('p3ep')
    rest = [i for i in range(g.NW2_CONV + g.NW2_P3, 70)]
    Lw0 = a.label('Lw0')
    g.row_signal_pre(a)
    a(f's_cmp_eq_u32 s{sWAVE}, 0'); a(f's_cbranch_scc0 {Lw0}')
    g.row_flag_store()
    a(f'{Lw0}:')
    g.row_overlap([lambda idx=idx: g.w2_load(idx) for idx in rest] + g.p4_pre_loads(), 16)
    g.stamp('B3')
    g.p4_h_setup()
    g.p4_main()
    g.stamp('p4main')
    g.p4_epilogue()
    g.stamp_flush(0)
    g.end()
    out.append(kernel_header(kn)); out += a.finalize()
    out.append('.section .rodata,"a"')
    out.append(kernel_desc(kn))
    return '\n'.join(out) + '\n'

def prep3(self):
    n0 = len(self.a.lines)
    self.prep()
    for i in range(n0, len(self.a.lines)):
        l = self.a.lines[i]
        if l.startswith('buffer_store') and 'sc1' not in l:
            self.a.lines[i] = l + ' sc1'
G3.prep3 = prep3

if __name__ == '__main__':
    dst = sys.argv[1]
    gen.TIMING = 'timing' in sys.argv[2:]
    for x in sys.argv[2:]:
        if x.startswith('set='): gen.STAMPSET = set(x[4:].split(','))
        if x.startswith('dbg='): gen.DBGSTAMP = int(x[4:])
    for x in sys.argv[2:]:
        if '=' in x and x.split('=')[0].isupper() or (x.split('=')[0].replace('_','').isalnum() and x.split('=')[0].upper() == x.split('=')[0] and '=' in x):
            k, v = x.split('='); setattr(G3, k, int(v))
    gen.HF = HF; gen.BLK = BLK; gen.HH = HH; gen.W1F = W1F; gen.W2F = W2F; gen.SP = SP
    s = build()
    open(dst, 'w').write(s)
    import shutil, os
    if gen.TIMING: shutil.copy('stamps_k0.txt', dst + '.tags')
    print('wrote', dst, len(s), 'bytes')
```

```python
import sys
sys.path.insert(0, 'work')
import gen, gen2, gen3
from gen import sr, vr, ar, f2u, sWAVE, SRD_A, SRD_WS, SRD_B, SRD_C, SRD_D
from gen import P_X, P_B1, P_B2, P_OUT
from gen import kernel_header, kernel_desc, NAME
from gen2 import BLK, HF, W1F, W2F, SP, HH, EPX, LDS_SIZE, NK2
from gen3 import G3, BFL1, PFL, UFL

BF2A = 0x2003000
BF2B = 0x200C000
RFA  = 0x2008000
RFB  = 0x2009000

class G4(G3):
    HT = 16640
    SBL = 162048

    def ln1x_recompute_addr(self):
        a = self.a
        a('v_lshrrev_b32 v3, 5, v0')
        a('v_and_b32 v4, 31, v0')
    PREPFIRST = 0
    def vm_reset(self): self.vm = []
    def vm(self): pass
    def vmi(self, tag): self.vmlist.append(tag)
    def vm_wait(self, pred, extra=''):
        last = max(i for i, t in enumerate(self.vmlist) if pred(t))
        n = len(self.vmlist) - 1 - last
        self.a(f's_waitcnt vmcnt({min(63, n)}){extra}')

    def w1_lds(self, idx):
        WS = self.WSTRIDE
        if idx < 44: return (idx % 4) * WS + 18688 + (idx // 4) * 1024
        if idx < 48: return 157952 + (idx - 44) * 1024
        if idx < 112:
            j = idx - 48
            return (j % 4) * WS + (j // 4) * 1024
        return self.UXB + (idx - 112) * 1024

    def pref_setup(self):
        a = self.a
        a('s_mul_i32 s76, s67, 143360')
        a(f's_add_u32 s76, s76, {W1F}')
        a(f's_mul_i32 s75, s{sWAVE}, {self.WSTRIDE}')
        a('v_lshlrev_b32 v3, 4, v2')
        a(f's_lshl_b32 s82, s{sWAVE}, 10')
        a('s_add_u32 s77, s76, s82')
    def w1A(self, j):
        self.dma([f's_add_u32 m0, s75, {18688 + 1024*j}'], [f's_add_u32 s5, s77, {4096*j}'])
    def w1T(self):
        self.dma([f's_add_u32 m0, s82, 157952'], [f's_add_u32 s5, s77, {44*1024}'])
    def w1T2(self):
        self.dma([f's_mov_b32 m0, {157952 + 4096}'], [f's_add_u32 s5, s76, {48*1024}'])
    def w1B(self, i):
        self.dma([f's_add_u32 m0, s75, {1024*i}'], [f's_add_u32 s5, s77, {48*1024 + 4096*i}'])
    def w1C(self, i):
        self.dma([f's_add_u32 m0, s82, {self.UXB + 4096*i}'], [f's_add_u32 s5, s77, {112*1024 + 4096*i}'])
    def list_late(self):
        return [lambda i=i: self.w1B(i) for i in range(16)] + [lambda i=i: self.w1C(i) for i in range(7)]

    def sb_issue(self):
        a = self.a
        a('v_lshlrev_b32 v35, 3, v2')
        a('s_mul_i32 s64, s67, 448')
        a(f's_add_u32 s64, s64, {SP}')
        for part in range(3):
            a(f'buffer_load_dwordx2 {vr(28+2*part,2)}, v35, {sr(SRD_WS)}, s64 offen sc1')
            if part < 2: a('s_add_u32 s64, s64, 7168')
        self.srd(SRD_B, P_B1, 1728 * 2)
        a('s_mul_i32 s64, s67, 216')
        a('v_lshlrev_b32 v36, 2, v2')
        a(f'buffer_load_dword v34, v36, {sr(SRD_B)}, s64 offen')
        return 4
    def sb_finish(self):
        a = self.a
        L = a.label('Lsb')
        a(f's_cmp_eq_u32 s{sWAVE}, 1'); a(f's_cbranch_scc0 {L}')
        a('s_mov_b32 exec_hi, 0x00ffffff')
        a('v_pk_add_f32 v[28:29], v[28:29], v[30:31]')
        a('v_pk_add_f32 v[28:29], v[28:29], v[32:33]')
        a('v_lshlrev_b32 v30, 16, v34')
        a('v_and_b32 v31, 0xffff0000, v34')
        a(f'v_add_u32 v35, {self.SBL}, v35')
        a('ds_write_b64 v35, v[28:29]')
        a('ds_write_b64 v35, v[30:31] offset:448')
        a('s_mov_b64 exec, -1')
        a(f'{L}:')

    def warm4(self):
        a = self.a
        a('s_sub_u32 s5, s2, 160'); a('s_lshr_b32 s5, s5, 3'); a('s_lshl_b32 s5, s5, 2'); a(f's_add_u32 s5, s5, s{sWAVE}')
        a('s_mul_i32 s6, s5, 10923'); a('s_lshr_b32 s6, s6, 16')
        a('s_mul_i32 s7, s6, 6'); a('s_sub_u32 s7, s5, s7')
        a('s_and_b32 s62, s2, 1'); a('s_lshl_b32 s62, s62, 3'); a('s_add_u32 s6, s6, s62')
        a('s_mul_i32 s6, s6, 143360'); a(f's_add_u32 s6, s6, {W1F}')
        a('s_add_u32 s63, s6, %d' % (139 * 1024))
        if self.WARM4 == 2:
            a('s_mul_i32 s7, s7, %d' % (24 * 1024)); a('s_add_u32 s6, s6, s7')
        else:
            a('s_lshl_b32 s7, s7, 14'); a('s_add_u32 s6, s6, s7'); a('s_add_u32 s6, s6, %d' % (48 * 1024))
        for i in range(24 if self.WARM4 == 2 else 16):
            a('s_min_u32 s62, s6, s63')
            a(f'buffer_load_dwordx4 {vr(176+4*(i%16),4)}, v3, {sr(SRD_WS)}, s62 offen sc1')
            a('s_add_u32 s6, s6, 1024')
        if self.WARM4 == 2:
            a('s_mul_i32 s6, s5, %d' % (47 * 1024))
            a(f's_add_u32 s6, s6, {W2F}')
            a(f's_mov_b32 s7, {W2F + 2240*1024 - 1024}')
            for i in range(47):
                a('s_min_u32 s62, s6, s7')
                a(f'buffer_load_dwordx4 {vr(176+4*(i%16),4)}, v3, {sr(SRD_WS)}, s62 offen sc1')
                a('s_add_u32 s6, s6, 1024')
            return
        L = a.label('Lwm')
        a('s_cmp_ge_u32 s5, 32'); a(f's_cbranch_scc1 {L}')
        a('s_lshr_b32 s6, s5, 2'); a(f's_mul_i32 s6, s6, {NK2}')
        a('s_and_b32 s7, s5, 3'); a('s_mul_i32 s7, s7, 14'); a('s_add_u32 s6, s6, s7')
        a('s_mul_i32 s6, s6, 5120'); a(f's_add_u32 s6, s6, {W2F + 48*1024}')
        for i in range(22):
            a(f'buffer_load_dwordx4 {vr(176+4*(i%16),4)}, v3, {sr(SRD_WS)}, s6 offen sc1')
            a('s_add_u32 s6, s6, 1024')
        a(f'{L}:')

    def fl_issue(self, base, D, A):
        a = self.a
        a(f'v_lshlrev_b32 v{A}, 4, v2')
        a('s_and_b32 s5, s2, 7')
        a('s_lshl_b32 s5, s5, 10')
        a(f's_add_u32 s5, s5, {base}')
        a(f'buffer_load_dwordx4 {vr(D,4)}, v{A}, {sr(SRD_WS)}, s5 offen sc1')
    def fl_check(self, base, D, A, lanes):
        a = self.a
        Lp = a.label('Lfp'); Lc = a.label('Lfc'); Ld = a.label('Lfd')
        lo, hi = lanes
        m = ((1 << hi) - 1) ^ ((1 << lo) - 1)
        a(f's_mov_b32 s62, {m & 0xffffffff:#x}'); a(f's_mov_b32 s63, {m >> 32:#x}')
        a('s_mov_b32 s7, 0')
        a(f's_branch {Lc}')
        a(f'{Lp}:')
        a('s_sleep 1')
        self.fl_issue(base, D, A)
        a('s_waitcnt vmcnt(0)')
        a(f'{Lc}:')
        for j in range(4): a(f'v_xor_b32 v{D+j}, s83, v{D+j}')
        a(f'v_or_b32 v{D}, v{D}, v{D+1}')
        a(f'v_or3_b32 v{D}, v{D}, v{D+2}, v{D+3}')
        a(f'v_cmp_ne_u32 vcc, 0, v{D}')
        a('s_and_b64 vcc, vcc, s[62:63]')
        a(f's_cbranch_vccz {Ld}')
        a('s_add_u32 s7, s7, 1')
        a('s_cmp_lt_u32 s7, 0x40000')
        a(f's_cbranch_scc1 {Lp}')
        a(f'{Ld}:')
    def row_issue(self, base, D, A):
        a = self.a
        a(f'v_and_b32 v{A}, 3, v2')
        a(f'v_lshlrev_b32 v{A}, 2, v{A}')
        a('s_lshr_b32 s5, s72, 1')
        a('s_lshl_b32 s5, s5, 7')
        a(f's_lshl_b32 s6, s{sWAVE}, 4')
        a('s_add_u32 s5, s5, s6')
        a(f's_add_u32 s5, s5, {base}')
        a(f'buffer_load_dword v{D}, v{A}, {sr(SRD_WS)}, s5 offen sc1')
    def row_check(self, base, D, A):
        a = self.a
        Lp = a.label('Lrp'); Lc = a.label('Lrc'); Ld = a.label('Lrd')
        a('s_mov_b32 s7, 0')
        a(f's_branch {Lc}')
        a(f'{Lp}:')
        a('s_sleep 1')
        self.row_issue(base, D, A)
        a('s_waitcnt vmcnt(0)')
        a(f'{Lc}:')
        a(f'v_cmp_ne_u32 vcc, s83, v{D}')
        a(f's_cbranch_vccz {Ld}')
        a('s_add_u32 s7, s7, 1')
        a('s_cmp_lt_u32 s7, 0x40000')
        a(f's_cbranch_scc1 {Lp}')
        a(f'{Ld}:')
    def wg_flag(self, base, D, A, only_conv=False):
        a = self.a
        L = a.label('Lsig')
        a(f's_cmp_eq_u32 s{sWAVE}, 0'); a(f's_cbranch_scc0 {L}')
        if only_conv:
            a('s_cmp_lt_u32 s2, 160'); a(f's_cbranch_scc0 {L}')
        a(f'v_lshlrev_b32 v{A}, 10, v2')
        a('s_lshl_b32 s5, s2, 2')
        a(f's_add_u32 s5, s5, {base}')
        a(f'v_mov_b32 v{D}, s83')
        a('s_mov_b64 exec, 0xff')
        a(f'buffer_store_dword v{D}, v{A}, {sr(SRD_WS)}, s5 offen sc1')
        a('s_mov_b64 exec, -1')
        a(f'{L}:')
    def row_flag(self, base, D, A):
        a = self.a
        L = a.label('Lsig')
        a(f's_cmp_eq_u32 s{sWAVE}, 0'); a(f's_cbranch_scc0 {L}')
        a('s_lshl_b32 s5, s66, 7')
        a('s_lshl_b32 s6, s67, 2')
        a('s_add_u32 s5, s5, s6')
        a(f's_add_u32 s5, s5, {base}')
        a('s_mov_b64 exec, 1')
        a(f'v_mov_b32 v{D}, s83')
        a(f'v_mov_b32 v{A}, 0')
        a(f'buffer_store_dword v{D}, v{A}, {sr(SRD_WS)}, s5 offen sc1')
        a('s_mov_b64 exec, -1')
        a(f'{L}:')

    UD = 108
    XR = 124
    def conv_pass(self, ps, hooks):
        a = self.a
        P = self.PL
        ACC = 12
        bufA = [44, 164]; bufB = [76, 196]
        T0 = 4 * ps
        pairs = [(aa, e) for aa in range(8) for e in range(8) if T0 <= aa + e <= T0 + 3]
        na = max(p[0] for p in pairs) + 1; ne = max(p[1] for p in pairs) + 1
        def reads(b):
            sel = b & 1
            A = []; B = []
            for aa in range(na):
                off = 512 * (7 - aa) + 64 * (7 - b)
                A.append([f'ds_read_b64 {vr(bufA[sel]+4*aa,2)}, v{self.VA} offset:{off}',
                          f'ds_read_b64 {vr(bufA[sel]+4*aa+2,2)}, v{self.VA} offset:{off+8}'])
            for e in range(ne):
                B.append(f'ds_read_b128 {vr(bufB[sel]+4*e,4)}, v{self.VB+b} offset:{4096*e}')
            order = []
            for k in range(max(na, ne)):
                if k < na: order += A[k]
                if k < ne: order.append(B[k])
            return order
        for r in reads(0): a(r)
        a(f'v_xor_b32 v4, 16, v{self.VEU}')
        if ps == 0: a(f'v_lshlrev_b32 v6, 16, v{P+5}')
        side_rd = []
        for tt in range(4):
            t = T0 + tt
            side_rd.append(f'ds_read_b64 {vr(self.UD+4*tt+2,2)}, v{self.VEU} offset:{4096*t}')
            side_rd.append(f'ds_read_b64 {vr(self.XR+4*tt+2,2)}, v4 offset:{4096*t}')
        side = []
        for tt in range(4):
            U = self.UD + 4 * tt; X = self.XR + 4 * tt
            side += [f'v_lshlrev_b32 v{U}, 16, v{U+2}', f'v_and_b32 v{U+1}, 0xffff0000, v{U+2}',
                     f'v_lshlrev_b32 v{U+2}, 16, v{U+3}', f'v_and_b32 v{U+3}, 0xffff0000, v{U+3}']
            side += [f'v_lshlrev_b32 v{X}, 16, v{X+2}', f'v_and_b32 v{X+1}, 0xffff0000, v{X+2}',
                     f'v_lshlrev_b32 v{X+2}, 16, v{X+3}', f'v_and_b32 v{X+3}, 0xffff0000, v{X+3}']
            side += [f'v_fma_f32 v{U+j}, v{U+j}, v6, v{X+j}' for j in range(4)]
        slots = list(hooks.get('slots', []))
        rate = hooks.get('rate', 4); sfrom = hooks.get('from', 0)
        started = set()
        cnt = 0
        self._nslots = 0
        for b in range(8):
            sel = b & 1
            nxt = reads(b + 1) if b < 7 else []
            if b == 0: nxt = side_rd + nxt if len(pairs) >= 20 else nxt + side_rd
            if b in hooks: hooks[b]()
            if ps == 1 and b in (2, 3, 4, 6): self.stamp(f'b{b}')
            a('s_waitcnt lgkmcnt(0)')
            extra_rd = list(nxt)
            n = 0
            for (aa, e) in pairs:
                t = aa + e - T0
                c = '0' if t not in started else vr(ACC + 4 * t, 4)
                started.add(t)
                a(f'v_mfma_f32_16x16x32_bf16 {vr(ACC+4*t,4)}, {vr(bufA[sel]+4*aa,4)}, {vr(bufB[sel]+4*e,4)}, {c}')
                k = 2 if len(extra_rd) > (len(pairs) - n) else 1
                for _ in range(k):
                    if extra_rd: a(extra_rd.pop(0))
                if b >= 1:
                    for _ in range(2 if ps == 0 else 1):
                        if side: a(side.pop(0))
                n += 1
                if b >= sfrom:
                    cnt += 1
                    if cnt % rate == 0 and slots:
                        slots.pop(0)(); self._nslots += 1
            for r in extra_rd: a(r)
        for s_ in side: a(s_)
        assert not slots, len(slots)

    def conv_epi(self, ps):
        a = self.a
        ACC = 12
        a('s_mov_b32 s70, 0x00003f80')
        a('s_mov_b32 s71, 0x3f800000')
        P = [(tt, h) for tt in range(4) for h in range(2)]
        Y = {p: ACC + 4 * p[0] + 2 * p[1] for p in P}
        U = {p: self.UD + 4 * p[0] + 2 * p[1] for p in P}
        O = {p: 84 + 2 * p[0] + p[1] for p in P}
        def step(f):
            for p in P: a(f(p))
        step(lambda p: f'v_pk_add_f32 {vr(Y[p],2)}, {vr(Y[p],2)}, {vr(U[p],2)}')
        step(lambda p: f'v_cvt_pk_bf16_f32 v{O[p]}, v{Y[p]}, v{Y[p]+1}')
        for tt in range(4):
            a(f'ds_write_b64 v{self.VHW}, {vr(84+2*tt,2)} offset:{self.HT + 512*tt}')
        a('v_bfe_u32 v4, v2, 2, 2')
        a(f'v_mul_u32_u24 v4, {self.WSTRIDE}, v4')
        a('v_lshrrev_b32 v5, 4, v2')
        a('v_lshl_add_u32 v4, v5, 5, v4')
        a('v_and_b32 v7, 3, v2')
        a('v_lshl_add_u32 v4, v7, 3, v4')
        a(f's_lshl_b32 s5, s{sWAVE}, 9')
        a(f's_add_u32 s5, s5, {self.HT}')
        a('v_add_u32 v4, s5, v4')
        a('v_mul_u32_u24 v5, 20480, v5')
        a('v_and_b32 v7, 15, v2')
        a('v_lshl_add_u32 v5, v7, 4, v5')
        a(f's_mul_i32 s62, s{sWAVE}, {16*20480}')
        a('s_lshr_b32 s6, s2, 3'); a('s_lshl_b32 s6, s6, 10'); a('s_add_u32 s62, s62, s6')
        a('s_bfe_u32 s6, s2, 0x20001'); a('s_lshl_b32 s6, s6, 8'); a('s_add_u32 s62, s62, s6')
        a('s_and_b32 s6, s2, 1'); a('s_lshl_b32 s6, s6, 3'); a('s_add_u32 s62, s62, s6')
        a(f's_add_u32 s62, s62, {HF + 64*ps*20480}')
        a('s_waitcnt lgkmcnt(0)')
        a('s_barrier')
        for m in range(4):
            a(f'ds_read_b64_tr_b16 {vr(76+2*m,2)}, v4 offset:{128*m}')
        for m in range(4):
            a(f's_waitcnt lgkmcnt({3-m})')
            a(f'buffer_store_dwordx2 {vr(76+2*m,2)}, v5, {sr(SRD_WS)}, s62 offen sc1')
            if m < 3: a(f's_add_u32 s62, s62, {4*20480}')

    HREG = {0: 96, 1: 176}
    ACC3 = {0: 8, 1: 36}
    WB = [172, 200, 228]
    GRAM = 164
    def h_bases(self):
        a = self.a
        a('s_lshl_b32 s78, s66, 2')
        a(f's_add_u32 s78, s78, s{sWAVE}')
        a('s_mul_i32 s78, s78, 20480')
        a(f's_add_u32 s81, s78, {HF}')
        a(f's_add_u32 s80, s81, {64*20480}')
    def hload(self, st, kap):
        a = self.a
        base = 's81' if st == 0 else 's80'
        reg = vr(self.hreg(st, kap), 4)
        if kap < 4:
            a(f'buffer_load_dwordx4 {reg}, v3, {sr(SRD_WS)}, {base} offen offset:{kap*1024} sc1')
        else:
            a(f's_add_u32 s5, {base}, {(kap//4)*4096}')
            a(f'buffer_load_dwordx4 {reg}, v3, {sr(SRD_WS)}, s5 offen offset:{(kap%4)*1024} sc1')
        self.vmi(('h', st, kap))
    seq0 = 0
    def wbi(self, kap): return (self.seq0 + kap) % 3
    def w1rd(self, kap, t):
        off = self.w1_lds(kap * 7 + t)
        reg = ['v3', 'v92', 'v93'][off >> 16]
        return f'ds_read_b128 {ar(self.WB[self.wbi(kap)]+4*t,4)}, {reg} offset:{off & 0xffff}'
    def w2l(self, idx):
        self.w2_load(idx); self.vmi(('w2', idx))

    def p3_stream(self, st, slots, hooks, nslot=2):
        a = self.a
        ACC = self.ACC3[st]
        slots = list(slots)
        def rd(gstep, t):
            kap = gstep % 20
            off = self.w1_lds(kap * 7 + t)
            reg = ['v3', 'v92', 'v93'][off >> 16]
            return f'ds_read_b128 {ar(self.WB[gstep % 3]+4*t,4)}, {reg} offset:{off & 0xffff}'
        for kap in range(20):
            gs = 20 * st + kap
            if kap in hooks: hooks[kap]()
            self.vm_wait(lambda t: t == ('h', st, kap), ' lgkmcnt(7)' if gs + 1 < 40 else ' lgkmcnt(0)')
            if kap in (0, 4, 5, 9, 10, 14, 15): self.stamp(f's{st}k{kap}')
            h = self.hreg(st, kap)
            extra = [rd(gs + 2, t) for t in range(7)] if gs + 2 < 40 else []
            for t in range(7):
                acc = ACC + 4 * t
                c = '0' if kap == 0 else vr(acc, 4)
                a(f'v_mfma_f32_16x16x32_bf16 {vr(acc,4)}, {ar(self.WB[gs % 3]+4*t,4)}, {vr(h,4)}, {c}')
                if extra: a(extra.pop(0))
                if (nslot >= 2 and t in (2, 5)) or (nslot == 1 and t == 3) or (nslot == 3 and t == 0):
                    if slots: slots.pop(0)()
            g = self.GRAM + 4 * st
            c = '0' if kap == 0 else ar(g, 4)
            a(f'v_mfma_f32_16x16x32_bf16 {ar(g,4)}, {vr(h,4)}, {vr(h,4)}, {c}')
        for f in slots: f()

    def hreg(self, st, kap):
        if st == 0 and kap < 8: return 44 + 4 * kap
        return self.HREG[st] + 4 * kap
    def w1rd_g(self, gstep, t):
        kap = gstep % 20
        off = self.w1_lds(kap * 7 + t)
        reg = ['v3', 'v92', 'v93'][off >> 16]
        return f'ds_read_b128 {ar(self.WB[gstep % 3]+4*t,4)}, {reg} offset:{off & 0xffff}'

    def p3_epi(self, st, slots):
        a = self.a
        ACC = self.ACC3[st]
        slots = list(slots)
        a('v_lshrrev_b32 v5, 4, v2')
        a('v_lshlrev_b32 v6, 4, v5')
        a(f'v_add_u32 v6, {self.SBL}, v6')
        for t in range(7):
            a(f'ds_read_b128 {vr(64+4*t,4)}, v6 offset:{64*t}')
            a(f'ds_read_b128 {vr(124+4*t,4)}, v6 offset:{448+64*t}')
        a('v_and_b32 v4, 15, v2')
        a('v_cmp_eq_u32 s[62:63], 3, v5')
        a('v_lshrrev_b32 v6, 2, v4')
        a('v_cmp_eq_u32 s[64:65], v6, v5')
        a('v_and_b32 v6, 3, v4')
        a('v_cmp_eq_u32 s[68:69], 1, v6')
        a('v_cmp_eq_u32 s[70:71], 2, v6')
        a('v_cmp_eq_u32 vcc, 3, v6')
        for j in range(4): a(f'v_accvgpr_read_b32 v{96+j}, a{self.GRAM+4*st+j}')
        a(f'v_cndmask_b32 v112, 0, v{ACC+24}, s[62:63]')
        a('v_cndmask_b32 v96, v96, v97, s[68:69]')
        a('v_cndmask_b32 v96, v96, v98, s[70:71]')
        a('v_cndmask_b32 v96, v96, v99, vcc')
        a('v_cndmask_b32 v113, 0, v96, s[64:65]')
        if self.epi_after_gram: self.epi_after_gram(st)
        for rnd in ('16', '32'):
            a('v_mov_b32 v104, v112'); a('v_mov_b32 v105, v113')
            a(f'v_permlane{rnd}_swap_b32 v112, v104'); a(f'v_permlane{rnd}_swap_b32 v113, v105')
            a('v_add_f32 v112, v112, v104'); a('v_add_f32 v113, v113, v105')
        a(f'v_mul_f32 v112, {f2u(1.0/640):#x}, v112')
        a(f'v_mul_f32 v113, {f2u(1.0/640):#x}, v113')
        a('v_fma_f32 v113, -v112, v112, v113')
        a('v_max_f32 v113, 0, v113')
        a('v_cvt_pk_bf16_f32 v113, v113, v112')
        a('v_and_b32 v112, 0xffff0000, v113')
        a('v_lshlrev_b32 v113, 16, v113')
        a(f'v_add_f32 v113, {f2u(1e-5):#x}, v113')
        self.bf16r(113, 113)
        a('v_sqrt_f32 v113, v113')
        self.bf16r(113, 113)
        a('v_rcp_f32 v116, v113')
        a('v_mov_b32 v118, v112'); a('v_mov_b32 v119, v112'); a('v_mov_b32 v117, v116')
        OUT = 152
        def outreg(t): return OUT + (t >> 1) * 4 + (t & 1) * 2 if t < 6 else OUT + 12
        a('s_lshl_b32 s72, s72, 0') if False else None
        a('s_lshl_b32 s6, s66, 2')
        a(f's_add_u32 s6, s6, s{sWAVE}')
        a(f's_mul_i32 s6, s6, {NK2*1024}')
        a(f's_add_u32 s6, s6, {HH + 64*st*NK2*1024}')
        a('s_lshr_b32 s7, s67, 1'); a('s_mul_i32 s7, s7, 7')
        a('s_and_b32 s63, s67, 1')
        a('s_lshl_b32 s62, s63, 2'); a('s_add_u32 s62, s62, s7'); a('s_lshl_b32 s62, s62, 10'); a('s_add_u32 s62, s62, s6')
        a('s_add_u32 s64, s7, 3'); a('s_lshl_b32 s64, s64, 10'); a('s_lshl_b32 s63, s63, 3'); a('s_add_u32 s64, s64, s63'); a('s_add_u32 s64, s64, s6')
        a('s_mov_b32 s70, 0x00003f80')
        a('s_mov_b32 s71, 0x3f800000')
        a('s_waitcnt lgkmcnt(0)')
        for tp in range(4):
            ts = [2 * tp, 2 * tp + 1] if tp < 3 else [6]
            P = [(t, h) for t in ts for h in range(2)]
            X = {p: ACC + 4 * p[0] + 2 * p[1] for p in P}
            T = {p: 100 + i for i, p in enumerate(P)}
            def step(f):
                for p in P: a(f(p))
            S = lambda p: 64 + 4 * p[0] + 2 * p[1]
            Bq = lambda p: 124 + 4 * p[0] + 2 * p[1]
            step(lambda p: f'v_pk_fma_f32 {vr(X[p],2)}, {vr(S(p),2)}, v[118:119], {vr(X[p],2)} neg_lo:[1,0,0] neg_hi:[1,0,0]')
            step(lambda p: f'v_pk_fma_f32 {vr(X[p],2)}, {vr(X[p],2)}, v[116:117], {vr(Bq(p),2)}')
            step(lambda p: f'v_max_f32 v{X[p]}, 0, v{X[p]}')
            step(lambda p: f'v_max_f32 v{X[p]+1}, 0, v{X[p]+1}')
            step(lambda p: f'v_pk_mul_f32 {vr(X[p],2)}, {vr(X[p],2)}, {vr(X[p],2)}')
            step(lambda p: f'v_cvt_pk_bf16_f32 v{outreg(p[0])+p[1]}, v{X[p]}, v{X[p]+1}')
            for _ in range(self.EPI_SLOTS):
                if slots: slots.pop(0)()
            if tp < 3:
                a(f'buffer_store_dwordx4 {vr(OUT+4*tp,4)}, v3, {sr(SRD_WS)}, s62 offen offset:{1024*tp} sc1')
            else:
                a(f'buffer_store_dwordx2 {vr(OUT+12,2)}, v3, {sr(SRD_WS)}, s64 offen sc1')
            self.vmi(('Hst', st))
        for f in slots: f()
    EPI_SLOTS = 3
    epi_after_gram = None

    RING = {0: 176, 1: 112}
    P4_SL = 7
    RES = 232
    def p4_setup(self):
        a = self.a
        a('s_lshl_b32 s80, s72, 1')
        a(f's_mul_i32 s80, s80, {NK2}')
        a('s_add_u32 s80, s80, s74')
        a('s_lshl_b32 s80, s80, 10')
        a(f's_add_u32 s80, s80, {HH}')
    def Hload(self, st, kk, lt):
        a = self.a
        reg = vr(self.RING[st] + (kk % self.P4_SL) * 8 + lt * 4, 4)
        off = (64 * st + lt) * NK2 * 1024 + kk * 1024
        a(f's_add_u32 s5, s80, {(off // 4096) * 4096}')
        a(f'buffer_load_dwordx4 {reg}, v3, {sr(SRD_WS)}, s5 offen offset:{off % 4096} sc1')
        self.vmi(('H', st, kk, lt))

    def p4_stream(self, st, slots, hooks):
        a = self.a
        ACC = 8
        slots = list(slots)
        for kk in range(14):
            if kk in hooks: hooks[kk]()
            need = [('H', st, kk, 0), ('H', st, kk, 1)] + [('w2', kk * 5 + t) for t in range(5)]
            have = [t for t in need if t in self.vmlist]
            for t_ in need:
                assert t_ in self.vmlist or (t_[0] == 'w2' and t_[1] < self.NW2_CONV), (st, kk, t_)
            self.vm_wait(lambda t: t in have)
            if kk in (0, 4, 5, 8, 11, 12): self.stamp(f'q{st}k{kk}')
            n = 0
            for t in range(5):
                for lt in range(2):
                    acc = ACC + (t * 4 + 2 * st + lt) * 4
                    c = '0' if kk == 0 else vr(acc, 4)
                    a(f'v_mfma_f32_16x16x32_bf16 {vr(acc,4)}, {self.w2reg(kk*5+t)}, {vr(self.RING[st]+(kk%self.P4_SL)*8+lt*4,4)}, {c}')
                    if n in (1, 3, 6, 8) and slots and slots[0][0] <= kk: slots.pop(0)[1]()
                    n += 1
        for k_, f in slots: f()

    def p4_pre_loads(self):
        a = self.a
        R = self.RES
        L = []
        def setup():
            self.srd(SRD_B, P_B2, 640 * 2)
            a('v_and_b32 v168, 15, v2')
            a('v_lshrrev_b32 v169, 4, v2')
            a('s_mul_i32 s62, s73, 20')
            a('s_lshl_b32 s63, s72, 1')
            a(f's_add_u32 s63, s63, s{sWAVE}')
            a('s_add_u32 s64, s63, 62')
            a(f's_cmp_ge_u32 s{sWAVE}, 2')
            a('s_cselect_b32 s63, s64, s63')
            a('s_mov_b32 s81, s63')
            a('s_mul_i32 s63, s63, 20480')
            a(f's_add_u32 s63, s63, {HF}')
        def one(t):
            def f():
                if t == 0: setup()
                a('v_add_u32 v170, s62, v169')
                a(f'v_add_u32 v170, {4*t}, v170')
                a('v_lshrrev_b32 v171, 3, v170')
                a('v_lshlrev_b32 v171, 10, v171')
                a('v_bfe_u32 v172, v170, 1, 2')
                a('v_lshl_add_u32 v171, v172, 8, v171')
                a('v_and_b32 v172, 1, v170')
                a('v_lshl_add_u32 v171, v172, 3, v171')
                a('v_lshl_add_u32 v171, v168, 4, v171')
                a(f'buffer_load_dwordx2 {vr(R+2*t,2)}, v171, {sr(SRD_WS)}, s63 offen sc1')
                a('v_lshlrev_b32 v170, 3, v170')
                a(f'buffer_load_dwordx2 {vr(R+10+2*t,2)}, v170, {sr(SRD_B)}, 0 offen')
                self.vmi(('res', t)); self.vmi(('res', t))
            return f
        return [one(t) for t in range(5)]

    def p4_epilogue(self):
        a = self.a
        ACC = 8
        a('v_lshlrev_b32 v3, 4, v2')
        a(f's_mul_i32 s5, s{sWAVE}, 20480')
        a('v_add_u32 v6, s5, v3')
        for lt in range(4):
            L = a.label('Lp4w')
            a(f's_cmp_eq_u32 s{sWAVE}, {lt}'); a(f's_cbranch_scc1 {L}')
            for t in range(5):
                a(f'ds_write_b128 v6, {vr(ACC+(t*4+lt)*4,4)} offset:{lt*5120+t*1024}')
            a(f'{L}:')
        Lend = a.label('Lp4o')
        for lt in range(4):
            L = a.label('Lp4c')
            a(f's_cmp_eq_u32 s{sWAVE}, {lt}'); a(f's_cbranch_scc0 {L}')
            for t in range(5):
                for h in range(2):
                    a(f'v_pk_mov_b32 {vr(112+4*t+2*h,2)}, {vr(ACC+(t*4+lt)*4+2*h,2)}, {vr(ACC+(t*4+lt)*4+2*h,2)} op_sel:[0,1]')
            a(f's_branch {Lend}')
            a(f'{L}:')
        a(f'{Lend}:')
        a('s_waitcnt vmcnt(0) lgkmcnt(0)')
        a('s_barrier')
        for k in range(1, 4):
            a(f's_add_u32 s5, s{sWAVE}, {k}'); a('s_and_b32 s5, s5, 3'); a('s_mul_i32 s5, s5, 20480')
            a(f's_mul_i32 s6, s{sWAVE}, 5120'); a('s_add_u32 s5, s5, s6')
            a(f'v_add_u32 v{4+k}, s5, v3')
        for t in range(5):
            for k in range(1, 4):
                a(f'ds_read_b128 {vr(172+(t*3+k-1)*4,4)}, v{4+k} offset:{t*1024}')
        for t in range(5):
            for h in range(2):
                b = self.RES + 10 + 2 * t + h; hh = self.RES + 2 * t + h
                a(f'v_lshlrev_b32 v{8+4*t+2*h}, 16, v{b}'); a(f'v_and_b32 v{8+4*t+2*h+1}, 0xffff0000, v{b}')
                a(f'v_lshlrev_b32 v{28+4*t+2*h}, 16, v{hh}'); a(f'v_and_b32 v{28+4*t+2*h+1}, 0xffff0000, v{hh}')
                a(f'v_pk_add_f32 {vr(112+4*t+2*h,2)}, {vr(112+4*t+2*h,2)}, {vr(8+4*t+2*h,2)}')
                a(f'v_pk_add_f32 {vr(112+4*t+2*h,2)}, {vr(112+4*t+2*h,2)}, {vr(28+4*t+2*h,2)}')
        self.srd(SRD_A, P_OUT, 2048 * 1280)
        a(f's_mul_i32 s5, s81, {16*1280}')
        a('s_mul_i32 s6, s73, 160')
        a('s_add_u32 s5, s5, s6')
        a('v_mul_u32_u24 v4, 1280, v168')
        a('v_lshl_add_u32 v4, v169, 3, v4')
        a('s_mov_b32 s70, 0x00003f80')
        a('s_mov_b32 s71, 0x3f800000')
        a('s_waitcnt lgkmcnt(0)')
        P = [(t, h) for t in range(5) for h in range(2)]
        X = {p: 112 + 4 * p[0] + 2 * p[1] for p in P}
        def step(f):
            for p in P: a(f(p))
        for k in range(3):
            step(lambda p: f'v_pk_add_f32 {vr(X[p],2)}, {vr(X[p],2)}, {vr(172+(p[0]*3+k)*4+2*p[1],2)}')
        step(lambda p: f'v_cvt_pk_bf16_f32 v{60+2*p[0]+p[1]}, v{X[p]}, v{X[p]+1}')
        for t in range(5):
            a(f'buffer_store_dwordx2 {vr(60+2*t,2)}, v4, {sr(SRD_A)}, s5 offen offset:{32*t}')

    NW2_CONV = 20
    NW2_P3B = 21
    NW2_P3A = 0
    CRATE = 4
    RCB_K = 11
    FLAGA_B = 3
    NPASS1 = 0
    NSLOTA = 2
    PFL_B = 3
    CHKA_IN = 0
    UGATE = 1
    WARM4 = 1
    ROWA_K = 5
    RPA_K = 14
    ROWB_K = 4
    AH3 = 8
    AH4 = 6

def build():
    out = []
    kn = NAME + '_kernel'
    out.append(f'; @launch grid=(256,1,1) block=(256,1,1) lds={LDS_SIZE}')
    out.append('.amdgcn_target "amdgcn-amd-amdhsa--gfx950"')
    out.append('.text')
    g = G4(True); g.kname = 'f'; a = g.a
    g.vmlist = []
    if g.timing:
        for i in range(16): a(f's_mov_b32 s{86+i}, 0')
    g.stamp('start')
    g.prologue()
    g.ln1x_issue()
    g.epoch_issue()
    Laux = a.label('Laux'); Lp3 = a.label('Lp3')
    a('s_cmp_lt_u32 s2, 160'); a(f's_cbranch_scc0 {Laux}')
    g.kgen_issue()
    g.code_prefetch()
    g.p2_consts(0)
    g.ln1x_compute(8)
    g.p2_consts(1)
    a('s_waitcnt vmcnt(12)')
    g.epoch_get()
    g.flag_signal(BFL1)
    g.stamp('ln1')
    g.ux_zero_pad()
    g.kg_hook1 = g.b1_issue
    g.kg_hook2 = g.b1_check_ux_issue
    g.kgen(0)
    g.p34_ids()
    g.w2_setup()
    g.pref_setup()
    g.h_bases()
    g.stamp('kgen')
    g.ux_write()
    g.flag_store_only(UFL)
    g.pfl_issue()
    g.stamp('ux')
    W1e = [lambda j=j: g.w1A(j) for j in range(11)] + [g.w1T]
    W2e = [lambda i=i: g.w2_load(i) for i in range(g.NW2_CONV)]
    mix = []
    while W1e or W2e:
        if W1e: mix.append(W1e.pop(0))
        for _ in range(3):
            if W2e: mix.append(W2e.pop(0))
    n1 = g.NPASS1
    def pfl1():
        g.pfl_check(0); g.sb_issue()
    if n1:
        g.conv_pass(0, {'slots': mix[:n1], 'rate': g.CRATE, 'from': 1, 1: pfl1})
    else:
        g.conv_pass(0, {})
    g.stamp('c1')
    g.conv_epi(0)
    g.stamp('e1')
    def flagA():
        if n1: a(f's_waitcnt vmcnt({g._nslots})')
        else: a('s_waitcnt vmcnt(0)')
        a('s_barrier'); g.wg_flag(BF2A, 4, 5)
    def pfl2():
        g.pfl_check(1); g.sb_issue()
    def pollA():
        g.fl_issue(BF2A, 8, 7)
    def chkA():
        a('s_waitcnt vmcnt(0)')
        g.sb_finish()
        g.fl_check(BF2A, 8, 7, (0, 40))
        for kap in range(8): g.hload(0, kap)
    if n1:
        hooks = {'slots': mix[n1:], 'rate': g.CRATE, 'from': 0, g.FLAGA_B: flagA, 6: pollA}
    else:
        hooks = {'slots': mix, 'rate': g.CRATE, 'from': g.PFL_B, 2: flagA, g.PFL_B: pfl2, 6: pollA}
    if g.CHKA_IN: hooks[7] = chkA
    g.conv_pass(1, hooks)
    g.stamp('b8')
    if not g.CHKA_IN: chkA()
    g.stamp('c2')
    g.conv_epi(1)
    g.stamp('e2')
    a(f's_branch {Lp3}')
    a(f'{Laux}:')
    g.code_prefetch()
    if g.PREPFIRST:
        g.prep_issue3()
        a('s_waitcnt vmcnt(0)')
        g.epoch_get()
        g.prep_compute3()
        g.ln1x_recompute_addr()
        g.ln1x_compute(63)
        g.flag_signal(BFL1)
        g.wg_flag(PFL, 4, 5)
        g.stamp('ln1')
    else:
        g.ln1x_compute(2, g.prep_issue3)
        a('s_waitcnt vmcnt(0)')
        g.epoch_get()
        g.flag_signal(BFL1)
        g.stamp('ln1')
        g.prep_compute3()
        g.flag_signal(PFL)
    g.p34_ids()
    g.w2_setup()
    g.pref_setup()
    g.h_bases()
    if g.UGATE: g.flag_wait(UFL, lanes=(0, 40))
    g.pfl_issue()
    g.pfl_check()
    g.sb_issue()
    for f in mix_copy(g): f()
    if g.WARM4: g.warm4()
    g.fl_issue(BF2A, 8, 7)
    a('s_waitcnt vmcnt(0)')
    g.sb_finish()
    g.fl_check(BF2A, 8, 7, (0, 40))
    for kap in range(8): g.hload(0, kap)
    a('s_waitcnt lgkmcnt(0)')
    a('s_barrier')
    a(f'{Lp3}:')
    g.vmlist = [('h', 0, k) for k in range(8)]
    late = g.list_late()
    def lw(i):
        def f():
            late[i](); g.vmi(('w1', 0 if i < 8 else 1 if i < 16 else 2))
        return f
    for i in range(8): lw(i)()
    a('v_add_u32 v92, 0x10000, v3')
    a('v_add_u32 v93, 0x20000, v3')
    for gs in range(2):
        for t in range(7): a(g.w1rd_g(gs, t))
    g.stamp('p3go')
    hrest = [lambda k=k: g.hload(0, k) for k in range(8, 20)]
    wrest = [lw(i) for i in range(8, 23)]
    slotsA = wrest[:8] + hrest[:2]
    hrest = hrest[2:]; wrest = wrest[8:]
    while hrest or wrest:
        if wrest: slotsA.append(wrest.pop(0))
        if hrest: slotsA.append(hrest.pop(0))
    slotsA += [lambda i=i: g.w2l(i) for i in range(g.NW2_CONV, g.NW2_CONV + g.NW2_P3A)]
    def grp(n, flag=False):
        def f():
            g.vm_wait(lambda t: t == ('w1', n)); a('s_barrier')
            if flag: g.wg_flag(BF2B, 4, 5, only_conv=True)
        return f
    def pollB_issue():
        g.fl_issue(BF2B, 4, 94); g.vmi(('pollB',))
    g.p3_stream(0, slotsA, {4: grp(0, True), 9: grp(1), 14: grp(2), 16: pollB_issue}, nslot=g.NSLOTA)
    g.stamp('p3a')
    g.vm_wait(lambda t: t == ('pollB',))
    g.fl_check(BF2B, 4, 94, (0, 40))
    Lx = a.label('Lep')
    a('s_cmp_eq_u32 s2, 0'); a(f's_cbranch_scc0 {Lx}')
    a(f's_cmp_eq_u32 s{sWAVE}, 0'); a(f's_cbranch_scc0 {Lx}')
    a('s_mov_b64 exec, 1'); a('v_mov_b32 v4, s83'); a(f'v_mov_b32 v5, {EPX}')
    a(f'buffer_store_dword v4, v5, {sr(SRD_WS)}, 0 offen sc1'); a('s_mov_b64 exec, -1')
    a(f'{Lx}:')
    for kap in range(6): g.hload(1, kap)
    g.p3_epi(0, [lambda k=k: g.hload(1, k) for k in range(6, 14)])
    g.stamp('epA')
    n0 = g.NW2_CONV + g.NW2_P3A
    slotsB = [lambda k=k: g.hload(1, k) for k in range(14, 20)] + [lambda i=i: g.w2l(i) for i in range(n0, n0 + g.NW2_P3B)]
    def rowA():
        g.vm_wait(lambda t: t == ('Hst', 0)); a('s_barrier'); g.row_flag(RFA, 4, 5)
    def rowpollA():
        g.row_issue(RFA, 4, 5); g.vmi(('rpA',))
    g.p3_stream(1, slotsB, {g.ROWA_K: rowA, g.RPA_K: rowpollA})
    g.stamp('p3b')
    g.vm_wait(lambda t: t == ('rpA',))
    g.row_check(RFA, 4, 5)
    g.p4_setup()
    nxt = n0 + g.NW2_P3B
    assert nxt <= 41
    HA0 = [lambda k=k, lt=lt: g.Hload(0, k, lt) for k in range(g.AH4) for lt in range(2)]
    def after_gram(st):
        if st == 1:
            for f in HA0[:6]: f()
    g.epi_after_gram = after_gram
    lateW2 = [lambda i=i: g.w2l(i) for i in range(nxt, 64)]
    g.p3_epi(1, HA0[6:] + lateW2[:6])
    g.stamp('epB')
    rest = lateW2[6:] + [lambda i=i: g.w2l(i) for i in range(64, 70)]
    for f in rest[:6]: f()
    rest = rest[6:]
    sl = []
    for kk in range(14):
        if kk + g.AH4 < 14:
            sl += [(kk, lambda k=kk + g.AH4: g.Hload(0, k, 0)), (kk, lambda k=kk + g.AH4: g.Hload(0, k, 1))]
        for _ in range(3 if kk < 3 else 2):
            if rest: sl.append((kk, rest.pop(0)))
    pre = g.p4_pre_loads()
    for j, f in enumerate(pre): sl.append((7 + j, f))
    sl.sort(key=lambda x: x[0])
    def rowB():
        g.vm_wait(lambda t: t == ('Hst', 1)); a('s_barrier'); g.row_flag(RFB, 4, 5)
    def rowpollB():
        g.row_issue(RFB, 4, 5); g.vmi(('rpB',))
    def rowchkB():
        g.vm_wait(lambda t: t == ('rpB',)); g.row_check(RFB, 4, 5)
        for k in range(2):
            g.Hload(1, k, 0); g.Hload(1, k, 1)
    slB = [(g.RCB_K, lambda k=k, lt=lt: g.Hload(1, k, lt)) for k in range(2, g.AH4) for lt in range(2)]
    g.p4_stream(0, sl + slB, {g.ROWB_K: rowB, g.RCB_K - 3: rowpollB, g.RCB_K: rowchkB})
    g.stamp('p4a')
    slB2 = []
    for kk in range(14):
        if kk + g.AH4 < 14:
            slB2 += [(kk, lambda k=kk + g.AH4: g.Hload(1, k, 0)), (kk, lambda k=kk + g.AH4: g.Hload(1, k, 1))]
    g.p4_stream(1, slB2, {})
    g.stamp('p4b')
    g.p4_epilogue()
    g.stamp_flush(0)
    g.end()
    out.append(kernel_header(kn)); out += a.finalize()
    out.append('.section .rodata,"a"')
    out.append(kernel_desc(kn))
    return '\n'.join(out) + '\n'

def mix_copy(g):
    W1e = [lambda j=j: g.w1A(j) for j in range(11)] + [g.w1T]
    W2e = [lambda i=i: g.w2_load(i) for i in range(g.NW2_CONV)]
    return W1e + W2e

if __name__ == '__main__':
    dst = sys.argv[1]
    gen.TIMING = 'timing' in sys.argv[2:]
    for x in sys.argv[2:]:
        if x.startswith('set='): gen.STAMPSET = set(x[4:].split(','))
        elif x.startswith('dbg='): gen.DBGSTAMP = int(x[4:])
        elif '=' in x:
            k, v = x.split('='); setattr(G4, k, int(v))
    gen.HF = HF; gen.BLK = BLK; gen.HH = HH; gen.W1F = W1F; gen.W2F = W2F; gen.SP = SP
    s = build()
    open(dst, 'w').write(s)
    import shutil, os
    if gen.TIMING: shutil.copy('stamps_k0.txt', dst + '.tags')
    print('wrote', dst, len(s), 'bytes')
```

```python
import sys
sys.path.insert(0, 'work')
import gen, gen2, gen3
from gen import sr, vr, ar, f2u, sWAVE, SRD_A, SRD_WS, SRD_B, SRD_C, SRD_D
from gen import P_X, P_B1, P_B2, P_OUT
from gen import kernel_header, kernel_desc, NAME
from gen2 import BLK, HF, W1F, W2F, SP, HH, EPX, LDS_SIZE, NK2
from gen3 import G3, BFL1, PFL, UFL

BF2A = 0x2003000
BF2B = 0x200C000
RFA  = 0x2008000
RFB  = 0x2009000

class G4(G3):
    HT = 16640
    SBL = 162048

    def ln1x_recompute_addr(self):
        a = self.a
        a('v_lshrrev_b32 v3, 5, v0')
        a('v_and_b32 v4, 31, v0')
    PREPFIRST = 0
    def vm_reset(self): self.vm = []
    def vm(self): pass
    def vmi(self, tag): self.vmlist.append(tag)
    def vm_wait(self, pred, extra=''):
        last = max(i for i, t in enumerate(self.vmlist) if pred(t))
        n = len(self.vmlist) - 1 - last
        self.a(f's_waitcnt vmcnt({min(63, n)}){extra}')

    def w1_lds(self, idx):
        WS = self.WSTRIDE
        if idx < 44: return (idx % 4) * WS + 18688 + (idx // 4) * 1024
        if idx < 48: return 157952 + (idx - 44) * 1024
        if idx < 112:
            j = idx - 48
            return (j % 4) * WS + (j // 4) * 1024
        return self.UXB + (idx - 112) * 1024

    def pref_setup(self):
        a = self.a
        a('s_mul_i32 s76, s67, 143360')
        a(f's_add_u32 s76, s76, {W1F}')
        a(f's_mul_i32 s75, s{sWAVE}, {self.WSTRIDE}')
        a('v_lshlrev_b32 v3, 4, v2')
        a(f's_lshl_b32 s82, s{sWAVE}, 10')
        a('s_add_u32 s77, s76, s82')
    def w1A(self, j):
        self.dma([f's_add_u32 m0, s75, {18688 + 1024*j}'], [f's_add_u32 s5, s77, {4096*j}'])
    def w1T(self):
        self.dma([f's_add_u32 m0, s82, 157952'], [f's_add_u32 s5, s77, {44*1024}'])
    def w1T2(self):
        self.dma([f's_mov_b32 m0, {157952 + 4096}'], [f's_add_u32 s5, s76, {48*1024}'])
    def w1B(self, i):
        self.dma([f's_add_u32 m0, s75, {1024*i}'], [f's_add_u32 s5, s77, {48*1024 + 4096*i}'])
    def w1C(self, i):
        self.dma([f's_add_u32 m0, s82, {self.UXB + 4096*i}'], [f's_add_u32 s5, s77, {112*1024 + 4096*i}'])
    def list_late(self):
        return [lambda i=i: self.w1B(i) for i in range(16)] + [lambda i=i: self.w1C(i) for i in range(7)]

    def sb_issue(self):
        a = self.a
        a('v_lshlrev_b32 v35, 3, v2')
        a('s_mul_i32 s64, s67, 448')
        a(f's_add_u32 s64, s64, {SP}')
        for part in range(3):
            a(f'buffer_load_dwordx2 {vr(28+2*part,2)}, v35, {sr(SRD_WS)}, s64 offen sc1')
            if part < 2: a('s_add_u32 s64, s64, 7168')
        self.srd(SRD_B, P_B1, 1728 * 2)
        a('s_mul_i32 s64, s67, 216')
        a('v_lshlrev_b32 v36, 2, v2')
        a(f'buffer_load_dword v34, v36, {sr(SRD_B)}, s64 offen')
        return 4
    def sb_finish(self):
        a = self.a
        L = a.label('Lsb')
        a(f's_cmp_eq_u32 s{sWAVE}, 1'); a(f's_cbranch_scc0 {L}')
        a('s_mov_b32 exec_hi, 0x00ffffff')
        a('v_pk_add_f32 v[28:29], v[28:29], v[30:31]')
        a('v_pk_add_f32 v[28:29], v[28:29], v[32:33]')
        a('v_lshlrev_b32 v30, 16, v34')
        a('v_and_b32 v31, 0xffff0000, v34')
        a(f'v_add_u32 v35, {self.SBL}, v35')
        a('ds_write_b64 v35, v[28:29]')
        a('ds_write_b64 v35, v[30:31] offset:448')
        a('s_mov_b64 exec, -1')
        a(f'{L}:')

    def warm4(self):
        a = self.a
        a('s_sub_u32 s5, s2, 160'); a('s_lshr_b32 s5, s5, 3'); a('s_lshl_b32 s5, s5, 2'); a(f's_add_u32 s5, s5, s{sWAVE}')
        a('s_mul_i32 s6, s5, 10923'); a('s_lshr_b32 s6, s6, 16')
        a('s_mul_i32 s7, s6, 6'); a('s_sub_u32 s7, s5, s7')
        a('s_and_b32 s62, s2, 1'); a('s_lshl_b32 s62, s62, 3'); a('s_add_u32 s6, s6, s62')
        a('s_mul_i32 s6, s6, 143360'); a(f's_add_u32 s6, s6, {W1F}')
        a('s_add_u32 s63, s6, %d' % (139 * 1024))
        if self.WARM4 == 2:
            a('s_mul_i32 s7, s7, %d' % (24 * 1024)); a('s_add_u32 s6, s6, s7')
        else:
            a('s_lshl_b32 s7, s7, 14'); a('s_add_u32 s6, s6, s7'); a('s_add_u32 s6, s6, %d' % (48 * 1024))
        for i in range(24 if self.WARM4 == 2 else 16):
            a('s_min_u32 s62, s6, s63')
            a(f'buffer_load_dwordx4 {vr(176+4*(i%16),4)}, v3, {sr(SRD_WS)}, s62 offen sc1')
            a('s_add_u32 s6, s6, 1024')
        if self.WARM4 == 3: return
        if self.WARM4 == 2:
            a('s_mul_i32 s6, s5, %d' % (47 * 1024))
            a(f's_add_u32 s6, s6, {W2F}')
            a(f's_mov_b32 s7, {W2F + 2240*1024 - 1024}')
            for i in range(47):
                a('s_min_u32 s62, s6, s7')
                a(f'buffer_load_dwordx4 {vr(176+4*(i%16),4)}, v3, {sr(SRD_WS)}, s62 offen sc1')
                a('s_add_u32 s6, s6, 1024')
            return
        L = a.label('Lwm')
        a('s_cmp_ge_u32 s5, 32'); a(f's_cbranch_scc1 {L}')
        a('s_lshr_b32 s6, s5, 2'); a(f's_mul_i32 s6, s6, {NK2}')
        a('s_and_b32 s7, s5, 3'); a('s_mul_i32 s7, s7, 14'); a('s_add_u32 s6, s6, s7')
        a('s_mul_i32 s6, s6, 5120'); a(f's_add_u32 s6, s6, {W2F + 48*1024}')
        for i in range(22):
            a(f'buffer_load_dwordx4 {vr(176+4*(i%16),4)}, v3, {sr(SRD_WS)}, s6 offen sc1')
            a('s_add_u32 s6, s6, 1024')
        a(f'{L}:')

    def fl_issue(self, base, D, A):
        a = self.a
        a(f'v_lshlrev_b32 v{A}, 4, v2')
        a('s_and_b32 s5, s2, 7')
        a('s_lshl_b32 s5, s5, 10')
        a(f's_add_u32 s5, s5, {base}')
        a(f'buffer_load_dwordx4 {vr(D,4)}, v{A}, {sr(SRD_WS)}, s5 offen sc1')
    def fl_check(self, base, D, A, lanes):
        a = self.a
        Lp = a.label('Lfp'); Lc = a.label('Lfc'); Ld = a.label('Lfd')
        lo, hi = lanes
        m = ((1 << hi) - 1) ^ ((1 << lo) - 1)
        a(f's_mov_b32 s62, {m & 0xffffffff:#x}'); a(f's_mov_b32 s63, {m >> 32:#x}')
        a('s_mov_b32 s7, 0')
        a(f's_branch {Lc}')
        a(f'{Lp}:')
        a('s_sleep 1')
        self.fl_issue(base, D, A)
        a('s_waitcnt vmcnt(0)')
        a(f'{Lc}:')
        for j in range(4): a(f'v_xor_b32 v{D+j}, s83, v{D+j}')
        a(f'v_or_b32 v{D}, v{D}, v{D+1}')
        a(f'v_or3_b32 v{D}, v{D}, v{D+2}, v{D+3}')
        a(f'v_cmp_ne_u32 vcc, 0, v{D}')
        a('s_and_b64 vcc, vcc, s[62:63]')
        a(f's_cbranch_vccz {Ld}')
        a('s_add_u32 s7, s7, 1')
        a('s_cmp_lt_u32 s7, 0x40000')
        a(f's_cbranch_scc1 {Lp}')
        a(f'{Ld}:')
    def row_issue(self, base, D, A):
        a = self.a
        a(f'v_and_b32 v{A}, 3, v2')
        a(f'v_lshlrev_b32 v{A}, 2, v{A}')
        a('s_lshr_b32 s5, s72, 1')
        a('s_lshl_b32 s5, s5, 7')
        a(f's_lshl_b32 s6, s{sWAVE}, 4')
        a('s_add_u32 s5, s5, s6')
        a(f's_add_u32 s5, s5, {base}')
        a(f'buffer_load_dword v{D}, v{A}, {sr(SRD_WS)}, s5 offen sc1')
    def row_check(self, base, D, A):
        a = self.a
        Lp = a.label('Lrp'); Lc = a.label('Lrc'); Ld = a.label('Lrd')
        a('s_mov_b32 s7, 0')
        a(f's_branch {Lc}')
        a(f'{Lp}:')
        a('s_sleep 1')
        self.row_issue(base, D, A)
        a('s_waitcnt vmcnt(0)')
        a(f'{Lc}:')
        a(f'v_cmp_ne_u32 vcc, s83, v{D}')
        a(f's_cbranch_vccz {Ld}')
        a('s_add_u32 s7, s7, 1')
        a('s_cmp_lt_u32 s7, 0x40000')
        a(f's_cbranch_scc1 {Lp}')
        a(f'{Ld}:')
    def wg_flag(self, base, D, A, only_conv=False):
        a = self.a
        L = a.label('Lsig')
        a(f's_cmp_eq_u32 s{sWAVE}, 0'); a(f's_cbranch_scc0 {L}')
        if only_conv:
            a('s_cmp_lt_u32 s2, 160'); a(f's_cbranch_scc0 {L}')
        a(f'v_lshlrev_b32 v{A}, 10, v2')
        a('s_lshl_b32 s5, s2, 2')
        a(f's_add_u32 s5, s5, {base}')
        a(f'v_mov_b32 v{D}, s83')
        a('s_mov_b64 exec, 0xff')
        a(f'buffer_store_dword v{D}, v{A}, {sr(SRD_WS)}, s5 offen sc1')
        a('s_mov_b64 exec, -1')
        a(f'{L}:')
    def row_flag(self, base, D, A):
        a = self.a
        L = a.label('Lsig')
        a(f's_cmp_eq_u32 s{sWAVE}, 0'); a(f's_cbranch_scc0 {L}')
        a('s_lshl_b32 s5, s66, 7')
        a('s_lshl_b32 s6, s67, 2')
        a('s_add_u32 s5, s5, s6')
        a(f's_add_u32 s5, s5, {base}')
        a('s_mov_b64 exec, 1')
        a(f'v_mov_b32 v{D}, s83')
        a(f'v_mov_b32 v{A}, 0')
        a(f'buffer_store_dword v{D}, v{A}, {sr(SRD_WS)}, s5 offen sc1')
        a('s_mov_b64 exec, -1')
        a(f'{L}:')

    UD = 108
    XR = 124
    def conv_pass(self, ps, hooks):
        a = self.a
        P = self.PL
        ACC = 12
        bufA = [44, 164]; bufB = [76, 196]
        T0 = 4 * ps
        pairs = [(aa, e) for aa in range(8) for e in range(8) if T0 <= aa + e <= T0 + 3]
        na = max(p[0] for p in pairs) + 1; ne = max(p[1] for p in pairs) + 1
        def reads(b):
            sel = b & 1
            A = []; B = []
            for aa in range(na):
                off = 512 * (7 - aa) + 64 * (7 - b)
                A.append([f'ds_read_b64 {vr(bufA[sel]+4*aa,2)}, v{self.VA} offset:{off}',
                          f'ds_read_b64 {vr(bufA[sel]+4*aa+2,2)}, v{self.VA} offset:{off+8}'])
            for e in range(ne):
                B.append(f'ds_read_b128 {vr(bufB[sel]+4*e,4)}, v{self.VB+b} offset:{4096*e}')
            order = []
            for k in range(max(na, ne)):
                if k < na: order += A[k]
                if k < ne: order.append(B[k])
            return order
        for r in reads(0): a(r)
        a(f'v_xor_b32 v4, 16, v{self.VEU}')
        if ps == 0: a(f'v_lshlrev_b32 v6, 16, v{P+5}')
        side_rd = []
        for tt in range(4):
            t = T0 + tt
            side_rd.append(f'ds_read_b64 {vr(self.UD+4*tt+2,2)}, v{self.VEU} offset:{4096*t}')
            side_rd.append(f'ds_read_b64 {vr(self.XR+4*tt+2,2)}, v4 offset:{4096*t}')
        side = []
        for tt in range(4):
            U = self.UD + 4 * tt; X = self.XR + 4 * tt
            side += [f'v_lshlrev_b32 v{U}, 16, v{U+2}', f'v_and_b32 v{U+1}, 0xffff0000, v{U+2}',
                     f'v_lshlrev_b32 v{U+2}, 16, v{U+3}', f'v_and_b32 v{U+3}, 0xffff0000, v{U+3}']
            side += [f'v_lshlrev_b32 v{X}, 16, v{X+2}', f'v_and_b32 v{X+1}, 0xffff0000, v{X+2}',
                     f'v_lshlrev_b32 v{X+2}, 16, v{X+3}', f'v_and_b32 v{X+3}, 0xffff0000, v{X+3}']
            side += [f'v_fma_f32 v{U+j}, v{U+j}, v6, v{X+j}' for j in range(4)]
        slots = list(hooks.get('slots', []))
        rate = hooks.get('rate', 4); sfrom = hooks.get('from', 0)
        started = set()
        cnt = 0
        self._nslots = 0
        for b in range(8):
            sel = b & 1
            nxt = reads(b + 1) if b < 7 else []
            if b == 0: nxt = side_rd + nxt if len(pairs) >= 20 else nxt + side_rd
            if b in hooks: hooks[b]()
            if ps == 1 and b in (2, 3, 4, 6): self.stamp(f'b{b}')
            a('s_waitcnt lgkmcnt(0)')
            extra_rd = list(nxt)
            n = 0
            for (aa, e) in pairs:
                t = aa + e - T0
                c = '0' if t not in started else vr(ACC + 4 * t, 4)
                started.add(t)
                a(f'v_mfma_f32_16x16x32_bf16 {vr(ACC+4*t,4)}, {vr(bufA[sel]+4*aa,4)}, {vr(bufB[sel]+4*e,4)}, {c}')
                k = 2 if len(extra_rd) > (len(pairs) - n) else 1
                for _ in range(k):
                    if extra_rd: a(extra_rd.pop(0))
                if b >= 1:
                    for _ in range(2 if ps == 0 else 1):
                        if side: a(side.pop(0))
                n += 1
                if b >= sfrom:
                    cnt += 1
                    if cnt % rate == 0 and slots:
                        slots.pop(0)(); self._nslots += 1
            for r in extra_rd: a(r)
        for s_ in side: a(s_)
        assert not slots, len(slots)

    def conv_epi(self, ps):
        a = self.a
        ACC = 12
        a('s_mov_b32 s70, 0x00003f80')
        a('s_mov_b32 s71, 0x3f800000')
        P = [(tt, h) for tt in range(4) for h in range(2)]
        Y = {p: ACC + 4 * p[0] + 2 * p[1] for p in P}
        U = {p: self.UD + 4 * p[0] + 2 * p[1] for p in P}
        O = {p: 84 + 2 * p[0] + p[1] for p in P}
        def step(f):
            for p in P: a(f(p))
        step(lambda p: f'v_pk_add_f32 {vr(Y[p],2)}, {vr(Y[p],2)}, {vr(U[p],2)}')
        step(lambda p: f'v_cvt_pk_bf16_f32 v{O[p]}, v{Y[p]}, v{Y[p]+1}')
        for tt in range(4):
            a(f'ds_write_b64 v{self.VHW}, {vr(84+2*tt,2)} offset:{self.HT + 512*tt}')
        a('v_bfe_u32 v4, v2, 2, 2')
        a(f'v_mul_u32_u24 v4, {self.WSTRIDE}, v4')
        a('v_lshrrev_b32 v5, 4, v2')
        a('v_lshl_add_u32 v4, v5, 5, v4')
        a('v_and_b32 v7, 3, v2')
        a('v_lshl_add_u32 v4, v7, 3, v4')
        a(f's_lshl_b32 s5, s{sWAVE}, 9')
        a(f's_add_u32 s5, s5, {self.HT}')
        a('v_add_u32 v4, s5, v4')
        a('v_mul_u32_u24 v5, 20480, v5')
        a('v_and_b32 v7, 15, v2')
        a('v_lshl_add_u32 v5, v7, 4, v5')
        a(f's_mul_i32 s62, s{sWAVE}, {16*20480}')
        a('s_lshr_b32 s6, s2, 3'); a('s_lshl_b32 s6, s6, 10'); a('s_add_u32 s62, s62, s6')
        a('s_bfe_u32 s6, s2, 0x20001'); a('s_lshl_b32 s6, s6, 8'); a('s_add_u32 s62, s62, s6')
        a('s_and_b32 s6, s2, 1'); a('s_lshl_b32 s6, s6, 3'); a('s_add_u32 s62, s62, s6')
        a(f's_add_u32 s62, s62, {HF + 64*ps*20480}')
        a('s_waitcnt lgkmcnt(0)')
        a('s_barrier')
        for m in range(4):
            a(f'ds_read_b64_tr_b16 {vr(76+2*m,2)}, v4 offset:{128*m}')
        for m in range(4):
            a(f's_waitcnt lgkmcnt({3-m})')
            a(f'buffer_store_dwordx2 {vr(76+2*m,2)}, v5, {sr(SRD_WS)}, s62 offen sc1')
            if m < 3: a(f's_add_u32 s62, s62, {4*20480}')

    HREG = {0: 96, 1: 176}
    ACC3 = {0: 8, 1: 36}
    WB = [172, 200, 228]
    GRAM = 164
    def h_bases(self):
        a = self.a
        a('s_lshl_b32 s78, s66, 2')
        a(f's_add_u32 s78, s78, s{sWAVE}')
        a('s_mul_i32 s78, s78, 20480')
        a(f's_add_u32 s81, s78, {HF}')
        a(f's_add_u32 s80, s81, {64*20480}')
    def hload(self, st, kap):
        a = self.a
        base = 's81' if st == 0 else 's80'
        reg = vr(self.hreg(st, kap), 4)
        if kap < 4:
            a(f'buffer_load_dwordx4 {reg}, v3, {sr(SRD_WS)}, {base} offen offset:{kap*1024} sc1')
        else:
            a(f's_add_u32 s5, {base}, {(kap//4)*4096}')
            a(f'buffer_load_dwordx4 {reg}, v3, {sr(SRD_WS)}, s5 offen offset:{(kap%4)*1024} sc1')
        self.vmi(('h', st, kap))
    seq0 = 0
    def wbi(self, kap): return (self.seq0 + kap) % 3
    def w1rd(self, kap, t):
        off = self.w1_lds(kap * 7 + t)
        reg = ['v3', 'v92', 'v93'][off >> 16]
        return f'ds_read_b128 {ar(self.WB[self.wbi(kap)]+4*t,4)}, {reg} offset:{off & 0xffff}'
    def w2l(self, idx):
        self.w2_load(idx); self.vmi(('w2', idx))

    def p3_stream(self, st, slots, hooks, nslot=2):
        a = self.a
        ACC = self.ACC3[st]
        slots = list(slots)
        def rd(gstep, t):
            kap = gstep % 20
            off = self.w1_lds(kap * 7 + t)
            reg = ['v3', 'v92', 'v93'][off >> 16]
            return f'ds_read_b128 {ar(self.WB[gstep % 3]+4*t,4)}, {reg} offset:{off & 0xffff}'
        for kap in range(20):
            gs = 20 * st + kap
            if kap in hooks: hooks[kap]()
            self.vm_wait(lambda t: t == ('h', st, kap), ' lgkmcnt(7)' if gs + 1 < 40 else ' lgkmcnt(0)')
            if kap in (0, 5, 10, 15): self.stamp(f's{st}k{kap}')
            h = self.hreg(st, kap)
            extra = [rd(gs + 2, t) for t in range(7)] if gs + 2 < 40 else []
            for t in range(7):
                acc = ACC + 4 * t
                c = '0' if kap == 0 else vr(acc, 4)
                a(f'v_mfma_f32_16x16x32_bf16 {vr(acc,4)}, {ar(self.WB[gs % 3]+4*t,4)}, {vr(h,4)}, {c}')
                if extra: a(extra.pop(0))
                if (nslot >= 2 and t in (2, 5)) or (nslot == 1 and t == 3) or (nslot == 3 and t == 0):
                    if slots: slots.pop(0)()
            g = self.GRAM + 4 * st
            c = '0' if kap == 0 else ar(g, 4)
            a(f'v_mfma_f32_16x16x32_bf16 {ar(g,4)}, {vr(h,4)}, {vr(h,4)}, {c}')
        for f in slots: f()

    def hreg(self, st, kap):
        if st == 0 and kap < 8: return 44 + 4 * kap
        return self.HREG[st] + 4 * kap
    def w1rd_g(self, gstep, t):
        kap = gstep % 20
        off = self.w1_lds(kap * 7 + t)
        reg = ['v3', 'v92', 'v93'][off >> 16]
        return f'ds_read_b128 {ar(self.WB[gstep % 3]+4*t,4)}, {reg} offset:{off & 0xffff}'

    def p3_epi(self, st, slots):
        a = self.a
        ACC = self.ACC3[st]
        slots = list(slots)
        a('v_lshrrev_b32 v5, 4, v2')
        a('v_lshlrev_b32 v6, 4, v5')
        a(f'v_add_u32 v6, {self.SBL}, v6')
        for t in range(7):
            a(f'ds_read_b128 {vr(64+4*t,4)}, v6 offset:{64*t}')
            a(f'ds_read_b128 {vr(124+4*t,4)}, v6 offset:{448+64*t}')
        a('v_and_b32 v4, 15, v2')
        a('v_cmp_eq_u32 s[62:63], 3, v5')
        a('v_lshrrev_b32 v6, 2, v4')
        a('v_cmp_eq_u32 s[64:65], v6, v5')
        a('v_and_b32 v6, 3, v4')
        a('v_cmp_eq_u32 s[68:69], 1, v6')
        a('v_cmp_eq_u32 s[70:71], 2, v6')
        a('v_cmp_eq_u32 vcc, 3, v6')
        for j in range(4): a(f'v_accvgpr_read_b32 v{96+j}, a{self.GRAM+4*st+j}')
        a(f'v_cndmask_b32 v112, 0, v{ACC+24}, s[62:63]')
        a('v_cndmask_b32 v96, v96, v97, s[68:69]')
        a('v_cndmask_b32 v96, v96, v98, s[70:71]')
        a('v_cndmask_b32 v96, v96, v99, vcc')
        a('v_cndmask_b32 v113, 0, v96, s[64:65]')
        if self.epi_after_gram: self.epi_after_gram(st)
        for rnd in ('16', '32'):
            a('v_mov_b32 v104, v112'); a('v_mov_b32 v105, v113')
            a(f'v_permlane{rnd}_swap_b32 v112, v104'); a(f'v_permlane{rnd}_swap_b32 v113, v105')
            a('v_add_f32 v112, v112, v104'); a('v_add_f32 v113, v113, v105')
        a(f'v_mul_f32 v112, {f2u(1.0/640):#x}, v112')
        a(f'v_mul_f32 v113, {f2u(1.0/640):#x}, v113')
        a('v_fma_f32 v113, -v112, v112, v113')
        a('v_max_f32 v113, 0, v113')
        a('v_cvt_pk_bf16_f32 v113, v113, v112')
        a('v_and_b32 v112, 0xffff0000, v113')
        a('v_lshlrev_b32 v113, 16, v113')
        a(f'v_add_f32 v113, {f2u(1e-5):#x}, v113')
        self.bf16r(113, 113)
        a('v_sqrt_f32 v113, v113')
        self.bf16r(113, 113)
        a('v_rcp_f32 v116, v113')
        a('v_mov_b32 v118, v112'); a('v_mov_b32 v119, v112'); a('v_mov_b32 v117, v116')
        OUT = 152
        def outreg(t): return OUT + (t >> 1) * 4 + (t & 1) * 2 if t < 6 else OUT + 12
        a('s_lshl_b32 s72, s72, 0') if False else None
        a('s_lshl_b32 s6, s66, 2')
        a(f's_add_u32 s6, s6, s{sWAVE}')
        a(f's_mul_i32 s6, s6, {NK2*1024}')
        a(f's_add_u32 s6, s6, {HH + 64*st*NK2*1024}')
        a('s_lshr_b32 s7, s67, 1'); a('s_mul_i32 s7, s7, 7')
        a('s_and_b32 s63, s67, 1')
        a('s_lshl_b32 s62, s63, 2'); a('s_add_u32 s62, s62, s7'); a('s_lshl_b32 s62, s62, 10'); a('s_add_u32 s62, s62, s6')
        a('s_add_u32 s64, s7, 3'); a('s_lshl_b32 s64, s64, 10'); a('s_lshl_b32 s63, s63, 3'); a('s_add_u32 s64, s64, s63'); a('s_add_u32 s64, s64, s6')
        a('s_mov_b32 s70, 0x00003f80')
        a('s_mov_b32 s71, 0x3f800000')
        a('s_waitcnt lgkmcnt(0)')
        for tp in range(4):
            ts = [2 * tp, 2 * tp + 1] if tp < 3 else [6]
            P = [(t, h) for t in ts for h in range(2)]
            X = {p: ACC + 4 * p[0] + 2 * p[1] for p in P}
            T = {p: 100 + i for i, p in enumerate(P)}
            def step(f):
                for p in P: a(f(p))
            S = lambda p: 64 + 4 * p[0] + 2 * p[1]
            Bq = lambda p: 124 + 4 * p[0] + 2 * p[1]
            step(lambda p: f'v_pk_fma_f32 {vr(X[p],2)}, {vr(S(p),2)}, v[118:119], {vr(X[p],2)} neg_lo:[1,0,0] neg_hi:[1,0,0]')
            step(lambda p: f'v_pk_fma_f32 {vr(X[p],2)}, {vr(X[p],2)}, v[116:117], {vr(Bq(p),2)}')
            step(lambda p: f'v_max_f32 v{X[p]}, 0, v{X[p]}')
            step(lambda p: f'v_max_f32 v{X[p]+1}, 0, v{X[p]+1}')
            step(lambda p: f'v_pk_mul_f32 {vr(X[p],2)}, {vr(X[p],2)}, {vr(X[p],2)}')
            step(lambda p: f'v_cvt_pk_bf16_f32 v{outreg(p[0])+p[1]}, v{X[p]}, v{X[p]+1}')
            for _ in range(self.EPI_SLOTS):
                if slots: slots.pop(0)()
            if tp < 3:
                a(f'buffer_store_dwordx4 {vr(OUT+4*tp,4)}, v3, {sr(SRD_WS)}, s62 offen offset:{1024*tp} sc1')
            else:
                a(f'buffer_store_dwordx2 {vr(OUT+12,2)}, v3, {sr(SRD_WS)}, s64 offen sc1')
            self.vmi(('Hst', st))
        for f in slots: f()
    EPI_SLOTS = 3
    epi_after_gram = None

    RING = {0: 176, 1: 112}
    P4_SL = 7
    RES = 232
    def p4_setup_alt(self):
        self.p4_setup()
    def p4_setup(self):
        a = self.a
        a('s_lshl_b32 s78, s72, 1')
        a(f's_mul_i32 s78, s78, {NK2}')
        a('s_add_u32 s78, s78, s74')
        a('s_lshl_b32 s78, s78, 10')
        a(f's_add_u32 s78, s78, {HH}')
    def Hload(self, st, kk, lt):
        a = self.a
        reg = vr(self.RING[st] + (kk % self.P4_SL) * 8 + lt * 4, 4)
        off = (64 * st + lt) * NK2 * 1024 + kk * 1024
        a(f's_add_u32 s5, s78, {(off // 4096) * 4096}')
        a(f'buffer_load_dwordx4 {reg}, v3, {sr(SRD_WS)}, s5 offen offset:{off % 4096} sc1')
        self.vmi(('H', st, kk, lt))

    def p4_stream(self, st, slots, hooks):
        a = self.a
        ACC = 8
        slots = list(slots)
        for kk in range(14):
            if kk in hooks: hooks[kk]()
            need = [('H', st, kk, 0), ('H', st, kk, 1)] + [('w2', kk * 5 + t) for t in range(5)]
            have = [t for t in need if t in self.vmlist]
            for t_ in need:
                assert t_ in self.vmlist or (t_[0] == 'w2' and t_[1] < self.NW2_CONV), (st, kk, t_)
            self.vm_wait(lambda t: t in have)
            if kk in (0, 4, 5, 8, 11, 12): self.stamp(f'q{st}k{kk}')
            n = 0
            for t in range(5):
                for lt in range(2):
                    acc = ACC + (t * 4 + 2 * st + lt) * 4
                    c = '0' if kk == 0 else vr(acc, 4)
                    a(f'v_mfma_f32_16x16x32_bf16 {vr(acc,4)}, {self.w2reg(kk*5+t)}, {vr(self.RING[st]+(kk%self.P4_SL)*8+lt*4,4)}, {c}')
                    if n in (1, 3, 6, 8) and slots and slots[0][0] <= kk: slots.pop(0)[1]()
                    n += 1
        for k_, f in slots: f()

    def p4_pre_loads(self):
        a = self.a
        R = self.RES
        L = []
        def setup():
            self.srd(SRD_B, P_B2, 640 * 2)
            a('v_and_b32 v168, 15, v2')
            a('v_lshrrev_b32 v169, 4, v2')
            a('s_mul_i32 s62, s73, 20')
            a('s_lshl_b32 s63, s72, 1')
            a(f's_add_u32 s63, s63, s{sWAVE}')
            a('s_add_u32 s64, s63, 62')
            a(f's_cmp_ge_u32 s{sWAVE}, 2')
            a('s_cselect_b32 s63, s64, s63')
            a('s_mov_b32 s81, s63')
            a('s_mul_i32 s63, s63, 20480')
            a(f's_add_u32 s63, s63, {HF}')
        def one(t):
            def f():
                if t == 0: setup()
                a('v_add_u32 v170, s62, v169')
                a(f'v_add_u32 v170, {4*t}, v170')
                a('v_lshrrev_b32 v171, 3, v170')
                a('v_lshlrev_b32 v171, 10, v171')
                a('v_bfe_u32 v172, v170, 1, 2')
                a('v_lshl_add_u32 v171, v172, 8, v171')
                a('v_and_b32 v172, 1, v170')
                a('v_lshl_add_u32 v171, v172, 3, v171')
                a('v_lshl_add_u32 v171, v168, 4, v171')
                a(f'buffer_load_dwordx2 {vr(R+2*t,2)}, v171, {sr(SRD_WS)}, s63 offen sc1')
                a('v_lshlrev_b32 v170, 3, v170')
                a(f'buffer_load_dwordx2 {vr(R+10+2*t,2)}, v170, {sr(SRD_B)}, 0 offen')
                self.vmi(('res', t)); self.vmi(('res', t))
            return f
        return [one(t) for t in range(5)]

    def p4_epilogue(self):
        a = self.a
        ACC = 8
        a('v_lshlrev_b32 v3, 4, v2')
        a(f's_mul_i32 s5, s{sWAVE}, 20480')
        a('v_add_u32 v6, s5, v3')
        for lt in range(4):
            L = a.label('Lp4w')
            a(f's_cmp_eq_u32 s{sWAVE}, {lt}'); a(f's_cbranch_scc1 {L}')
            for t in range(5):
                a(f'ds_write_b128 v6, {vr(ACC+(t*4+lt)*4,4)} offset:{lt*5120+t*1024}')
            a(f'{L}:')
        Lend = a.label('Lp4o')
        for lt in range(4):
            L = a.label('Lp4c')
            a(f's_cmp_eq_u32 s{sWAVE}, {lt}'); a(f's_cbranch_scc0 {L}')
            for t in range(5):
                for h in range(2):
                    a(f'v_pk_mov_b32 {vr(112+4*t+2*h,2)}, {vr(ACC+(t*4+lt)*4+2*h,2)}, {vr(ACC+(t*4+lt)*4+2*h,2)} op_sel:[0,1]')
            a(f's_branch {Lend}')
            a(f'{L}:')
        a(f'{Lend}:')
        a('s_waitcnt vmcnt(0) lgkmcnt(0)')
        a('s_barrier')
        for k in range(1, 4):
            a(f's_add_u32 s5, s{sWAVE}, {k}'); a('s_and_b32 s5, s5, 3'); a('s_mul_i32 s5, s5, 20480')
            a(f's_mul_i32 s6, s{sWAVE}, 5120'); a('s_add_u32 s5, s5, s6')
            a(f'v_add_u32 v{4+k}, s5, v3')
        for t in range(5):
            for k in range(1, 4):
                a(f'ds_read_b128 {vr(172+(t*3+k-1)*4,4)}, v{4+k} offset:{t*1024}')
        for t in range(5):
            for h in range(2):
                b = self.RES + 10 + 2 * t + h; hh = self.RES + 2 * t + h
                a(f'v_lshlrev_b32 v{8+4*t+2*h}, 16, v{b}'); a(f'v_and_b32 v{8+4*t+2*h+1}, 0xffff0000, v{b}')
                a(f'v_lshlrev_b32 v{28+4*t+2*h}, 16, v{hh}'); a(f'v_and_b32 v{28+4*t+2*h+1}, 0xffff0000, v{hh}')
                a(f'v_pk_add_f32 {vr(112+4*t+2*h,2)}, {vr(112+4*t+2*h,2)}, {vr(8+4*t+2*h,2)}')
                a(f'v_pk_add_f32 {vr(112+4*t+2*h,2)}, {vr(112+4*t+2*h,2)}, {vr(28+4*t+2*h,2)}')
        self.srd(SRD_A, P_OUT, 2048 * 1280)
        a(f's_mul_i32 s5, s81, {16*1280}')
        a('s_mul_i32 s6, s73, 160')
        a('s_add_u32 s5, s5, s6')
        a('v_mul_u32_u24 v4, 1280, v168')
        a('v_lshl_add_u32 v4, v169, 3, v4')
        a('s_mov_b32 s70, 0x00003f80')
        a('s_mov_b32 s71, 0x3f800000')
        a('s_waitcnt lgkmcnt(0)')
        P = [(t, h) for t in range(5) for h in range(2)]
        X = {p: 112 + 4 * p[0] + 2 * p[1] for p in P}
        def step(f):
            for p in P: a(f(p))
        for k in range(3):
            step(lambda p: f'v_pk_add_f32 {vr(X[p],2)}, {vr(X[p],2)}, {vr(172+(p[0]*3+k)*4+2*p[1],2)}')
        step(lambda p: f'v_cvt_pk_bf16_f32 v{60+2*p[0]+p[1]}, v{X[p]}, v{X[p]+1}')
        for t in range(5):
            a(f'buffer_store_dwordx2 {vr(60+2*t,2)}, v4, {sr(SRD_A)}, s5 offen offset:{32*t}')

    NW2_CONV = 6
    NW2_P3B = 30
    NW2_P3A = 0
    CRATE = 4
    RCB_K = 11
    FLAGA_B = 3
    NPASS1 = 0
    NSLOTA = 2
    PRE_B = 0
    EARLYHA = 0
    RCA_K = 16
    PFL_B = 3
    CHKA_IN = 0
    UGATE = 1
    WARM4 = 3
    ROWA_K = 5
    RPA_K = 14
    ROWB_K = 4
    AH3 = 8
    AH4 = 6

def build():
    out = []
    kn = NAME + '_kernel'
    out.append(f'; @launch grid=(256,1,1) block=(256,1,1) lds={LDS_SIZE}')
    out.append('.amdgcn_target "amdgcn-amd-amdhsa--gfx950"')
    out.append('.text')
    g = G4(True); g.kname = 'f'; a = g.a
    g.vmlist = []
    if g.timing:
        for i in range(16): a(f's_mov_b32 s{86+i}, 0')
    g.stamp('start')
    g.prologue()
    g.ln1x_issue()
    g.epoch_issue()
    Laux = a.label('Laux'); Lp3 = a.label('Lp3')
    a('s_cmp_lt_u32 s2, 160'); a(f's_cbranch_scc0 {Laux}')
    g.kgen_issue()
    g.code_prefetch()
    g.p2_consts(0)
    g.ln1x_compute(8)
    g.p2_consts(1)
    a('s_waitcnt vmcnt(12)')
    g.epoch_get()
    g.flag_signal(BFL1)
    g.stamp('ln1')
    g.ux_zero_pad()
    g.kg_hook1 = g.b1_issue
    g.kg_hook2 = g.b1_check_ux_issue
    g.kgen(0)
    g.p34_ids()
    g.w2_setup()
    g.pref_setup()
    g.h_bases()
    g.stamp('kgen')
    g.ux_write()
    g.flag_store_only(UFL)
    g.pfl_issue()
    g.stamp('ux')
    W1e = [lambda j=j: g.w1A(j) for j in range(11)] + [g.w1T]
    W2e = [lambda i=i: g.w2_load(i) for i in range(g.NW2_CONV)]
    mix = []
    while W1e or W2e:
        if W1e: mix.append(W1e.pop(0))
        for _ in range(3):
            if W2e: mix.append(W2e.pop(0))
    n1 = g.NPASS1
    def pfl1():
        g.pfl_check(0); g.sb_issue()
    if n1:
        g.conv_pass(0, {'slots': mix[:n1], 'rate': g.CRATE, 'from': 1, 1: pfl1})
    else:
        g.conv_pass(0, {})
    g.stamp('c1')
    g.conv_epi(0)
    g.stamp('e1')
    def flagA():
        if n1: a(f's_waitcnt vmcnt({g._nslots})')
        else: a('s_waitcnt vmcnt(0)')
        a('s_barrier'); g.wg_flag(BF2A, 4, 5)
    def pfl2():
        g.pfl_check(1); g.sb_issue()
    def pollA():
        g.fl_issue(BF2A, 8, 7)
    def chkA():
        a('s_waitcnt vmcnt(0)')
        g.sb_finish()
        g.fl_check(BF2A, 8, 7, (0, 40))
        for kap in range(8): g.hload(0, kap)
    if n1:
        hooks = {'slots': mix[n1:], 'rate': g.CRATE, 'from': 0, g.FLAGA_B: flagA, 6: pollA}
    else:
        hooks = {'slots': mix, 'rate': g.CRATE, 'from': g.PFL_B, 2: flagA, g.PFL_B: pfl2, 6: pollA}
    if g.CHKA_IN: hooks[7] = chkA
    g.conv_pass(1, hooks)
    g.stamp('b8')
    if not g.CHKA_IN: chkA()
    g.stamp('c2')
    g.conv_epi(1)
    g.stamp('e2')
    a(f's_branch {Lp3}')
    a(f'{Laux}:')
    g.code_prefetch()
    if g.PREPFIRST:
        g.prep_issue3()
        a('s_waitcnt vmcnt(0)')
        g.epoch_get()
        g.prep_compute3()
        g.ln1x_recompute_addr()
        g.ln1x_compute(63)
        g.flag_signal(BFL1)
        g.wg_flag(PFL, 4, 5)
        g.stamp('ln1')
    else:
        g.ln1x_compute(2, g.prep_issue3)
        a('s_waitcnt vmcnt(0)')
        g.epoch_get()
        g.flag_signal(BFL1)
        g.stamp('ln1')
        g.prep_compute3()
        g.flag_signal(PFL)
    g.p34_ids()
    g.w2_setup()
    g.pref_setup()
    g.h_bases()
    if g.UGATE: g.flag_wait(UFL, lanes=(0, 40))
    g.pfl_issue()
    g.pfl_check()
    g.sb_issue()
    if g.WARM4 in (2, 3): g.warm4()
    for f in mix_copy(g): f()
    if g.WARM4 == 1: g.warm4()
    g.fl_issue(BF2A, 8, 7)
    a('s_waitcnt vmcnt(0)')
    g.sb_finish()
    g.fl_check(BF2A, 8, 7, (0, 40))
    for kap in range(8): g.hload(0, kap)
    a('s_waitcnt lgkmcnt(0)')
    a('s_barrier')
    a(f'{Lp3}:')
    g.vmlist = [('h', 0, k) for k in range(8)]
    late = g.list_late()
    def lw(i):
        def f():
            late[i](); g.vmi(('w1', 0 if i < 8 else 1 if i < 16 else 2))
        return f
    a('v_add_u32 v92, 0x10000, v3')
    a('v_add_u32 v93, 0x20000, v3')
    for gs in range(2):
        for t in range(7): a(g.w1rd_g(gs, t))
    for i in range(8): lw(i)()
    g.stamp('p3go')
    hrest = [lambda k=k: g.hload(0, k) for k in range(8, 20)]
    wrest = [lw(i) for i in range(8, 23)]
    slotsA = wrest[:8] + hrest[:2]
    hrest = hrest[2:]; wrest = wrest[8:]
    while hrest or wrest:
        if wrest: slotsA.append(wrest.pop(0))
        if hrest: slotsA.append(hrest.pop(0))
    slotsA += [lambda i=i: g.w2l(i) for i in range(g.NW2_CONV, g.NW2_CONV + g.NW2_P3A)]
    def grp(n, flag=False):
        def f():
            g.vm_wait(lambda t: t == ('w1', n)); a('s_barrier')
            if flag: g.wg_flag(BF2B, 4, 5, only_conv=True)
        return f
    def pollB_issue():
        g.fl_issue(BF2B, 4, 94); g.vmi(('pollB',))
    g.p3_stream(0, slotsA, {4: grp(0, True), 9: grp(1), 14: grp(2), 16: pollB_issue}, nslot=g.NSLOTA)
    g.stamp('p3a')
    g.vm_wait(lambda t: t == ('pollB',))
    g.fl_check(BF2B, 4, 94, (0, 40))
    Lx = a.label('Lep')
    a('s_cmp_eq_u32 s2, 0'); a(f's_cbranch_scc0 {Lx}')
    a(f's_cmp_eq_u32 s{sWAVE}, 0'); a(f's_cbranch_scc0 {Lx}')
    a('s_mov_b64 exec, 1'); a('v_mov_b32 v4, s83'); a(f'v_mov_b32 v5, {EPX}')
    a(f'buffer_store_dword v4, v5, {sr(SRD_WS)}, 0 offen sc1'); a('s_mov_b64 exec, -1')
    a(f'{Lx}:')
    for kap in range(6): g.hload(1, kap)
    g.p3_epi(0, [lambda k=k: g.hload(1, k) for k in range(6, 14)])
    g.stamp('epA')
    n0 = g.NW2_CONV + g.NW2_P3A
    slotsB = [lambda k=k: g.hload(1, k) for k in range(14, 20)] + [lambda i=i: g.w2l(i) for i in range(n0, n0 + g.NW2_P3B)]
    def rowA():
        g.vm_wait(lambda t: t == ('Hst', 0)); a('s_barrier'); g.row_flag(RFA, 4, 5)
    def rowpollA():
        g.row_issue(RFA, 4, 5); g.vmi(('rpA',))
    HA0 = [lambda k=k, lt=lt: g.Hload(0, k, lt) for k in range(g.AH4) for lt in range(2)]
    nxt = n0 + g.NW2_P3B
    assert nxt <= 41
    if g.EARLYHA:
        def chkrA():
            g.vm_wait(lambda t: t == ('rpA',))
            g.row_check(RFA, 4, 5)
            g.p4_setup_alt()
            for f in HA0[:g.EARLYHA]: f()
        g.p3_stream(1, slotsB, {g.ROWA_K: rowA, g.RPA_K: rowpollA, g.RCA_K: chkrA})
        g.stamp('p3b')
        g.p4_setup()
        HA0 = HA0[g.EARLYHA:]
        def after_gram(st):
            if st == 1:
                for f in HA0: f()
        HA0r = []
    else:
        g.p3_stream(1, slotsB, {g.ROWA_K: rowA, g.RPA_K: rowpollA})
        g.stamp('p3b')
        g.vm_wait(lambda t: t == ('rpA',))
        g.row_check(RFA, 4, 5)
        g.p4_setup()
        def after_gram(st):
            if st == 1:
                for f in HA0[:6]: f()
        HA0r = HA0[6:]
    g.epi_after_gram = after_gram
    lateW2 = [lambda i=i: g.w2l(i) for i in range(nxt, 64)]
    g.p3_epi(1, HA0r + lateW2[:6])
    g.stamp('epB')
    rest = lateW2[6:] + [lambda i=i: g.w2l(i) for i in range(64, 70)]
    for f in rest[:6]: f()
    rest = rest[6:]
    sl = []
    for kk in range(14):
        if kk + g.AH4 < 14:
            sl += [(kk, lambda k=kk + g.AH4: g.Hload(0, k, 0)), (kk, lambda k=kk + g.AH4: g.Hload(0, k, 1))]
        for _ in range(3 if kk < 3 else 2):
            if rest: sl.append((kk, rest.pop(0)))
    pre = g.p4_pre_loads()
    if not g.PRE_B:
        for j, f in enumerate(pre): sl.append((7 + j, f))
    sl.sort(key=lambda x: x[0])
    def rowB():
        g.vm_wait(lambda t: t == ('Hst', 1)); a('s_barrier'); g.row_flag(RFB, 4, 5)
    def rowpollB():
        g.row_issue(RFB, 4, 5); g.vmi(('rpB',))
    def rowchkB():
        g.vm_wait(lambda t: t == ('rpB',)); g.row_check(RFB, 4, 5)
        for k in range(2):
            g.Hload(1, k, 0); g.Hload(1, k, 1)
    slB = [(g.RCB_K, lambda k=k, lt=lt: g.Hload(1, k, lt)) for k in range(2, g.AH4) for lt in range(2)]
    g.p4_stream(0, sl + slB, {g.ROWB_K: rowB, g.RCB_K - 3: rowpollB, g.RCB_K: rowchkB})
    g.stamp('p4a')
    slB2 = []
    for kk in range(14):
        if kk + g.AH4 < 14:
            slB2 += [(kk, lambda k=kk + g.AH4: g.Hload(1, k, 0)), (kk, lambda k=kk + g.AH4: g.Hload(1, k, 1))]
    if g.PRE_B:
        for j, f in enumerate(pre): slB2.append((2 + j, f))
        slB2.sort(key=lambda x: x[0])
    g.p4_stream(1, slB2, {})
    g.stamp('p4b')
    g.p4_epilogue()
    g.stamp_flush(0)
    g.end()
    out.append(kernel_header(kn)); out += a.finalize()
    out.append('.section .rodata,"a"')
    out.append(kernel_desc(kn))
    return '\n'.join(out) + '\n'

def mix_copy(g):
    W1e = [lambda j=j: g.w1A(j) for j in range(11)] + [g.w1T]
    W2e = [lambda i=i: g.w2_load(i) for i in range(g.NW2_CONV)]
    return W1e + W2e

if __name__ == '__main__':
    dst = sys.argv[1]
    gen.TIMING = 'timing' in sys.argv[2:]
    for x in sys.argv[2:]:
        if x.startswith('set='): gen.STAMPSET = set(x[4:].split(','))
        elif x.startswith('dbg='): gen.DBGSTAMP = int(x[4:])
        elif '=' in x:
            k, v = x.split('='); setattr(G4, k, int(v))
    gen.HF = HF; gen.BLK = BLK; gen.HH = HH; gen.W1F = W1F; gen.W2F = W2F; gen.SP = SP
    s = build()
    open(dst, 'w').write(s)
    import shutil, os
    if gen.TIMING: shutil.copy('stamps_k0.txt', dst + '.tags')
    print('wrote', dst, len(s), 'bytes')
```

```python
import sys
sys.path.insert(0, 'work')
import gen, gen2, gen3
from gen import sr, vr, ar, f2u, sWAVE, SRD_A, SRD_WS, SRD_B, SRD_C, SRD_D
from gen import P_X, P_B1, P_B2, P_OUT
from gen import kernel_header, kernel_desc, NAME
from gen2 import BLK, HF, W1F, W2F, SP, HH, EPX, LDS_SIZE, NK2
from gen3 import G3, BFL1, PFL, UFL

BF2A = 0x2003000
BF2B = 0x200C000
RFA  = 0x2008000
RFB  = 0x2009000

class G4(G3):
    HT = 16640
    SBL = 162048

    def ln1x_recompute_addr(self):
        a = self.a
        a('v_lshrrev_b32 v3, 5, v0')
        a('v_and_b32 v4, 31, v0')
    PREPFIRST = 0
    PREPL4 = 0
    def vm_reset(self): self.vm = []
    def vm(self): pass
    def vmi(self, tag): self.vmlist.append(tag)
    def vm_wait(self, pred, extra=''):
        last = max(i for i, t in enumerate(self.vmlist) if pred(t))
        n = len(self.vmlist) - 1 - last
        self.a(f's_waitcnt vmcnt({min(63, n)}){extra}')

    def w1_lds(self, idx):
        WS = self.WSTRIDE
        if idx < 44: return (idx % 4) * WS + 18688 + (idx // 4) * 1024
        if idx < 48: return 157952 + (idx - 44) * 1024
        if idx < 112:
            j = idx - 48
            return (j % 4) * WS + (j // 4) * 1024
        return self.UXB + (idx - 112) * 1024

    def pref_setup(self):
        a = self.a
        a('s_mul_i32 s76, s67, 143360')
        a(f's_add_u32 s76, s76, {W1F}')
        a(f's_mul_i32 s75, s{sWAVE}, {self.WSTRIDE}')
        a('v_lshlrev_b32 v3, 4, v2')
        a(f's_lshl_b32 s82, s{sWAVE}, 10')
        a('s_add_u32 s77, s76, s82')
    def w1A(self, j):
        self.dma([f's_add_u32 m0, s75, {18688 + 1024*j}'], [f's_add_u32 s5, s77, {4096*j}'])
    def w1T(self):
        self.dma([f's_add_u32 m0, s82, 157952'], [f's_add_u32 s5, s77, {44*1024}'])
    def w1T2(self):
        self.dma([f's_mov_b32 m0, {157952 + 4096}'], [f's_add_u32 s5, s76, {48*1024}'])
    def w1B(self, i):
        self.dma([f's_add_u32 m0, s75, {1024*i}'], [f's_add_u32 s5, s77, {48*1024 + 4096*i}'])
    def w1C(self, i):
        self.dma([f's_add_u32 m0, s82, {self.UXB + 4096*i}'], [f's_add_u32 s5, s77, {112*1024 + 4096*i}'])
    def list_late(self):
        return [lambda i=i: self.w1B(i) for i in range(16)] + [lambda i=i: self.w1C(i) for i in range(7)]

    def sb_issue(self):
        a = self.a
        a('v_lshlrev_b32 v35, 3, v2')
        a('s_mul_i32 s64, s67, 448')
        a(f's_add_u32 s64, s64, {SP}')
        for part in range(3):
            a(f'buffer_load_dwordx2 {vr(28+2*part,2)}, v35, {sr(SRD_WS)}, s64 offen sc1')
            if part < 2: a('s_add_u32 s64, s64, 7168')
        self.srd(SRD_B, P_B1, 1728 * 2)
        a('s_mul_i32 s64, s67, 216')
        a('v_lshlrev_b32 v36, 2, v2')
        a(f'buffer_load_dword v34, v36, {sr(SRD_B)}, s64 offen')
        return 4
    def sb_finish(self):
        a = self.a
        L = a.label('Lsb')
        a(f's_cmp_eq_u32 s{sWAVE}, 1'); a(f's_cbranch_scc0 {L}')
        a('s_mov_b32 exec_hi, 0x00ffffff')
        a('v_pk_add_f32 v[28:29], v[28:29], v[30:31]')
        a('v_pk_add_f32 v[28:29], v[28:29], v[32:33]')
        a('v_lshlrev_b32 v30, 16, v34')
        a('v_and_b32 v31, 0xffff0000, v34')
        a(f'v_add_u32 v35, {self.SBL}, v35')
        a('ds_write_b64 v35, v[28:29]')
        a('ds_write_b64 v35, v[30:31] offset:448')
        a('s_mov_b64 exec, -1')
        a(f'{L}:')

    def warm4(self):
        a = self.a
        a('s_sub_u32 s5, s2, 160'); a('s_lshr_b32 s5, s5, 3'); a('s_lshl_b32 s5, s5, 2'); a(f's_add_u32 s5, s5, s{sWAVE}')
        a('s_mul_i32 s6, s5, 10923'); a('s_lshr_b32 s6, s6, 16')
        a('s_mul_i32 s7, s6, 6'); a('s_sub_u32 s7, s5, s7')
        a('s_and_b32 s62, s2, 1'); a('s_lshl_b32 s62, s62, 3'); a('s_add_u32 s6, s6, s62')
        a('s_mul_i32 s6, s6, 143360'); a(f's_add_u32 s6, s6, {W1F}')
        a('s_add_u32 s63, s6, %d' % (139 * 1024))
        if self.WARM4 == 2:
            a('s_mul_i32 s7, s7, %d' % (24 * 1024)); a('s_add_u32 s6, s6, s7')
        else:
            a('s_lshl_b32 s7, s7, 14'); a('s_add_u32 s6, s6, s7'); a('s_add_u32 s6, s6, %d' % (48 * 1024))
        for i in range(24 if self.WARM4 == 2 else 16):
            a('s_min_u32 s62, s6, s63')
            a(f'buffer_load_dwordx4 {vr(176+4*(i%16),4)}, v3, {sr(SRD_WS)}, s62 offen sc1')
            a('s_add_u32 s6, s6, 1024')
        if self.WARM4 == 3: return
        if self.WARM4 == 2:
            a('s_mul_i32 s6, s5, %d' % (47 * 1024))
            a(f's_add_u32 s6, s6, {W2F}')
            a(f's_mov_b32 s7, {W2F + 2240*1024 - 1024}')
            for i in range(47):
                a('s_min_u32 s62, s6, s7')
                a(f'buffer_load_dwordx4 {vr(176+4*(i%16),4)}, v3, {sr(SRD_WS)}, s62 offen sc1')
                a('s_add_u32 s6, s6, 1024')
            return
        L = a.label('Lwm')
        a('s_cmp_ge_u32 s5, 32'); a(f's_cbranch_scc1 {L}')
        a('s_lshr_b32 s6, s5, 2'); a(f's_mul_i32 s6, s6, {NK2}')
        a('s_and_b32 s7, s5, 3'); a('s_mul_i32 s7, s7, 14'); a('s_add_u32 s6, s6, s7')
        a('s_mul_i32 s6, s6, 5120'); a(f's_add_u32 s6, s6, {W2F + 48*1024}')
        for i in range(22):
            a(f'buffer_load_dwordx4 {vr(176+4*(i%16),4)}, v3, {sr(SRD_WS)}, s6 offen sc1')
            a('s_add_u32 s6, s6, 1024')
        a(f'{L}:')

    def fl_issue(self, base, D, A):
        a = self.a
        a(f'v_lshlrev_b32 v{A}, 4, v2')
        a('s_and_b32 s5, s2, 7')
        a('s_lshl_b32 s5, s5, 10')
        a(f's_add_u32 s5, s5, {base}')
        a(f'buffer_load_dwordx4 {vr(D,4)}, v{A}, {sr(SRD_WS)}, s5 offen sc1')
    def fl_check(self, base, D, A, lanes):
        a = self.a
        Lp = a.label('Lfp'); Lc = a.label('Lfc'); Ld = a.label('Lfd')
        lo, hi = lanes
        m = ((1 << hi) - 1) ^ ((1 << lo) - 1)
        a(f's_mov_b32 s62, {m & 0xffffffff:#x}'); a(f's_mov_b32 s63, {m >> 32:#x}')
        a('s_mov_b32 s7, 0')
        a(f's_branch {Lc}')
        a(f'{Lp}:')
        a('s_sleep 1')
        self.fl_issue(base, D, A)
        a('s_waitcnt vmcnt(0)')
        a(f'{Lc}:')
        for j in range(4): a(f'v_xor_b32 v{D+j}, s83, v{D+j}')
        a(f'v_or_b32 v{D}, v{D}, v{D+1}')
        a(f'v_or3_b32 v{D}, v{D}, v{D+2}, v{D+3}')
        a(f'v_cmp_ne_u32 vcc, 0, v{D}')
        a('s_and_b64 vcc, vcc, s[62:63]')
        a(f's_cbranch_vccz {Ld}')
        a('s_add_u32 s7, s7, 1')
        a('s_cmp_lt_u32 s7, 0x40000')
        a(f's_cbranch_scc1 {Lp}')
        a(f'{Ld}:')
    def row_issue(self, base, D, A):
        a = self.a
        a(f'v_and_b32 v{A}, 3, v2')
        a(f'v_lshlrev_b32 v{A}, 2, v{A}')
        a('s_lshr_b32 s5, s72, 1')
        a('s_lshl_b32 s5, s5, 7')
        a(f's_lshl_b32 s6, s{sWAVE}, 4')
        a('s_add_u32 s5, s5, s6')
        a(f's_add_u32 s5, s5, {base}')
        a(f'buffer_load_dword v{D}, v{A}, {sr(SRD_WS)}, s5 offen sc1')
    def row_check(self, base, D, A):
        a = self.a
        Lp = a.label('Lrp'); Lc = a.label('Lrc'); Ld = a.label('Lrd')
        a('s_mov_b32 s7, 0')
        a(f's_branch {Lc}')
        a(f'{Lp}:')
        a('s_sleep 1')
        self.row_issue(base, D, A)
        a('s_waitcnt vmcnt(0)')
        a(f'{Lc}:')
        a(f'v_cmp_ne_u32 vcc, s83, v{D}')
        a(f's_cbranch_vccz {Ld}')
        a('s_add_u32 s7, s7, 1')
        a('s_cmp_lt_u32 s7, 0x40000')
        a(f's_cbranch_scc1 {Lp}')
        a(f'{Ld}:')
    def wg_flag(self, base, D, A, only_conv=False):
        a = self.a
        L = a.label('Lsig')
        a(f's_cmp_eq_u32 s{sWAVE}, 0'); a(f's_cbranch_scc0 {L}')
        if only_conv:
            a('s_cmp_lt_u32 s2, 160'); a(f's_cbranch_scc0 {L}')
        a(f'v_lshlrev_b32 v{A}, 10, v2')
        a('s_lshl_b32 s5, s2, 2')
        a(f's_add_u32 s5, s5, {base}')
        a(f'v_mov_b32 v{D}, s83')
        a('s_mov_b64 exec, 0xff')
        a(f'buffer_store_dword v{D}, v{A}, {sr(SRD_WS)}, s5 offen sc1')
        a('s_mov_b64 exec, -1')
        a(f'{L}:')
    def row_flag(self, base, D, A):
        a = self.a
        L = a.label('Lsig')
        a(f's_cmp_eq_u32 s{sWAVE}, 0'); a(f's_cbranch_scc0 {L}')
        a('s_lshl_b32 s5, s66, 7')
        a('s_lshl_b32 s6, s67, 2')
        a('s_add_u32 s5, s5, s6')
        a(f's_add_u32 s5, s5, {base}')
        a('s_mov_b64 exec, 1')
        a(f'v_mov_b32 v{D}, s83')
        a(f'v_mov_b32 v{A}, 0')
        a(f'buffer_store_dword v{D}, v{A}, {sr(SRD_WS)}, s5 offen sc1')
        a('s_mov_b64 exec, -1')
        a(f'{L}:')

    UD = 108
    XR = 124
    def conv_pass(self, ps, hooks):
        a = self.a
        P = self.PL
        ACC = 12
        bufA = [44, 164]; bufB = [76, 196]
        T0 = 4 * ps
        pairs = [(aa, e) for aa in range(8) for e in range(8) if T0 <= aa + e <= T0 + 3]
        na = max(p[0] for p in pairs) + 1; ne = max(p[1] for p in pairs) + 1
        def reads(b):
            sel = b & 1
            A = []; B = []
            for aa in range(na):
                off = 512 * (7 - aa) + 64 * (7 - b)
                A.append([f'ds_read_b64 {vr(bufA[sel]+4*aa,2)}, v{self.VA} offset:{off}',
                          f'ds_read_b64 {vr(bufA[sel]+4*aa+2,2)}, v{self.VA} offset:{off+8}'])
            for e in range(ne):
                B.append(f'ds_read_b128 {vr(bufB[sel]+4*e,4)}, v{self.VB+b} offset:{4096*e}')
            order = []
            for k in range(max(na, ne)):
                if k < na: order += A[k]
                if k < ne: order.append(B[k])
            return order
        for r in reads(0): a(r)
        a(f'v_xor_b32 v4, 16, v{self.VEU}')
        if ps == 0: a(f'v_lshlrev_b32 v6, 16, v{P+5}')
        side_rd = []
        for tt in range(4):
            t = T0 + tt
            side_rd.append(f'ds_read_b64 {vr(self.UD+4*tt+2,2)}, v{self.VEU} offset:{4096*t}')
            side_rd.append(f'ds_read_b64 {vr(self.XR+4*tt+2,2)}, v4 offset:{4096*t}')
        side = []
        for tt in range(4):
            U = self.UD + 4 * tt; X = self.XR + 4 * tt
            side += [f'v_lshlrev_b32 v{U}, 16, v{U+2}', f'v_and_b32 v{U+1}, 0xffff0000, v{U+2}',
                     f'v_lshlrev_b32 v{U+2}, 16, v{U+3}', f'v_and_b32 v{U+3}, 0xffff0000, v{U+3}']
            side += [f'v_lshlrev_b32 v{X}, 16, v{X+2}', f'v_and_b32 v{X+1}, 0xffff0000, v{X+2}',
                     f'v_lshlrev_b32 v{X+2}, 16, v{X+3}', f'v_and_b32 v{X+3}, 0xffff0000, v{X+3}']
            side += [f'v_fma_f32 v{U+j}, v{U+j}, v6, v{X+j}' for j in range(4)]
        slots = list(hooks.get('slots', []))
        rate = hooks.get('rate', 4); sfrom = hooks.get('from', 0)
        started = set()
        cnt = 0
        self._nslots = 0
        for b in range(8):
            sel = b & 1
            nxt = reads(b + 1) if b < 7 else []
            if b == 0: nxt = side_rd + nxt if len(pairs) >= 20 else nxt + side_rd
            if b in hooks: hooks[b]()
            if ps == 1 and b in (2, 3, 4, 6): self.stamp(f'b{b}')
            a('s_waitcnt lgkmcnt(0)')
            extra_rd = list(nxt)
            n = 0
            for (aa, e) in pairs:
                t = aa + e - T0
                c = '0' if t not in started else vr(ACC + 4 * t, 4)
                started.add(t)
                a(f'v_mfma_f32_16x16x32_bf16 {vr(ACC+4*t,4)}, {vr(bufA[sel]+4*aa,4)}, {vr(bufB[sel]+4*e,4)}, {c}')
                k = 2 if len(extra_rd) > (len(pairs) - n) else 1
                for _ in range(k):
                    if extra_rd: a(extra_rd.pop(0))
                if b >= 1:
                    for _ in range(2 if ps == 0 else 1):
                        if side: a(side.pop(0))
                n += 1
                if b >= sfrom:
                    cnt += 1
                    if cnt % rate == 0 and slots:
                        slots.pop(0)(); self._nslots += 1
            for r in extra_rd: a(r)
        for s_ in side: a(s_)
        assert not slots, len(slots)

    def conv_epi(self, ps):
        a = self.a
        ACC = 12
        a('s_mov_b32 s70, 0x00003f80')
        a('s_mov_b32 s71, 0x3f800000')
        P = [(tt, h) for tt in range(4) for h in range(2)]
        Y = {p: ACC + 4 * p[0] + 2 * p[1] for p in P}
        U = {p: self.UD + 4 * p[0] + 2 * p[1] for p in P}
        O = {p: 84 + 2 * p[0] + p[1] for p in P}
        def step(f):
            for p in P: a(f(p))
        step(lambda p: f'v_pk_add_f32 {vr(Y[p],2)}, {vr(Y[p],2)}, {vr(U[p],2)}')
        step(lambda p: f'v_cvt_pk_bf16_f32 v{O[p]}, v{Y[p]}, v{Y[p]+1}')
        for tt in range(4):
            a(f'ds_write_b64 v{self.VHW}, {vr(84+2*tt,2)} offset:{self.HT + 512*tt}')
        a('v_bfe_u32 v4, v2, 2, 2')
        a(f'v_mul_u32_u24 v4, {self.WSTRIDE}, v4')
        a('v_lshrrev_b32 v5, 4, v2')
        a('v_lshl_add_u32 v4, v5, 5, v4')
        a('v_and_b32 v7, 3, v2')
        a('v_lshl_add_u32 v4, v7, 3, v4')
        a(f's_lshl_b32 s5, s{sWAVE}, 9')
        a(f's_add_u32 s5, s5, {self.HT}')
        a('v_add_u32 v4, s5, v4')
        a('v_mul_u32_u24 v5, 20480, v5')
        a('v_and_b32 v7, 15, v2')
        a('v_lshl_add_u32 v5, v7, 4, v5')
        a(f's_mul_i32 s62, s{sWAVE}, {16*20480}')
        a('s_lshr_b32 s6, s2, 3'); a('s_lshl_b32 s6, s6, 10'); a('s_add_u32 s62, s62, s6')
        a('s_bfe_u32 s6, s2, 0x20001'); a('s_lshl_b32 s6, s6, 8'); a('s_add_u32 s62, s62, s6')
        a('s_and_b32 s6, s2, 1'); a('s_lshl_b32 s6, s6, 3'); a('s_add_u32 s62, s62, s6')
        a(f's_add_u32 s62, s62, {HF + 64*ps*20480}')
        a('s_waitcnt lgkmcnt(0)')
        a('s_barrier')
        for m in range(4):
            a(f'ds_read_b64_tr_b16 {vr(76+2*m,2)}, v4 offset:{128*m}')
        for m in range(4):
            a(f's_waitcnt lgkmcnt({3-m})')
            a(f'buffer_store_dwordx2 {vr(76+2*m,2)}, v5, {sr(SRD_WS)}, s62 offen sc1')
            if m < 3: a(f's_add_u32 s62, s62, {4*20480}')

    HREG = {0: 96, 1: 176}
    ACC3 = {0: 8, 1: 36}
    WB = [172, 200, 228]
    GRAM = 164
    def h_bases(self):
        a = self.a
        a('s_lshl_b32 s78, s66, 2')
        a(f's_add_u32 s78, s78, s{sWAVE}')
        a('s_mul_i32 s78, s78, 20480')
        a(f's_add_u32 s81, s78, {HF}')
        a(f's_add_u32 s80, s81, {64*20480}')
    def hload(self, st, kap):
        a = self.a
        base = 's81' if st == 0 else 's80'
        reg = vr(self.hreg(st, kap), 4)
        if kap < 4:
            a(f'buffer_load_dwordx4 {reg}, v3, {sr(SRD_WS)}, {base} offen offset:{kap*1024} sc1')
        else:
            a(f's_add_u32 s5, {base}, {(kap//4)*4096}')
            a(f'buffer_load_dwordx4 {reg}, v3, {sr(SRD_WS)}, s5 offen offset:{(kap%4)*1024} sc1')
        self.vmi(('h', st, kap))
    seq0 = 0
    def wbi(self, kap): return (self.seq0 + kap) % 3
    def w1rd(self, kap, t):
        off = self.w1_lds(kap * 7 + t)
        reg = ['v3', 'v92', 'v93'][off >> 16]
        return f'ds_read_b128 {ar(self.WB[self.wbi(kap)]+4*t,4)}, {reg} offset:{off & 0xffff}'
    def w2l(self, idx):
        self.w2_load(idx); self.vmi(('w2', idx))

    def p3_stream(self, st, slots, hooks, nslot=2):
        a = self.a
        ACC = self.ACC3[st]
        slots = list(slots)
        def rd(gstep, t):
            kap = gstep % 20
            off = self.w1_lds(kap * 7 + t)
            reg = ['v3', 'v92', 'v93'][off >> 16]
            return f'ds_read_b128 {ar(self.WB[gstep % 3]+4*t,4)}, {reg} offset:{off & 0xffff}'
        for kap in range(20):
            gs = 20 * st + kap
            if kap in hooks: hooks[kap]()
            self.vm_wait(lambda t: t == ('h', st, kap), ' lgkmcnt(7)' if gs + 1 < 40 else ' lgkmcnt(0)')
            if kap in (0, 5, 10, 15): self.stamp(f's{st}k{kap}')
            h = self.hreg(st, kap)
            extra = [rd(gs + 2, t) for t in range(7)] if gs + 2 < 40 else []
            for t in range(7):
                acc = ACC + 4 * t
                c = '0' if kap == 0 else vr(acc, 4)
                a(f'v_mfma_f32_16x16x32_bf16 {vr(acc,4)}, {ar(self.WB[gs % 3]+4*t,4)}, {vr(h,4)}, {c}')
                if extra: a(extra.pop(0))
                if (nslot >= 2 and t in (2, 5)) or (nslot == 1 and t == 3) or (nslot == 3 and t == 0):
                    if slots: slots.pop(0)()
            g = self.GRAM + 4 * st
            c = '0' if kap == 0 else ar(g, 4)
            a(f'v_mfma_f32_16x16x32_bf16 {ar(g,4)}, {vr(h,4)}, {vr(h,4)}, {c}')
        for f in slots: f()

    def hreg(self, st, kap):
        if st == 0 and kap < 8: return 44 + 4 * kap
        return self.HREG[st] + 4 * kap
    def w1rd_g(self, gstep, t):
        kap = gstep % 20
        off = self.w1_lds(kap * 7 + t)
        reg = ['v3', 'v92', 'v93'][off >> 16]
        return f'ds_read_b128 {ar(self.WB[gstep % 3]+4*t,4)}, {reg} offset:{off & 0xffff}'

    def p3_epi(self, st, slots):
        a = self.a
        ACC = self.ACC3[st]
        slots = list(slots)
        a('v_lshrrev_b32 v5, 4, v2')
        a('v_lshlrev_b32 v6, 4, v5')
        a(f'v_add_u32 v6, {self.SBL}, v6')
        for t in range(7):
            a(f'ds_read_b128 {vr(64+4*t,4)}, v6 offset:{64*t}')
            a(f'ds_read_b128 {vr(124+4*t,4)}, v6 offset:{448+64*t}')
        a('v_and_b32 v4, 15, v2')
        a('v_cmp_eq_u32 s[62:63], 3, v5')
        a('v_lshrrev_b32 v6, 2, v4')
        a('v_cmp_eq_u32 s[64:65], v6, v5')
        a('v_and_b32 v6, 3, v4')
        a('v_cmp_eq_u32 s[68:69], 1, v6')
        a('v_cmp_eq_u32 s[70:71], 2, v6')
        a('v_cmp_eq_u32 vcc, 3, v6')
        for j in range(4): a(f'v_accvgpr_read_b32 v{96+j}, a{self.GRAM+4*st+j}')
        a(f'v_cndmask_b32 v112, 0, v{ACC+24}, s[62:63]')
        a('v_cndmask_b32 v96, v96, v97, s[68:69]')
        a('v_cndmask_b32 v96, v96, v98, s[70:71]')
        a('v_cndmask_b32 v96, v96, v99, vcc')
        a('v_cndmask_b32 v113, 0, v96, s[64:65]')
        if self.epi_after_gram: self.epi_after_gram(st)
        for rnd in ('16', '32'):
            a('v_mov_b32 v104, v112'); a('v_mov_b32 v105, v113')
            a(f'v_permlane{rnd}_swap_b32 v112, v104'); a(f'v_permlane{rnd}_swap_b32 v113, v105')
            a('v_add_f32 v112, v112, v104'); a('v_add_f32 v113, v113, v105')
        a(f'v_mul_f32 v112, {f2u(1.0/640):#x}, v112')
        a(f'v_mul_f32 v113, {f2u(1.0/640):#x}, v113')
        a('v_fma_f32 v113, -v112, v112, v113')
        a('v_max_f32 v113, 0, v113')
        a('v_cvt_pk_bf16_f32 v113, v113, v112')
        a('v_and_b32 v112, 0xffff0000, v113')
        a('v_lshlrev_b32 v113, 16, v113')
        a(f'v_add_f32 v113, {f2u(1e-5):#x}, v113')
        self.bf16r(113, 113)
        a('v_sqrt_f32 v113, v113')
        self.bf16r(113, 113)
        a('v_rcp_f32 v116, v113')
        a('v_mov_b32 v118, v112'); a('v_mov_b32 v119, v112'); a('v_mov_b32 v117, v116')
        OUT = 152
        def outreg(t): return OUT + (t >> 1) * 4 + (t & 1) * 2 if t < 6 else OUT + 12
        a('s_lshl_b32 s72, s72, 0') if False else None
        a('s_lshl_b32 s6, s66, 2')
        a(f's_add_u32 s6, s6, s{sWAVE}')
        a(f's_mul_i32 s6, s6, {NK2*1024}')
        a(f's_add_u32 s6, s6, {HH + 64*st*NK2*1024}')
        a('s_lshr_b32 s7, s67, 1'); a('s_mul_i32 s7, s7, 7')
        a('s_and_b32 s63, s67, 1')
        a('s_lshl_b32 s62, s63, 2'); a('s_add_u32 s62, s62, s7'); a('s_lshl_b32 s62, s62, 10'); a('s_add_u32 s62, s62, s6')
        a('s_add_u32 s64, s7, 3'); a('s_lshl_b32 s64, s64, 10'); a('s_lshl_b32 s63, s63, 3'); a('s_add_u32 s64, s64, s63'); a('s_add_u32 s64, s64, s6')
        a('s_mov_b32 s70, 0x00003f80')
        a('s_mov_b32 s71, 0x3f800000')
        a('s_waitcnt lgkmcnt(0)')
        for tp in range(4):
            ts = [2 * tp, 2 * tp + 1] if tp < 3 else [6]
            P = [(t, h) for t in ts for h in range(2)]
            X = {p: ACC + 4 * p[0] + 2 * p[1] for p in P}
            T = {p: 100 + i for i, p in enumerate(P)}
            def step(f):
                for p in P: a(f(p))
            S = lambda p: 64 + 4 * p[0] + 2 * p[1]
            Bq = lambda p: 124 + 4 * p[0] + 2 * p[1]
            step(lambda p: f'v_pk_fma_f32 {vr(X[p],2)}, {vr(S(p),2)}, v[118:119], {vr(X[p],2)} neg_lo:[1,0,0] neg_hi:[1,0,0]')
            step(lambda p: f'v_pk_fma_f32 {vr(X[p],2)}, {vr(X[p],2)}, v[116:117], {vr(Bq(p),2)}')
            step(lambda p: f'v_max_f32 v{X[p]}, 0, v{X[p]}')
            step(lambda p: f'v_max_f32 v{X[p]+1}, 0, v{X[p]+1}')
            step(lambda p: f'v_pk_mul_f32 {vr(X[p],2)}, {vr(X[p],2)}, {vr(X[p],2)}')
            step(lambda p: f'v_cvt_pk_bf16_f32 v{outreg(p[0])+p[1]}, v{X[p]}, v{X[p]+1}')
            for _ in range(self.EPI_SLOTS):
                if slots: slots.pop(0)()
            if tp < 3:
                a(f'buffer_store_dwordx4 {vr(OUT+4*tp,4)}, v3, {sr(SRD_WS)}, s62 offen offset:{1024*tp} sc1')
            else:
                a(f'buffer_store_dwordx2 {vr(OUT+12,2)}, v3, {sr(SRD_WS)}, s64 offen sc1')
            self.vmi(('Hst', st))
        for f in slots: f()
    EPI_SLOTS = 3
    epi_after_gram = None

    RING = {0: 176, 1: 112}
    P4_SL = 7
    RES = 232
    def p4_setup_alt(self):
        self.p4_setup()
    def p4_setup(self):
        a = self.a
        a('s_lshl_b32 s78, s72, 1')
        a(f's_mul_i32 s78, s78, {NK2}')
        a('s_add_u32 s78, s78, s74')
        a('s_lshl_b32 s78, s78, 10')
        a(f's_add_u32 s78, s78, {HH}')
    def Hload(self, st, kk, lt):
        a = self.a
        reg = vr(self.RING[st] + (kk % self.P4_SL) * 8 + lt * 4, 4)
        off = (64 * st + lt) * NK2 * 1024 + kk * 1024
        a(f's_add_u32 s5, s78, {(off // 4096) * 4096}')
        a(f'buffer_load_dwordx4 {reg}, v3, {sr(SRD_WS)}, s5 offen offset:{off % 4096} sc1')
        self.vmi(('H', st, kk, lt))

    def p4_stream(self, st, slots, hooks):
        a = self.a
        ACC = 8
        slots = list(slots)
        for kk in range(14):
            if kk in hooks: hooks[kk]()
            need = [('H', st, kk, 0), ('H', st, kk, 1)] + [('w2', kk * 5 + t) for t in range(5)]
            have = [t for t in need if t in self.vmlist]
            for t_ in need:
                assert t_ in self.vmlist or (t_[0] == 'w2' and t_[1] < self.NW2_CONV), (st, kk, t_)
            self.vm_wait(lambda t: t in have)
            if kk in (0, 4, 5, 8, 11, 12): self.stamp(f'q{st}k{kk}')
            n = 0
            for t in range(5):
                for lt in range(2):
                    acc = ACC + (t * 4 + 2 * st + lt) * 4
                    c = '0' if kk == 0 else vr(acc, 4)
                    a(f'v_mfma_f32_16x16x32_bf16 {vr(acc,4)}, {self.w2reg(kk*5+t)}, {vr(self.RING[st]+(kk%self.P4_SL)*8+lt*4,4)}, {c}')
                    if n in (1, 3, 6, 8) and slots and slots[0][0] <= kk: slots.pop(0)[1]()
                    n += 1
        for k_, f in slots: f()

    def p4_pre_loads(self):
        a = self.a
        R = self.RES
        L = []
        def setup():
            self.srd(SRD_B, P_B2, 640 * 2)
            a('v_and_b32 v168, 15, v2')
            a('v_lshrrev_b32 v169, 4, v2')
            a('s_mul_i32 s62, s73, 20')
            a('s_lshl_b32 s63, s72, 1')
            a(f's_add_u32 s63, s63, s{sWAVE}')
            a('s_add_u32 s64, s63, 62')
            a(f's_cmp_ge_u32 s{sWAVE}, 2')
            a('s_cselect_b32 s63, s64, s63')
            a('s_mov_b32 s81, s63')
            a('s_mul_i32 s63, s63, 20480')
            a(f's_add_u32 s63, s63, {HF}')
        def one(t):
            def f():
                if t == 0: setup()
                a('v_add_u32 v170, s62, v169')
                a(f'v_add_u32 v170, {4*t}, v170')
                a('v_lshrrev_b32 v171, 3, v170')
                a('v_lshlrev_b32 v171, 10, v171')
                a('v_bfe_u32 v172, v170, 1, 2')
                a('v_lshl_add_u32 v171, v172, 8, v171')
                a('v_and_b32 v172, 1, v170')
                a('v_lshl_add_u32 v171, v172, 3, v171')
                a('v_lshl_add_u32 v171, v168, 4, v171')
                a(f'buffer_load_dwordx2 {vr(R+2*t,2)}, v171, {sr(SRD_WS)}, s63 offen sc1')
                a('v_lshlrev_b32 v170, 3, v170')
                a(f'buffer_load_dwordx2 {vr(R+10+2*t,2)}, v170, {sr(SRD_B)}, 0 offen')
                self.vmi(('res', t)); self.vmi(('res', t))
            return f
        return [one(t) for t in range(5)]

    def p4_epilogue(self):
        a = self.a
        ACC = 8
        a('v_lshlrev_b32 v3, 4, v2')
        a(f's_mul_i32 s5, s{sWAVE}, 20480')
        a('v_add_u32 v6, s5, v3')
        for lt in range(4):
            L = a.label('Lp4w')
            a(f's_cmp_eq_u32 s{sWAVE}, {lt}'); a(f's_cbranch_scc1 {L}')
            for t in range(5):
                a(f'ds_write_b128 v6, {vr(ACC+(t*4+lt)*4,4)} offset:{lt*5120+t*1024}')
            a(f'{L}:')
        Lend = a.label('Lp4o')
        for lt in range(4):
            L = a.label('Lp4c')
            a(f's_cmp_eq_u32 s{sWAVE}, {lt}'); a(f's_cbranch_scc0 {L}')
            for t in range(5):
                for h in range(2):
                    a(f'v_pk_mov_b32 {vr(112+4*t+2*h,2)}, {vr(ACC+(t*4+lt)*4+2*h,2)}, {vr(ACC+(t*4+lt)*4+2*h,2)} op_sel:[0,1]')
            a(f's_branch {Lend}')
            a(f'{L}:')
        a(f'{Lend}:')
        a('s_waitcnt vmcnt(0) lgkmcnt(0)')
        a('s_barrier')
        for k in range(1, 4):
            a(f's_add_u32 s5, s{sWAVE}, {k}'); a('s_and_b32 s5, s5, 3'); a('s_mul_i32 s5, s5, 20480')
            a(f's_mul_i32 s6, s{sWAVE}, 5120'); a('s_add_u32 s5, s5, s6')
            a(f'v_add_u32 v{4+k}, s5, v3')
        for t in range(5):
            for k in range(1, 4):
                a(f'ds_read_b128 {vr(172+(t*3+k-1)*4,4)}, v{4+k} offset:{t*1024}')
        for t in range(5):
            for h in range(2):
                b = self.RES + 10 + 2 * t + h; hh = self.RES + 2 * t + h
                a(f'v_lshlrev_b32 v{8+4*t+2*h}, 16, v{b}'); a(f'v_and_b32 v{8+4*t+2*h+1}, 0xffff0000, v{b}')
                a(f'v_lshlrev_b32 v{28+4*t+2*h}, 16, v{hh}'); a(f'v_and_b32 v{28+4*t+2*h+1}, 0xffff0000, v{hh}')
                a(f'v_pk_add_f32 {vr(112+4*t+2*h,2)}, {vr(112+4*t+2*h,2)}, {vr(8+4*t+2*h,2)}')
                a(f'v_pk_add_f32 {vr(112+4*t+2*h,2)}, {vr(112+4*t+2*h,2)}, {vr(28+4*t+2*h,2)}')
        self.srd(SRD_A, P_OUT, 2048 * 1280)
        a(f's_mul_i32 s5, s81, {16*1280}')
        a('s_mul_i32 s6, s73, 160')
        a('s_add_u32 s5, s5, s6')
        a('v_mul_u32_u24 v4, 1280, v168')
        a('v_lshl_add_u32 v4, v169, 3, v4')
        a('s_mov_b32 s70, 0x00003f80')
        a('s_mov_b32 s71, 0x3f800000')
        a('s_waitcnt lgkmcnt(0)')
        P = [(t, h) for t in range(5) for h in range(2)]
        X = {p: 112 + 4 * p[0] + 2 * p[1] for p in P}
        def step(f):
            for p in P: a(f(p))
        for k in range(3):
            step(lambda p: f'v_pk_add_f32 {vr(X[p],2)}, {vr(X[p],2)}, {vr(172+(p[0]*3+k)*4+2*p[1],2)}')
        step(lambda p: f'v_cvt_pk_bf16_f32 v{60+2*p[0]+p[1]}, v{X[p]}, v{X[p]+1}')
        for t in range(5):
            a(f'buffer_store_dwordx2 {vr(60+2*t,2)}, v4, {sr(SRD_A)}, s5 offen offset:{32*t}')

    NW2_CONV = 6
    NW2_P3B = 30
    NW2_P3A = 0
    CRATE = 4
    RCB_K = 11
    FLAGA_B = 3
    NPASS1 = 0
    NSLOTA = 2
    PRE_B = 0
    EARLYHA = 0
    RCA_K = 16
    PFL_B = 3
    CHKA_IN = 0
    UGATE = 1
    WARM4 = 3
    ROWA_K = 5
    RPA_K = 14
    ROWB_K = 4
    AH3 = 8
    AH4 = 6

def build():
    out = []
    kn = NAME + '_kernel'
    out.append(f'; @launch grid=(256,1,1) block=(256,1,1) lds={LDS_SIZE}')
    out.append('.amdgcn_target "amdgcn-amd-amdhsa--gfx950"')
    out.append('.text')
    g = G4(True); g.kname = 'f'; a = g.a
    g.vmlist = []
    if g.timing:
        for i in range(16): a(f's_mov_b32 s{86+i}, 0')
    g.stamp('start')
    g.prologue()
    g.ln1x_issue()
    g.epoch_issue()
    Laux = a.label('Laux'); Lp3 = a.label('Lp3')
    a('s_cmp_lt_u32 s2, 160'); a(f's_cbranch_scc0 {Laux}')
    g.kgen_issue()
    g.code_prefetch()
    g.p2_consts(0)
    g.ln1x_compute(8)
    g.p2_consts(1)
    a('s_waitcnt vmcnt(12)')
    g.epoch_get()
    g.flag_signal(BFL1)
    g.stamp('ln1')
    g.ux_zero_pad()
    g.kg_hook1 = g.b1_issue
    g.kg_hook2 = g.b1_check_ux_issue
    g.kgen(0)
    g.p34_ids()
    g.w2_setup()
    g.pref_setup()
    g.h_bases()
    g.stamp('kgen')
    g.ux_write()
    g.flag_store_only(UFL)
    g.pfl_issue()
    g.stamp('ux')
    W1e = [lambda j=j: g.w1A(j) for j in range(11)] + [g.w1T]
    W2e = [lambda i=i: g.w2_load(i) for i in range(g.NW2_CONV)]
    mix = []
    while W1e or W2e:
        if W1e: mix.append(W1e.pop(0))
        for _ in range(3):
            if W2e: mix.append(W2e.pop(0))
    n1 = g.NPASS1
    def pfl1():
        g.pfl_check(0); g.sb_issue()
    if n1:
        g.conv_pass(0, {'slots': mix[:n1], 'rate': g.CRATE, 'from': 1, 1: pfl1})
    else:
        g.conv_pass(0, {})
    g.stamp('c1')
    g.conv_epi(0)
    g.stamp('e1')
    def flagA():
        if n1: a(f's_waitcnt vmcnt({g._nslots})')
        else: a('s_waitcnt vmcnt(0)')
        a('s_barrier'); g.wg_flag(BF2A, 4, 5)
    def pfl2():
        g.pfl_check(1); g.sb_issue()
    def pollA():
        g.fl_issue(BF2A, 8, 7)
    def chkA():
        a('s_waitcnt vmcnt(0)')
        g.sb_finish()
        g.fl_check(BF2A, 8, 7, (0, 40))
        for kap in range(8): g.hload(0, kap)
    if n1:
        hooks = {'slots': mix[n1:], 'rate': g.CRATE, 'from': 0, g.FLAGA_B: flagA, 6: pollA}
    else:
        hooks = {'slots': mix, 'rate': g.CRATE, 'from': g.PFL_B, 2: flagA, g.PFL_B: pfl2, 6: pollA}
    if g.CHKA_IN: hooks[7] = chkA
    g.conv_pass(1, hooks)
    g.stamp('b8')
    if not g.CHKA_IN: chkA()
    g.stamp('c2')
    g.conv_epi(1)
    g.stamp('e2')
    a(f's_branch {Lp3}')
    a(f'{Laux}:')
    g.code_prefetch()
    if g.PREPFIRST:
        g.prep_issue3()
        a('s_waitcnt vmcnt(0)')
        g.epoch_get()
        g.prep_compute3()
        g.ln1x_recompute_addr()
        g.ln1x_compute(63)
        g.flag_signal(BFL1)
        g.wg_flag(PFL, 4, 5)
        g.stamp('ln1')
    elif g.PREPL4 == 2:
        g.ln1x_compute(0)
        g.epoch_get()
        g.flag_signal(BFL1)
        g.stamp('ln1')
        g.prep_issue3()
        g.prep_compute3()
        g.flag_signal(PFL)
    elif g.PREPL4 == 1:
        g.ln1x_compute(0)
        g.epoch_get()
        g.prep_issue3()
        g.flag_signal(BFL1, drain=False)
        g.stamp('ln1')
        g.prep_compute3()
        g.flag_signal(PFL)
    else:
        g.ln1x_compute(2, g.prep_issue3)
        a('s_waitcnt vmcnt(0)')
        g.epoch_get()
        g.flag_signal(BFL1)
        g.stamp('ln1')
        g.prep_compute3()
        g.flag_signal(PFL)
    g.p34_ids()
    g.w2_setup()
    g.pref_setup()
    g.h_bases()
    if g.UGATE: g.flag_wait(UFL, lanes=(0, 40))
    g.pfl_issue()
    g.pfl_check()
    g.sb_issue()
    if g.WARM4 in (2, 3): g.warm4()
    for f in mix_copy(g): f()
    if g.WARM4 == 1: g.warm4()
    g.fl_issue(BF2A, 8, 7)
    a('s_waitcnt vmcnt(0)')
    g.sb_finish()
    g.fl_check(BF2A, 8, 7, (0, 40))
    for kap in range(8): g.hload(0, kap)
    a('s_waitcnt lgkmcnt(0)')
    a('s_barrier')
    a(f'{Lp3}:')
    g.vmlist = [('h', 0, k) for k in range(8)]
    late = g.list_late()
    def lw(i):
        def f():
            late[i](); g.vmi(('w1', 0 if i < 8 else 1 if i < 16 else 2))
        return f
    a('v_add_u32 v92, 0x10000, v3')
    a('v_add_u32 v93, 0x20000, v3')
    for gs in range(2):
        for t in range(7): a(g.w1rd_g(gs, t))
    for i in range(8): lw(i)()
    g.stamp('p3go')
    hrest = [lambda k=k: g.hload(0, k) for k in range(8, 20)]
    wrest = [lw(i) for i in range(8, 23)]
    slotsA = wrest[:8] + hrest[:2]
    hrest = hrest[2:]; wrest = wrest[8:]
    while hrest or wrest:
        if wrest: slotsA.append(wrest.pop(0))
        if hrest: slotsA.append(hrest.pop(0))
    slotsA += [lambda i=i: g.w2l(i) for i in range(g.NW2_CONV, g.NW2_CONV + g.NW2_P3A)]
    def grp(n, flag=False):
        def f():
            g.vm_wait(lambda t: t == ('w1', n)); a('s_barrier')
            if flag: g.wg_flag(BF2B, 4, 5, only_conv=True)
        return f
    def pollB_issue():
        g.fl_issue(BF2B, 4, 94); g.vmi(('pollB',))
    g.p3_stream(0, slotsA, {4: grp(0, True), 9: grp(1), 14: grp(2), 16: pollB_issue}, nslot=g.NSLOTA)
    g.stamp('p3a')
    g.vm_wait(lambda t: t == ('pollB',))
    g.fl_check(BF2B, 4, 94, (0, 40))
    Lx = a.label('Lep')
    a('s_cmp_eq_u32 s2, 0'); a(f's_cbranch_scc0 {Lx}')
    a(f's_cmp_eq_u32 s{sWAVE}, 0'); a(f's_cbranch_scc0 {Lx}')
    a('s_mov_b64 exec, 1'); a('v_mov_b32 v4, s83'); a(f'v_mov_b32 v5, {EPX}')
    a(f'buffer_store_dword v4, v5, {sr(SRD_WS)}, 0 offen sc1'); a('s_mov_b64 exec, -1')
    a(f'{Lx}:')
    for kap in range(6): g.hload(1, kap)
    g.p3_epi(0, [lambda k=k: g.hload(1, k) for k in range(6, 14)])
    g.stamp('epA')
    n0 = g.NW2_CONV + g.NW2_P3A
    slotsB = [lambda k=k: g.hload(1, k) for k in range(14, 20)] + [lambda i=i: g.w2l(i) for i in range(n0, n0 + g.NW2_P3B)]
    def rowA():
        g.vm_wait(lambda t: t == ('Hst', 0)); a('s_barrier'); g.row_flag(RFA, 4, 5)
    def rowpollA():
        g.row_issue(RFA, 4, 5); g.vmi(('rpA',))
    HA0 = [lambda k=k, lt=lt: g.Hload(0, k, lt) for k in range(g.AH4) for lt in range(2)]
    nxt = n0 + g.NW2_P3B
    assert nxt <= 41
    if g.EARLYHA:
        def chkrA():
            g.vm_wait(lambda t: t == ('rpA',))
            g.row_check(RFA, 4, 5)
            g.p4_setup_alt()
            for f in HA0[:g.EARLYHA]: f()
        g.p3_stream(1, slotsB, {g.ROWA_K: rowA, g.RPA_K: rowpollA, g.RCA_K: chkrA})
        g.stamp('p3b')
        g.p4_setup()
        HA0 = HA0[g.EARLYHA:]
        def after_gram(st):
            if st == 1:
                for f in HA0: f()
        HA0r = []
    else:
        g.p3_stream(1, slotsB, {g.ROWA_K: rowA, g.RPA_K: rowpollA})
        g.stamp('p3b')
        g.vm_wait(lambda t: t == ('rpA',))
        g.row_check(RFA, 4, 5)
        g.p4_setup()
        def after_gram(st):
            if st == 1:
                for f in HA0[:6]: f()
        HA0r = HA0[6:]
    g.epi_after_gram = after_gram
    lateW2 = [lambda i=i: g.w2l(i) for i in range(nxt, 64)]
    g.p3_epi(1, HA0r + lateW2[:6])
    g.stamp('epB')
    rest = lateW2[6:] + [lambda i=i: g.w2l(i) for i in range(64, 70)]
    for f in rest[:6]: f()
    rest = rest[6:]
    sl = []
    for kk in range(14):
        if kk + g.AH4 < 14:
            sl += [(kk, lambda k=kk + g.AH4: g.Hload(0, k, 0)), (kk, lambda k=kk + g.AH4: g.Hload(0, k, 1))]
        for _ in range(3 if kk < 3 else 2):
            if rest: sl.append((kk, rest.pop(0)))
    pre = g.p4_pre_loads()
    if not g.PRE_B:
        for j, f in enumerate(pre): sl.append((7 + j, f))
    sl.sort(key=lambda x: x[0])
    def rowB():
        g.vm_wait(lambda t: t == ('Hst', 1)); a('s_barrier'); g.row_flag(RFB, 4, 5)
    def rowpollB():
        g.row_issue(RFB, 4, 5); g.vmi(('rpB',))
    def rowchkB():
        g.vm_wait(lambda t: t == ('rpB',)); g.row_check(RFB, 4, 5)
        for k in range(2):
            g.Hload(1, k, 0); g.Hload(1, k, 1)
    slB = [(g.RCB_K, lambda k=k, lt=lt: g.Hload(1, k, lt)) for k in range(2, g.AH4) for lt in range(2)]
    g.p4_stream(0, sl + slB, {g.ROWB_K: rowB, g.RCB_K - 3: rowpollB, g.RCB_K: rowchkB})
    g.stamp('p4a')
    slB2 = []
    for kk in range(14):
        if kk + g.AH4 < 14:
            slB2 += [(kk, lambda k=kk + g.AH4: g.Hload(1, k, 0)), (kk, lambda k=kk + g.AH4: g.Hload(1, k, 1))]
    if g.PRE_B:
        for j, f in enumerate(pre): slB2.append((2 + j, f))
        slB2.sort(key=lambda x: x[0])
    g.p4_stream(1, slB2, {})
    g.stamp('p4b')
    g.p4_epilogue()
    g.stamp_flush(0)
    g.end()
    out.append(kernel_header(kn)); out += a.finalize()
    out.append('.section .rodata,"a"')
    out.append(kernel_desc(kn))
    return '\n'.join(out) + '\n'

def mix_copy(g):
    W1e = [lambda j=j: g.w1A(j) for j in range(11)] + [g.w1T]
    W2e = [lambda i=i: g.w2_load(i) for i in range(g.NW2_CONV)]
    return W1e + W2e

if __name__ == '__main__':
    dst = sys.argv[1]
    gen.TIMING = 'timing' in sys.argv[2:]
    for x in sys.argv[2:]:
        if x.startswith('set='): gen.STAMPSET = set(x[4:].split(','))
        elif x.startswith('dbg='): gen.DBGSTAMP = int(x[4:])
        elif '=' in x:
            k, v = x.split('='); setattr(G4, k, int(v))
    gen.HF = HF; gen.BLK = BLK; gen.HH = HH; gen.W1F = W1F; gen.W2F = W2F; gen.SP = SP
    s = build()
    open(dst, 'w').write(s)
    import shutil, os
    if gen.TIMING: shutil.copy('stamps_k0.txt', dst + '.tags')
    print('wrote', dst, len(s), 'bytes')
```

```python
import sys
sys.path.insert(0, 'work')
import gen, gen2, gen3
from gen import sr, vr, ar, f2u, sWAVE, SRD_A, SRD_WS, SRD_B, SRD_C, SRD_D
from gen import P_X, P_B1, P_B2, P_OUT
from gen import kernel_header, kernel_desc, NAME
from gen2 import BLK, HF, W1F, W2F, SP, HH, EPX, LDS_SIZE, NK2
from gen3 import G3, BFL1, PFL, UFL

BF2A = 0x2003000
BF2B = 0x200C000
RFA  = 0x2008000
RFB  = 0x2009000

class G4(G3):
    HT = 16640
    SBL = 162048

    def ln1x_recompute_addr(self):
        a = self.a
        a('v_lshrrev_b32 v3, 5, v0')
        a('v_and_b32 v4, 31, v0')
    PREPFIRST = 0
    PREPL4 = 0
    def vm_reset(self): self.vm = []
    def vm(self): pass
    def vmi(self, tag): self.vmlist.append(tag)
    def vm_wait(self, pred, extra=''):
        last = max(i for i, t in enumerate(self.vmlist) if pred(t))
        n = len(self.vmlist) - 1 - last
        self.a(f's_waitcnt vmcnt({min(63, n)}){extra}')

    def w1_lds(self, idx):
        WS = self.WSTRIDE
        if idx < 44: return (idx % 4) * WS + 18688 + (idx // 4) * 1024
        if idx < 48: return 157952 + (idx - 44) * 1024
        if idx < 112:
            j = idx - 48
            return (j % 4) * WS + (j // 4) * 1024
        return self.UXB + (idx - 112) * 1024

    def pref_setup(self):
        a = self.a
        a('s_mul_i32 s76, s67, 143360')
        a(f's_add_u32 s76, s76, {W1F}')
        a(f's_mul_i32 s75, s{sWAVE}, {self.WSTRIDE}')
        a('v_lshlrev_b32 v3, 4, v2')
        a(f's_lshl_b32 s82, s{sWAVE}, 10')
        a('s_add_u32 s77, s76, s82')
    def w1A(self, j):
        self.dma([f's_add_u32 m0, s75, {18688 + 1024*j}'], [f's_add_u32 s5, s77, {4096*j}'])
    def w1T(self):
        self.dma([f's_add_u32 m0, s82, 157952'], [f's_add_u32 s5, s77, {44*1024}'])
    def w1T2(self):
        self.dma([f's_mov_b32 m0, {157952 + 4096}'], [f's_add_u32 s5, s76, {48*1024}'])
    def w1B(self, i):
        self.dma([f's_add_u32 m0, s75, {1024*i}'], [f's_add_u32 s5, s77, {48*1024 + 4096*i}'])
    def w1C(self, i):
        self.dma([f's_add_u32 m0, s82, {self.UXB + 4096*i}'], [f's_add_u32 s5, s77, {112*1024 + 4096*i}'])
    def list_late(self):
        return [lambda i=i: self.w1B(i) for i in range(16)] + [lambda i=i: self.w1C(i) for i in range(7)]

    def sb_issue(self):
        a = self.a
        a('v_lshlrev_b32 v35, 3, v2')
        a('s_mul_i32 s64, s67, 448')
        a(f's_add_u32 s64, s64, {SP}')
        for part in range(3):
            a(f'buffer_load_dwordx2 {vr(28+2*part,2)}, v35, {sr(SRD_WS)}, s64 offen sc1')
            if part < 2: a('s_add_u32 s64, s64, 7168')
        self.srd(SRD_B, P_B1, 1728 * 2)
        a('s_mul_i32 s64, s67, 216')
        a('v_lshlrev_b32 v36, 2, v2')
        a(f'buffer_load_dword v34, v36, {sr(SRD_B)}, s64 offen')
        return 4
    def sb_finish(self):
        a = self.a
        L = a.label('Lsb')
        a(f's_cmp_eq_u32 s{sWAVE}, 1'); a(f's_cbranch_scc0 {L}')
        a('s_mov_b32 exec_hi, 0x00ffffff')
        a('v_pk_add_f32 v[28:29], v[28:29], v[30:31]')
        a('v_pk_add_f32 v[28:29], v[28:29], v[32:33]')
        a('v_lshlrev_b32 v30, 16, v34')
        a('v_and_b32 v31, 0xffff0000, v34')
        a(f'v_add_u32 v35, {self.SBL}, v35')
        a('ds_write_b64 v35, v[28:29]')
        a('ds_write_b64 v35, v[30:31] offset:448')
        a('s_mov_b64 exec, -1')
        a(f'{L}:')

    def warm4(self):
        a = self.a
        a('s_sub_u32 s5, s2, 160'); a('s_lshr_b32 s5, s5, 3'); a('s_lshl_b32 s5, s5, 2'); a(f's_add_u32 s5, s5, s{sWAVE}')
        a('s_mul_i32 s6, s5, 10923'); a('s_lshr_b32 s6, s6, 16')
        a('s_mul_i32 s7, s6, 6'); a('s_sub_u32 s7, s5, s7')
        a('s_and_b32 s62, s2, 1'); a('s_lshl_b32 s62, s62, 3'); a('s_add_u32 s6, s6, s62')
        a('s_mul_i32 s6, s6, 143360'); a(f's_add_u32 s6, s6, {W1F}')
        a('s_add_u32 s63, s6, %d' % (139 * 1024))
        if self.WARM4 == 2:
            a('s_mul_i32 s7, s7, %d' % (24 * 1024)); a('s_add_u32 s6, s6, s7')
        else:
            a('s_lshl_b32 s7, s7, 14'); a('s_add_u32 s6, s6, s7'); a('s_add_u32 s6, s6, %d' % (48 * 1024))
        for i in range(24 if self.WARM4 == 2 else 16):
            a('s_min_u32 s62, s6, s63')
            a(f'buffer_load_dwordx4 {vr(176+4*(i%16),4)}, v3, {sr(SRD_WS)}, s62 offen sc1')
            a('s_add_u32 s6, s6, 1024')
        if self.WARM4 == 3: return
        if self.WARM4 == 2:
            a('s_mul_i32 s6, s5, %d' % (47 * 1024))
            a(f's_add_u32 s6, s6, {W2F}')
            a(f's_mov_b32 s7, {W2F + 2240*1024 - 1024}')
            for i in range(47):
                a('s_min_u32 s62, s6, s7')
                a(f'buffer_load_dwordx4 {vr(176+4*(i%16),4)}, v3, {sr(SRD_WS)}, s62 offen sc1')
                a('s_add_u32 s6, s6, 1024')
            return
        L = a.label('Lwm')
        a('s_cmp_ge_u32 s5, 32'); a(f's_cbranch_scc1 {L}')
        a('s_lshr_b32 s6, s5, 2'); a(f's_mul_i32 s6, s6, {NK2}')
        a('s_and_b32 s7, s5, 3'); a('s_mul_i32 s7, s7, 14'); a('s_add_u32 s6, s6, s7')
        a('s_mul_i32 s6, s6, 5120'); a(f's_add_u32 s6, s6, {W2F + 48*1024}')
        for i in range(22):
            a(f'buffer_load_dwordx4 {vr(176+4*(i%16),4)}, v3, {sr(SRD_WS)}, s6 offen sc1')
            a('s_add_u32 s6, s6, 1024')
        a(f'{L}:')

    def fl_issue(self, base, D, A):
        a = self.a
        a(f'v_lshlrev_b32 v{A}, 4, v2')
        a('s_and_b32 s5, s2, 7')
        a('s_lshl_b32 s5, s5, 10')
        a(f's_add_u32 s5, s5, {base}')
        a(f'buffer_load_dwordx4 {vr(D,4)}, v{A}, {sr(SRD_WS)}, s5 offen sc1')
    def fl_check(self, base, D, A, lanes):
        a = self.a
        Lp = a.label('Lfp'); Lc = a.label('Lfc'); Ld = a.label('Lfd')
        lo, hi = lanes
        m = ((1 << hi) - 1) ^ ((1 << lo) - 1)
        a(f's_mov_b32 s62, {m & 0xffffffff:#x}'); a(f's_mov_b32 s63, {m >> 32:#x}')
        a('s_mov_b32 s7, 0')
        a(f's_branch {Lc}')
        a(f'{Lp}:')
        a('s_sleep 1')
        self.fl_issue(base, D, A)
        a('s_waitcnt vmcnt(0)')
        a(f'{Lc}:')
        for j in range(4): a(f'v_xor_b32 v{D+j}, s83, v{D+j}')
        a(f'v_or_b32 v{D}, v{D}, v{D+1}')
        a(f'v_or3_b32 v{D}, v{D}, v{D+2}, v{D+3}')
        a(f'v_cmp_ne_u32 vcc, 0, v{D}')
        a('s_and_b64 vcc, vcc, s[62:63]')
        a(f's_cbranch_vccz {Ld}')
        a('s_add_u32 s7, s7, 1')
        a('s_cmp_lt_u32 s7, 0x40000')
        a(f's_cbranch_scc1 {Lp}')
        a(f'{Ld}:')
    def row_issue(self, base, D, A):
        a = self.a
        a(f'v_and_b32 v{A}, 3, v2')
        a(f'v_lshlrev_b32 v{A}, 2, v{A}')
        a('s_lshr_b32 s5, s72, 1')
        a('s_lshl_b32 s5, s5, 7')
        a(f's_lshl_b32 s6, s{sWAVE}, 4')
        a('s_add_u32 s5, s5, s6')
        a(f's_add_u32 s5, s5, {base}')
        a(f'buffer_load_dword v{D}, v{A}, {sr(SRD_WS)}, s5 offen sc1')
    def row_check(self, base, D, A):
        a = self.a
        Lp = a.label('Lrp'); Lc = a.label('Lrc'); Ld = a.label('Lrd')
        a('s_mov_b32 s7, 0')
        a(f's_branch {Lc}')
        a(f'{Lp}:')
        a('s_sleep 1')
        self.row_issue(base, D, A)
        a('s_waitcnt vmcnt(0)')
        a(f'{Lc}:')
        a(f'v_cmp_ne_u32 vcc, s83, v{D}')
        a(f's_cbranch_vccz {Ld}')
        a('s_add_u32 s7, s7, 1')
        a('s_cmp_lt_u32 s7, 0x40000')
        a(f's_cbranch_scc1 {Lp}')
        a(f'{Ld}:')
    def wg_flag(self, base, D, A, only_conv=False):
        a = self.a
        L = a.label('Lsig')
        a(f's_cmp_eq_u32 s{sWAVE}, 0'); a(f's_cbranch_scc0 {L}')
        if only_conv:
            a('s_cmp_lt_u32 s2, 160'); a(f's_cbranch_scc0 {L}')
        a(f'v_lshlrev_b32 v{A}, 10, v2')
        a('s_lshl_b32 s5, s2, 2')
        a(f's_add_u32 s5, s5, {base}')
        a(f'v_mov_b32 v{D}, s83')
        a('s_mov_b64 exec, 0xff')
        a(f'buffer_store_dword v{D}, v{A}, {sr(SRD_WS)}, s5 offen sc1')
        a('s_mov_b64 exec, -1')
        a(f'{L}:')
    def row_flag(self, base, D, A):
        a = self.a
        L = a.label('Lsig')
        a(f's_cmp_eq_u32 s{sWAVE}, 0'); a(f's_cbranch_scc0 {L}')
        a('s_lshl_b32 s5, s66, 7')
        a('s_lshl_b32 s6, s67, 2')
        a('s_add_u32 s5, s5, s6')
        a(f's_add_u32 s5, s5, {base}')
        a('s_mov_b64 exec, 1')
        a(f'v_mov_b32 v{D}, s83')
        a(f'v_mov_b32 v{A}, 0')
        a(f'buffer_store_dword v{D}, v{A}, {sr(SRD_WS)}, s5 offen sc1')
        a('s_mov_b64 exec, -1')
        a(f'{L}:')

    UD = 108
    XR = 124
    def conv_pass(self, ps, hooks):
        a = self.a
        P = self.PL
        ACC = 12
        bufA = [44, 164]; bufB = [76, 196]
        T0 = 4 * ps
        pairs = [(aa, e) for aa in range(8) for e in range(8) if T0 <= aa + e <= T0 + 3]
        na = max(p[0] for p in pairs) + 1; ne = max(p[1] for p in pairs) + 1
        def reads(b):
            sel = b & 1
            A = []; B = []
            for aa in range(na):
                off = 512 * (7 - aa) + 64 * (7 - b)
                A.append([f'ds_read_b64 {vr(bufA[sel]+4*aa,2)}, v{self.VA} offset:{off}',
                          f'ds_read_b64 {vr(bufA[sel]+4*aa+2,2)}, v{self.VA} offset:{off+8}'])
            for e in range(ne):
                B.append(f'ds_read_b128 {vr(bufB[sel]+4*e,4)}, v{self.VB+b} offset:{4096*e}')
            order = []
            for k in range(max(na, ne)):
                if k < na: order += A[k]
                if k < ne: order.append(B[k])
            return order
        for r in reads(0): a(r)
        a(f'v_xor_b32 v4, 16, v{self.VEU}')
        if ps == 0: a(f'v_lshlrev_b32 v6, 16, v{P+5}')
        side_rd = []
        for tt in range(4):
            t = T0 + tt
            side_rd.append(f'ds_read_b64 {vr(self.UD+4*tt+2,2)}, v{self.VEU} offset:{4096*t}')
            side_rd.append(f'ds_read_b64 {vr(self.XR+4*tt+2,2)}, v4 offset:{4096*t}')
        side = []
        for tt in range(4):
            U = self.UD + 4 * tt; X = self.XR + 4 * tt
            side += [f'v_lshlrev_b32 v{U}, 16, v{U+2}', f'v_and_b32 v{U+1}, 0xffff0000, v{U+2}',
                     f'v_lshlrev_b32 v{U+2}, 16, v{U+3}', f'v_and_b32 v{U+3}, 0xffff0000, v{U+3}']
            side += [f'v_lshlrev_b32 v{X}, 16, v{X+2}', f'v_and_b32 v{X+1}, 0xffff0000, v{X+2}',
                     f'v_lshlrev_b32 v{X+2}, 16, v{X+3}', f'v_and_b32 v{X+3}, 0xffff0000, v{X+3}']
            side += [f'v_fma_f32 v{U+j}, v{U+j}, v6, v{X+j}' for j in range(4)]
        slots = list(hooks.get('slots', []))
        rate = hooks.get('rate', 4); sfrom = hooks.get('from', 0)
        started = set()
        cnt = 0
        self._nslots = 0
        for b in range(8):
            sel = b & 1
            nxt = reads(b + 1) if b < 7 else []
            if b == 0: nxt = side_rd + nxt if len(pairs) >= 20 else nxt + side_rd
            if b in hooks: hooks[b]()
            if ps == 1 and b in (2, 3, 4, 6): self.stamp(f'b{b}')
            a('s_waitcnt lgkmcnt(0)')
            extra_rd = list(nxt)
            n = 0
            for (aa, e) in pairs:
                t = aa + e - T0
                c = '0' if t not in started else vr(ACC + 4 * t, 4)
                started.add(t)
                a(f'v_mfma_f32_16x16x32_bf16 {vr(ACC+4*t,4)}, {vr(bufA[sel]+4*aa,4)}, {vr(bufB[sel]+4*e,4)}, {c}')
                k = 2 if len(extra_rd) > (len(pairs) - n) else 1
                for _ in range(k):
                    if extra_rd: a(extra_rd.pop(0))
                if b >= 1:
                    for _ in range(2 if ps == 0 else 1):
                        if side: a(side.pop(0))
                n += 1
                if b >= sfrom:
                    cnt += 1
                    if cnt % rate == 0 and slots:
                        slots.pop(0)(); self._nslots += 1
            for r in extra_rd: a(r)
        for s_ in side: a(s_)
        assert not slots, len(slots)

    def conv_epi(self, ps):
        a = self.a
        ACC = 12
        a('s_mov_b32 s70, 0x00003f80')
        a('s_mov_b32 s71, 0x3f800000')
        P = [(tt, h) for tt in range(4) for h in range(2)]
        Y = {p: ACC + 4 * p[0] + 2 * p[1] for p in P}
        U = {p: self.UD + 4 * p[0] + 2 * p[1] for p in P}
        O = {p: 84 + 2 * p[0] + p[1] for p in P}
        def step(f):
            for p in P: a(f(p))
        step(lambda p: f'v_pk_add_f32 {vr(Y[p],2)}, {vr(Y[p],2)}, {vr(U[p],2)}')
        step(lambda p: f'v_cvt_pk_bf16_f32 v{O[p]}, v{Y[p]}, v{Y[p]+1}')
        for tt in range(4):
            a(f'ds_write_b64 v{self.VHW}, {vr(84+2*tt,2)} offset:{self.HT + 512*tt}')
        a('v_bfe_u32 v4, v2, 2, 2')
        a(f'v_mul_u32_u24 v4, {self.WSTRIDE}, v4')
        a('v_lshrrev_b32 v5, 4, v2')
        a('v_lshl_add_u32 v4, v5, 5, v4')
        a('v_and_b32 v7, 3, v2')
        a('v_lshl_add_u32 v4, v7, 3, v4')
        a(f's_lshl_b32 s5, s{sWAVE}, 9')
        a(f's_add_u32 s5, s5, {self.HT}')
        a('v_add_u32 v4, s5, v4')
        a('v_mul_u32_u24 v5, 20480, v5')
        a('v_and_b32 v7, 15, v2')
        a('v_lshl_add_u32 v5, v7, 4, v5')
        a(f's_mul_i32 s62, s{sWAVE}, {16*20480}')
        a('s_lshr_b32 s6, s2, 3'); a('s_lshl_b32 s6, s6, 10'); a('s_add_u32 s62, s62, s6')
        a('s_bfe_u32 s6, s2, 0x20001'); a('s_lshl_b32 s6, s6, 8'); a('s_add_u32 s62, s62, s6')
        a('s_and_b32 s6, s2, 1'); a('s_lshl_b32 s6, s6, 3'); a('s_add_u32 s62, s62, s6')
        a(f's_add_u32 s62, s62, {HF + 64*ps*20480}')
        a('s_waitcnt lgkmcnt(0)')
        a('s_barrier')
        for m in range(4):
            a(f'ds_read_b64_tr_b16 {vr(76+2*m,2)}, v4 offset:{128*m}')
        for m in range(4):
            a(f's_waitcnt lgkmcnt({3-m})')
            a(f'buffer_store_dwordx2 {vr(76+2*m,2)}, v5, {sr(SRD_WS)}, s62 offen sc1')
            if m < 3: a(f's_add_u32 s62, s62, {4*20480}')

    HREG = {0: 96, 1: 176}
    ACC3 = {0: 8, 1: 36}
    WB = [172, 200, 228]
    GRAM = 164
    def h_bases(self):
        a = self.a
        a('s_lshl_b32 s78, s66, 2')
        a(f's_add_u32 s78, s78, s{sWAVE}')
        a('s_mul_i32 s78, s78, 20480')
        a(f's_add_u32 s81, s78, {HF}')
        a(f's_add_u32 s80, s81, {64*20480}')
    def hload(self, st, kap):
        a = self.a
        base = 's81' if st == 0 else 's80'
        reg = vr(self.hreg(st, kap), 4)
        if kap < 4:
            a(f'buffer_load_dwordx4 {reg}, v3, {sr(SRD_WS)}, {base} offen offset:{kap*1024} sc1')
        else:
            a(f's_add_u32 s5, {base}, {(kap//4)*4096}')
            a(f'buffer_load_dwordx4 {reg}, v3, {sr(SRD_WS)}, s5 offen offset:{(kap%4)*1024} sc1')
        self.vmi(('h', st, kap))
    seq0 = 0
    def wbi(self, kap): return (self.seq0 + kap) % 3
    def w1rd(self, kap, t):
        off = self.w1_lds(kap * 7 + t)
        reg = ['v3', 'v92', 'v93'][off >> 16]
        return f'ds_read_b128 {ar(self.WB[self.wbi(kap)]+4*t,4)}, {reg} offset:{off & 0xffff}'
    def w2l(self, idx):
        self.w2_load(idx); self.vmi(('w2', idx))

    def p3_stream(self, st, slots, hooks, nslot=2):
        a = self.a
        ACC = self.ACC3[st]
        slots = list(slots)
        def rd(gstep, t):
            kap = gstep % 20
            off = self.w1_lds(kap * 7 + t)
            reg = ['v3', 'v92', 'v93'][off >> 16]
            return f'ds_read_b128 {ar(self.WB[gstep % 3]+4*t,4)}, {reg} offset:{off & 0xffff}'
        for kap in range(20):
            gs = 20 * st + kap
            if kap in hooks: hooks[kap]()
            self.vm_wait(lambda t: t == ('h', st, kap), ' lgkmcnt(7)' if gs + 1 < 40 else ' lgkmcnt(0)')
            if kap in (0, 5, 10, 15): self.stamp(f's{st}k{kap}')
            h = self.hreg(st, kap)
            extra = [rd(gs + 2, t) for t in range(7)] if gs + 2 < 40 else []
            for t in range(7):
                acc = ACC + 4 * t
                c = '0' if kap == 0 else vr(acc, 4)
                a(f'v_mfma_f32_16x16x32_bf16 {vr(acc,4)}, {ar(self.WB[gs % 3]+4*t,4)}, {vr(h,4)}, {c}')
                if extra: a(extra.pop(0))
                if (nslot >= 2 and t in (2, 5)) or (nslot == 1 and t == 3) or (nslot == 3 and t == 0):
                    if slots: slots.pop(0)()
            g = self.GRAM + 4 * st
            c = '0' if kap == 0 else ar(g, 4)
            a(f'v_mfma_f32_16x16x32_bf16 {ar(g,4)}, {vr(h,4)}, {vr(h,4)}, {c}')
        for f in slots: f()

    def hreg(self, st, kap):
        if st == 0 and kap < 8: return 44 + 4 * kap
        return self.HREG[st] + 4 * kap
    def w1rd_g(self, gstep, t):
        kap = gstep % 20
        off = self.w1_lds(kap * 7 + t)
        reg = ['v3', 'v92', 'v93'][off >> 16]
        return f'ds_read_b128 {ar(self.WB[gstep % 3]+4*t,4)}, {reg} offset:{off & 0xffff}'

    def p3_epi(self, st, slots):
        a = self.a
        ACC = self.ACC3[st]
        slots = list(slots)
        a('v_lshrrev_b32 v5, 4, v2')
        a('v_lshlrev_b32 v6, 4, v5')
        a(f'v_add_u32 v6, {self.SBL}, v6')
        for t in range(7):
            a(f'ds_read_b128 {vr(64+4*t,4)}, v6 offset:{64*t}')
            a(f'ds_read_b128 {vr(124+4*t,4)}, v6 offset:{448+64*t}')
        a('v_and_b32 v4, 15, v2')
        a('v_cmp_eq_u32 s[62:63], 3, v5')
        a('v_lshrrev_b32 v6, 2, v4')
        a('v_cmp_eq_u32 s[64:65], v6, v5')
        a('v_and_b32 v6, 3, v4')
        a('v_cmp_eq_u32 s[68:69], 1, v6')
        a('v_cmp_eq_u32 s[70:71], 2, v6')
        a('v_cmp_eq_u32 vcc, 3, v6')
        for j in range(4): a(f'v_accvgpr_read_b32 v{96+j}, a{self.GRAM+4*st+j}')
        a(f'v_cndmask_b32 v112, 0, v{ACC+24}, s[62:63]')
        a('v_cndmask_b32 v96, v96, v97, s[68:69]')
        a('v_cndmask_b32 v96, v96, v98, s[70:71]')
        a('v_cndmask_b32 v96, v96, v99, vcc')
        a('v_cndmask_b32 v113, 0, v96, s[64:65]')
        if self.epi_after_gram: self.epi_after_gram(st)
        for rnd in ('16', '32'):
            a('v_mov_b32 v104, v112'); a('v_mov_b32 v105, v113')
            a(f'v_permlane{rnd}_swap_b32 v112, v104'); a(f'v_permlane{rnd}_swap_b32 v113, v105')
            a('v_add_f32 v112, v112, v104'); a('v_add_f32 v113, v113, v105')
        a(f'v_mul_f32 v112, {f2u(1.0/640):#x}, v112')
        a(f'v_mul_f32 v113, {f2u(1.0/640):#x}, v113')
        a('v_fma_f32 v113, -v112, v112, v113')
        a('v_max_f32 v113, 0, v113')
        a('v_cvt_pk_bf16_f32 v113, v113, v112')
        a('v_and_b32 v112, 0xffff0000, v113')
        a('v_lshlrev_b32 v113, 16, v113')
        a(f'v_add_f32 v113, {f2u(1e-5):#x}, v113')
        self.bf16r(113, 113)
        a('v_sqrt_f32 v113, v113')
        self.bf16r(113, 113)
        a('v_rcp_f32 v116, v113')
        a('v_mov_b32 v118, v112'); a('v_mov_b32 v119, v112'); a('v_mov_b32 v117, v116')
        OUT = 152
        def outreg(t): return OUT + (t >> 1) * 4 + (t & 1) * 2 if t < 6 else OUT + 12
        a('s_lshl_b32 s72, s72, 0') if False else None
        a('s_lshl_b32 s6, s66, 2')
        a(f's_add_u32 s6, s6, s{sWAVE}')
        a(f's_mul_i32 s6, s6, {NK2*1024}')
        a(f's_add_u32 s6, s6, {HH + 64*st*NK2*1024}')
        a('s_lshr_b32 s7, s67, 1'); a('s_mul_i32 s7, s7, 7')
        a('s_and_b32 s63, s67, 1')
        a('s_lshl_b32 s62, s63, 2'); a('s_add_u32 s62, s62, s7'); a('s_lshl_b32 s62, s62, 10'); a('s_add_u32 s62, s62, s6')
        a('s_add_u32 s64, s7, 3'); a('s_lshl_b32 s64, s64, 10'); a('s_lshl_b32 s63, s63, 3'); a('s_add_u32 s64, s64, s63'); a('s_add_u32 s64, s64, s6')
        a('s_mov_b32 s70, 0x00003f80')
        a('s_mov_b32 s71, 0x3f800000')
        a('s_waitcnt lgkmcnt(0)')
        for tp in range(4):
            ts = [2 * tp, 2 * tp + 1] if tp < 3 else [6]
            P = [(t, h) for t in ts for h in range(2)]
            X = {p: ACC + 4 * p[0] + 2 * p[1] for p in P}
            T = {p: 100 + i for i, p in enumerate(P)}
            def step(f):
                for p in P: a(f(p))
            S = lambda p: 64 + 4 * p[0] + 2 * p[1]
            Bq = lambda p: 124 + 4 * p[0] + 2 * p[1]
            step(lambda p: f'v_pk_fma_f32 {vr(X[p],2)}, {vr(S(p),2)}, v[118:119], {vr(X[p],2)} neg_lo:[1,0,0] neg_hi:[1,0,0]')
            step(lambda p: f'v_pk_fma_f32 {vr(X[p],2)}, {vr(X[p],2)}, v[116:117], {vr(Bq(p),2)}')
            step(lambda p: f'v_max_f32 v{X[p]}, 0, v{X[p]}')
            step(lambda p: f'v_max_f32 v{X[p]+1}, 0, v{X[p]+1}')
            step(lambda p: f'v_pk_mul_f32 {vr(X[p],2)}, {vr(X[p],2)}, {vr(X[p],2)}')
            step(lambda p: f'v_cvt_pk_bf16_f32 v{outreg(p[0])+p[1]}, v{X[p]}, v{X[p]+1}')
            for _ in range(self.EPI_SLOTS):
                if slots: slots.pop(0)()
            if tp < 3:
                a(f'buffer_store_dwordx4 {vr(OUT+4*tp,4)}, v3, {sr(SRD_WS)}, s62 offen offset:{1024*tp} sc1')
            else:
                a(f'buffer_store_dwordx2 {vr(OUT+12,2)}, v3, {sr(SRD_WS)}, s64 offen sc1')
            self.vmi(('Hst', st))
        for f in slots: f()
    EPI_SLOTS = 3
    epi_after_gram = None

    RING = {0: 176, 1: 112}
    P4_SL = 7
    RES = 232
    def p4_setup_alt(self):
        self.p4_setup()
    def p4_setup(self):
        a = self.a
        a('s_lshl_b32 s78, s72, 1')
        a(f's_mul_i32 s78, s78, {NK2}')
        a('s_add_u32 s78, s78, s74')
        a('s_lshl_b32 s78, s78, 10')
        a(f's_add_u32 s78, s78, {HH}')
    def Hload(self, st, kk, lt):
        a = self.a
        reg = vr(self.RING[st] + (kk % self.P4_SL) * 8 + lt * 4, 4)
        off = (64 * st + lt) * NK2 * 1024 + kk * 1024
        a(f's_add_u32 s5, s78, {(off // 4096) * 4096}')
        a(f'buffer_load_dwordx4 {reg}, v3, {sr(SRD_WS)}, s5 offen offset:{off % 4096} sc1')
        self.vmi(('H', st, kk, lt))

    def p4_stream(self, st, slots, hooks, lds=None):
        a = self.a
        ACC = 8
        slots = list(slots)
        lds = list(lds or [])
        for kk in range(14):
            if kk in hooks: hooks[kk]()
            need = [('H', st, kk, 0), ('H', st, kk, 1)] + [('w2', kk * 5 + t) for t in range(5)]
            have = [t for t in need if t in self.vmlist]
            for t_ in need:
                assert t_ in self.vmlist or (t_[0] == 'w2' and t_[1] < self.NW2_CONV), (st, kk, t_)
            self.vm_wait(lambda t: t in have)
            if kk in (0, 4, 5, 8, 11, 12): self.stamp(f'q{st}k{kk}')
            n = 0
            for t in range(5):
                for lt in range(2):
                    acc = ACC + (t * 4 + 2 * st + lt) * 4
                    c = '0' if kk == 0 else vr(acc, 4)
                    a(f'v_mfma_f32_16x16x32_bf16 {vr(acc,4)}, {self.w2reg(kk*5+t)}, {vr(self.RING[st]+(kk%self.P4_SL)*8+lt*4,4)}, {c}')
                    if n in (1, 3, 6, 8) and slots and slots[0][0] <= kk: slots.pop(0)[1]()
                    if n == 4 and lds and kk >= 1: a(lds.pop(0))
                    n += 1
        for k_, f in slots: f()
        for l in lds: a(l)

    def p4_pre_loads(self):
        a = self.a
        R = self.RES
        L = []
        def setup():
            self.srd(SRD_B, P_B2, 640 * 2)
            a('v_and_b32 v168, 15, v2')
            a('v_lshrrev_b32 v169, 4, v2')
            a('s_mul_i32 s62, s73, 20')
            a('s_lshl_b32 s63, s72, 1')
            a(f's_add_u32 s63, s63, s{sWAVE}')
            a('s_add_u32 s64, s63, 62')
            a(f's_cmp_ge_u32 s{sWAVE}, 2')
            a('s_cselect_b32 s63, s64, s63')
            a('s_mov_b32 s81, s63')
            a('s_mul_i32 s63, s63, 20480')
            a(f's_add_u32 s63, s63, {HF}')
        def one(t):
            def f():
                if t == 0: setup()
                a('v_add_u32 v170, s62, v169')
                a(f'v_add_u32 v170, {4*t}, v170')
                a('v_lshrrev_b32 v171, 3, v170')
                a('v_lshlrev_b32 v171, 10, v171')
                a('v_bfe_u32 v172, v170, 1, 2')
                a('v_lshl_add_u32 v171, v172, 8, v171')
                a('v_and_b32 v172, 1, v170')
                a('v_lshl_add_u32 v171, v172, 3, v171')
                a('v_lshl_add_u32 v171, v168, 4, v171')
                a(f'buffer_load_dwordx2 {vr(R+2*t,2)}, v171, {sr(SRD_WS)}, s63 offen sc1')
                a('v_lshlrev_b32 v170, 3, v170')
                a(f'buffer_load_dwordx2 {vr(R+10+2*t,2)}, v170, {sr(SRD_B)}, 0 offen')
                self.vmi(('res', t)); self.vmi(('res', t))
            return f
        return [one(t) for t in range(5)]

    def p4_epilogue(self):
        a = self.a
        ACC = 8
        a('v_lshlrev_b32 v3, 4, v2')
        a(f's_mul_i32 s5, s{sWAVE}, 20480')
        a('v_add_u32 v6, s5, v3')
        for lt in range(2 if self.EARLYRED else 0, 4):
            L = a.label('Lp4w')
            a(f's_cmp_eq_u32 s{sWAVE}, {lt}'); a(f's_cbranch_scc1 {L}')
            for t in range(5):
                a(f'ds_write_b128 v6, {vr(ACC+(t*4+lt)*4,4)} offset:{lt*5120+t*1024}')
            a(f'{L}:')
        Lend = a.label('Lp4o')
        for lt in range(4):
            L = a.label('Lp4c')
            a(f's_cmp_eq_u32 s{sWAVE}, {lt}'); a(f's_cbranch_scc0 {L}')
            for t in range(5):
                for h in range(2):
                    a(f'v_pk_mov_b32 {vr(112+4*t+2*h,2)}, {vr(ACC+(t*4+lt)*4+2*h,2)}, {vr(ACC+(t*4+lt)*4+2*h,2)} op_sel:[0,1]')
            a(f's_branch {Lend}')
            a(f'{L}:')
        a(f'{Lend}:')
        a('s_waitcnt vmcnt(0) lgkmcnt(0)')
        a('s_barrier')
        for k in range(1, 4):
            a(f's_add_u32 s5, s{sWAVE}, {k}'); a('s_and_b32 s5, s5, 3'); a('s_mul_i32 s5, s5, 20480')
            a(f's_mul_i32 s6, s{sWAVE}, 5120'); a('s_add_u32 s5, s5, s6')
            a(f'v_add_u32 v{4+k}, s5, v3')
        for t in range(5):
            for k in range(1, 4):
                a(f'ds_read_b128 {vr(172+(t*3+k-1)*4,4)}, v{4+k} offset:{t*1024}')
        for t in range(5):
            for h in range(2):
                b = self.RES + 10 + 2 * t + h; hh = self.RES + 2 * t + h
                a(f'v_lshlrev_b32 v{8+4*t+2*h}, 16, v{b}'); a(f'v_and_b32 v{8+4*t+2*h+1}, 0xffff0000, v{b}')
                a(f'v_lshlrev_b32 v{28+4*t+2*h}, 16, v{hh}'); a(f'v_and_b32 v{28+4*t+2*h+1}, 0xffff0000, v{hh}')
                a(f'v_pk_add_f32 {vr(112+4*t+2*h,2)}, {vr(112+4*t+2*h,2)}, {vr(8+4*t+2*h,2)}')
                a(f'v_pk_add_f32 {vr(112+4*t+2*h,2)}, {vr(112+4*t+2*h,2)}, {vr(28+4*t+2*h,2)}')
        self.srd(SRD_A, P_OUT, 2048 * 1280)
        a(f's_mul_i32 s5, s81, {16*1280}')
        a('s_mul_i32 s6, s73, 160')
        a('s_add_u32 s5, s5, s6')
        a('v_mul_u32_u24 v4, 1280, v168')
        a('v_lshl_add_u32 v4, v169, 3, v4')
        a('s_mov_b32 s70, 0x00003f80')
        a('s_mov_b32 s71, 0x3f800000')
        a('s_waitcnt lgkmcnt(0)')
        P = [(t, h) for t in range(5) for h in range(2)]
        X = {p: 112 + 4 * p[0] + 2 * p[1] for p in P}
        def step(f):
            for p in P: a(f(p))
        for k in range(3):
            step(lambda p: f'v_pk_add_f32 {vr(X[p],2)}, {vr(X[p],2)}, {vr(172+(p[0]*3+k)*4+2*p[1],2)}')
        step(lambda p: f'v_cvt_pk_bf16_f32 v{60+2*p[0]+p[1]}, v{X[p]}, v{X[p]+1}')
        for t in range(5):
            a(f'buffer_store_dwordx2 {vr(60+2*t,2)}, v4, {sr(SRD_A)}, s5 offen offset:{32*t}')

    NW2_CONV = 6
    NW2_P3B = 30
    NW2_P3A = 0
    CRATE = 4
    RCB_K = 11
    FLAGA_B = 3
    NPASS1 = 0
    NSLOTA = 2
    PRE_B = 0
    EARLYRED = 1
    EARLYHA = 0
    RCA_K = 16
    PFL_B = 3
    FLAGA2_B = 2
    POLLA_B = 6
    CHKA_IN = 0
    UGATE = 1
    WARM4 = 3
    ROWA_K = 5
    RPA_K = 14
    ROWB_K = 4
    AH3 = 8
    AH4 = 6

def build():
    out = []
    kn = NAME + '_kernel'
    out.append(f'; @launch grid=(256,1,1) block=(256,1,1) lds={LDS_SIZE}')
    out.append('.amdgcn_target "amdgcn-amd-amdhsa--gfx950"')
    out.append('.text')
    g = G4(True); g.kname = 'f'; a = g.a
    g.vmlist = []
    if g.timing:
        for i in range(16): a(f's_mov_b32 s{86+i}, 0')
    g.stamp('start')
    g.prologue()
    g.ln1x_issue()
    g.epoch_issue()
    Laux = a.label('Laux'); Lp3 = a.label('Lp3')
    a('s_cmp_lt_u32 s2, 160'); a(f's_cbranch_scc0 {Laux}')
    g.kgen_issue()
    g.code_prefetch()
    g.p2_consts(0)
    g.ln1x_compute(8)
    g.p2_consts(1)
    a('s_waitcnt vmcnt(12)')
    g.epoch_get()
    g.flag_signal(BFL1)
    g.stamp('ln1')
    g.ux_zero_pad()
    g.kg_hook1 = g.b1_issue
    g.kg_hook2 = g.b1_check_ux_issue
    g.kgen(0)
    g.p34_ids()
    g.w2_setup()
    g.pref_setup()
    g.h_bases()
    g.stamp('kgen')
    g.ux_write()
    g.flag_store_only(UFL)
    g.pfl_issue()
    g.stamp('ux')
    W1e = [lambda j=j: g.w1A(j) for j in range(11)] + [g.w1T]
    W2e = [lambda i=i: g.w2_load(i) for i in range(g.NW2_CONV)]
    mix = []
    while W1e or W2e:
        if W1e: mix.append(W1e.pop(0))
        for _ in range(3):
            if W2e: mix.append(W2e.pop(0))
    n1 = g.NPASS1
    def pfl1():
        g.pfl_check(0); g.sb_issue()
    if n1:
        g.conv_pass(0, {'slots': mix[:n1], 'rate': g.CRATE, 'from': 1, 1: pfl1})
    else:
        g.conv_pass(0, {})
    g.stamp('c1')
    g.conv_epi(0)
    g.stamp('e1')
    def flagA():
        if n1: a(f's_waitcnt vmcnt({g._nslots})')
        else: a('s_waitcnt vmcnt(0)')
        a('s_barrier'); g.wg_flag(BF2A, 4, 5)
    def pfl2():
        g.pfl_check(1); g.sb_issue()
    def pollA():
        g.fl_issue(BF2A, 8, 7)
    def chkA():
        a('s_waitcnt vmcnt(0)')
        g.sb_finish()
        g.fl_check(BF2A, 8, 7, (0, 40))
        for kap in range(8): g.hload(0, kap)
    if n1:
        hooks = {'slots': mix[n1:], 'rate': g.CRATE, 'from': 0, g.FLAGA_B: flagA, 6: pollA}
    else:
        hooks = {'slots': mix, 'rate': g.CRATE, 'from': g.PFL_B, g.FLAGA2_B: flagA, g.PFL_B: pfl2, g.POLLA_B: pollA}
    if g.CHKA_IN: hooks[7] = chkA
    g.conv_pass(1, hooks)
    g.stamp('b8')
    if not g.CHKA_IN: chkA()
    g.stamp('c2')
    g.conv_epi(1)
    g.stamp('e2')
    a(f's_branch {Lp3}')
    a(f'{Laux}:')
    g.code_prefetch()
    if g.PREPFIRST:
        g.prep_issue3()
        a('s_waitcnt vmcnt(0)')
        g.epoch_get()
        g.prep_compute3()
        g.ln1x_recompute_addr()
        g.ln1x_compute(63)
        g.flag_signal(BFL1)
        g.wg_flag(PFL, 4, 5)
        g.stamp('ln1')
    elif g.PREPL4 == 2:
        g.ln1x_compute(0)
        g.epoch_get()
        g.flag_signal(BFL1)
        g.stamp('ln1')
        g.prep_issue3()
        g.prep_compute3()
        g.flag_signal(PFL)
    elif g.PREPL4 == 1:
        g.ln1x_compute(0)
        g.epoch_get()
        g.prep_issue3()
        g.flag_signal(BFL1, drain=False)
        g.stamp('ln1')
        g.prep_compute3()
        g.flag_signal(PFL)
    else:
        g.ln1x_compute(2, g.prep_issue3)
        a('s_waitcnt vmcnt(0)')
        g.epoch_get()
        g.flag_signal(BFL1)
        g.stamp('ln1')
        g.prep_compute3()
        g.flag_signal(PFL)
    g.p34_ids()
    g.w2_setup()
    g.pref_setup()
    g.h_bases()
    if g.UGATE: g.flag_wait(UFL, lanes=(0, 40))
    g.pfl_issue()
    g.pfl_check()
    g.sb_issue()
    if g.WARM4 in (2, 3): g.warm4()
    for f in mix_copy(g): f()
    if g.WARM4 == 1: g.warm4()
    g.fl_issue(BF2A, 8, 7)
    a('s_waitcnt vmcnt(0)')
    g.sb_finish()
    g.fl_check(BF2A, 8, 7, (0, 40))
    for kap in range(8): g.hload(0, kap)
    a('s_waitcnt lgkmcnt(0)')
    a('s_barrier')
    a(f'{Lp3}:')
    g.vmlist = [('h', 0, k) for k in range(8)]
    late = g.list_late()
    def lw(i):
        def f():
            late[i](); g.vmi(('w1', 0 if i < 8 else 1 if i < 16 else 2))
        return f
    a('v_add_u32 v92, 0x10000, v3')
    a('v_add_u32 v93, 0x20000, v3')
    for gs in range(2):
        for t in range(7): a(g.w1rd_g(gs, t))
    for i in range(8): lw(i)()
    g.stamp('p3go')
    hrest = [lambda k=k: g.hload(0, k) for k in range(8, 20)]
    wrest = [lw(i) for i in range(8, 23)]
    slotsA = wrest[:8] + hrest[:2]
    hrest = hrest[2:]; wrest = wrest[8:]
    while hrest or wrest:
        if wrest: slotsA.append(wrest.pop(0))
        if hrest: slotsA.append(hrest.pop(0))
    slotsA += [lambda i=i: g.w2l(i) for i in range(g.NW2_CONV, g.NW2_CONV + g.NW2_P3A)]
    def grp(n, flag=False):
        def f():
            g.vm_wait(lambda t: t == ('w1', n)); a('s_barrier')
            if flag: g.wg_flag(BF2B, 4, 5, only_conv=True)
        return f
    def pollB_issue():
        g.fl_issue(BF2B, 4, 94); g.vmi(('pollB',))
    g.p3_stream(0, slotsA, {4: grp(0, True), 9: grp(1), 14: grp(2), 16: pollB_issue}, nslot=g.NSLOTA)
    g.stamp('p3a')
    g.vm_wait(lambda t: t == ('pollB',))
    g.fl_check(BF2B, 4, 94, (0, 40))
    Lx = a.label('Lep')
    a('s_cmp_eq_u32 s2, 0'); a(f's_cbranch_scc0 {Lx}')
    a(f's_cmp_eq_u32 s{sWAVE}, 0'); a(f's_cbranch_scc0 {Lx}')
    a('s_mov_b64 exec, 1'); a('v_mov_b32 v4, s83'); a(f'v_mov_b32 v5, {EPX}')
    a(f'buffer_store_dword v4, v5, {sr(SRD_WS)}, 0 offen sc1'); a('s_mov_b64 exec, -1')
    a(f'{Lx}:')
    for kap in range(6): g.hload(1, kap)
    g.p3_epi(0, [lambda k=k: g.hload(1, k) for k in range(6, 14)])
    g.stamp('epA')
    n0 = g.NW2_CONV + g.NW2_P3A
    slotsB = [lambda k=k: g.hload(1, k) for k in range(14, 20)] + [lambda i=i: g.w2l(i) for i in range(n0, n0 + g.NW2_P3B)]
    def rowA():
        g.vm_wait(lambda t: t == ('Hst', 0)); a('s_barrier'); g.row_flag(RFA, 4, 5)
    def rowpollA():
        g.row_issue(RFA, 4, 5); g.vmi(('rpA',))
    HA0 = [lambda k=k, lt=lt: g.Hload(0, k, lt) for k in range(g.AH4) for lt in range(2)]
    nxt = n0 + g.NW2_P3B
    assert nxt <= 41
    if g.EARLYHA:
        def chkrA():
            g.vm_wait(lambda t: t == ('rpA',))
            g.row_check(RFA, 4, 5)
            g.p4_setup_alt()
            for f in HA0[:g.EARLYHA]: f()
        g.p3_stream(1, slotsB, {g.ROWA_K: rowA, g.RPA_K: rowpollA, g.RCA_K: chkrA})
        g.stamp('p3b')
        g.p4_setup()
        HA0 = HA0[g.EARLYHA:]
        def after_gram(st):
            if st == 1:
                for f in HA0: f()
        HA0r = []
    else:
        g.p3_stream(1, slotsB, {g.ROWA_K: rowA, g.RPA_K: rowpollA})
        g.stamp('p3b')
        g.vm_wait(lambda t: t == ('rpA',))
        g.row_check(RFA, 4, 5)
        g.p4_setup()
        def after_gram(st):
            if st == 1:
                for f in HA0[:6]: f()
        HA0r = HA0[6:]
    g.epi_after_gram = after_gram
    lateW2 = [lambda i=i: g.w2l(i) for i in range(nxt, 64)]
    g.p3_epi(1, HA0r + lateW2[:6])
    g.stamp('epB')
    rest = lateW2[6:] + [lambda i=i: g.w2l(i) for i in range(64, 70)]
    for f in rest[:6]: f()
    rest = rest[6:]
    sl = []
    for kk in range(14):
        if kk + g.AH4 < 14:
            sl += [(kk, lambda k=kk + g.AH4: g.Hload(0, k, 0)), (kk, lambda k=kk + g.AH4: g.Hload(0, k, 1))]
        for _ in range(3 if kk < 3 else 2):
            if rest: sl.append((kk, rest.pop(0)))
    pre = g.p4_pre_loads()
    if not g.PRE_B:
        for j, f in enumerate(pre): sl.append((7 + j, f))
    sl.sort(key=lambda x: x[0])
    def rowB():
        g.vm_wait(lambda t: t == ('Hst', 1)); a('s_barrier'); g.row_flag(RFB, 4, 5)
    def rowpollB():
        g.row_issue(RFB, 4, 5); g.vmi(('rpB',))
    def rowchkB():
        g.vm_wait(lambda t: t == ('rpB',)); g.row_check(RFB, 4, 5)
        for k in range(2):
            g.Hload(1, k, 0); g.Hload(1, k, 1)
    slB = [(g.RCB_K, lambda k=k, lt=lt: g.Hload(1, k, lt)) for k in range(2, g.AH4) for lt in range(2)]
    g.p4_stream(0, sl + slB, {g.ROWB_K: rowB, g.RCB_K - 3: rowpollB, g.RCB_K: rowchkB})
    g.stamp('p4a')
    slB2 = []
    for kk in range(14):
        if kk + g.AH4 < 14:
            slB2 += [(kk, lambda k=kk + g.AH4: g.Hload(1, k, 0)), (kk, lambda k=kk + g.AH4: g.Hload(1, k, 1))]
    if g.PRE_B:
        for j, f in enumerate(pre): slB2.append((2 + j, f))
        slB2.sort(key=lambda x: x[0])
    ldsA = []
    if g.EARLYRED:
        a(f's_mul_i32 s5, s{sWAVE}, 20480')
        a('v_add_u32 v6, s5, v3')
        ldsA = [f'ds_write_b128 v6, {vr(8+(t*4+lt)*4,4)} offset:{lt*5120+t*1024}' for lt in range(2) for t in range(5)]
    g.p4_stream(1, slB2, {}, ldsA)
    g.stamp('p4b')
    g.p4_epilogue()
    g.stamp_flush(0)
    g.end()
    out.append(kernel_header(kn)); out += a.finalize()
    out.append('.section .rodata,"a"')
    out.append(kernel_desc(kn))
    return '\n'.join(out) + '\n'

def mix_copy(g):
    W1e = [lambda j=j: g.w1A(j) for j in range(11)] + [g.w1T]
    W2e = [lambda i=i: g.w2_load(i) for i in range(g.NW2_CONV)]
    return W1e + W2e

if __name__ == '__main__':
    dst = sys.argv[1]
    gen.TIMING = 'timing' in sys.argv[2:]
    for x in sys.argv[2:]:
        if x.startswith('set='): gen.STAMPSET = set(x[4:].split(','))
        elif x.startswith('dbg='): gen.DBGSTAMP = int(x[4:])
        elif '=' in x:
            k, v = x.split('='); setattr(G4, k, int(v))
    gen.HF = HF; gen.BLK = BLK; gen.HH = HH; gen.W1F = W1F; gen.W2F = W2F; gen.SP = SP
    s = build()
    open(dst, 'w').write(s)
    import shutil, os
    if gen.TIMING: shutil.copy('stamps_k0.txt', dst + '.tags')
    print('wrote', dst, len(s), 'bytes')
```

```python
import sys
sys.path.insert(0, 'work')
import gen, gen2, gen3
from gen import sr, vr, ar, f2u, sWAVE, SRD_A, SRD_WS, SRD_B, SRD_C, SRD_D
from gen import P_X, P_B1, P_B2, P_OUT
from gen import kernel_header, kernel_desc, NAME
from gen2 import BLK, HF, W1F, W2F, SP, HH, EPX, LDS_SIZE, NK2
from gen3 import G3, BFL1, PFL, UFL

BF2A = 0x2003000
BF2B = 0x200C000
RFA  = 0x2008000
RFB  = 0x2009000

class G4(G3):
    HT = 16640
    SBL = 162048

    def ln1x_recompute_addr(self):
        a = self.a
        a('v_lshrrev_b32 v3, 5, v0')
        a('v_and_b32 v4, 31, v0')
    PREPFIRST = 0
    PREPL4 = 0

    def uxreg(self, k): return 228 + 4 * k if k < 7 else 96
    def b1e_issue(self):
        a = self.a
        a('v_lshlrev_b32 v160, 4, v2')
        a('s_and_b32 s5, s2, 7')
        a('s_lshl_b32 s5, s5, 10')
        a(f's_add_u32 s5, s5, {BFL1}')
        a(f'buffer_load_dwordx4 v[156:159], v160, {sr(SRD_WS)}, s5 offen sc1')
    def b1e_check(self):
        a = self.a
        Lp = a.label('Lb1p'); Lc = a.label('Lb1c'); Ld = a.label('Lb1d')
        a('s_mov_b32 s7, 0')
        a('s_waitcnt vmcnt(0)')
        a(f's_branch {Lc}')
        a(f'{Lp}:')
        a('s_sleep 1')
        self.b1e_issue()
        a('s_waitcnt vmcnt(0)')
        a(f'{Lc}:')
        for j in range(4): a(f'v_xor_b32 v{156+j}, s83, v{156+j}')
        a('v_or_b32 v156, v156, v157')
        a('v_or3_b32 v156, v156, v158, v159')
        a('v_cmp_ne_u32 vcc, 0, v156')
        a(f's_cbranch_vccz {Ld}')
        a('s_add_u32 s7, s7, 1')
        a('s_cmp_lt_u32 s7, 0x40000')
        a(f's_cbranch_scc1 {Lp}')
        a(f'{Ld}:')
        a('v_lshrrev_b32 v162, 3, v2')
        a('v_mul_u32_u24 v163, 20480, v162')
        a('v_and_b32 v162, 7, v2')
        a('v_lshl_add_u32 v163, v162, 4, v163')
        a(f's_mul_i32 s5, s{sWAVE}, {64*20480}')
        a('s_lshl_b32 s7, s2, 7')
        a('s_add_u32 s5, s5, s7')
        for k in range(8):
            a(f'buffer_load_dwordx4 {vr(self.uxreg(k),4)}, v163, {sr(SRD_WS)}, s5 offen sc1')
            if k < 7: a(f's_add_u32 s5, s5, {8*20480}')
    def ux_write_e(self):
        a = self.a
        a('v_lshrrev_b32 v4, 3, v2')
        a('v_and_b32 v6, 7, v2')
        a('v_lshrrev_b32 v7, 4, v2')
        a('v_xor_b32 v8, v6, v7')
        a('v_xor_b32 v9, 4, v8')
        a('v_lshlrev_b32 v4, 7, v4')
        a(f's_lshl_b32 s6, s{sWAVE}, 13')
        a(f's_add_u32 s6, s6, {self.UXB + 4096}')
        a('v_add_u32 v4, s6, v4')
        a('v_lshl_add_u32 v8, v8, 4, v4')
        a('v_lshl_add_u32 v9, v9, 4, v4')
        for k in range(8):
            a(f's_waitcnt vmcnt({7-k})')
            a(f'ds_write_b128 v{8 + (k&1)}, {vr(self.uxreg(k),4)} offset:{k*1024}')
        a('s_waitcnt lgkmcnt(0)')
        a('s_barrier')
    KG_MID = 2
    EARLYB1 = 0
    def vm_reset(self): self.vm = []
    def vm(self): pass
    def vmi(self, tag): self.vmlist.append(tag)
    def vm_wait(self, pred, extra=''):
        last = max(i for i, t in enumerate(self.vmlist) if pred(t))
        n = len(self.vmlist) - 1 - last
        self.a(f's_waitcnt vmcnt({min(63, n)}){extra}')

    def w1_lds(self, idx):
        WS = self.WSTRIDE
        if idx < 44: return (idx % 4) * WS + 18688 + (idx // 4) * 1024
        if idx < 48: return 157952 + (idx - 44) * 1024
        if idx < 112:
            j = idx - 48
            return (j % 4) * WS + (j // 4) * 1024
        return self.UXB + (idx - 112) * 1024

    def pref_setup(self):
        a = self.a
        a('s_mul_i32 s76, s67, 143360')
        a(f's_add_u32 s76, s76, {W1F}')
        a(f's_mul_i32 s75, s{sWAVE}, {self.WSTRIDE}')
        a('v_lshlrev_b32 v3, 4, v2')
        a(f's_lshl_b32 s82, s{sWAVE}, 10')
        a('s_add_u32 s77, s76, s82')
    def w1A(self, j):
        self.dma([f's_add_u32 m0, s75, {18688 + 1024*j}'], [f's_add_u32 s5, s77, {4096*j}'])
    def w1T(self):
        self.dma([f's_add_u32 m0, s82, 157952'], [f's_add_u32 s5, s77, {44*1024}'])
    def w1T2(self):
        self.dma([f's_mov_b32 m0, {157952 + 4096}'], [f's_add_u32 s5, s76, {48*1024}'])
    def w1B(self, i):
        self.dma([f's_add_u32 m0, s75, {1024*i}'], [f's_add_u32 s5, s77, {48*1024 + 4096*i}'])
    def w1C(self, i):
        self.dma([f's_add_u32 m0, s82, {self.UXB + 4096*i}'], [f's_add_u32 s5, s77, {112*1024 + 4096*i}'])
    def list_late(self):
        return [lambda i=i: self.w1B(i) for i in range(16)] + [lambda i=i: self.w1C(i) for i in range(7)]

    def sb_issue(self):
        a = self.a
        a('v_lshlrev_b32 v35, 3, v2')
        a('s_mul_i32 s64, s67, 448')
        a(f's_add_u32 s64, s64, {SP}')
        for part in range(3):
            a(f'buffer_load_dwordx2 {vr(28+2*part,2)}, v35, {sr(SRD_WS)}, s64 offen sc1')
            if part < 2: a('s_add_u32 s64, s64, 7168')
        self.srd(SRD_B, P_B1, 1728 * 2)
        a('s_mul_i32 s64, s67, 216')
        a('v_lshlrev_b32 v36, 2, v2')
        a(f'buffer_load_dword v34, v36, {sr(SRD_B)}, s64 offen')
        return 4
    def sb_finish(self):
        a = self.a
        L = a.label('Lsb')
        a(f's_cmp_eq_u32 s{sWAVE}, 1'); a(f's_cbranch_scc0 {L}')
        a('s_mov_b32 exec_hi, 0x00ffffff')
        a('v_pk_add_f32 v[28:29], v[28:29], v[30:31]')
        a('v_pk_add_f32 v[28:29], v[28:29], v[32:33]')
        a('v_lshlrev_b32 v30, 16, v34')
        a('v_and_b32 v31, 0xffff0000, v34')
        a(f'v_add_u32 v35, {self.SBL}, v35')
        a('ds_write_b64 v35, v[28:29]')
        a('ds_write_b64 v35, v[30:31] offset:448')
        a('s_mov_b64 exec, -1')
        a(f'{L}:')

    def warm4(self):
        a = self.a
        a('s_sub_u32 s5, s2, 160'); a('s_lshr_b32 s5, s5, 3'); a('s_lshl_b32 s5, s5, 2'); a(f's_add_u32 s5, s5, s{sWAVE}')
        a('s_mul_i32 s6, s5, 10923'); a('s_lshr_b32 s6, s6, 16')
        a('s_mul_i32 s7, s6, 6'); a('s_sub_u32 s7, s5, s7')
        a('s_and_b32 s62, s2, 1'); a('s_lshl_b32 s62, s62, 3'); a('s_add_u32 s6, s6, s62')
        a('s_mul_i32 s6, s6, 143360'); a(f's_add_u32 s6, s6, {W1F}')
        a('s_add_u32 s63, s6, %d' % (139 * 1024))
        if self.WARM4 == 2:
            a('s_mul_i32 s7, s7, %d' % (24 * 1024)); a('s_add_u32 s6, s6, s7')
        else:
            a('s_lshl_b32 s7, s7, 14'); a('s_add_u32 s6, s6, s7'); a('s_add_u32 s6, s6, %d' % (48 * 1024))
        for i in range(24 if self.WARM4 == 2 else 16):
            a('s_min_u32 s62, s6, s63')
            a(f'buffer_load_dwordx4 {vr(176+4*(i%16),4)}, v3, {sr(SRD_WS)}, s62 offen sc1')
            a('s_add_u32 s6, s6, 1024')
        if self.WARM4 == 3: return
        if self.WARM4 == 2:
            a('s_mul_i32 s6, s5, %d' % (47 * 1024))
            a(f's_add_u32 s6, s6, {W2F}')
            a(f's_mov_b32 s7, {W2F + 2240*1024 - 1024}')
            for i in range(47):
                a('s_min_u32 s62, s6, s7')
                a(f'buffer_load_dwordx4 {vr(176+4*(i%16),4)}, v3, {sr(SRD_WS)}, s62 offen sc1')
                a('s_add_u32 s6, s6, 1024')
            return
        L = a.label('Lwm')
        a('s_cmp_ge_u32 s5, 32'); a(f's_cbranch_scc1 {L}')
        a('s_lshr_b32 s6, s5, 2'); a(f's_mul_i32 s6, s6, {NK2}')
        a('s_and_b32 s7, s5, 3'); a('s_mul_i32 s7, s7, 14'); a('s_add_u32 s6, s6, s7')
        a('s_mul_i32 s6, s6, 5120'); a(f's_add_u32 s6, s6, {W2F + 48*1024}')
        for i in range(22):
            a(f'buffer_load_dwordx4 {vr(176+4*(i%16),4)}, v3, {sr(SRD_WS)}, s6 offen sc1')
            a('s_add_u32 s6, s6, 1024')
        a(f'{L}:')

    def fl_issue(self, base, D, A):
        a = self.a
        a(f'v_lshlrev_b32 v{A}, 4, v2')
        a('s_and_b32 s5, s2, 7')
        a('s_lshl_b32 s5, s5, 10')
        a(f's_add_u32 s5, s5, {base}')
        a(f'buffer_load_dwordx4 {vr(D,4)}, v{A}, {sr(SRD_WS)}, s5 offen sc1')
    def fl_check(self, base, D, A, lanes):
        a = self.a
        Lp = a.label('Lfp'); Lc = a.label('Lfc'); Ld = a.label('Lfd')
        lo, hi = lanes
        m = ((1 << hi) - 1) ^ ((1 << lo) - 1)
        a(f's_mov_b32 s62, {m & 0xffffffff:#x}'); a(f's_mov_b32 s63, {m >> 32:#x}')
        a('s_mov_b32 s7, 0')
        a(f's_branch {Lc}')
        a(f'{Lp}:')
        a('s_sleep 1')
        self.fl_issue(base, D, A)
        a('s_waitcnt vmcnt(0)')
        a(f'{Lc}:')
        for j in range(4): a(f'v_xor_b32 v{D+j}, s83, v{D+j}')
        a(f'v_or_b32 v{D}, v{D}, v{D+1}')
        a(f'v_or3_b32 v{D}, v{D}, v{D+2}, v{D+3}')
        a(f'v_cmp_ne_u32 vcc, 0, v{D}')
        a('s_and_b64 vcc, vcc, s[62:63]')
        a(f's_cbranch_vccz {Ld}')
        a('s_add_u32 s7, s7, 1')
        a('s_cmp_lt_u32 s7, 0x40000')
        a(f's_cbranch_scc1 {Lp}')
        a(f'{Ld}:')
    def row_issue(self, base, D, A):
        a = self.a
        a(f'v_and_b32 v{A}, 3, v2')
        a(f'v_lshlrev_b32 v{A}, 2, v{A}')
        a('s_lshr_b32 s5, s72, 1')
        a('s_lshl_b32 s5, s5, 7')
        a(f's_lshl_b32 s6, s{sWAVE}, 4')
        a('s_add_u32 s5, s5, s6')
        a(f's_add_u32 s5, s5, {base}')
        a(f'buffer_load_dword v{D}, v{A}, {sr(SRD_WS)}, s5 offen sc1')
    def row_check(self, base, D, A):
        a = self.a
        Lp = a.label('Lrp'); Lc = a.label('Lrc'); Ld = a.label('Lrd')
        a('s_mov_b32 s7, 0')
        a(f's_branch {Lc}')
        a(f'{Lp}:')
        a('s_sleep 1')
        self.row_issue(base, D, A)
        a('s_waitcnt vmcnt(0)')
        a(f'{Lc}:')
        a(f'v_cmp_ne_u32 vcc, s83, v{D}')
        a(f's_cbranch_vccz {Ld}')
        a('s_add_u32 s7, s7, 1')
        a('s_cmp_lt_u32 s7, 0x40000')
        a(f's_cbranch_scc1 {Lp}')
        a(f'{Ld}:')
    def wg_flag(self, base, D, A, only_conv=False):
        a = self.a
        L = a.label('Lsig')
        a(f's_cmp_eq_u32 s{sWAVE}, 0'); a(f's_cbranch_scc0 {L}')
        if only_conv:
            a('s_cmp_lt_u32 s2, 160'); a(f's_cbranch_scc0 {L}')
        a(f'v_lshlrev_b32 v{A}, 10, v2')
        a('s_lshl_b32 s5, s2, 2')
        a(f's_add_u32 s5, s5, {base}')
        a(f'v_mov_b32 v{D}, s83')
        a('s_mov_b64 exec, 0xff')
        a(f'buffer_store_dword v{D}, v{A}, {sr(SRD_WS)}, s5 offen sc1')
        a('s_mov_b64 exec, -1')
        a(f'{L}:')
    def row_flag(self, base, D, A):
        a = self.a
        L = a.label('Lsig')
        a(f's_cmp_eq_u32 s{sWAVE}, 0'); a(f's_cbranch_scc0 {L}')
        a('s_lshl_b32 s5, s66, 7')
        a('s_lshl_b32 s6, s67, 2')
        a('s_add_u32 s5, s5, s6')
        a(f's_add_u32 s5, s5, {base}')
        a('s_mov_b64 exec, 1')
        a(f'v_mov_b32 v{D}, s83')
        a(f'v_mov_b32 v{A}, 0')
        a(f'buffer_store_dword v{D}, v{A}, {sr(SRD_WS)}, s5 offen sc1')
        a('s_mov_b64 exec, -1')
        a(f'{L}:')

    UD = 108
    XR = 124
    def conv_pass(self, ps, hooks):
        a = self.a
        P = self.PL
        ACC = 12
        bufA = [44, 164]; bufB = [76, 196]
        T0 = 4 * ps
        pairs = [(aa, e) for aa in range(8) for e in range(8) if T0 <= aa + e <= T0 + 3]
        na = max(p[0] for p in pairs) + 1; ne = max(p[1] for p in pairs) + 1
        def reads(b):
            sel = b & 1
            A = []; B = []
            for aa in range(na):
                off = 512 * (7 - aa) + 64 * (7 - b)
                A.append([f'ds_read_b64 {vr(bufA[sel]+4*aa,2)}, v{self.VA} offset:{off}',
                          f'ds_read_b64 {vr(bufA[sel]+4*aa+2,2)}, v{self.VA} offset:{off+8}'])
            for e in range(ne):
                B.append(f'ds_read_b128 {vr(bufB[sel]+4*e,4)}, v{self.VB+b} offset:{4096*e}')
            order = []
            for k in range(max(na, ne)):
                if k < na: order += A[k]
                if k < ne: order.append(B[k])
            return order
        for r in reads(0): a(r)
        a(f'v_xor_b32 v4, 16, v{self.VEU}')
        if ps == 0: a(f'v_lshlrev_b32 v6, 16, v{P+5}')
        side_rd = []
        for tt in range(4):
            t = T0 + tt
            side_rd.append(f'ds_read_b64 {vr(self.UD+4*tt+2,2)}, v{self.VEU} offset:{4096*t}')
            side_rd.append(f'ds_read_b64 {vr(self.XR+4*tt+2,2)}, v4 offset:{4096*t}')
        side = []
        for tt in range(4):
            U = self.UD + 4 * tt; X = self.XR + 4 * tt
            side += [f'v_lshlrev_b32 v{U}, 16, v{U+2}', f'v_and_b32 v{U+1}, 0xffff0000, v{U+2}',
                     f'v_lshlrev_b32 v{U+2}, 16, v{U+3}', f'v_and_b32 v{U+3}, 0xffff0000, v{U+3}']
            side += [f'v_lshlrev_b32 v{X}, 16, v{X+2}', f'v_and_b32 v{X+1}, 0xffff0000, v{X+2}',
                     f'v_lshlrev_b32 v{X+2}, 16, v{X+3}', f'v_and_b32 v{X+3}, 0xffff0000, v{X+3}']
            side += [f'v_fma_f32 v{U+j}, v{U+j}, v6, v{X+j}' for j in range(4)]
        slots = list(hooks.get('slots', []))
        rate = hooks.get('rate', 4); sfrom = hooks.get('from', 0)
        started = set()
        cnt = 0
        self._nslots = 0
        for b in range(8):
            sel = b & 1
            nxt = reads(b + 1) if b < 7 else []
            if b == 0: nxt = side_rd + nxt if len(pairs) >= 20 else nxt + side_rd
            if b in hooks: hooks[b]()
            if ps == 1 and b in (2, 3, 4, 6): self.stamp(f'b{b}')
            a('s_waitcnt lgkmcnt(0)')
            extra_rd = list(nxt)
            n = 0
            for (aa, e) in pairs:
                t = aa + e - T0
                c = '0' if t not in started else vr(ACC + 4 * t, 4)
                started.add(t)
                a(f'v_mfma_f32_16x16x32_bf16 {vr(ACC+4*t,4)}, {vr(bufA[sel]+4*aa,4)}, {vr(bufB[sel]+4*e,4)}, {c}')
                k = 2 if len(extra_rd) > (len(pairs) - n) else 1
                for _ in range(k):
                    if extra_rd: a(extra_rd.pop(0))
                if b >= 1:
                    for _ in range(2 if ps == 0 else 1):
                        if side: a(side.pop(0))
                n += 1
                if b >= sfrom:
                    cnt += 1
                    if cnt % rate == 0 and slots:
                        slots.pop(0)(); self._nslots += 1
            for r in extra_rd: a(r)
        for s_ in side: a(s_)
        assert not slots, len(slots)

    def conv_epi(self, ps):
        a = self.a
        ACC = 12
        a('s_mov_b32 s70, 0x00003f80')
        a('s_mov_b32 s71, 0x3f800000')
        P = [(tt, h) for tt in range(4) for h in range(2)]
        Y = {p: ACC + 4 * p[0] + 2 * p[1] for p in P}
        U = {p: self.UD + 4 * p[0] + 2 * p[1] for p in P}
        O = {p: 84 + 2 * p[0] + p[1] for p in P}
        def step(f):
            for p in P: a(f(p))
        step(lambda p: f'v_pk_add_f32 {vr(Y[p],2)}, {vr(Y[p],2)}, {vr(U[p],2)}')
        step(lambda p: f'v_cvt_pk_bf16_f32 v{O[p]}, v{Y[p]}, v{Y[p]+1}')
        for tt in range(4):
            a(f'ds_write_b64 v{self.VHW}, {vr(84+2*tt,2)} offset:{self.HT + 512*tt}')
        a('v_bfe_u32 v4, v2, 2, 2')
        a(f'v_mul_u32_u24 v4, {self.WSTRIDE}, v4')
        a('v_lshrrev_b32 v5, 4, v2')
        a('v_lshl_add_u32 v4, v5, 5, v4')
        a('v_and_b32 v7, 3, v2')
        a('v_lshl_add_u32 v4, v7, 3, v4')
        a(f's_lshl_b32 s5, s{sWAVE}, 9')
        a(f's_add_u32 s5, s5, {self.HT}')
        a('v_add_u32 v4, s5, v4')
        a('v_mul_u32_u24 v5, 20480, v5')
        a('v_and_b32 v7, 15, v2')
        a('v_lshl_add_u32 v5, v7, 4, v5')
        a(f's_mul_i32 s62, s{sWAVE}, {16*20480}')
        a('s_lshr_b32 s6, s2, 3'); a('s_lshl_b32 s6, s6, 10'); a('s_add_u32 s62, s62, s6')
        a('s_bfe_u32 s6, s2, 0x20001'); a('s_lshl_b32 s6, s6, 8'); a('s_add_u32 s62, s62, s6')
        a('s_and_b32 s6, s2, 1'); a('s_lshl_b32 s6, s6, 3'); a('s_add_u32 s62, s62, s6')
        a(f's_add_u32 s62, s62, {HF + 64*ps*20480}')
        a('s_waitcnt lgkmcnt(0)')
        a('s_barrier')
        for m in range(4):
            a(f'ds_read_b64_tr_b16 {vr(76+2*m,2)}, v4 offset:{128*m}')
        for m in range(4):
            a(f's_waitcnt lgkmcnt({3-m})')
            a(f'buffer_store_dwordx2 {vr(76+2*m,2)}, v5, {sr(SRD_WS)}, s62 offen sc1')
            if m < 3: a(f's_add_u32 s62, s62, {4*20480}')

    HREG = {0: 96, 1: 176}
    ACC3 = {0: 8, 1: 36}
    WB = [172, 200, 228]
    GRAM = 164
    def h_bases(self):
        a = self.a
        a('s_lshl_b32 s78, s66, 2')
        a(f's_add_u32 s78, s78, s{sWAVE}')
        a('s_mul_i32 s78, s78, 20480')
        a(f's_add_u32 s81, s78, {HF}')
        a(f's_add_u32 s80, s81, {64*20480}')
    def hload(self, st, kap):
        a = self.a
        base = 's81' if st == 0 else 's80'
        reg = vr(self.hreg(st, kap), 4)
        if kap < 4:
            a(f'buffer_load_dwordx4 {reg}, v3, {sr(SRD_WS)}, {base} offen offset:{kap*1024} sc1')
        else:
            a(f's_add_u32 s5, {base}, {(kap//4)*4096}')
            a(f'buffer_load_dwordx4 {reg}, v3, {sr(SRD_WS)}, s5 offen offset:{(kap%4)*1024} sc1')
        self.vmi(('h', st, kap))
    seq0 = 0
    def wbi(self, kap): return (self.seq0 + kap) % 3
    def w1rd(self, kap, t):
        off = self.w1_lds(kap * 7 + t)
        reg = ['v3', 'v92', 'v93'][off >> 16]
        return f'ds_read_b128 {ar(self.WB[self.wbi(kap)]+4*t,4)}, {reg} offset:{off & 0xffff}'
    def w2l(self, idx):
        self.w2_load(idx); self.vmi(('w2', idx))

    def p3_stream(self, st, slots, hooks, nslot=2):
        a = self.a
        ACC = self.ACC3[st]
        slots = list(slots)
        def rd(gstep, t):
            kap = gstep % 20
            off = self.w1_lds(kap * 7 + t)
            reg = ['v3', 'v92', 'v93'][off >> 16]
            return f'ds_read_b128 {ar(self.WB[gstep % 3]+4*t,4)}, {reg} offset:{off & 0xffff}'
        for kap in range(20):
            gs = 20 * st + kap
            if kap in hooks: hooks[kap]()
            self.vm_wait(lambda t: t == ('h', st, kap), ' lgkmcnt(7)' if gs + 1 < 40 else ' lgkmcnt(0)')
            if kap in (0, 5, 10, 15): self.stamp(f's{st}k{kap}')
            h = self.hreg(st, kap)
            extra = [rd(gs + 2, t) for t in range(7)] if gs + 2 < 40 else []
            for t in range(7):
                acc = ACC + 4 * t
                c = '0' if kap == 0 else vr(acc, 4)
                a(f'v_mfma_f32_16x16x32_bf16 {vr(acc,4)}, {ar(self.WB[gs % 3]+4*t,4)}, {vr(h,4)}, {c}')
                if extra: a(extra.pop(0))
                if (nslot >= 2 and t in (2, 5)) or (nslot == 1 and t == 3) or (nslot == 3 and t == 0):
                    if slots: slots.pop(0)()
            g = self.GRAM + 4 * st
            c = '0' if kap == 0 else ar(g, 4)
            a(f'v_mfma_f32_16x16x32_bf16 {ar(g,4)}, {vr(h,4)}, {vr(h,4)}, {c}')
        for f in slots: f()

    def hreg(self, st, kap):
        if st == 0 and kap < 8: return 44 + 4 * kap
        return self.HREG[st] + 4 * kap
    def w1rd_g(self, gstep, t):
        kap = gstep % 20
        off = self.w1_lds(kap * 7 + t)
        reg = ['v3', 'v92', 'v93'][off >> 16]
        return f'ds_read_b128 {ar(self.WB[gstep % 3]+4*t,4)}, {reg} offset:{off & 0xffff}'

    def p3_epi(self, st, slots):
        a = self.a
        ACC = self.ACC3[st]
        slots = list(slots)
        a('v_lshrrev_b32 v5, 4, v2')
        a('v_lshlrev_b32 v6, 4, v5')
        a(f'v_add_u32 v6, {self.SBL}, v6')
        for t in range(7):
            a(f'ds_read_b128 {vr(64+4*t,4)}, v6 offset:{64*t}')
            a(f'ds_read_b128 {vr(124+4*t,4)}, v6 offset:{448+64*t}')
        a('v_and_b32 v4, 15, v2')
        a('v_cmp_eq_u32 s[62:63], 3, v5')
        a('v_lshrrev_b32 v6, 2, v4')
        a('v_cmp_eq_u32 s[64:65], v6, v5')
        a('v_and_b32 v6, 3, v4')
        a('v_cmp_eq_u32 s[68:69], 1, v6')
        a('v_cmp_eq_u32 s[70:71], 2, v6')
        a('v_cmp_eq_u32 vcc, 3, v6')
        for j in range(4): a(f'v_accvgpr_read_b32 v{96+j}, a{self.GRAM+4*st+j}')
        a(f'v_cndmask_b32 v112, 0, v{ACC+24}, s[62:63]')
        a('v_cndmask_b32 v96, v96, v97, s[68:69]')
        a('v_cndmask_b32 v96, v96, v98, s[70:71]')
        a('v_cndmask_b32 v96, v96, v99, vcc')
        a('v_cndmask_b32 v113, 0, v96, s[64:65]')
        if self.epi_after_gram: self.epi_after_gram(st)
        for rnd in ('16', '32'):
            a('v_mov_b32 v104, v112'); a('v_mov_b32 v105, v113')
            a(f'v_permlane{rnd}_swap_b32 v112, v104'); a(f'v_permlane{rnd}_swap_b32 v113, v105')
            a('v_add_f32 v112, v112, v104'); a('v_add_f32 v113, v113, v105')
        a(f'v_mul_f32 v112, {f2u(1.0/640):#x}, v112')
        a(f'v_mul_f32 v113, {f2u(1.0/640):#x}, v113')
        a('v_fma_f32 v113, -v112, v112, v113')
        a('v_max_f32 v113, 0, v113')
        a('v_cvt_pk_bf16_f32 v113, v113, v112')
        a('v_and_b32 v112, 0xffff0000, v113')
        a('v_lshlrev_b32 v113, 16, v113')
        a(f'v_add_f32 v113, {f2u(1e-5):#x}, v113')
        self.bf16r(113, 113)
        a('v_sqrt_f32 v113, v113')
        self.bf16r(113, 113)
        a('v_rcp_f32 v116, v113')
        a('v_mov_b32 v118, v112'); a('v_mov_b32 v119, v112'); a('v_mov_b32 v117, v116')
        OUT = 152
        def outreg(t): return OUT + (t >> 1) * 4 + (t & 1) * 2 if t < 6 else OUT + 12
        a('s_lshl_b32 s72, s72, 0') if False else None
        a('s_lshl_b32 s6, s66, 2')
        a(f's_add_u32 s6, s6, s{sWAVE}')
        a(f's_mul_i32 s6, s6, {NK2*1024}')
        a(f's_add_u32 s6, s6, {HH + 64*st*NK2*1024}')
        a('s_lshr_b32 s7, s67, 1'); a('s_mul_i32 s7, s7, 7')
        a('s_and_b32 s63, s67, 1')
        a('s_lshl_b32 s62, s63, 2'); a('s_add_u32 s62, s62, s7'); a('s_lshl_b32 s62, s62, 10'); a('s_add_u32 s62, s62, s6')
        a('s_add_u32 s64, s7, 3'); a('s_lshl_b32 s64, s64, 10'); a('s_lshl_b32 s63, s63, 3'); a('s_add_u32 s64, s64, s63'); a('s_add_u32 s64, s64, s6')
        a('s_mov_b32 s70, 0x00003f80')
        a('s_mov_b32 s71, 0x3f800000')
        a('s_waitcnt lgkmcnt(0)')
        for tp in range(4):
            ts = [2 * tp, 2 * tp + 1] if tp < 3 else [6]
            P = [(t, h) for t in ts for h in range(2)]
            X = {p: ACC + 4 * p[0] + 2 * p[1] for p in P}
            T = {p: 100 + i for i, p in enumerate(P)}
            def step(f):
                for p in P: a(f(p))
            S = lambda p: 64 + 4 * p[0] + 2 * p[1]
            Bq = lambda p: 124 + 4 * p[0] + 2 * p[1]
            step(lambda p: f'v_pk_fma_f32 {vr(X[p],2)}, {vr(S(p),2)}, v[118:119], {vr(X[p],2)} neg_lo:[1,0,0] neg_hi:[1,0,0]')
            step(lambda p: f'v_pk_fma_f32 {vr(X[p],2)}, {vr(X[p],2)}, v[116:117], {vr(Bq(p),2)}')
            step(lambda p: f'v_max_f32 v{X[p]}, 0, v{X[p]}')
            step(lambda p: f'v_max_f32 v{X[p]+1}, 0, v{X[p]+1}')
            step(lambda p: f'v_pk_mul_f32 {vr(X[p],2)}, {vr(X[p],2)}, {vr(X[p],2)}')
            step(lambda p: f'v_cvt_pk_bf16_f32 v{outreg(p[0])+p[1]}, v{X[p]}, v{X[p]+1}')
            for _ in range(self.EPI_SLOTS):
                if slots: slots.pop(0)()
            if tp < 3:
                a(f'buffer_store_dwordx4 {vr(OUT+4*tp,4)}, v3, {sr(SRD_WS)}, s62 offen offset:{1024*tp} sc1')
            else:
                a(f'buffer_store_dwordx2 {vr(OUT+12,2)}, v3, {sr(SRD_WS)}, s64 offen sc1')
            self.vmi(('Hst', st))
        for f in slots: f()
    EPI_SLOTS = 3
    epi_after_gram = None

    RING = {0: 176, 1: 112}
    P4_SL = 7
    RES = 232
    def p4_setup_alt(self):
        self.p4_setup()
    def p4_setup(self):
        a = self.a
        a('s_lshl_b32 s78, s72, 1')
        a(f's_mul_i32 s78, s78, {NK2}')
        a('s_add_u32 s78, s78, s74')
        a('s_lshl_b32 s78, s78, 10')
        a(f's_add_u32 s78, s78, {HH}')
    def Hload(self, st, kk, lt):
        a = self.a
        reg = vr(self.RING[st] + (kk % self.P4_SL) * 8 + lt * 4, 4)
        off = (64 * st + lt) * NK2 * 1024 + kk * 1024
        a(f's_add_u32 s5, s78, {(off // 4096) * 4096}')
        a(f'buffer_load_dwordx4 {reg}, v3, {sr(SRD_WS)}, s5 offen offset:{off % 4096} sc1')
        self.vmi(('H', st, kk, lt))

    def p4_stream(self, st, slots, hooks, lds=None):
        a = self.a
        ACC = 8
        slots = list(slots)
        lds = list(lds or [])
        for kk in range(14):
            if kk in hooks: hooks[kk]()
            need = [('H', st, kk, 0), ('H', st, kk, 1)] + [('w2', kk * 5 + t) for t in range(5)]
            have = [t for t in need if t in self.vmlist]
            for t_ in need:
                assert t_ in self.vmlist or (t_[0] == 'w2' and t_[1] < self.NW2_CONV), (st, kk, t_)
            self.vm_wait(lambda t: t in have)
            if kk in (0, 4, 5, 8, 11, 12): self.stamp(f'q{st}k{kk}')
            n = 0
            for t in range(5):
                for lt in range(2):
                    acc = ACC + (t * 4 + 2 * st + lt) * 4
                    c = '0' if kk == 0 else vr(acc, 4)
                    a(f'v_mfma_f32_16x16x32_bf16 {vr(acc,4)}, {self.w2reg(kk*5+t)}, {vr(self.RING[st]+(kk%self.P4_SL)*8+lt*4,4)}, {c}')
                    if n in (1, 3, 6, 8) and slots and slots[0][0] <= kk: slots.pop(0)[1]()
                    if n == 4 and lds and kk >= 1: a(lds.pop(0))
                    n += 1
        for k_, f in slots: f()
        for l in lds: a(l)

    def p4_pre_loads(self):
        a = self.a
        R = self.RES
        L = []
        def setup():
            self.srd(SRD_B, P_B2, 640 * 2)
            a('v_and_b32 v168, 15, v2')
            a('v_lshrrev_b32 v169, 4, v2')
            a('s_mul_i32 s62, s73, 20')
            a('s_lshl_b32 s63, s72, 1')
            a(f's_add_u32 s63, s63, s{sWAVE}')
            a('s_add_u32 s64, s63, 62')
            a(f's_cmp_ge_u32 s{sWAVE}, 2')
            a('s_cselect_b32 s63, s64, s63')
            a('s_mov_b32 s81, s63')
            a('s_mul_i32 s63, s63, 20480')
            a(f's_add_u32 s63, s63, {HF}')
        def one(t):
            def f():
                if t == 0: setup()
                a('v_add_u32 v170, s62, v169')
                a(f'v_add_u32 v170, {4*t}, v170')
                a('v_lshrrev_b32 v171, 3, v170')
                a('v_lshlrev_b32 v171, 10, v171')
                a('v_bfe_u32 v172, v170, 1, 2')
                a('v_lshl_add_u32 v171, v172, 8, v171')
                a('v_and_b32 v172, 1, v170')
                a('v_lshl_add_u32 v171, v172, 3, v171')
                a('v_lshl_add_u32 v171, v168, 4, v171')
                a(f'buffer_load_dwordx2 {vr(R+2*t,2)}, v171, {sr(SRD_WS)}, s63 offen sc1')
                a('v_lshlrev_b32 v170, 3, v170')
                a(f'buffer_load_dwordx2 {vr(R+10+2*t,2)}, v170, {sr(SRD_B)}, 0 offen')
                self.vmi(('res', t)); self.vmi(('res', t))
            return f
        return [one(t) for t in range(5)]

    def p4_epilogue(self):
        a = self.a
        ACC = 8
        a('v_lshlrev_b32 v3, 4, v2')
        a(f's_mul_i32 s5, s{sWAVE}, 20480')
        a('v_add_u32 v6, s5, v3')
        for lt in range(2 if self.EARLYRED else 0, 4):
            L = a.label('Lp4w')
            a(f's_cmp_eq_u32 s{sWAVE}, {lt}'); a(f's_cbranch_scc1 {L}')
            for t in range(5):
                a(f'ds_write_b128 v6, {vr(ACC+(t*4+lt)*4,4)} offset:{lt*5120+t*1024}')
            a(f'{L}:')
        Lend = a.label('Lp4o')
        for lt in range(4):
            L = a.label('Lp4c')
            a(f's_cmp_eq_u32 s{sWAVE}, {lt}'); a(f's_cbranch_scc0 {L}')
            for t in range(5):
                for h in range(2):
                    a(f'v_pk_mov_b32 {vr(112+4*t+2*h,2)}, {vr(ACC+(t*4+lt)*4+2*h,2)}, {vr(ACC+(t*4+lt)*4+2*h,2)} op_sel:[0,1]')
            a(f's_branch {Lend}')
            a(f'{L}:')
        a(f'{Lend}:')
        a('s_waitcnt vmcnt(0) lgkmcnt(0)')
        a('s_barrier')
        for k in range(1, 4):
            a(f's_add_u32 s5, s{sWAVE}, {k}'); a('s_and_b32 s5, s5, 3'); a('s_mul_i32 s5, s5, 20480')
            a(f's_mul_i32 s6, s{sWAVE}, 5120'); a('s_add_u32 s5, s5, s6')
            a(f'v_add_u32 v{4+k}, s5, v3')
        for t in range(5):
            for k in range(1, 4):
                a(f'ds_read_b128 {vr(172+(t*3+k-1)*4,4)}, v{4+k} offset:{t*1024}')
        for t in range(5):
            for h in range(2):
                b = self.RES + 10 + 2 * t + h; hh = self.RES + 2 * t + h
                a(f'v_lshlrev_b32 v{8+4*t+2*h}, 16, v{b}'); a(f'v_and_b32 v{8+4*t+2*h+1}, 0xffff0000, v{b}')
                a(f'v_lshlrev_b32 v{28+4*t+2*h}, 16, v{hh}'); a(f'v_and_b32 v{28+4*t+2*h+1}, 0xffff0000, v{hh}')
                a(f'v_pk_add_f32 {vr(112+4*t+2*h,2)}, {vr(112+4*t+2*h,2)}, {vr(8+4*t+2*h,2)}')
                a(f'v_pk_add_f32 {vr(112+4*t+2*h,2)}, {vr(112+4*t+2*h,2)}, {vr(28+4*t+2*h,2)}')
        self.srd(SRD_A, P_OUT, 2048 * 1280)
        a(f's_mul_i32 s5, s81, {16*1280}')
        a('s_mul_i32 s6, s73, 160')
        a('s_add_u32 s5, s5, s6')
        a('v_mul_u32_u24 v4, 1280, v168')
        a('v_lshl_add_u32 v4, v169, 3, v4')
        a('s_mov_b32 s70, 0x00003f80')
        a('s_mov_b32 s71, 0x3f800000')
        a('s_waitcnt lgkmcnt(0)')
        P = [(t, h) for t in range(5) for h in range(2)]
        X = {p: 112 + 4 * p[0] + 2 * p[1] for p in P}
        def step(f):
            for p in P: a(f(p))
        for k in range(3):
            step(lambda p: f'v_pk_add_f32 {vr(X[p],2)}, {vr(X[p],2)}, {vr(172+(p[0]*3+k)*4+2*p[1],2)}')
        step(lambda p: f'v_cvt_pk_bf16_f32 v{60+2*p[0]+p[1]}, v{X[p]}, v{X[p]+1}')
        for t in range(5):
            a(f'buffer_store_dwordx2 {vr(60+2*t,2)}, v4, {sr(SRD_A)}, s5 offen offset:{32*t}')

    NW2_CONV = 6
    NW2_P3B = 30
    NW2_P3A = 0
    CRATE = 4
    RCB_K = 11
    FLAGA_B = 3
    NPASS1 = 0
    NSLOTA = 2
    PRE_B = 0
    KZEARLY = 0
    EARLYRED = 1
    EARLYHA = 0
    RCA_K = 16
    PFL_B = 3
    FLAGA2_B = 2
    POLLA_B = 6
    CHKA_IN = 0
    UGATE = 1
    WARM4 = 3
    ROWA_K = 5
    RPA_K = 14
    ROWB_K = 4
    AH3 = 8
    AH4 = 6

def build():
    out = []
    kn = NAME + '_kernel'
    out.append(f'; @launch grid=(256,1,1) block=(256,1,1) lds={LDS_SIZE}')
    out.append('.amdgcn_target "amdgcn-amd-amdhsa--gfx950"')
    out.append('.text')
    g = G4(True); g.kname = 'f'; a = g.a
    g.vmlist = []
    if g.timing:
        for i in range(16): a(f's_mov_b32 s{86+i}, 0')
    g.stamp('start')
    g.prologue()
    g.ln1x_issue()
    g.epoch_issue()
    Laux = a.label('Laux'); Lp3 = a.label('Lp3')
    a('s_cmp_lt_u32 s2, 160'); a(f's_cbranch_scc0 {Laux}')
    g.kgen_issue()
    g.code_prefetch()
    g.p2_consts(0)
    g.ln1x_compute(8)
    g.p2_consts(1)
    if g.EARLYB1:
        g.kg_hookm = g.b1e_issue
        g.kg_hook1 = g.b1e_check
        g.kg_hook2 = None
    else:
        g.kg_hook1 = g.b1_issue
        g.kg_hook2 = g.b1_check_ux_issue
    if g.KZEARLY:
        g.ux_zero_pad()
        a('s_waitcnt vmcnt(12)')
        g.epoch_get()
        def sig():
            g.flag_signal(BFL1); g.stamp('ln1')
        g.kg_hook0 = sig
        g.kgen(5)
        g.kg_hook0 = None
    else:
        a('s_waitcnt vmcnt(12)')
        g.epoch_get()
        g.flag_signal(BFL1)
        g.stamp('ln1')
        g.ux_zero_pad()
        g.kgen(0)
    g.p34_ids()
    g.w2_setup()
    g.pref_setup()
    g.h_bases()
    g.stamp('kgen')
    if g.EARLYB1: g.ux_write_e()
    else: g.ux_write()
    g.flag_store_only(UFL)
    g.pfl_issue()
    g.stamp('ux')
    W1e = [lambda j=j: g.w1A(j) for j in range(11)] + [g.w1T]
    W2e = [lambda i=i: g.w2_load(i) for i in range(g.NW2_CONV)]
    mix = []
    while W1e or W2e:
        if W1e: mix.append(W1e.pop(0))
        for _ in range(3):
            if W2e: mix.append(W2e.pop(0))
    n1 = g.NPASS1
    def pfl1():
        g.pfl_check(0); g.sb_issue()
    if n1:
        g.conv_pass(0, {'slots': mix[:n1], 'rate': g.CRATE, 'from': 1, 1: pfl1})
    else:
        g.conv_pass(0, {})
    g.stamp('c1')
    g.conv_epi(0)
    g.stamp('e1')
    def flagA():
        if n1: a(f's_waitcnt vmcnt({g._nslots})')
        else: a('s_waitcnt vmcnt(0)')
        a('s_barrier'); g.wg_flag(BF2A, 4, 5)
    def pfl2():
        g.pfl_check(1); g.sb_issue()
    def pollA():
        g.fl_issue(BF2A, 8, 7)
    def chkA():
        a('s_waitcnt vmcnt(0)')
        g.sb_finish()
        g.fl_check(BF2A, 8, 7, (0, 40))
        for kap in range(8): g.hload(0, kap)
    if n1:
        hooks = {'slots': mix[n1:], 'rate': g.CRATE, 'from': 0, g.FLAGA_B: flagA, 6: pollA}
    else:
        hooks = {'slots': mix, 'rate': g.CRATE, 'from': g.PFL_B, g.FLAGA2_B: flagA, g.PFL_B: pfl2, g.POLLA_B: pollA}
    if g.CHKA_IN: hooks[7] = chkA
    g.conv_pass(1, hooks)
    g.stamp('b8')
    if not g.CHKA_IN: chkA()
    g.stamp('c2')
    g.conv_epi(1)
    g.stamp('e2')
    a(f's_branch {Lp3}')
    a(f'{Laux}:')
    g.code_prefetch()
    if g.PREPFIRST:
        g.prep_issue3()
        a('s_waitcnt vmcnt(0)')
        g.epoch_get()
        g.prep_compute3()
        g.ln1x_recompute_addr()
        g.ln1x_compute(63)
        g.flag_signal(BFL1)
        g.wg_flag(PFL, 4, 5)
        g.stamp('ln1')
    elif g.PREPL4 == 2:
        g.ln1x_compute(0)
        g.epoch_get()
        g.flag_signal(BFL1)
        g.stamp('ln1')
        g.prep_issue3()
        g.prep_compute3()
        g.flag_signal(PFL)
    elif g.PREPL4 == 1:
        g.ln1x_compute(0)
        g.epoch_get()
        g.prep_issue3()
        g.flag_signal(BFL1, drain=False)
        g.stamp('ln1')
        g.prep_compute3()
        g.flag_signal(PFL)
    else:
        g.ln1x_compute(2, g.prep_issue3)
        a('s_waitcnt vmcnt(0)')
        g.epoch_get()
        g.flag_signal(BFL1)
        g.stamp('ln1')
        g.prep_compute3()
        g.flag_signal(PFL)
    g.p34_ids()
    g.w2_setup()
    g.pref_setup()
    g.h_bases()
    if g.UGATE: g.flag_wait(UFL, lanes=(0, 40))
    g.pfl_issue()
    g.pfl_check()
    g.sb_issue()
    if g.WARM4 in (2, 3): g.warm4()
    for f in mix_copy(g): f()
    if g.WARM4 == 1: g.warm4()
    g.fl_issue(BF2A, 8, 7)
    a('s_waitcnt vmcnt(0)')
    g.sb_finish()
    g.fl_check(BF2A, 8, 7, (0, 40))
    for kap in range(8): g.hload(0, kap)
    a('s_waitcnt lgkmcnt(0)')
    a('s_barrier')
    a(f'{Lp3}:')
    g.vmlist = [('h', 0, k) for k in range(8)]
    late = g.list_late()
    def lw(i):
        def f():
            late[i](); g.vmi(('w1', 0 if i < 8 else 1 if i < 16 else 2))
        return f
    a('v_add_u32 v92, 0x10000, v3')
    a('v_add_u32 v93, 0x20000, v3')
    for gs in range(2):
        for t in range(7): a(g.w1rd_g(gs, t))
    for i in range(8): lw(i)()
    g.stamp('p3go')
    hrest = [lambda k=k: g.hload(0, k) for k in range(8, 20)]
    wrest = [lw(i) for i in range(8, 23)]
    slotsA = wrest[:8] + hrest[:2]
    hrest = hrest[2:]; wrest = wrest[8:]
    while hrest or wrest:
        if wrest: slotsA.append(wrest.pop(0))
        if hrest: slotsA.append(hrest.pop(0))
    slotsA += [lambda i=i: g.w2l(i) for i in range(g.NW2_CONV, g.NW2_CONV + g.NW2_P3A)]
    def grp(n, flag=False):
        def f():
            g.vm_wait(lambda t: t == ('w1', n)); a('s_barrier')
            if flag: g.wg_flag(BF2B, 4, 5, only_conv=True)
        return f
    def pollB_issue():
        g.fl_issue(BF2B, 4, 94); g.vmi(('pollB',))
    g.p3_stream(0, slotsA, {4: grp(0, True), 9: grp(1), 14: grp(2), 16: pollB_issue}, nslot=g.NSLOTA)
    g.stamp('p3a')
    g.vm_wait(lambda t: t == ('pollB',))
    g.fl_check(BF2B, 4, 94, (0, 40))
    Lx = a.label('Lep')
    a('s_cmp_eq_u32 s2, 0'); a(f's_cbranch_scc0 {Lx}')
    a(f's_cmp_eq_u32 s{sWAVE}, 0'); a(f's_cbranch_scc0 {Lx}')
    a('s_mov_b64 exec, 1'); a('v_mov_b32 v4, s83'); a(f'v_mov_b32 v5, {EPX}')
    a(f'buffer_store_dword v4, v5, {sr(SRD_WS)}, 0 offen sc1'); a('s_mov_b64 exec, -1')
    a(f'{Lx}:')
    for kap in range(6): g.hload(1, kap)
    g.p3_epi(0, [lambda k=k: g.hload(1, k) for k in range(6, 14)])
    g.stamp('epA')
    n0 = g.NW2_CONV + g.NW2_P3A
    slotsB = [lambda k=k: g.hload(1, k) for k in range(14, 20)] + [lambda i=i: g.w2l(i) for i in range(n0, n0 + g.NW2_P3B)]
    def rowA():
        g.vm_wait(lambda t: t == ('Hst', 0)); a('s_barrier'); g.row_flag(RFA, 4, 5)
    def rowpollA():
        g.row_issue(RFA, 4, 5); g.vmi(('rpA',))
    HA0 = [lambda k=k, lt=lt: g.Hload(0, k, lt) for k in range(g.AH4) for lt in range(2)]
    nxt = n0 + g.NW2_P3B
    assert nxt <= 41
    if g.EARLYHA:
        def chkrA():
            g.vm_wait(lambda t: t == ('rpA',))
            g.row_check(RFA, 4, 5)
            g.p4_setup_alt()
            for f in HA0[:g.EARLYHA]: f()
        g.p3_stream(1, slotsB, {g.ROWA_K: rowA, g.RPA_K: rowpollA, g.RCA_K: chkrA})
        g.stamp('p3b')
        g.p4_setup()
        HA0 = HA0[g.EARLYHA:]
        def after_gram(st):
            if st == 1:
                for f in HA0: f()
        HA0r = []
    else:
        g.p3_stream(1, slotsB, {g.ROWA_K: rowA, g.RPA_K: rowpollA})
        g.stamp('p3b')
        g.vm_wait(lambda t: t == ('rpA',))
        g.row_check(RFA, 4, 5)
        g.p4_setup()
        def after_gram(st):
            if st == 1:
                for f in HA0[:6]: f()
        HA0r = HA0[6:]
    g.epi_after_gram = after_gram
    lateW2 = [lambda i=i: g.w2l(i) for i in range(nxt, 64)]
    g.p3_epi(1, HA0r + lateW2[:6])
    g.stamp('epB')
    rest = lateW2[6:] + [lambda i=i: g.w2l(i) for i in range(64, 70)]
    for f in rest[:6]: f()
    rest = rest[6:]
    sl = []
    for kk in range(14):
        if kk + g.AH4 < 14:
            sl += [(kk, lambda k=kk + g.AH4: g.Hload(0, k, 0)), (kk, lambda k=kk + g.AH4: g.Hload(0, k, 1))]
        for _ in range(3 if kk < 3 else 2):
            if rest: sl.append((kk, rest.pop(0)))
    pre = g.p4_pre_loads()
    if not g.PRE_B:
        for j, f in enumerate(pre): sl.append((7 + j, f))
    sl.sort(key=lambda x: x[0])
    def rowB():
        g.vm_wait(lambda t: t == ('Hst', 1)); a('s_barrier'); g.row_flag(RFB, 4, 5)
    def rowpollB():
        g.row_issue(RFB, 4, 5); g.vmi(('rpB',))
    def rowchkB():
        g.vm_wait(lambda t: t == ('rpB',)); g.row_check(RFB, 4, 5)
        for k in range(2):
            g.Hload(1, k, 0); g.Hload(1, k, 1)
    slB = [(g.RCB_K, lambda k=k, lt=lt: g.Hload(1, k, lt)) for k in range(2, g.AH4) for lt in range(2)]
    g.p4_stream(0, sl + slB, {g.ROWB_K: rowB, g.RCB_K - 3: rowpollB, g.RCB_K: rowchkB})
    g.stamp('p4a')
    slB2 = []
    for kk in range(14):
        if kk + g.AH4 < 14:
            slB2 += [(kk, lambda k=kk + g.AH4: g.Hload(1, k, 0)), (kk, lambda k=kk + g.AH4: g.Hload(1, k, 1))]
    if g.PRE_B:
        for j, f in enumerate(pre): slB2.append((2 + j, f))
        slB2.sort(key=lambda x: x[0])
    ldsA = []
    if g.EARLYRED:
        a(f's_mul_i32 s5, s{sWAVE}, 20480')
        a('v_add_u32 v6, s5, v3')
        ldsA = [f'ds_write_b128 v6, {vr(8+(t*4+lt)*4,4)} offset:{lt*5120+t*1024}' for lt in range(2) for t in range(5)]
    g.p4_stream(1, slB2, {}, ldsA)
    g.stamp('p4b')
    g.p4_epilogue()
    g.stamp_flush(0)
    g.end()
    out.append(kernel_header(kn)); out += a.finalize()
    out.append('.section .rodata,"a"')
    out.append(kernel_desc(kn))
    return '\n'.join(out) + '\n'

def mix_copy(g):
    W1e = [lambda j=j: g.w1A(j) for j in range(11)] + [g.w1T]
    W2e = [lambda i=i: g.w2_load(i) for i in range(g.NW2_CONV)]
    return W1e + W2e

if __name__ == '__main__':
    dst = sys.argv[1]
    gen.TIMING = 'timing' in sys.argv[2:]
    for x in sys.argv[2:]:
        if x.startswith('set='): gen.STAMPSET = set(x[4:].split(','))
        elif x.startswith('dbg='): gen.DBGSTAMP = int(x[4:])
        elif '=' in x:
            k, v = x.split('='); setattr(G4, k, int(v))
    gen.HF = HF; gen.BLK = BLK; gen.HH = HH; gen.W1F = W1F; gen.W2F = W2F; gen.SP = SP
    s = build()
    open(dst, 'w').write(s)
    import shutil, os
    if gen.TIMING: shutil.copy('stamps_k0.txt', dst + '.tags')
    print('wrote', dst, len(s), 'bytes')
```

```python
import sys
sys.path.insert(0, 'work')
import gen, gen2, gen3
from gen import sr, vr, ar, f2u, sWAVE, SRD_A, SRD_WS, SRD_B, SRD_C, SRD_D
from gen import P_X, P_B1, P_B2, P_OUT
from gen import kernel_header, kernel_desc, NAME
from gen2 import BLK, HF, W1F, W2F, SP, HH, EPX, LDS_SIZE, NK2
from gen3 import G3, BFL1, PFL, UFL

BF2A = 0x2003000
BF2B = 0x200C000
RFA  = 0x2008000
RFB  = 0x2009000

class G4(G3):
    HT = 16640
    SBL = 162048

    def ln1x_recompute_addr(self):
        a = self.a
        a('v_lshrrev_b32 v3, 5, v0')
        a('v_and_b32 v4, 31, v0')
    PREPFIRST = 0
    PREPL4 = 0

    def uxreg(self, k): return 228 + 4 * k if k < 7 else 96
    def b1e_issue(self):
        a = self.a
        a('v_lshlrev_b32 v160, 4, v2')
        a('s_and_b32 s5, s2, 7')
        a('s_lshl_b32 s5, s5, 10')
        a(f's_add_u32 s5, s5, {BFL1}')
        a(f'buffer_load_dwordx4 v[156:159], v160, {sr(SRD_WS)}, s5 offen sc1')
    def b1e_check(self):
        a = self.a
        Lp = a.label('Lb1p'); Lc = a.label('Lb1c'); Ld = a.label('Lb1d')
        a('s_mov_b32 s7, 0')
        a('s_waitcnt vmcnt(0)')
        a(f's_branch {Lc}')
        a(f'{Lp}:')
        a('s_sleep 1')
        self.b1e_issue()
        a('s_waitcnt vmcnt(0)')
        a(f'{Lc}:')
        for j in range(4): a(f'v_xor_b32 v{156+j}, s83, v{156+j}')
        a('v_or_b32 v156, v156, v157')
        a('v_or3_b32 v156, v156, v158, v159')
        a('v_cmp_ne_u32 vcc, 0, v156')
        a(f's_cbranch_vccz {Ld}')
        a('s_add_u32 s7, s7, 1')
        a('s_cmp_lt_u32 s7, 0x40000')
        a(f's_cbranch_scc1 {Lp}')
        a(f'{Ld}:')
        a('v_lshrrev_b32 v162, 3, v2')
        a('v_mul_u32_u24 v163, 20480, v162')
        a('v_and_b32 v162, 7, v2')
        a('v_lshl_add_u32 v163, v162, 4, v163')
        a(f's_mul_i32 s5, s{sWAVE}, {64*20480}')
        a('s_lshl_b32 s7, s2, 7')
        a('s_add_u32 s5, s5, s7')
        for k in range(8):
            a(f'buffer_load_dwordx4 {vr(self.uxreg(k),4)}, v163, {sr(SRD_WS)}, s5 offen sc1')
            if k < 7: a(f's_add_u32 s5, s5, {8*20480}')
    def ux_write_e(self):
        a = self.a
        a('v_lshrrev_b32 v4, 3, v2')
        a('v_and_b32 v6, 7, v2')
        a('v_lshrrev_b32 v7, 4, v2')
        a('v_xor_b32 v8, v6, v7')
        a('v_xor_b32 v9, 4, v8')
        a('v_lshlrev_b32 v4, 7, v4')
        a(f's_lshl_b32 s6, s{sWAVE}, 13')
        a(f's_add_u32 s6, s6, {self.UXB + 4096}')
        a('v_add_u32 v4, s6, v4')
        a('v_lshl_add_u32 v8, v8, 4, v4')
        a('v_lshl_add_u32 v9, v9, 4, v4')
        for k in range(8):
            a(f's_waitcnt vmcnt({7-k})')
            a(f'ds_write_b128 v{8 + (k&1)}, {vr(self.uxreg(k),4)} offset:{k*1024}')
        a('s_waitcnt lgkmcnt(0)')
        a('s_barrier')
    KG_MID = 2
    EARLYB1 = 0
    def vm_reset(self): self.vm = []
    def vm(self): pass
    def vmi(self, tag): self.vmlist.append(tag)
    def vm_wait(self, pred, extra=''):
        last = max(i for i, t in enumerate(self.vmlist) if pred(t))
        n = len(self.vmlist) - 1 - last
        self.a(f's_waitcnt vmcnt({min(63, n)}){extra}')

    def w1_lds(self, idx):
        WS = self.WSTRIDE
        if idx < 44: return (idx % 4) * WS + 18688 + (idx // 4) * 1024
        if idx < 48: return 157952 + (idx - 44) * 1024
        if idx < 112:
            j = idx - 48
            return (j % 4) * WS + (j // 4) * 1024
        return self.UXB + (idx - 112) * 1024

    def pref_setup(self):
        a = self.a
        a('s_mul_i32 s76, s67, 143360')
        a(f's_add_u32 s76, s76, {W1F}')
        a(f's_mul_i32 s75, s{sWAVE}, {self.WSTRIDE}')
        a('v_lshlrev_b32 v3, 4, v2')
        a(f's_lshl_b32 s82, s{sWAVE}, 10')
        a('s_add_u32 s77, s76, s82')
    def w1A(self, j):
        self.dma([f's_add_u32 m0, s75, {18688 + 1024*j}'], [f's_add_u32 s5, s77, {4096*j}'])
    def w1T(self):
        self.dma([f's_add_u32 m0, s82, 157952'], [f's_add_u32 s5, s77, {44*1024}'])
    def w1T2(self):
        self.dma([f's_mov_b32 m0, {157952 + 4096}'], [f's_add_u32 s5, s76, {48*1024}'])
    def w1B(self, i):
        self.dma([f's_add_u32 m0, s75, {1024*i}'], [f's_add_u32 s5, s77, {48*1024 + 4096*i}'])
    def w1C(self, i):
        self.dma([f's_add_u32 m0, s82, {self.UXB + 4096*i}'], [f's_add_u32 s5, s77, {112*1024 + 4096*i}'])
    def list_late(self):
        return [lambda i=i: self.w1B(i) for i in range(16)] + [lambda i=i: self.w1C(i) for i in range(7)]

    def sb_issue(self):
        a = self.a
        a('v_lshlrev_b32 v35, 3, v2')
        a('s_mul_i32 s64, s67, 448')
        a(f's_add_u32 s64, s64, {SP}')
        for part in range(3):
            a(f'buffer_load_dwordx2 {vr(28+2*part,2)}, v35, {sr(SRD_WS)}, s64 offen sc1')
            if part < 2: a('s_add_u32 s64, s64, 7168')
        self.srd(SRD_B, P_B1, 1728 * 2)
        a('s_mul_i32 s64, s67, 216')
        a('v_lshlrev_b32 v36, 2, v2')
        a(f'buffer_load_dword v34, v36, {sr(SRD_B)}, s64 offen')
        return 4
    def sb_finish(self):
        a = self.a
        L = a.label('Lsb')
        a(f's_cmp_eq_u32 s{sWAVE}, 1'); a(f's_cbranch_scc0 {L}')
        a('s_mov_b32 exec_hi, 0x00ffffff')
        a('v_pk_add_f32 v[28:29], v[28:29], v[30:31]')
        a('v_pk_add_f32 v[28:29], v[28:29], v[32:33]')
        a('v_lshlrev_b32 v30, 16, v34')
        a('v_and_b32 v31, 0xffff0000, v34')
        a(f'v_add_u32 v35, {self.SBL}, v35')
        a('ds_write_b64 v35, v[28:29]')
        a('ds_write_b64 v35, v[30:31] offset:448')
        a('s_mov_b64 exec, -1')
        a(f'{L}:')

    def warm4(self):
        a = self.a
        a('s_sub_u32 s5, s2, 160'); a('s_lshr_b32 s5, s5, 3'); a('s_lshl_b32 s5, s5, 2'); a(f's_add_u32 s5, s5, s{sWAVE}')
        a('s_mul_i32 s6, s5, 10923'); a('s_lshr_b32 s6, s6, 16')
        a('s_mul_i32 s7, s6, 6'); a('s_sub_u32 s7, s5, s7')
        a('s_and_b32 s62, s2, 1'); a('s_lshl_b32 s62, s62, 3'); a('s_add_u32 s6, s6, s62')
        a('s_mul_i32 s6, s6, 143360'); a(f's_add_u32 s6, s6, {W1F}')
        a('s_add_u32 s63, s6, %d' % (139 * 1024))
        if self.WARM4 == 2:
            a('s_mul_i32 s7, s7, %d' % (24 * 1024)); a('s_add_u32 s6, s6, s7')
        else:
            a('s_lshl_b32 s7, s7, 14'); a('s_add_u32 s6, s6, s7'); a('s_add_u32 s6, s6, %d' % (48 * 1024))
        for i in range(24 if self.WARM4 == 2 else 16):
            a('s_min_u32 s62, s6, s63')
            a(f'buffer_load_dwordx4 {vr(176+4*(i%16),4)}, v3, {sr(SRD_WS)}, s62 offen sc1')
            a('s_add_u32 s6, s6, 1024')
        if self.WARM4 == 3: return
        if self.WARM4 == 2:
            a('s_mul_i32 s6, s5, %d' % (47 * 1024))
            a(f's_add_u32 s6, s6, {W2F}')
            a(f's_mov_b32 s7, {W2F + 2240*1024 - 1024}')
            for i in range(47):
                a('s_min_u32 s62, s6, s7')
                a(f'buffer_load_dwordx4 {vr(176+4*(i%16),4)}, v3, {sr(SRD_WS)}, s62 offen sc1')
                a('s_add_u32 s6, s6, 1024')
            return
        L = a.label('Lwm')
        a('s_cmp_ge_u32 s5, 32'); a(f's_cbranch_scc1 {L}')
        a('s_lshr_b32 s6, s5, 2'); a(f's_mul_i32 s6, s6, {NK2}')
        a('s_and_b32 s7, s5, 3'); a('s_mul_i32 s7, s7, 14'); a('s_add_u32 s6, s6, s7')
        a('s_mul_i32 s6, s6, 5120'); a(f's_add_u32 s6, s6, {W2F + 48*1024}')
        for i in range(22):
            a(f'buffer_load_dwordx4 {vr(176+4*(i%16),4)}, v3, {sr(SRD_WS)}, s6 offen sc1')
            a('s_add_u32 s6, s6, 1024')
        a(f'{L}:')

    def fl_issue(self, base, D, A):
        a = self.a
        a(f'v_lshlrev_b32 v{A}, 4, v2')
        a('s_and_b32 s5, s2, 7')
        a('s_lshl_b32 s5, s5, 10')
        a(f's_add_u32 s5, s5, {base}')
        a(f'buffer_load_dwordx4 {vr(D,4)}, v{A}, {sr(SRD_WS)}, s5 offen sc1')
    def fl_check(self, base, D, A, lanes):
        a = self.a
        Lp = a.label('Lfp'); Lc = a.label('Lfc'); Ld = a.label('Lfd')
        lo, hi = lanes
        m = ((1 << hi) - 1) ^ ((1 << lo) - 1)
        a(f's_mov_b32 s62, {m & 0xffffffff:#x}'); a(f's_mov_b32 s63, {m >> 32:#x}')
        a('s_mov_b32 s7, 0')
        a(f's_branch {Lc}')
        a(f'{Lp}:')
        a('s_sleep 1')
        self.fl_issue(base, D, A)
        a('s_waitcnt vmcnt(0)')
        a(f'{Lc}:')
        for j in range(4): a(f'v_xor_b32 v{D+j}, s83, v{D+j}')
        a(f'v_or_b32 v{D}, v{D}, v{D+1}')
        a(f'v_or3_b32 v{D}, v{D}, v{D+2}, v{D+3}')
        a(f'v_cmp_ne_u32 vcc, 0, v{D}')
        a('s_and_b64 vcc, vcc, s[62:63]')
        a(f's_cbranch_vccz {Ld}')
        a('s_add_u32 s7, s7, 1')
        a('s_cmp_lt_u32 s7, 0x40000')
        a(f's_cbranch_scc1 {Lp}')
        a(f'{Ld}:')
    def row_issue(self, base, D, A):
        a = self.a
        a(f'v_and_b32 v{A}, 3, v2')
        a(f'v_lshlrev_b32 v{A}, 2, v{A}')
        a('s_lshr_b32 s5, s72, 1')
        a('s_lshl_b32 s5, s5, 7')
        a(f's_lshl_b32 s6, s{sWAVE}, 4')
        a('s_add_u32 s5, s5, s6')
        a(f's_add_u32 s5, s5, {base}')
        a(f'buffer_load_dword v{D}, v{A}, {sr(SRD_WS)}, s5 offen sc1')
    def row_check(self, base, D, A):
        a = self.a
        Lp = a.label('Lrp'); Lc = a.label('Lrc'); Ld = a.label('Lrd')
        a('s_mov_b32 s7, 0')
        a(f's_branch {Lc}')
        a(f'{Lp}:')
        a('s_sleep 1')
        self.row_issue(base, D, A)
        a('s_waitcnt vmcnt(0)')
        a(f'{Lc}:')
        a(f'v_cmp_ne_u32 vcc, s83, v{D}')
        a(f's_cbranch_vccz {Ld}')
        a('s_add_u32 s7, s7, 1')
        a('s_cmp_lt_u32 s7, 0x40000')
        a(f's_cbranch_scc1 {Lp}')
        a(f'{Ld}:')
    def wg_flag(self, base, D, A, only_conv=False):
        a = self.a
        L = a.label('Lsig')
        a(f's_cmp_eq_u32 s{sWAVE}, 0'); a(f's_cbranch_scc0 {L}')
        if only_conv:
            a('s_cmp_lt_u32 s2, 160'); a(f's_cbranch_scc0 {L}')
        a(f'v_lshlrev_b32 v{A}, 10, v2')
        a('s_lshl_b32 s5, s2, 2')
        a(f's_add_u32 s5, s5, {base}')
        a(f'v_mov_b32 v{D}, s83')
        a('s_mov_b64 exec, 0xff')
        a(f'buffer_store_dword v{D}, v{A}, {sr(SRD_WS)}, s5 offen sc1')
        a('s_mov_b64 exec, -1')
        a(f'{L}:')
    def row_flag(self, base, D, A):
        a = self.a
        L = a.label('Lsig')
        a(f's_cmp_eq_u32 s{sWAVE}, 0'); a(f's_cbranch_scc0 {L}')
        a('s_lshl_b32 s5, s66, 7')
        a('s_lshl_b32 s6, s67, 2')
        a('s_add_u32 s5, s5, s6')
        a(f's_add_u32 s5, s5, {base}')
        a('s_mov_b64 exec, 1')
        a(f'v_mov_b32 v{D}, s83')
        a(f'v_mov_b32 v{A}, 0')
        a(f'buffer_store_dword v{D}, v{A}, {sr(SRD_WS)}, s5 offen sc1')
        a('s_mov_b64 exec, -1')
        a(f'{L}:')

    UD = 108
    XR = 124
    def conv_pass(self, ps, hooks):
        a = self.a
        P = self.PL
        ACC = 12
        bufA = [44, 164]; bufB = [76, 196]
        T0 = 4 * ps
        pairs = [(aa, e) for aa in range(8) for e in range(8) if T0 <= aa + e <= T0 + 3]
        na = max(p[0] for p in pairs) + 1; ne = max(p[1] for p in pairs) + 1
        def reads(b):
            sel = b & 1
            A = []; B = []
            for aa in range(na):
                off = 512 * (7 - aa) + 64 * (7 - b)
                A.append([f'ds_read_b64 {vr(bufA[sel]+4*aa,2)}, v{self.VA} offset:{off}',
                          f'ds_read_b64 {vr(bufA[sel]+4*aa+2,2)}, v{self.VA} offset:{off+8}'])
            for e in range(ne):
                B.append(f'ds_read_b128 {vr(bufB[sel]+4*e,4)}, v{self.VB+b} offset:{4096*e}')
            order = []
            for k in range(max(na, ne)):
                if k < na: order += A[k]
                if k < ne: order.append(B[k])
            return order
        for r in reads(0): a(r)
        a(f'v_xor_b32 v4, 16, v{self.VEU}')
        if ps == 0: a(f'v_lshlrev_b32 v6, 16, v{P+5}')
        side_rd = []
        for tt in range(4):
            t = T0 + tt
            side_rd.append(f'ds_read_b64 {vr(self.UD+4*tt+2,2)}, v{self.VEU} offset:{4096*t}')
            side_rd.append(f'ds_read_b64 {vr(self.XR+4*tt+2,2)}, v4 offset:{4096*t}')
        side = []
        for tt in range(4):
            U = self.UD + 4 * tt; X = self.XR + 4 * tt
            side += [f'v_lshlrev_b32 v{U}, 16, v{U+2}', f'v_and_b32 v{U+1}, 0xffff0000, v{U+2}',
                     f'v_lshlrev_b32 v{U+2}, 16, v{U+3}', f'v_and_b32 v{U+3}, 0xffff0000, v{U+3}']
            side += [f'v_lshlrev_b32 v{X}, 16, v{X+2}', f'v_and_b32 v{X+1}, 0xffff0000, v{X+2}',
                     f'v_lshlrev_b32 v{X+2}, 16, v{X+3}', f'v_and_b32 v{X+3}, 0xffff0000, v{X+3}']
            side += [f'v_fma_f32 v{U+j}, v{U+j}, v6, v{X+j}' for j in range(4)]
        slots = list(hooks.get('slots', []))
        rate = hooks.get('rate', 4); sfrom = hooks.get('from', 0)
        started = set()
        cnt = 0
        self._nslots = 0
        for b in range(8):
            sel = b & 1
            nxt = reads(b + 1) if b < 7 else []
            if b == 0: nxt = side_rd + nxt if len(pairs) >= 20 else nxt + side_rd
            if b in hooks: hooks[b]()
            if ps == 1 and b in (2, 3, 4, 6): self.stamp(f'b{b}')
            a('s_waitcnt lgkmcnt(0)')
            extra_rd = list(nxt)
            n = 0
            for (aa, e) in pairs:
                t = aa + e - T0
                c = '0' if t not in started else vr(ACC + 4 * t, 4)
                started.add(t)
                a(f'v_mfma_f32_16x16x32_bf16 {vr(ACC+4*t,4)}, {vr(bufA[sel]+4*aa,4)}, {vr(bufB[sel]+4*e,4)}, {c}')
                k = 2 if len(extra_rd) > (len(pairs) - n) else 1
                for _ in range(k):
                    if extra_rd: a(extra_rd.pop(0))
                if b >= 1:
                    for _ in range(2 if ps == 0 else 1):
                        if side: a(side.pop(0))
                n += 1
                if b >= sfrom:
                    cnt += 1
                    if cnt % rate == 0 and slots:
                        slots.pop(0)(); self._nslots += 1
            for r in extra_rd: a(r)
        for s_ in side: a(s_)
        assert not slots, len(slots)

    def conv_epi(self, ps):
        a = self.a
        ACC = 12
        a('s_mov_b32 s70, 0x00003f80')
        a('s_mov_b32 s71, 0x3f800000')
        P = [(tt, h) for tt in range(4) for h in range(2)]
        Y = {p: ACC + 4 * p[0] + 2 * p[1] for p in P}
        U = {p: self.UD + 4 * p[0] + 2 * p[1] for p in P}
        O = {p: 84 + 2 * p[0] + p[1] for p in P}
        def step(f):
            for p in P: a(f(p))
        step(lambda p: f'v_pk_add_f32 {vr(Y[p],2)}, {vr(Y[p],2)}, {vr(U[p],2)}')
        step(lambda p: f'v_cvt_pk_bf16_f32 v{O[p]}, v{Y[p]}, v{Y[p]+1}')
        for tt in range(4):
            a(f'ds_write_b64 v{self.VHW}, {vr(84+2*tt,2)} offset:{self.HT + 512*tt}')
        a('v_bfe_u32 v4, v2, 2, 2')
        a(f'v_mul_u32_u24 v4, {self.WSTRIDE}, v4')
        a('v_lshrrev_b32 v5, 4, v2')
        a('v_lshl_add_u32 v4, v5, 5, v4')
        a('v_and_b32 v7, 3, v2')
        a('v_lshl_add_u32 v4, v7, 3, v4')
        a(f's_lshl_b32 s5, s{sWAVE}, 9')
        a(f's_add_u32 s5, s5, {self.HT}')
        a('v_add_u32 v4, s5, v4')
        a('v_mul_u32_u24 v5, 20480, v5')
        a('v_and_b32 v7, 15, v2')
        a('v_lshl_add_u32 v5, v7, 4, v5')
        a(f's_mul_i32 s62, s{sWAVE}, {16*20480}')
        a('s_lshr_b32 s6, s2, 3'); a('s_lshl_b32 s6, s6, 10'); a('s_add_u32 s62, s62, s6')
        a('s_bfe_u32 s6, s2, 0x20001'); a('s_lshl_b32 s6, s6, 8'); a('s_add_u32 s62, s62, s6')
        a('s_and_b32 s6, s2, 1'); a('s_lshl_b32 s6, s6, 3'); a('s_add_u32 s62, s62, s6')
        a(f's_add_u32 s62, s62, {HF + 64*ps*20480}')
        a('s_waitcnt lgkmcnt(0)')
        a('s_barrier')
        for m in range(4):
            a(f'ds_read_b64_tr_b16 {vr(76+2*m,2)}, v4 offset:{128*m}')
        for m in range(4):
            a(f's_waitcnt lgkmcnt({3-m})')
            a(f'buffer_store_dwordx2 {vr(76+2*m,2)}, v5, {sr(SRD_WS)}, s62 offen sc1')
            if m < 3: a(f's_add_u32 s62, s62, {4*20480}')

    HREG = {0: 96, 1: 176}
    ACC3 = {0: 8, 1: 36}
    WB = [172, 200, 228]
    GRAM = 164
    def h_bases(self):
        a = self.a
        a('s_lshl_b32 s78, s66, 2')
        a(f's_add_u32 s78, s78, s{sWAVE}')
        a('s_mul_i32 s78, s78, 20480')
        a(f's_add_u32 s81, s78, {HF}')
        a(f's_add_u32 s80, s81, {64*20480}')
    def hload(self, st, kap):
        a = self.a
        base = 's81' if st == 0 else 's80'
        reg = vr(self.hreg(st, kap), 4)
        if kap < 4:
            a(f'buffer_load_dwordx4 {reg}, v3, {sr(SRD_WS)}, {base} offen offset:{kap*1024} sc1')
        else:
            a(f's_add_u32 s5, {base}, {(kap//4)*4096}')
            a(f'buffer_load_dwordx4 {reg}, v3, {sr(SRD_WS)}, s5 offen offset:{(kap%4)*1024} sc1')
        self.vmi(('h', st, kap))
    seq0 = 0
    def wbi(self, kap): return (self.seq0 + kap) % 3
    def w1rd(self, kap, t):
        off = self.w1_lds(kap * 7 + t)
        reg = ['v3', 'v92', 'v93'][off >> 16]
        return f'ds_read_b128 {ar(self.WB[self.wbi(kap)]+4*t,4)}, {reg} offset:{off & 0xffff}'
    def w2l(self, idx):
        self.w2_load(idx); self.vmi(('w2', idx))

    def p3_stream(self, st, slots, hooks, nslot=2):
        a = self.a
        ACC = self.ACC3[st]
        slots = list(slots)
        def rd(gstep, t):
            kap = gstep % 20
            off = self.w1_lds(kap * 7 + t)
            reg = ['v3', 'v92', 'v93'][off >> 16]
            return f'ds_read_b128 {self.wbreg(gstep, t)}, {reg} offset:{off & 0xffff}'
        for kap in range(20):
            gs = 20 * st + kap
            if kap in hooks: hooks[kap]()
            self.vm_wait(lambda t: t == ('h', st, kap), ' lgkmcnt(7)' if gs + 1 < 40 else ' lgkmcnt(0)')
            if kap in (0, 5, 10, 15): self.stamp(f's{st}k{kap}')
            h = self.hreg(st, kap)
            extra = [rd(gs + 2, t) for t in range(7)] if gs + 2 < 40 else []
            for t in range(7):
                acc = ACC + 4 * t
                c = '0' if kap == 0 else vr(acc, 4)
                a(f'v_mfma_f32_16x16x32_bf16 {vr(acc,4)}, {self.wbreg(gs, t)}, {vr(h,4)}, {c}')
                if extra: a(extra.pop(0))
                if (nslot >= 2 and t in (2, 5)) or (nslot == 1 and t == 3) or (nslot == 3 and t == 0):
                    if slots: slots.pop(0)()
            g = self.GRAM + 4 * st
            c = '0' if kap == 0 else ar(g, 4)
            a(f'v_mfma_f32_16x16x32_bf16 {ar(g,4)}, {vr(h,4)}, {vr(h,4)}, {c}')
        for f in slots: f()

    WBV = [64, 96, 124]
    VWB = 0
    def wbreg(self, gs, t):
        if self.VWB and gs >= 22: return vr(self.WBV[gs % 3] + 4 * t, 4)
        return ar(self.WB[gs % 3] + 4 * t, 4)
    def hreg(self, st, kap):
        if st == 0 and kap < 8: return 44 + 4 * kap
        return self.HREG[st] + 4 * kap
    def w1rd_g(self, gstep, t):
        kap = gstep % 20
        off = self.w1_lds(kap * 7 + t)
        reg = ['v3', 'v92', 'v93'][off >> 16]
        return f'ds_read_b128 {ar(self.WB[gstep % 3]+4*t,4)}, {reg} offset:{off & 0xffff}'

    def p3_epi(self, st, slots):
        a = self.a
        ACC = self.ACC3[st]
        slots = list(slots)
        a('v_lshrrev_b32 v5, 4, v2')
        a('v_lshlrev_b32 v6, 4, v5')
        a(f'v_add_u32 v6, {self.SBL}, v6')
        for t in range(7):
            a(f'ds_read_b128 {vr(64+4*t,4)}, v6 offset:{64*t}')
            a(f'ds_read_b128 {vr(124+4*t,4)}, v6 offset:{448+64*t}')
        a('v_and_b32 v4, 15, v2')
        a('v_cmp_eq_u32 s[62:63], 3, v5')
        a('v_lshrrev_b32 v6, 2, v4')
        a('v_cmp_eq_u32 s[64:65], v6, v5')
        a('v_and_b32 v6, 3, v4')
        a('v_cmp_eq_u32 s[68:69], 1, v6')
        a('v_cmp_eq_u32 s[70:71], 2, v6')
        a('v_cmp_eq_u32 vcc, 3, v6')
        for j in range(4): a(f'v_accvgpr_read_b32 v{96+j}, a{self.GRAM+4*st+j}')
        a(f'v_cndmask_b32 v112, 0, v{ACC+24}, s[62:63]')
        a('v_cndmask_b32 v96, v96, v97, s[68:69]')
        a('v_cndmask_b32 v96, v96, v98, s[70:71]')
        a('v_cndmask_b32 v96, v96, v99, vcc')
        a('v_cndmask_b32 v113, 0, v96, s[64:65]')
        if self.epi_after_gram: self.epi_after_gram(st)
        for rnd in ('16', '32'):
            a('v_mov_b32 v104, v112'); a('v_mov_b32 v105, v113')
            a(f'v_permlane{rnd}_swap_b32 v112, v104'); a(f'v_permlane{rnd}_swap_b32 v113, v105')
            a('v_add_f32 v112, v112, v104'); a('v_add_f32 v113, v113, v105')
        a(f'v_mul_f32 v112, {f2u(1.0/640):#x}, v112')
        a(f'v_mul_f32 v113, {f2u(1.0/640):#x}, v113')
        a('v_fma_f32 v113, -v112, v112, v113')
        a('v_max_f32 v113, 0, v113')
        a('v_cvt_pk_bf16_f32 v113, v113, v112')
        a('v_and_b32 v112, 0xffff0000, v113')
        a('v_lshlrev_b32 v113, 16, v113')
        a(f'v_add_f32 v113, {f2u(1e-5):#x}, v113')
        self.bf16r(113, 113)
        a('v_sqrt_f32 v113, v113')
        self.bf16r(113, 113)
        a('v_rcp_f32 v116, v113')
        a('v_mov_b32 v118, v112'); a('v_mov_b32 v119, v112'); a('v_mov_b32 v117, v116')
        OUT = 152
        def outreg(t): return OUT + (t >> 1) * 4 + (t & 1) * 2 if t < 6 else OUT + 12
        a('s_lshl_b32 s72, s72, 0') if False else None
        a('s_lshl_b32 s6, s66, 2')
        a(f's_add_u32 s6, s6, s{sWAVE}')
        a(f's_mul_i32 s6, s6, {NK2*1024}')
        a(f's_add_u32 s6, s6, {HH + 64*st*NK2*1024}')
        a('s_lshr_b32 s7, s67, 1'); a('s_mul_i32 s7, s7, 7')
        a('s_and_b32 s63, s67, 1')
        a('s_lshl_b32 s62, s63, 2'); a('s_add_u32 s62, s62, s7'); a('s_lshl_b32 s62, s62, 10'); a('s_add_u32 s62, s62, s6')
        a('s_add_u32 s64, s7, 3'); a('s_lshl_b32 s64, s64, 10'); a('s_lshl_b32 s63, s63, 3'); a('s_add_u32 s64, s64, s63'); a('s_add_u32 s64, s64, s6')
        a('s_mov_b32 s70, 0x00003f80')
        a('s_mov_b32 s71, 0x3f800000')
        a('s_waitcnt lgkmcnt(0)')
        for tp in range(4):
            ts = [2 * tp, 2 * tp + 1] if tp < 3 else [6]
            P = [(t, h) for t in ts for h in range(2)]
            X = {p: ACC + 4 * p[0] + 2 * p[1] for p in P}
            T = {p: 100 + i for i, p in enumerate(P)}
            def step(f):
                for p in P: a(f(p))
            S = lambda p: 64 + 4 * p[0] + 2 * p[1]
            Bq = lambda p: 124 + 4 * p[0] + 2 * p[1]
            step(lambda p: f'v_pk_fma_f32 {vr(X[p],2)}, {vr(S(p),2)}, v[118:119], {vr(X[p],2)} neg_lo:[1,0,0] neg_hi:[1,0,0]')
            step(lambda p: f'v_pk_fma_f32 {vr(X[p],2)}, {vr(X[p],2)}, v[116:117], {vr(Bq(p),2)}')
            step(lambda p: f'v_max_f32 v{X[p]}, 0, v{X[p]}')
            step(lambda p: f'v_max_f32 v{X[p]+1}, 0, v{X[p]+1}')
            step(lambda p: f'v_pk_mul_f32 {vr(X[p],2)}, {vr(X[p],2)}, {vr(X[p],2)}')
            step(lambda p: f'v_cvt_pk_bf16_f32 v{outreg(p[0])+p[1]}, v{X[p]}, v{X[p]+1}')
            for _ in range(self.EPI_SLOTS):
                if slots: slots.pop(0)()
            if tp < 3:
                a(f'buffer_store_dwordx4 {vr(OUT+4*tp,4)}, v3, {sr(SRD_WS)}, s62 offen offset:{1024*tp} sc1')
            else:
                a(f'buffer_store_dwordx2 {vr(OUT+12,2)}, v3, {sr(SRD_WS)}, s64 offen sc1')
            self.vmi(('Hst', st))
        for f in slots: f()
    EPI_SLOTS = 3
    epi_after_gram = None

    RING = {0: 176, 1: 112}
    P4_SL = 7
    RES = 232
    def p4_setup_alt(self):
        self.p4_setup()
    def p4_setup(self):
        a = self.a
        a('s_lshl_b32 s78, s72, 1')
        a(f's_mul_i32 s78, s78, {NK2}')
        a('s_add_u32 s78, s78, s74')
        a('s_lshl_b32 s78, s78, 10')
        a(f's_add_u32 s78, s78, {HH}')
    def Hload(self, st, kk, lt):
        a = self.a
        reg = vr(self.RING[st] + (kk % self.P4_SL) * 8 + lt * 4, 4)
        off = (64 * st + lt) * NK2 * 1024 + kk * 1024
        a(f's_add_u32 s5, s78, {(off // 4096) * 4096}')
        a(f'buffer_load_dwordx4 {reg}, v3, {sr(SRD_WS)}, s5 offen offset:{off % 4096} sc1')
        self.vmi(('H', st, kk, lt))

    def p4_stream(self, st, slots, hooks, lds=None):
        a = self.a
        ACC = 8
        slots = list(slots)
        lds = list(lds or [])
        for kk in range(14):
            if kk in hooks: hooks[kk]()
            need = [('H', st, kk, 0), ('H', st, kk, 1)] + [('w2', kk * 5 + t) for t in range(5)]
            have = [t for t in need if t in self.vmlist]
            for t_ in need:
                assert t_ in self.vmlist or (t_[0] == 'w2' and t_[1] < self.NW2_CONV), (st, kk, t_)
            self.vm_wait(lambda t: t in have)
            if kk in (0, 4, 5, 8, 11, 12): self.stamp(f'q{st}k{kk}')
            n = 0
            for t in range(5):
                for lt in range(2):
                    acc = ACC + (t * 4 + 2 * st + lt) * 4
                    c = '0' if kk == 0 else vr(acc, 4)
                    a(f'v_mfma_f32_16x16x32_bf16 {vr(acc,4)}, {self.w2reg(kk*5+t)}, {vr(self.RING[st]+(kk%self.P4_SL)*8+lt*4,4)}, {c}')
                    if n in (1, 3, 6, 8) and slots and slots[0][0] <= kk: slots.pop(0)[1]()
                    if n == 4 and lds and kk >= 1: a(lds.pop(0))
                    n += 1
        for k_, f in slots: f()
        for l in lds: a(l)

    def p4_pre_loads(self):
        a = self.a
        R = self.RES
        L = []
        def setup():
            self.srd(SRD_B, P_B2, 640 * 2)
            a('v_and_b32 v168, 15, v2')
            a('v_lshrrev_b32 v169, 4, v2')
            a('s_mul_i32 s62, s73, 20')
            a('s_lshl_b32 s63, s72, 1')
            a(f's_add_u32 s63, s63, s{sWAVE}')
            a('s_add_u32 s64, s63, 62')
            a(f's_cmp_ge_u32 s{sWAVE}, 2')
            a('s_cselect_b32 s63, s64, s63')
            a('s_mov_b32 s81, s63')
            a('s_mul_i32 s63, s63, 20480')
            a(f's_add_u32 s63, s63, {HF}')
        def one(t):
            def f():
                if t == 0: setup()
                a('v_add_u32 v170, s62, v169')
                a(f'v_add_u32 v170, {4*t}, v170')
                a('v_lshrrev_b32 v171, 3, v170')
                a('v_lshlrev_b32 v171, 10, v171')
                a('v_bfe_u32 v172, v170, 1, 2')
                a('v_lshl_add_u32 v171, v172, 8, v171')
                a('v_and_b32 v172, 1, v170')
                a('v_lshl_add_u32 v171, v172, 3, v171')
                a('v_lshl_add_u32 v171, v168, 4, v171')
                a(f'buffer_load_dwordx2 {vr(R+2*t,2)}, v171, {sr(SRD_WS)}, s63 offen sc1')
                a('v_lshlrev_b32 v170, 3, v170')
                a(f'buffer_load_dwordx2 {vr(R+10+2*t,2)}, v170, {sr(SRD_B)}, 0 offen')
                self.vmi(('res', t)); self.vmi(('res', t))
            return f
        return [one(t) for t in range(5)]

    def p4_epilogue(self):
        a = self.a
        ACC = 8
        a('v_lshlrev_b32 v3, 4, v2')
        a(f's_mul_i32 s5, s{sWAVE}, 20480')
        a('v_add_u32 v6, s5, v3')
        for lt in range(2 if self.EARLYRED else 0, 4):
            L = a.label('Lp4w')
            a(f's_cmp_eq_u32 s{sWAVE}, {lt}'); a(f's_cbranch_scc1 {L}')
            for t in range(5):
                a(f'ds_write_b128 v6, {vr(ACC+(t*4+lt)*4,4)} offset:{lt*5120+t*1024}')
            a(f'{L}:')
        Lend = a.label('Lp4o')
        for lt in range(4):
            L = a.label('Lp4c')
            a(f's_cmp_eq_u32 s{sWAVE}, {lt}'); a(f's_cbranch_scc0 {L}')
            for t in range(5):
                for h in range(2):
                    a(f'v_pk_mov_b32 {vr(112+4*t+2*h,2)}, {vr(ACC+(t*4+lt)*4+2*h,2)}, {vr(ACC+(t*4+lt)*4+2*h,2)} op_sel:[0,1]')
            a(f's_branch {Lend}')
            a(f'{L}:')
        a(f'{Lend}:')
        a('s_waitcnt vmcnt(0) lgkmcnt(0)')
        a('s_barrier')
        for k in range(1, 4):
            a(f's_add_u32 s5, s{sWAVE}, {k}'); a('s_and_b32 s5, s5, 3'); a('s_mul_i32 s5, s5, 20480')
            a(f's_mul_i32 s6, s{sWAVE}, 5120'); a('s_add_u32 s5, s5, s6')
            a(f'v_add_u32 v{4+k}, s5, v3')
        for t in range(5):
            for k in range(1, 4):
                a(f'ds_read_b128 {vr(172+(t*3+k-1)*4,4)}, v{4+k} offset:{t*1024}')
        for t in range(5):
            for h in range(2):
                b = self.RES + 10 + 2 * t + h; hh = self.RES + 2 * t + h
                a(f'v_lshlrev_b32 v{8+4*t+2*h}, 16, v{b}'); a(f'v_and_b32 v{8+4*t+2*h+1}, 0xffff0000, v{b}')
                a(f'v_lshlrev_b32 v{28+4*t+2*h}, 16, v{hh}'); a(f'v_and_b32 v{28+4*t+2*h+1}, 0xffff0000, v{hh}')
                a(f'v_pk_add_f32 {vr(112+4*t+2*h,2)}, {vr(112+4*t+2*h,2)}, {vr(8+4*t+2*h,2)}')
                a(f'v_pk_add_f32 {vr(112+4*t+2*h,2)}, {vr(112+4*t+2*h,2)}, {vr(28+4*t+2*h,2)}')
        self.srd(SRD_A, P_OUT, 2048 * 1280)
        a(f's_mul_i32 s5, s81, {16*1280}')
        a('s_mul_i32 s6, s73, 160')
        a('s_add_u32 s5, s5, s6')
        a('v_mul_u32_u24 v4, 1280, v168')
        a('v_lshl_add_u32 v4, v169, 3, v4')
        a('s_mov_b32 s70, 0x00003f80')
        a('s_mov_b32 s71, 0x3f800000')
        a('s_waitcnt lgkmcnt(0)')
        P = [(t, h) for t in range(5) for h in range(2)]
        X = {p: 112 + 4 * p[0] + 2 * p[1] for p in P}
        def step(f):
            for p in P: a(f(p))
        for k in range(3):
            step(lambda p: f'v_pk_add_f32 {vr(X[p],2)}, {vr(X[p],2)}, {vr(172+(p[0]*3+k)*4+2*p[1],2)}')
        step(lambda p: f'v_cvt_pk_bf16_f32 v{60+2*p[0]+p[1]}, v{X[p]}, v{X[p]+1}')
        for t in range(5):
            a(f'buffer_store_dwordx2 {vr(60+2*t,2)}, v4, {sr(SRD_A)}, s5 offen offset:{32*t}')

    NW2_CONV = 6
    NW2_P3B = 30
    NW2_P3A = 0
    CRATE = 4
    RCB_K = 11
    FLAGA_B = 3
    NPASS1 = 0
    NSLOTA = 2
    PRE_B = 0
    NW2_LATEB = 21
    NSLOTB = 2
    KZEARLY = 0
    EARLYRED = 1
    EARLYHA = 0
    RCA_K = 16
    PFL_B = 3
    FLAGA2_B = 2
    POLLA_B = 6
    CHKA_IN = 0
    UGATE = 1
    WARM4 = 3
    ROWA_K = 5
    RPA_K = 14
    ROWB_K = 4
    AH3 = 8
    AH4 = 6

def build():
    out = []
    kn = NAME + '_kernel'
    out.append(f'; @launch grid=(256,1,1) block=(256,1,1) lds={LDS_SIZE}')
    out.append('.amdgcn_target "amdgcn-amd-amdhsa--gfx950"')
    out.append('.text')
    g = G4(True); g.kname = 'f'; a = g.a
    g.vmlist = []
    if g.timing:
        for i in range(16): a(f's_mov_b32 s{86+i}, 0')
    g.stamp('start')
    g.prologue()
    g.ln1x_issue()
    g.epoch_issue()
    Laux = a.label('Laux'); Lp3 = a.label('Lp3')
    a('s_cmp_lt_u32 s2, 160'); a(f's_cbranch_scc0 {Laux}')
    g.kgen_issue()
    g.code_prefetch()
    g.p2_consts(0)
    g.ln1x_compute(8)
    g.p2_consts(1)
    if g.EARLYB1:
        g.kg_hookm = g.b1e_issue
        g.kg_hook1 = g.b1e_check
        g.kg_hook2 = None
    else:
        g.kg_hook1 = g.b1_issue
        g.kg_hook2 = g.b1_check_ux_issue
    if g.KZEARLY:
        g.ux_zero_pad()
        a('s_waitcnt vmcnt(12)')
        g.epoch_get()
        def sig():
            g.flag_signal(BFL1); g.stamp('ln1')
        g.kg_hook0 = sig
        g.kgen(5)
        g.kg_hook0 = None
    else:
        a('s_waitcnt vmcnt(12)')
        g.epoch_get()
        g.flag_signal(BFL1)
        g.stamp('ln1')
        g.ux_zero_pad()
        g.kgen(0)
    g.p34_ids()
    g.w2_setup()
    g.pref_setup()
    g.h_bases()
    g.stamp('kgen')
    if g.EARLYB1: g.ux_write_e()
    else: g.ux_write()
    g.flag_store_only(UFL)
    g.pfl_issue()
    g.stamp('ux')
    W1e = [lambda j=j: g.w1A(j) for j in range(11)] + [g.w1T]
    W2e = [lambda i=i: g.w2_load(i) for i in range(g.NW2_CONV)]
    mix = []
    while W1e or W2e:
        if W1e: mix.append(W1e.pop(0))
        for _ in range(3):
            if W2e: mix.append(W2e.pop(0))
    n1 = g.NPASS1
    def pfl1():
        g.pfl_check(0); g.sb_issue()
    if n1:
        g.conv_pass(0, {'slots': mix[:n1], 'rate': g.CRATE, 'from': 1, 1: pfl1})
    else:
        g.conv_pass(0, {})
    g.stamp('c1')
    g.conv_epi(0)
    g.stamp('e1')
    def flagA():
        if n1: a(f's_waitcnt vmcnt({g._nslots})')
        else: a('s_waitcnt vmcnt(0)')
        a('s_barrier'); g.wg_flag(BF2A, 4, 5)
    def pfl2():
        g.pfl_check(1); g.sb_issue()
    pa = {}
    def pollA():
        g.fl_issue(BF2A, 8, 7); pa['n'] = g._nslots
    def chkA():
        a(f"s_waitcnt vmcnt({g._nslots - pa['n']})")
        g.sb_finish()
        g.fl_check(BF2A, 8, 7, (0, 40))
        for kap in range(8): g.hload(0, kap)
    if n1:
        hooks = {'slots': mix[n1:], 'rate': g.CRATE, 'from': 0, g.FLAGA_B: flagA, 6: pollA}
    else:
        hooks = {'slots': mix, 'rate': g.CRATE, 'from': g.PFL_B, g.FLAGA2_B: flagA, g.PFL_B: pfl2, g.POLLA_B: pollA}
    if g.CHKA_IN: hooks[7] = chkA
    g.conv_pass(1, hooks)
    g.stamp('b8')
    if not g.CHKA_IN: chkA()
    g.stamp('c2')
    g.conv_epi(1)
    g.stamp('e2')
    a(f's_branch {Lp3}')
    a(f'{Laux}:')
    g.code_prefetch()
    if g.PREPFIRST:
        g.prep_issue3()
        a('s_waitcnt vmcnt(0)')
        g.epoch_get()
        g.prep_compute3()
        g.ln1x_recompute_addr()
        g.ln1x_compute(63)
        g.flag_signal(BFL1)
        g.wg_flag(PFL, 4, 5)
        g.stamp('ln1')
    elif g.PREPL4 == 2:
        g.ln1x_compute(0)
        g.epoch_get()
        g.flag_signal(BFL1)
        g.stamp('ln1')
        g.prep_issue3()
        g.prep_compute3()
        g.flag_signal(PFL)
    elif g.PREPL4 == 1:
        g.ln1x_compute(0)
        g.epoch_get()
        g.prep_issue3()
        g.flag_signal(BFL1, drain=False)
        g.stamp('ln1')
        g.prep_compute3()
        g.flag_signal(PFL)
    else:
        g.ln1x_compute(2, g.prep_issue3)
        a('s_waitcnt vmcnt(0)')
        g.epoch_get()
        g.flag_signal(BFL1)
        g.stamp('ln1')
        g.prep_compute3()
        g.flag_signal(PFL)
    g.p34_ids()
    g.w2_setup()
    g.pref_setup()
    g.h_bases()
    if g.UGATE: g.flag_wait(UFL, lanes=(0, 40))
    g.pfl_issue()
    g.pfl_check()
    g.sb_issue()
    if g.WARM4 in (2, 3): g.warm4()
    for f in mix_copy(g): f()
    if g.WARM4 == 1: g.warm4()
    g.fl_issue(BF2A, 8, 7)
    a('s_waitcnt vmcnt(0)')
    g.sb_finish()
    g.fl_check(BF2A, 8, 7, (0, 40))
    for kap in range(8): g.hload(0, kap)
    a('s_waitcnt lgkmcnt(0)')
    a('s_barrier')
    a(f'{Lp3}:')
    g.vmlist = [('h', 0, k) for k in range(8)]
    late = g.list_late()
    def lw(i):
        def f():
            late[i](); g.vmi(('w1', 0 if i < 8 else 1 if i < 16 else 2))
        return f
    a('v_add_u32 v92, 0x10000, v3')
    a('v_add_u32 v93, 0x20000, v3')
    for gs in range(2):
        for t in range(7): a(g.w1rd_g(gs, t))
    for i in range(8): lw(i)()
    g.stamp('p3go')
    hrest = [lambda k=k: g.hload(0, k) for k in range(8, 20)]
    wrest = [lw(i) for i in range(8, 23)]
    slotsA = wrest[:8] + hrest[:2]
    hrest = hrest[2:]; wrest = wrest[8:]
    while hrest or wrest:
        if wrest: slotsA.append(wrest.pop(0))
        if hrest: slotsA.append(hrest.pop(0))
    slotsA += [lambda i=i: g.w2l(i) for i in range(g.NW2_CONV, g.NW2_CONV + g.NW2_P3A)]
    def grp(n, flag=False):
        def f():
            g.vm_wait(lambda t: t == ('w1', n)); a('s_barrier')
            if flag: g.wg_flag(BF2B, 4, 5, only_conv=True)
        return f
    def pollB_issue():
        g.fl_issue(BF2B, 4, 94); g.vmi(('pollB',))
    g.p3_stream(0, slotsA, {4: grp(0, True), 9: grp(1), 14: grp(2), 16: pollB_issue}, nslot=g.NSLOTA)
    g.stamp('p3a')
    g.vm_wait(lambda t: t == ('pollB',))
    g.fl_check(BF2B, 4, 94, (0, 40))
    Lx = a.label('Lep')
    a('s_cmp_eq_u32 s2, 0'); a(f's_cbranch_scc0 {Lx}')
    a(f's_cmp_eq_u32 s{sWAVE}, 0'); a(f's_cbranch_scc0 {Lx}')
    a('s_mov_b64 exec, 1'); a('v_mov_b32 v4, s83'); a(f'v_mov_b32 v5, {EPX}')
    a(f'buffer_store_dword v4, v5, {sr(SRD_WS)}, 0 offen sc1'); a('s_mov_b64 exec, -1')
    a(f'{Lx}:')
    for kap in range(6): g.hload(1, kap)
    g.p3_epi(0, [lambda k=k: g.hload(1, k) for k in range(6, 14)])
    g.stamp('epA')
    n0 = g.NW2_CONV + g.NW2_P3A
    slotsB = [lambda k=k: g.hload(1, k) for k in range(14, 20)] + [lambda i=i: g.w2l(i) for i in range(n0, n0 + g.NW2_P3B)]
    late_in_b = list(range(43, 43 + g.NW2_LATEB)) if g.VWB else []
    slotsB += [lambda i=i: g.w2l(i) for i in late_in_b]
    def rowA():
        g.vm_wait(lambda t: t == ('Hst', 0)); a('s_barrier'); g.row_flag(RFA, 4, 5)
    def rowpollA():
        g.row_issue(RFA, 4, 5); g.vmi(('rpA',))
    HA0 = [lambda k=k, lt=lt: g.Hload(0, k, lt) for k in range(g.AH4) for lt in range(2)]
    nxt = n0 + g.NW2_P3B
    assert nxt <= 41
    if g.EARLYHA:
        def chkrA():
            g.vm_wait(lambda t: t == ('rpA',))
            g.row_check(RFA, 4, 5)
            g.p4_setup_alt()
            for f in HA0[:g.EARLYHA]: f()
        g.p3_stream(1, slotsB, {g.ROWA_K: rowA, g.RPA_K: rowpollA, g.RCA_K: chkrA})
        g.stamp('p3b')
        g.p4_setup()
        HA0 = HA0[g.EARLYHA:]
        def after_gram(st):
            if st == 1:
                for f in HA0: f()
        HA0r = []
    else:
        g.p3_stream(1, slotsB, {g.ROWA_K: rowA, g.RPA_K: rowpollA}, nslot=g.NSLOTB)
        g.stamp('p3b')
        g.vm_wait(lambda t: t == ('rpA',))
        g.row_check(RFA, 4, 5)
        g.p4_setup()
        def after_gram(st):
            if st == 1:
                for f in HA0[:6]: f()
        HA0r = HA0[6:]
    g.epi_after_gram = after_gram
    lateW2 = [lambda i=i: g.w2l(i) for i in range(nxt, 64) if i not in late_in_b]
    g.p3_epi(1, HA0r + lateW2[:6])
    g.stamp('epB')
    rest = lateW2[6:] + [lambda i=i: g.w2l(i) for i in range(64, 70)]
    for f in rest[:6]: f()
    rest = rest[6:]
    sl = []
    for kk in range(14):
        if kk + g.AH4 < 14:
            sl += [(kk, lambda k=kk + g.AH4: g.Hload(0, k, 0)), (kk, lambda k=kk + g.AH4: g.Hload(0, k, 1))]
        for _ in range(3 if kk < 3 else 2):
            if rest: sl.append((kk, rest.pop(0)))
    pre = g.p4_pre_loads()
    if not g.PRE_B:
        for j, f in enumerate(pre): sl.append((7 + j, f))
    sl.sort(key=lambda x: x[0])
    def rowB():
        g.vm_wait(lambda t: t == ('Hst', 1)); a('s_barrier'); g.row_flag(RFB, 4, 5)
    def rowpollB():
        g.row_issue(RFB, 4, 5); g.vmi(('rpB',))
    def rowchkB():
        g.vm_wait(lambda t: t == ('rpB',)); g.row_check(RFB, 4, 5)
        for k in range(2):
            g.Hload(1, k, 0); g.Hload(1, k, 1)
    slB = [(g.RCB_K, lambda k=k, lt=lt: g.Hload(1, k, lt)) for k in range(2, g.AH4) for lt in range(2)]
    g.p4_stream(0, sl + slB, {g.ROWB_K: rowB, g.RCB_K - 3: rowpollB, g.RCB_K: rowchkB})
    g.stamp('p4a')
    slB2 = []
    for kk in range(14):
        if kk + g.AH4 < 14:
            slB2 += [(kk, lambda k=kk + g.AH4: g.Hload(1, k, 0)), (kk, lambda k=kk + g.AH4: g.Hload(1, k, 1))]
    if g.PRE_B:
        for j, f in enumerate(pre): slB2.append((2 + j, f))
        slB2.sort(key=lambda x: x[0])
    ldsA = []
    if g.EARLYRED:
        a(f's_mul_i32 s5, s{sWAVE}, 20480')
        a('v_add_u32 v6, s5, v3')
        ldsA = [f'ds_write_b128 v6, {vr(8+(t*4+lt)*4,4)} offset:{lt*5120+t*1024}' for lt in range(2) for t in range(5)]
    g.p4_stream(1, slB2, {}, ldsA)
    g.stamp('p4b')
    g.p4_epilogue()
    g.stamp_flush(0)
    g.end()
    out.append(kernel_header(kn)); out += a.finalize()
    out.append('.section .rodata,"a"')
    out.append(kernel_desc(kn))
    return '\n'.join(out) + '\n'

def mix_copy(g):
    W1e = [lambda j=j: g.w1A(j) for j in range(11)] + [g.w1T]
    W2e = [lambda i=i: g.w2_load(i) for i in range(g.NW2_CONV)]
    return W1e + W2e

if __name__ == '__main__':
    dst = sys.argv[1]
    gen.TIMING = 'timing' in sys.argv[2:]
    for x in sys.argv[2:]:
        if x.startswith('set='): gen.STAMPSET = set(x[4:].split(','))
        elif x.startswith('dbg='): gen.DBGSTAMP = int(x[4:])
        elif '=' in x:
            k, v = x.split('='); setattr(G4, k, int(v))
    gen.HF = HF; gen.BLK = BLK; gen.HH = HH; gen.W1F = W1F; gen.W2F = W2F; gen.SP = SP
    s = build()
    open(dst, 'w').write(s)
    import shutil, os
    if gen.TIMING: shutil.copy('stamps_k0.txt', dst + '.tags')
    print('wrote', dst, len(s), 'bytes')
```
